```python
import torch

def _softmax(x, axis=-1):
    return torch.softmax(x, dim=axis)
def _gelu(x):
    return torch.nn.functional.gelu(x, approximate="tanh")
def _silu(x):
    return torch.nn.functional.silu(x)
def _sigmoid(x):
    return torch.sigmoid(x)
def _layernorm(x, axis=-1, eps=1e-5):
    m = x.mean(dim=axis, keepdim=True)
    v = x.var(dim=axis, keepdim=True, unbiased=False)
    return (x - m) / torch.sqrt(v + eps)
def _scatter_add(tgt, idx, src, axis=0):
    return tgt.clone().index_add_(axis, idx, src)
def _segment_sum(src, seg, n):
    out = torch.zeros((n,) + src.shape[1:], dtype=src.dtype)
    return out.index_add_(0, seg, src)
def _pad(x, pw):
    flat = tuple(v for pair in reversed(pw) for v in pair)
    return torch.nn.functional.pad(x, flat)

kernel_name = 'standalone__edge_featured_mpnn_gatedgcn__graph'

def setup_inputs():

    _w = (lambda a: (lambda t: t.to(torch.bfloat16) if t.is_floating_point() else t)(torch.as_tensor(a)))
    N, deg, D, De = 12500, 64, 64, max(16, 1)
    E = N * deg
    return {
        "x": _w((lambda *s: torch.randn(*s, dtype=torch.bfloat16) * 0.8)(N, D)),
        "e_attr": _w((lambda *s: torch.randn(*s, dtype=torch.bfloat16) * 0.8)(E, De)),
        "src": _w((lambda lo, hi, *s: torch.randint(lo, hi, s))(0, N, E).to(torch.int64)),
        "dst": _w((lambda lo, hi, *s: torch.randint(lo, hi, s))(0, N, E).to(torch.int64)),
        "w_a": _w((lambda *s: torch.randn(*s, dtype=torch.bfloat16) * 0.8)(D, D)),
        "w_b": _w((lambda *s: torch.randn(*s, dtype=torch.bfloat16) * 0.8)(D, D)),
        "w_c": _w((lambda *s: torch.randn(*s, dtype=torch.bfloat16) * 0.8)(De, D)),
        "w_u": _w((lambda *s: torch.randn(*s, dtype=torch.bfloat16) * 0.05)(D, D)),
        "w_v": _w((lambda *s: torch.randn(*s, dtype=torch.bfloat16) * 0.05)(D, D)),
    }

def reference(x, e_attr, src, dst, w_a, w_b, w_c, w_u, w_v):
    N, D = x.shape
    hv = x @ w_v
    g = x[dst] @ w_a + x[src] @ w_b + e_attr @ w_c
    eta = _sigmoid(g)
    denom = _segment_sum(eta, dst, N) + 1e-6
    eta_n = eta / denom[dst]
    agg = _segment_sum(eta_n * hv[src], dst, N)
    z = x @ w_u + agg
    relu_z = torch.where(z > 0, z, 0 * z)
    return x + relu_z
```

```python
import sys
N=12500; E=800000; CH=3200; NCH=250; NBK=256
WS_CELLS=0; WS_OVFCNT=0x800000; WS_WPREP=0x801000; WS_OVFL=0x810000
NLOG2E=0xBFB8AA3B
L=[]
def A(s): L.append('    '+s)
def lab(s): L.append(s+':')
def C(s): L.append('    ; '+s)

def k1():
    lab('gcn_sort_kernel')
    A('s_cmp_ge_u32 s2, 253'); A('s_cbranch_scc1 K1_END')
    A('s_load_dwordx4 s[4:7], s[0:1], 16')
    A('s_load_dwordx2 s[8:9], s[0:1], 88')
    A('s_cmp_ge_u32 s2, 250'); A('s_cbranch_scc1 K1_W')
    A('v_lshlrev_b32 v1, 4, v0')
    A('s_mul_i32 s10, s2, 12800')
    A('s_waitcnt lgkmcnt(0)')
    A('s_add_u32 s12, s4, s10'); A('s_addc_u32 s13, s5, 0'); A('s_mov_b32 s14, 12800'); A('s_mov_b32 s15, 0x20000')
    A('s_add_u32 s16, s6, s10'); A('s_addc_u32 s17, s7, 0'); A('s_mov_b32 s18, 12800'); A('s_mov_b32 s19, 0x20000')
    A('buffer_load_dwordx4 v[8:11], v1, s[16:19], 0 offen')
    A('buffer_load_dwordx4 v[12:15], v1, s[12:15], 0 offen')
    for r in range(4,8): A(f'v_mov_b32 v{r}, 0')
    A('ds_write_b128 v1, v[4:7]'); A('ds_write_b128 v1, v[4:7] offset:16384'); A('ds_write_b128 v1, v[4:7] offset:32768')
    A('s_mul_i32 s10, s2, 25600')
    A(f's_add_u32 s24, s8, {WS_OVFL}'); A('s_addc_u32 s25, s9, 0'); A('s_add_u32 s24, s24, s10'); A('s_addc_u32 s25, s25, 0')
    A('s_mov_b32 s26, 25600'); A('s_mov_b32 s27, 0x20000')
    A('s_mov_b32 s32, s8'); A('s_mov_b32 s33, s9'); A('s_mov_b32 s34, 0x800000'); A('s_mov_b32 s35, 0x20000')
    A('s_lshl_b32 s36, s2, 7'); A('s_add_u32 s37, s36, 0x400000')
    A(f's_add_u32 s40, s8, {WS_OVFCNT}'); A('s_addc_u32 s41, s9, 0'); A('s_mov_b32 s42, 1000'); A('s_mov_b32 s43, 0x20000')
    A('v_mov_b32 v2, 1'); A('v_mov_b32 v3, 37888')
    A('s_waitcnt lgkmcnt(0)'); A('s_barrier')
    A('v_cmp_gt_u32 vcc, 800, v0'); A('s_and_saveexec_b64 s[20:21], vcc'); A('s_cbranch_execz K1_SKIP')
    A('s_mov_b64 s[28:29], exec')
    A('s_waitcnt vmcnt(0)')
    for j in range(4):
        A(f'v_and_b32 v{16+j}, 255, v{8+j}')
        A(f'v_lshlrev_b32 v{24+j}, 2, v{16+j}')
        A(f'ds_add_rtn_u32 v{28+j}, v{24+j}, v2 offset:36864')
    for j in range(4):
        A(f'v_lshrrev_b32 v{20+j}, 8, v{8+j}')
        A(f'v_lshl_or_b32 v{20+j}, v{12+j}, 6, v{20+j}')
        A(f'v_lshl_add_u32 v32, v0, 2, {j+1}')
        A(f'v_lshl_or_b32 v{20+j}, v32, 20, v{20+j}')
        A(f'v_mul_u32_u24 v{24+j}, 144, v{16+j}')
    A('s_waitcnt lgkmcnt(0)')
    for j in range(4):
        A(f'v_lshl_add_u32 v{24+j}, v{28+j}, 2, v{24+j}')
        A(f'v_cmp_gt_u32 vcc, 32, v{28+j}')
        A('s_mov_b64 exec, vcc')
        A(f'ds_write_b32 v{24+j}, v{20+j}')
        A('s_andn2_b64 exec, s[28:29], vcc')
        A(f's_cbranch_execz K1_NOV{j}')
        A('ds_add_rtn_u32 v33, v3, v2')
        A(f'v_mov_b32 v34, v{20+j}'); A(f'v_mov_b32 v35, v{16+j}')
        A('s_waitcnt lgkmcnt(0)')
        A('v_lshlrev_b32 v33, 3, v33')
        A('buffer_store_dwordx2 v[34:35], v33, s[24:27], 0 offen')
        A('s_nop 1')
        lab(f'K1_NOV{j}')
        A('s_mov_b64 exec, s[28:29]')
    lab('K1_SKIP')
    A('s_mov_b64 exec, -1')
    A('v_lshrrev_b32 v4, 3, v0'); A('v_and_b32 v5, 7, v0')
    A('v_mul_u32_u24 v6, 144, v4'); A('v_lshl_add_u32 v6, v5, 4, v6')
    A('v_lshlrev_b32 v7, 15, v4'); A('v_lshl_add_u32 v7, v5, 4, v7')
    A('s_waitcnt lgkmcnt(0)'); A('s_barrier')
    A('ds_read_b128 v[8:11], v6'); A('ds_read_b128 v[12:15], v6 offset:18432'); A('ds_read_b32 v16, v3')
    A('s_waitcnt lgkmcnt(1)')
    A('buffer_store_dwordx4 v[8:11], v7, s[32:35], s36 offen')
    A('buffer_store_dwordx4 v[12:15], v7, s[32:35], s37 offen')
    A('v_cmp_eq_u32 vcc, 0, v0'); A('s_and_saveexec_b64 s[20:21], vcc'); A('s_cbranch_execz K1_END')
    A('s_lshl_b32 s10, s2, 2'); A('v_mov_b32 v17, s10')
    A('s_waitcnt lgkmcnt(0)')
    A('buffer_store_dword v16, v17, s[40:43], 0 offen')
    A('s_branch K1_END')
    lab('K1_W')
    A('s_load_dwordx8 s[12:19], s[0:1], 32')
    A('s_load_dwordx2 s[20:21], s[0:1], 64')
    A('v_lshrrev_b32 v1, 6, v0'); A('s_nop 0'); A('v_readfirstlane_b32 s10, v1')
    A('s_sub_u32 s11, s2, 250'); A('s_lshl_b32 s11, s11, 4'); A('s_nop 2'); A('s_add_u32 s10, s10, s11')
    A('s_cmp_ge_u32 s10, 34'); A('s_cbranch_scc1 K1_END')
    A('s_waitcnt lgkmcnt(0)')
    A('s_mov_b32 s24, s14'); A('s_mov_b32 s25, s15'); A('s_mov_b32 s26, 8192'); A('s_mov_b32 s27, 0x20000')
    A(f's_mov_b32 s28, 0x{NLOG2E:08x}'); A('s_mov_b32 s29, s10')
    A('s_cmp_ge_u32 s10, 8'); A('s_cbranch_scc0 K1_WSEL')
    A('s_mov_b32 s24, s20'); A('s_mov_b32 s25, s21'); A('s_mov_b32 s28, 0x3f800000'); A('s_sub_u32 s29, s10, 8')
    A('s_cmp_ge_u32 s10, 16'); A('s_cbranch_scc0 K1_WSEL')
    A('s_mov_b32 s24, s16'); A('s_mov_b32 s25, s17'); A('s_mov_b32 s26, 2048'); A(f's_mov_b32 s28, 0x{NLOG2E:08x}')
    A('s_sub_u32 s29, s10, 16'); A('s_lshl_b32 s29, s29, 2')
    A('s_cmp_ge_u32 s10, 18'); A('s_cbranch_scc0 K1_WSEL')
    A('s_mov_b32 s24, s12'); A('s_mov_b32 s25, s13'); A('s_mov_b32 s26, 8192'); A('s_mov_b32 s28, 0x3f800000'); A('s_sub_u32 s29, s10, 18')
    A('s_cmp_ge_u32 s10, 26'); A('s_cbranch_scc0 K1_WSEL')
    A('s_mov_b32 s24, s18'); A('s_mov_b32 s25, s19'); A('s_sub_u32 s29, s10, 26')
    lab('K1_WSEL')
    A('s_lshr_b32 s30, s29, 2'); A('s_and_b32 s31, s29, 3')
    A('s_lshl_b32 s30, s30, 6'); A('s_lshl_b32 s31, s31, 11'); A('s_add_u32 s30, s30, s31')
    A('v_and_b32 v2, 63, v0'); A('v_and_b32 v3, 31, v0'); A('v_lshrrev_b32 v4, 5, v2')
    A('v_lshlrev_b32 v4, 10, v4'); A('v_lshl_add_u32 v4, v3, 1, v4'); A('v_add_u32 v4, s30, v4')
    for t in range(8): A(f'buffer_load_ushort v{8+t}, v4, s[24:27], 0 offen offset:{128*t}')
    A(f's_add_u32 s32, s8, {WS_WPREP}'); A('s_addc_u32 s33, s9, 0'); A('s_mov_b32 s34, 34816'); A('s_mov_b32 s35, 0x20000')
    A('s_lshl_b32 s36, s10, 10'); A('v_lshlrev_b32 v5, 4, v2')
    A('s_waitcnt vmcnt(0)')
    for t in range(8):
        A(f'v_lshlrev_b32 v{8+t}, 16, v{8+t}'); A(f'v_mul_f32 v{8+t}, s28, v{8+t}')
    for t in range(4): A(f'v_cvt_pk_bf16_f32 v{16+t}, v{8+2*t}, v{9+2*t}')
    A('buffer_store_dwordx4 v[16:19], v5, s[32:35], s36 offen')
    lab('K1_END')
    A('s_endpgm')

XST=0; EST=65536; REC=90112; RECSZ=896; XS=REC+50*RECSZ; ES=XS+8192; GRP=ES+16384; CNT=GRP+1024; NBT=CNT+256; LDS_END=NBT+256
CAPG=512
DUMMY=49*RECSZ
WB=16; WV=48; WC=80; XB=88; AX=96; AE=112; AZ=116; G0=120; G1=136; H0=152; H1=168
cXE=2; cXO=3; aXS=4; aES=5; cEO=6; aPAD=7; aGRP=8; cREC=9; aAX=10; cAE=14; vT=15
XI=184; XV=186; EI=190; EV=191; GR=192; RA0=193; RA1=194; aAE=195; T0=196
vONE=212; vTID=0; vL16=213; NGB=216
EN=120; RK=136; EB=152; AD=156
sB=3; X_=4; EA_=8; CE_=12; WP_=16; OU_=20; MI_=24; sWS=28; sWAVE=30; sNT=31; sTI=32; sXN=33; sEC=34; sEN=35; sMODE=36; sFIRST=37; sOVF=38; sU=39
MK=40
sCNT=72; sXS=73; sES=74; sT0=75; sT1=76; sT2=77; sOC=78; sOP=79; sON=80; sXW=81; sEW=82; sT3=83
def q(base,n=4): return f'v[{base}:{base+n-1}]'
def mfma(d,a,b,c): A(f'v_mfma_f32_32x32x16_bf16 {q(d,16)}, {q(a)}, {q(b)}, {c if c=="0" else q(c,16)}')

def issue_x(pref_regs=None):
    A(f's_mov_b32 m0, s{sXN}')
    A(f'v_mad_u32_u16 v{XV}, v{XI}, s{sT3}, v{cXE} op_sel:[0,0,0,0]')
    A(f'buffer_load_dwordx4 v{XV}, s[{X_}:{X_+3}], 0 offen lds')
    A('s_add_u32 m0, m0, 1024')
    A(f'v_mad_u32_u16 v{XV+1}, v{XI}, s{sT3}, v{cXO} op_sel:[1,0,0,0]')
    A(f'buffer_load_dwordx4 v{XV+1}, s[{X_}:{X_+3}], 0 offen lds')
    A('s_add_u32 m0, m0, 1024')
    A(f'v_mad_u32_u16 v{XV+2}, v{XI+1}, s{sT3}, v{cXE} op_sel:[0,0,0,0]')
    A(f'buffer_load_dwordx4 v{XV+2}, s[{X_}:{X_+3}], 0 offen lds')
    A('s_add_u32 m0, m0, 1024')
    A(f'v_mad_u32_u16 v{XV+3}, v{XI+1}, s{sT3}, v{cXO} op_sel:[1,0,0,0]')
    A(f'buffer_load_dwordx4 v{XV+3}, s[{X_}:{X_+3}], 0 offen lds')
def issue_e(sreg):
    A(f's_mov_b32 m0, s{sreg}')
    A(f'v_lshl_add_u32 v{EV}, v{EI}, 5, v{cEO}')
    A(f'buffer_load_dwordx4 v{EV}, s[{EA_}:{EA_+3}], 0 offen lds')
def next_estage(dst,src):
    A(f's_add_u32 s{dst}, s{src}, 1024'); A(f's_add_u32 s{sT0}, s{sEW}, 3072'); A(f's_cmp_eq_u32 s{dst}, s{sT0}'); A(f's_cselect_b32 s{dst}, s{sEW}, s{dst}')

def k2():
    lab('standalone__edge_featured_mpnn_gatedgcn__graph_kernel')
    A('s_cmp_ge_u32 s2, 256'); A('s_cbranch_scc1 K2_END')
    A('s_load_dwordx4 s[4:7], s[0:1], 0')
    A('s_load_dwordx2 s[20:21], s[0:1], 72')
    A(f's_load_dwordx2 s[{sWS}:{sWS+1}], s[0:1], 88')
    A(f's_and_b32 s{sB}, s2, 7'); A(f's_lshl_b32 s{sB}, s{sB}, 5'); A(f's_lshr_b32 s{sT0}, s2, 3'); A(f's_or_b32 s{sB}, s{sB}, s{sT0}')
    A('v_lshrrev_b32 v1, 6, v0'); A('v_and_b32 v15, 63, v0')
    A(f'v_readfirstlane_b32 s{sWAVE}, v1')
    A('v_lshlrev_b32 v1, 4, v0')
    A('s_waitcnt lgkmcnt(0)')
    A('s_mov_b32 s8, s6'); A('s_mov_b32 s9, s7'); A(f's_mov_b32 s10, {E*32}'); A('s_mov_b32 s11, 0x20000')
    A(f's_mov_b32 s6, {N*128}'); A('s_mov_b32 s7, 0x20000')
    A(f's_mov_b32 s22, {N*128}'); A('s_mov_b32 s23, 0x20000')
    A(f's_lshl_b32 s{sT0}, s{sB}, 15'); A(f's_add_u32 s12, s{sWS}, s{sT0}'); A(f's_addc_u32 s13, s{sWS+1}, 0'); A('s_mov_b32 s14, 32000'); A('s_mov_b32 s15, 0x20000')
    A(f's_add_u32 s16, s{sWS}, {WS_WPREP}'); A(f's_addc_u32 s17, s{sWS+1}, 0'); A('s_mov_b32 s18, 34816'); A('s_mov_b32 s19, 0x20000')
    A(f's_add_u32 s24, s{sWS}, {WS_OVFCNT}'); A(f's_addc_u32 s25, s{sWS+1}, 0'); A('s_mov_b32 s26, 1000'); A('s_mov_b32 s27, 0x20000')
    for u in range(4):
        A(f's_mov_b32 s{sT0}, {u*8192}') if u else None
        A(f'buffer_load_dwordx4 {q(EN+4*u)}, v1, s[12:15], {("s%d"%sT0) if u else "0"} offen')
    A(f'v_lshlrev_b32 v{vL16}, 4, v15')
    A(f'buffer_load_dwordx4 {q(T0)}, v{vL16}, s[24:27], 0 offen')
    A(f'v_lshrrev_b32 v3, 3, v15'); A(f's_lshl_b32 s{sT0}, s{sWAVE}, 3'); A(f'v_add_u32 v3, s{sT0}, v3')
    A(f'v_lshlrev_b32 v3, 8, v3'); A(f'v_add_u32 v3, s{sB}, v3'); A('v_lshlrev_b32 v3, 7, v3')
    A('v_lshrrev_b32 v4, 4, v15'); A('v_and_b32 v5, 7, v15'); A('v_xor_b32 v4, v4, v5'); A(f'v_lshlrev_b32 v{cXE}, 4, v4'); A(f'v_xor_b32 v6, 64, v{cXE}')
    A(f's_and_b32 s{sT0}, s{sWAVE}, 1'); A(f's_cmp_eq_u32 s{sT0}, 0'); A('s_cselect_b64 vcc, -1, 0')
    A(f'v_cndmask_b32 v4, v6, v{cXE}, vcc'); A('v_add_u32 v4, v3, v4')
    A(f'v_mov_b32 v{cXO}, v6')
    A(f's_lshl_b32 s{sT0}, s{sWAVE}, 10'); A(f's_add_u32 m0, s{sT0}, {XST+32768}'); A('s_nop 0')
    A(f'buffer_load_dwordx4 v4, s[{X_}:{X_+3}], 0 offen lds')
    A(f's_lshr_b32 s{sT0}, s{sWAVE}, 1'); A(f's_lshl_b32 s{sT0}, s{sT0}, 12'); A(f's_add_u32 s{sT0}, s{sT0}, {18*1024}')
    for s in range(4): A(f'buffer_load_dwordx4 {q(NGB+4*s)}, v{vL16}, s[16:19], s{sT0} offen offset:{1024*s}')
    for i in range(18):
        if i%4==0: A(f's_mov_b32 s{sT0}, {i*1024}')
        A(f'buffer_load_dwordx4 {q(WB+4*i)}, v{vL16}, s[16:19], s{sT0} offen offset:{1024*(i%4)}')
    A(f's_lshr_b32 s{sT0}, s2, 3'); A(f's_mul_i32 s{sT0}, s{sT0}, 391'); A(f'v_add_u32 v4, s{sT0}, v0'); A('v_lshlrev_b32 v4, 7, v4')
    A('v_cmp_gt_u32 vcc, 391, v0'); A('v_mov_b32 v5, 0x7fffffff'); A('s_nop 0'); A('v_cndmask_b32 v4, v5, v4, vcc')
    A(f'buffer_load_dword v{T0+4}, v4, s[{X_}:{X_+3}], 0 offen')
    C('lane constants')
    A('v_lshrrev_b32 v4, 5, v15'); A('v_bfe_u32 v5, v15, 3, 2'); A('v_lshlrev_b32 v4, 5, v4'); A('v_lshl_add_u32 v4, v5, 2, v4'); A(f'v_add_u32 v{T0+5}, {XS}, v4')
    A('v_bfe_u32 v4, v15, 3, 1'); A('v_lshlrev_b32 v4, 4, v4'); A('v_lshrrev_b32 v5, 5, v15'); A('v_lshl_add_u32 v4, v5, 3, v4')
    A('v_bfe_u32 v5, v15, 1, 2'); A('v_lshl_add_u32 v4, v5, 1, v4'); A('v_bfe_u32 v5, v15, 4, 1'); A('v_add_u32 v4, v4, v5')
    A('v_lshlrev_b32 v4, 2, v4'); A(f'v_add_u32 v{T0+6}, {ES}, v4')
    A('v_and_b32 v4, 1, v15'); A('v_lshrrev_b32 v5, 5, v15'); A('v_xor_b32 v4, v4, v5'); A(f'v_lshlrev_b32 v{cEO}, 4, v4')
    A('v_bfe_u32 v4, v15, 2, 1'); A('v_lshlrev_b32 v4, 4, v4'); A('v_bfe_u32 v5, v15, 4, 1'); A('v_lshl_add_u32 v4, v5, 3, v4')
    A('v_and_b32 v5, 3, v15'); A('v_lshl_add_u32 v4, v5, 1, v4'); A('v_bfe_u32 v5, v15, 3, 1'); A('v_add_u32 v4, v4, v5')
    A('v_lshlrev_b32 v4, 1, v4'); A(f'v_add_u32 v{T0+7}, {XS}, v4')
    A('v_lshrrev_b32 v4, 5, v15'); A('v_lshlrev_b32 v4, 2, v4'); A(f'v_add_u32 v{T0+8}, {GRP}, v4')
    A('v_and_b32 v4, 31, v15'); A('v_lshlrev_b32 v4, 2, v4'); A(f'v_add_u32 v{cREC}, {REC}, v4')
    A('v_and_b32 v4, 31, v15'); A('v_bfe_u32 v5, v15, 1, 3'); A(f'v_lshrrev_b32 v{vT}, 5, v15')
    L.pop()
    A(f'v_lshrrev_b32 v1, 5, v15'); A('v_xor_b32 v5, v5, v1'); A('v_lshlrev_b32 v5, 4, v5'); A('v_lshl_add_u32 v4, v4, 7, v5')
    for s in range(4): A(f'v_xor_b32 v{T0+9+s}, {32*s}, v4')
    A('v_and_b32 v4, 31, v15'); A('v_bfe_u32 v5, v15, 4, 1'); A('v_xor_b32 v5, v5, v1'); A('v_lshlrev_b32 v5, 4, v5'); A(f'v_lshl_add_u32 v{cAE}, v4, 5, v5')
    A('v_bfe_u32 v4, v15, 2, 1'); A('v_cmp_eq_u32 vcc, v4, v1'); A('v_mov_b32 v5, 0x3f803f80'); A('s_nop 0'); A('v_cndmask_b32 v5, 0, v5, vcc')
    A('v_bfe_u32 v4, v15, 4, 1'); A('v_cmp_eq_u32 vcc, 0, v4'); A('s_nop 1'); A(f'v_cndmask_b32 v{AZ}, 0, v5, vcc'); A(f'v_cndmask_b32 v{AZ+1}, v5, 0, vcc')
    L.pop(); A(f'v_sub_u32 v{AZ+1}, v5, v{AZ}')
    A(f'v_mov_b32 v{AZ+2}, 0'); A(f'v_mov_b32 v{AZ+3}, 0')
    A('v_cmp_eq_u32 vcc, 0, v1'); A('v_mov_b32 v5, 0xf180'); A('s_nop 0')
    for ct in range(2):
        A(f'v_cndmask_b32 v{XB+4*ct+2}, 0, v5, vcc'); A(f'v_mov_b32 v{XB+4*ct+3}, 0'); A(f'v_mov_b32 v{XB+4*ct}, 0'); A(f'v_mov_b32 v{XB+4*ct+1}, 0')
    A(f'v_mov_b32 v{vONE}, 1')
    A(f's_mov_b32 s{sCNT}, {CNT}'); A(f's_mov_b32 s{sXS}, {XS}'); A(f's_mov_b32 s{sES}, {ES}'); A(f's_mov_b32 s{sT3}, 128')
    A(f's_lshl_b32 s{sXW}, s{sWAVE}, 12')
    A(f's_mul_i32 s{sEW}, s{sWAVE}, 3072'); A(f's_add_u32 s{sEW}, s{sEW}, {EST}')
    A(f's_mov_b32 s{sMODE}, 0'); A(f's_mov_b32 s{sFIRST}, 1'); A(f's_mov_b32 s{sU}, 0')
    A('v_lshrrev_b32 v4, 3, v0'); A('v_mul_u32_u24 v4, 3200, v4')
    for u in range(4): A(f'v_add_u32 v{EB+u}, {64*u*3200-1 if u else -1}, v4')
    A('v_lshlrev_b32 v1, 4, v0'); A(f'v_add_u32 v4, {REC}, v1')
    for r in range(4): A(f'v_mov_b32 v{T0+13+ (r if r<3 else 0)}, 0') if False else None
    A(f'v_mov_b32 v{AX}, 0'); A(f'v_mov_b32 v{AX+1}, 0'); A(f'v_mov_b32 v{AX+2}, 0'); A(f'v_mov_b32 v{AX+3}, 0')
    for i in range(5): A(f'ds_write_b128 v4, {q(AX)} offset:{8192*i}')
    A('v_cmp_gt_u32 vcc, 240, v0'); A(f's_and_saveexec_b64 s[{MK}:{MK+1}], vcc'); A(f'ds_write_b128 v4, {q(AX)} offset:40960'); A(f's_mov_b64 exec, s[{MK}:{MK+1}]')
    lab('K2_ROUND')
    A('v_lshlrev_b32 v1, 4, v0')
    for r in range(4): A(f'v_mov_b32 v{AX+r}, -1')
    A(f'v_add_u32 v4, {XS}, v1'); A(f'ds_write_b128 v4, {q(AX)}')
    for r in range(4): A(f'v_mov_b32 v{AX+4+r}, 0x00ffffff')
    A(f'ds_write_b128 v4, {q(AX+4)} offset:8192'); A(f'ds_write_b128 v4, {q(AX+4)} offset:16384')
    for r in range(4): A(f'v_mov_b32 v{AX+8+r}, 0x{(DUMMY<<16)|DUMMY:08x}')
    for r in range(4): A(f'v_mov_b32 v{AX+12+r}, 0')
    A('v_cmp_gt_u32 vcc, 64, v0'); A('s_nop 1')
    for r in range(4): A(f'v_cndmask_b32 v{AX+8+r}, v{AX+12+r}, v{AX+8+r}, vcc')
    A('v_cmp_gt_u32 vcc, 96, v0'); A(f's_and_saveexec_b64 s[{MK}:{MK+1}], vcc'); A(f'ds_write_b128 v4, {q(AX+8)} offset:{GRP-XS}'); A(f's_mov_b64 exec, s[{MK}:{MK+1}]')
    A('s_waitcnt lgkmcnt(0)'); A('s_barrier')
    A(f's_cmp_eq_u32 s{sFIRST}, 1'); A('s_cbranch_scc1 K2_W25'); A('s_waitcnt vmcnt(0)'); A('s_branch K2_WD')
    lab('K2_W25'); A('s_waitcnt vmcnt(25)'); lab('K2_WD')
    for k in range(16): A(f'v_cmp_ne_u32 s[{MK+2*k}:{MK+2*k+1}], 0, v{EN+k}')
    for k in range(16):
        A(f'v_and_b32 v{AD+k}, 63, v{EN+k}'); A(f'v_lshl_add_u32 v{AD+k}, v{AD+k}, 2, s{sCNT}')
    for k in range(16):
        A(f's_mov_b64 exec, s[{MK+2*k}:{MK+2*k+1}]'); A(f'ds_add_rtn_u32 v{RK+k}, v{AD+k}, v{vONE}')
    A('s_mov_b64 exec, -1')
    A(f's_cmp_eq_u32 s{sFIRST}, 1'); A('s_cbranch_scc0 K2_NF1')
    A('s_waitcnt vmcnt(23)')
    A(f'v_or_b32 v{T0}, v{T0}, v{T0+1}'); A(f'v_or_b32 v{T0+2}, v{T0+2}, v{T0+3}'); A(f'v_or_b32 v{T0}, v{T0}, v{T0+2}')
    A(f'v_cmp_ne_u32 vcc, 0, v{T0}'); A('s_nop 3'); A('s_cmp_lg_u64 vcc, 0'); A(f's_cselect_b32 s{sOVF}, 1, 0')
    A(f's_mov_b32 s{sFIRST}, 2')
    lab('K2_NF1')
    A('s_waitcnt lgkmcnt(0)'); A('s_barrier')
    A(f'v_lshl_add_u32 v4, v15, 2, s{sCNT}'); A('ds_read_b32 v5, v4'); A('s_waitcnt lgkmcnt(0)')
    A('v_add_u32 v5, 7, v5'); A('v_lshrrev_b32 v5, 3, v5'); A('v_mov_b32 v1, v5'); A('s_nop 1')
    for sh in (1,2,4,8):
        A(f'v_add_u32_dpp v1, v1, v1 row_shr:{sh} row_mask:0xf bank_mask:0xf bound_ctrl:0'); A('s_nop 1')
    A('v_add_u32_dpp v1, v1, v1 row_bcast:15 row_mask:0xa bank_mask:0xf'); A('s_nop 1')
    A('v_add_u32_dpp v1, v1, v1 row_bcast:31 row_mask:0xc bank_mask:0xf'); A('s_nop 1')
    A(f'v_readlane_b32 s{sNT}, v1, 63')
    A('v_sub_u32 v1, v1, v5')
    A(f'v_lshlrev_b32 v{T0}, 3, v1'); A(f'ds_write_b32 v4, v{T0} offset:256')
    A(f's_cmp_gt_u32 s{sNT}, {CAPG}'); A('s_cbranch_scc1 K2_SPLIT')
    A(f'v_mul_u32_u24 v{T0+1}, {RECSZ}, v15'); A(f'v_mov_b32 v{T0+2}, s{sWAVE}')
    lab('K2_GL')
    A(f'v_cmp_lt_u32 vcc, v{T0+2}, v5'); A('s_and_saveexec_b64 s[84:85], vcc'); A('s_cbranch_execz K2_GLD')
    A(f'v_add_u32 v{T0+3}, v1, v{T0+2}'); A(f'v_lshlrev_b32 v{T0+3}, 1, v{T0+3}'); A(f'v_add_u32 v{T0+3}, {GRP}, v{T0+3}')
    A(f'ds_write_b16 v{T0+3}, v{T0+1}'); A(f'v_add_u32 v{T0+2}, 8, v{T0+2}')
    A('s_mov_b64 exec, s[84:85]'); A('s_branch K2_GL')
    lab('K2_GLD'); A('s_mov_b64 exec, -1')
    for k in range(16): A(f'ds_read_b32 v{AD+k}, v{AD+k} offset:256')
    A('s_waitcnt lgkmcnt(0)')
    for k in range(16):
        A(f'v_add_u32 v{RK+k}, v{RK+k}, v{AD+k}')
        A(f'v_lshl_add_u32 v{AD+k}, v{RK+k}, 1, s{sXS}')
        A(f'v_lshl_add_u32 v{RK+k}, v{RK+k}, 2, s{sES}')
        A(f'v_lshrrev_b32 v1, 20, v{EN+k}')
        A(f'v_bfe_u32 v{EN+k}, v{EN+k}, 6, 14')
        A(f'v_add_u32 v1, v1, v{EB+k//4}')
        A(f's_mov_b64 exec, s[{MK+2*k}:{MK+2*k+1}]')
        A(f'ds_write_b16 v{AD+k}, v{EN+k}'); A(f'ds_write_b32 v{RK+k}, v1')
        A('s_mov_b64 exec, -1')
    A(f's_add_u32 s{sNT}, s{sNT}, 3'); A(f's_lshr_b32 s{sNT}, s{sNT}, 2')
    A('s_waitcnt lgkmcnt(0)'); A('s_barrier')
    A(f's_mov_b32 s{sTI}, s{sWAVE}')
    A(f's_lshl_b32 s{sT0}, s{sWAVE}, 6'); A(f'v_add_u32 v{aXS}, s{sT0}, v{T0+5}'); A(f'v_add_u32 v{aPAD}, s{sT0}, v{T0+7}')
    A(f's_lshl_b32 s{sT0}, s{sWAVE}, 7'); A(f'v_add_u32 v{aES}, s{sT0}, v{T0+6}')
    A(f's_lshl_b32 s{sT0}, s{sWAVE}, 3'); A(f'v_add_u32 v{aGRP}, s{sT0}, v{T0+8}')
    A(f'ds_read_b32 v{EI}, v{aES}'); A(f'ds_read2_b32 v[{XI}:{XI+1}], v{aXS} offset0:0 offset1:4'); A(f'ds_read_b32 v{T0}, v{aES} offset:1024')
    A(f's_mov_b32 s{sXN}, s{sXW}'); A(f's_mov_b32 s{sEC}, s{sEW}')
    for s in range(4): A(f'v_add_u32 v{aAX+s}, s{sXW}, v{T0+9+s}')
    A('s_waitcnt lgkmcnt(0)')
    issue_e(sEC)
    issue_x()
    next_estage(sEN, sEC)
    A(f'v_mov_b32 v{EI}, v{T0}')
    issue_e(sEN)
    next_estage(sEN, sEN)
    A(f's_xor_b32 s{sXN}, s{sXN}, 32768')
    A(f'v_add_u32 v{aXS}, 512, v{aXS}'); A(f'v_add_u32 v{aES}, 2048, v{aES}')
    A(f's_cmp_eq_u32 s{sFIRST}, 0'); A('s_cbranch_scc1 K2_NG_DONE')
    A(f's_and_b32 s{sT0}, s{sWAVE}, 1'); A(f's_lshl_b32 s{sT0}, s{sT0}, 12'); A(f's_add_u32 s{sT0}, s{sT0}, {XST+32768}')
    for s in range(4): A(f'v_add_u32 v{T0+s}, s{sT0}, v{T0+9+s}')
    for s in range(4): A(f'ds_read_b128 {q(AX+4*s)}, v{T0+s}')
    A('s_waitcnt vmcnt(25) lgkmcnt(0)')
    for s in range(4): mfma(G0, AX+4*s, NGB+4*s, '0' if s==0 else G0)
    A(f's_and_b32 s{sT0}, s{sWAVE}, 1'); A(f's_lshl_b32 s{sT0}, s{sT0}, 5'); A(f'v_lshrrev_b32 v1, 5, v15'); A(f'v_lshl_add_u32 v1, v1, 2, s{sT0}')
    A(f'v_mul_u32_u24 v1, {RECSZ}, v1')
    A(f's_bfe_u32 s{sT1}, s{sWAVE}, 0x10001')
    A(f's_cmp_ge_u32 s{sWAVE}, 4'); A('s_cbranch_scc1 K2_NG_U')
    A(f's_lshl_b32 s{sT1}, s{sT1}, 7'); A(f'v_add_u32 v1, v1, v{cREC}'); A(f'v_add_u32 v1, s{sT1}, v1')
    A(f's_mov_b32 s{sT2}, 0x{NLOG2E:08x}'); A('s_nop 7')
    for r in range(16):
        A(f'v_mul_f32 v{G0+r}, s{sT2}, v{G0+r}')
        A(f'v_cvt_pk_bf16_f32 v209, v{G0+r}, v{G0+r}'); A('v_lshlrev_b32 v209, 16, v209'); A(f'v_sub_f32 v210, v{G0+r}, v209'); A(f'v_cvt_pk_bf16_f32 v{G0+r}, v209, v210')
    def wr_a(r): A(f'ds_write_b32 v1, v{G0+r} offset:{(8*(r//4)+(r%4))*RECSZ}')
    for r in range(8): wr_a(r)
    A(f's_and_b32 s{sT0}, s{sWAVE}, 1'); A(f's_cmp_eq_u32 s{sT0}, 0'); A('s_cbranch_scc0 K2_NG_A1')
    for r in range(8,16): wr_a(r)
    A('s_branch K2_NG_BAR')
    lab('K2_NG_A1')
    A('s_mov_b32 exec_lo, -1'); A('s_mov_b32 exec_hi, 0'); wr_a(8); wr_a(9); A('s_mov_b64 exec, -1'); A('s_branch K2_NG_BAR')
    lab('K2_NG_U')
    A(f's_lshl_b32 s{sT1}, s{sT1}, 6'); A('v_and_b32 v209, 31, v15'); A('v_lshl_add_u32 v1, v209, 1, v1'); A(f'v_add_u32 v1, s{sT1}, v1'); A(f'v_add_u32 v1, {REC+768}, v1')
    A('s_nop 7')
    for r in range(16): A(f'v_cvt_pk_bf16_f32 v{G0+r}, v{G0+r}, v{G0+r}')
    def wr_u(r): A(f'ds_write_b16 v1, v{G0+r} offset:{(8*(r//4)+(r%4))*RECSZ}')
    for r in range(8): wr_u(r)
    A(f's_and_b32 s{sT0}, s{sWAVE}, 1'); A(f's_cmp_eq_u32 s{sT0}, 0'); A('s_cbranch_scc0 K2_NG_U1')
    for r in range(8,16): wr_u(r)
    A('s_branch K2_NG_BAR')
    lab('K2_NG_U1')
    A('s_mov_b32 exec_lo, -1'); A('s_mov_b32 exec_hi, 0'); wr_u(8); wr_u(9); A('s_mov_b64 exec, -1')
    lab('K2_NG_BAR')
    A('s_waitcnt lgkmcnt(0)'); A('s_barrier')
    lab('K2_NG_DONE')
    A(f's_mov_b32 s{sFIRST}, 0')
    A(f's_cmp_lt_u32 s{sTI}, s{sNT}'); A('s_cbranch_scc0 K2_LOOP_END')
    lab('K2_LOOP')
    A(f'ds_read2_b32 v[{XI}:{XI+1}], v{aXS} offset0:0 offset1:4')
    A(f'ds_read_b32 v{EI}, v{aES}')
    A(f'ds_read_u16 v{AZ+2}, v{aPAD}')
    A(f'ds_read_b32 v{GR}, v{aGRP}')
    A(f'v_add_u32 v{aAE}, s{sEC}, v{cAE}')
    A('s_waitcnt lgkmcnt(0)')
    issue_x()
    issue_e(sEN)
    A(f'v_mad_u32_u16 v{RA0}, v{GR}, 1, v{cREC} op_sel:[0,0,0,0]'); A(f'v_mad_u32_u16 v{RA1}, v{GR}, 1, v{cREC} op_sel:[1,0,0,0]')
    A(f'v_and_b32 v{AZ+2}, 0xc000, v{AZ+2}')
    A(f'ds_read_b32 v{XB}, v{RA0}'); A(f'ds_read_b32 v{XB+1}, v{RA1}'); A(f'ds_read_b32 v{XB+4}, v{RA0} offset:128'); A(f'ds_read_b32 v{XB+5}, v{RA1} offset:128')
    A('s_waitcnt vmcnt(6)')
    for s in range(4): A(f'ds_read_b128 {q(AX+4*s)}, v{aAX+s}')
    A(f'ds_read_b128 {q(AE)}, v{aAE}')
    A(f'v_add_u32 v{aXS}, 512, v{aXS}'); A(f'v_add_u32 v{aES}, 1024, v{aES}'); A(f'v_add_u32 v{aPAD}, 512, v{aPAD}'); A(f'v_add_u32 v{aGRP}, 64, v{aGRP}')
    for s in range(4): A(f'v_xor_b32 v{aAX+s}, 32768, v{aAX+s}')
    A(f's_xor_b32 s{sXN}, s{sXN}, 32768')
    next_estage(sEC, sEC); next_estage(sEN, sEN)
    A('s_waitcnt lgkmcnt(0)')
    for ct,(G,H) in enumerate(((G0,H0),(G1,H1))):
        for s in range(4): mfma(G, AX+4*s, WB+16*ct+4*s, '0' if s==0 else G)
        mfma(G, AE, WC+4*ct, G); mfma(G, AZ, XB+4*ct, G)
    for ct,(G,H) in enumerate(((G0,H0),(G1,H1))):
        for s in range(4): mfma(H, AX+4*s, WV+16*ct+4*s, '0' if s==0 else H)
    for ct,(G,H) in enumerate(((G0,H0),(G1,H1))):
        if ct==1: pass
        for r in range(16): A(f'v_exp_f32 v{G+r}, v{G+r}')
        for r in range(16): A(f'v_add_f32 v{G+r}, 1.0, v{G+r}')
        for r in range(16): A(f'v_rcp_f32 v{G+r}, v{G+r}')
        if ct==0: A('s_nop 7')
        for jj in range(2):
            b=8*jj; d=T0+2*jj; n=T0+2*jj+1
            A(f'v_mul_f32 v{n}, v{G+b}, v{H+b}')
            A(f'v_add_f32 v{d}, v{G+b}, v{G+b+1}')
            for r in range(1,8):
                A(f'v_fmac_f32 v{n}, v{G+b+r}, v{H+b+r}')
                if r>=2: A(f'v_add_f32 v{d}, v{d}, v{G+b+r}')
            ra = RA0 if jj==0 else RA1
            A(f'ds_add_f32 v{ra}, v{d} offset:{256+128*ct}'); A(f'ds_add_f32 v{ra}, v{n} offset:{512+128*ct}')
    A(f's_add_u32 s{sTI}, s{sTI}, 8'); A(f's_cmp_lt_u32 s{sTI}, s{sNT}'); A('s_cbranch_scc1 K2_LOOP')
    lab('K2_LOOP_END')
    A('s_waitcnt vmcnt(0) lgkmcnt(0)'); A('s_barrier')
    A(f's_cmp_eq_u32 s{sMODE}, 1'); A('s_cbranch_scc1 K2_NEXT_SPLIT')
    A(f's_cmp_eq_u32 s{sMODE}, 2'); A('s_cbranch_scc1 K2_NEXT_OVF')
    lab('K2_CHECK_OVF')
    A(f's_cmp_eq_u32 s{sOVF}, 0'); A('s_cbranch_scc1 K2_EPI')
    A(f's_mov_b32 s{sMODE}, 2'); A(f's_mov_b32 s{sOC}, 0'); A(f's_mov_b32 s{sOP}, 0'); A('s_branch K2_OVF_FIND')
    lab('K2_SPLIT')
    A(f's_mov_b32 s{sMODE}, 1'); A(f's_mov_b32 s{sU}, 0')
    A('s_waitcnt lgkmcnt(0)'); A('s_barrier')
    A('s_branch K2_LOADQ')
    lab('K2_NEXT_SPLIT')
    A(f's_add_u32 s{sU}, s{sU}, 1'); A(f's_cmp_ge_u32 s{sU}, 4'); A('s_cbranch_scc1 K2_CHECK_OVF')
    lab('K2_LOADQ')
    A(f's_lshl_b32 s{sT0}, s{sU}, 13'); A('v_lshlrev_b32 v1, 4, v0')
    A(f'buffer_load_dwordx4 {q(EN)}, v1, s[12:15], s{sT0} offen')
    for k in range(4,16): A(f'v_mov_b32 v{EN+k}, 0')
    A(f's_mul_i32 s{sT0}, s{sU}, {64*3200}'); A(f's_sub_u32 s{sT0}, s{sT0}, 1')
    A('v_lshrrev_b32 v4, 3, v0'); A('v_mul_u32_u24 v4, 3200, v4'); A(f'v_add_u32 v{EB}, s{sT0}, v4')
    A('s_branch K2_ROUND')
    lab('K2_NEXT_OVF')
    A(f's_add_u32 s{sOP}, s{sOP}, 2048')
    lab('K2_OVF_FIND')
    A(f's_cmp_ge_u32 s{sOC}, {NCH}'); A('s_cbranch_scc1 K2_EPI')
    A(f's_lshl_b32 s{sT0}, s{sOC}, 2'); A(f's_add_u32 s{sT0}, s{sT0}, {WS_OVFCNT}')
    A(f's_load_dword s{sON}, s[{sWS}:{sWS+1}], s{sT0}'); A('s_waitcnt lgkmcnt(0)')
    A(f's_cmp_gt_u32 s{sON}, s{sOP}'); A('s_cbranch_scc1 K2_OVF_LOAD')
    A(f's_add_u32 s{sOC}, s{sOC}, 1'); A(f's_mov_b32 s{sOP}, 0'); A('s_branch K2_OVF_FIND')
    lab('K2_OVF_LOAD')
    A(f's_mul_i32 s{sT0}, s{sOC}, 25600'); A(f's_add_u32 s{sT0}, s{sT0}, {WS_OVFL}')
    A(f's_add_u32 s24, s{sWS}, s{sT0}'); A(f's_addc_u32 s25, s{sWS+1}, 0'); A(f's_lshl_b32 s26, s{sON}, 3'); A('s_mov_b32 s27, 0x20000')
    A(f'v_add_u32 v1, s{sOP}, v0'); A('v_lshlrev_b32 v1, 3, v1')
    for j in range(4): A(f'buffer_load_dwordx2 v[{AX+2*j}:{AX+2*j+1}], v1, s[24:27], 0 offen offset:0') if j==0 else None
    for j in range(1,4):
        A(f's_mov_b32 s{sT0}, {4096*j}'); A(f'buffer_load_dwordx2 v[{AX+2*j}:{AX+2*j+1}], v1, s[24:27], s{sT0} offen')
    A('s_waitcnt vmcnt(0)')
    for j in range(4):
        A(f'v_cmp_eq_u32 vcc, s{sB}, v{AX+2*j+1}'); A('s_nop 1'); A(f'v_cndmask_b32 v{EN+j}, 0, v{AX+2*j}, vcc')
    for k in range(4,16): A(f'v_mov_b32 v{EN+k}, 0')
    A(f's_mul_i32 s{sT0}, s{sOC}, 3200'); A(f's_sub_u32 s{sT0}, s{sT0}, 1'); A(f'v_mov_b32 v{EB}, s{sT0}')
    A('s_branch K2_ROUND')
    lab('K2_EPI')
    A('v_lshrrev_b32 v1, 3, v0'); A('v_and_b32 v2, 7, v0')
    A(f'v_lshlrev_b32 v3, 8, v1'); A(f'v_add_u32 v3, s{sB}, v3'); A('v_lshlrev_b32 v3, 7, v3'); A('v_lshl_add_u32 v3, v2, 4, v3')
    A(f'buffer_load_dwordx4 v[16:19], v3, s[{X_}:{X_+3}], 0 offen')
    A(f'v_mul_u32_u24 v4, {RECSZ}, v1'); A(f'v_add_u32 v4, {REC}, v4'); A('v_lshl_add_u32 v5, v2, 5, v4'); A('v_lshl_add_u32 v6, v2, 4, v4')
    A('ds_read_b128 v[20:23], v5 offset:256'); A('ds_read_b128 v[24:27], v5 offset:272')
    A('ds_read_b128 v[28:31], v5 offset:512'); A('ds_read_b128 v[32:35], v5 offset:528')
    A('ds_read_b128 v[36:39], v6 offset:768')
    A('s_mov_b32 s40, 0x358637bd')
    A('s_waitcnt lgkmcnt(0)')
    for i in range(8): A(f'v_add_f32 v{20+i}, s40, v{20+i}')
    for i in range(8): A(f'v_rcp_f32 v{20+i}, v{20+i}')
    A('s_nop 0')
    for i in range(8): A(f'v_mul_f32 v{28+i}, v{28+i}, v{20+i}')
    for i in range(4):
        A(f'v_lshlrev_b32 v{40+2*i}, 16, v{36+i}'); A(f'v_and_b32 v{41+2*i}, 0xffff0000, v{36+i}')
    for i in range(8): A(f'v_add_f32 v{28+i}, v{28+i}, v{40+i}')
    for i in range(8):
        A(f'v_mul_f32 v{40+i}, 0, v{28+i}'); A(f'v_cmp_lt_f32 vcc, 0, v{28+i}'); A('s_nop 1'); A(f'v_cndmask_b32 v{28+i}, v{40+i}, v{28+i}, vcc')
    A('s_waitcnt vmcnt(0)')
    for i in range(4):
        A(f'v_lshlrev_b32 v{40+2*i}, 16, v{16+i}'); A(f'v_and_b32 v{41+2*i}, 0xffff0000, v{16+i}')
    for i in range(8): A(f'v_add_f32 v{28+i}, v{28+i}, v{40+i}')
    for i in range(4): A(f'v_cvt_pk_bf16_f32 v{20+i}, v{28+2*i}, v{29+2*i}')
    A(f'buffer_store_dwordx4 v[20:23], v3, s[{OU_}:{OU_+3}], 0 offen')
    lab('K2_END')
    A('s_endpgm')

hdr = f'''; GatedGCN edge-featured MPNN: K1 buckets edges by destination, K2 gathers + MFMA + segment-reduces in LDS.
; @launch kernel=gcn_sort_kernel grid=(253,1,1) block=(1024,1,1) lds=49152
; @launch kernel=standalone__edge_featured_mpnn_gatedgcn__graph_kernel grid=(256,1,1) block=(512,1,1) lds={LDS_END}
.amdgcn_target "amdgcn-amd-amdhsa--gfx950"
.text
'''
def kd(name, nv, ns):
    return f'''.p2align 6
.amdhsa_kernel {name}
  .amdhsa_next_free_vgpr {nv}
  .amdhsa_next_free_sgpr {ns}
  .amdhsa_accum_offset {(nv+3)//4*4}
  .amdhsa_group_segment_fixed_size 0
  .amdhsa_kernarg_size 96
  .amdhsa_user_sgpr_count 2
  .amdhsa_user_sgpr_kernarg_segment_ptr 1
  .amdhsa_system_sgpr_workgroup_id_x 1
.end_amdhsa_kernel
'''
out=[hdr]
out.append('.globl gcn_sort_kernel\n.p2align 8\n.type gcn_sort_kernel,@function')
k1(); out+=L; L=[]
out.append('.globl standalone__edge_featured_mpnn_gatedgcn__graph_kernel\n.p2align 8\n.type standalone__edge_featured_mpnn_gatedgcn__graph_kernel,@function')
k2(); out+=L
out.append('.section .rodata,"a"')
out.append(kd('gcn_sort_kernel', 40, 64))
out.append(kd('standalone__edge_featured_mpnn_gatedgcn__graph_kernel', 232, 96))
open(sys.argv[1] if len(sys.argv)>1 else 'out.s','w').write('\n'.join(out)+'\n')
print('LDS_END',LDS_END)
```

```python
import sys, os
N=12500; E=800000; CH=3200; NCH=250; NBK=256
WS_CELLS=0; WS_OVFCNT=0x800000; WS_WPREP=0x801000; WS_OVFL=0x810000; WS_T=0x1000000
NLOG2E=0xBFB8AA3B
L=[]
def A(s): L.append(s if s.endswith(':') else '    '+s)
def lab(s): L.append(s+':')
def C(s): L.append('    ; '+s)
ENV=lambda k: os.environ.get(k)
def q(base,n=4): return f'v[{base}:{base+n-1}]'
def mf(d,a,b,c): return f'v_mfma_f32_32x32x16_bf16 {q(d,16)}, {q(a)}, {q(b)}, {c if c=="0" else q(c,16)}'
K1_GRID=NCH+3
K1_LDS=49152
S1=ENV('S1')
def k1():
    lab('gcn_sort_kernel')
    A(f's_cmp_ge_u32 s2, {K1_GRID}'); A('s_cbranch_scc1 K1_END')
    A('s_load_dwordx2 s[8:9], s[0:1], 88')
    A(f's_cmp_ge_u32 s2, {NCH}'); A('s_cbranch_scc1 K1_W')
    A('s_load_dwordx4 s[4:7], s[0:1], 16')
    A('s_load_dwordx2 s[44:45], s[0:1], 0')
    A('v_lshlrev_b32 v1, 4, v0')
    A('s_mul_i32 s10, s2, 12800')
    A('s_waitcnt lgkmcnt(0)')
    A('s_add_u32 s16, s6, s10'); A('s_addc_u32 s17, s7, 0'); A('s_mov_b32 s18, 12800'); A('s_mov_b32 s19, 0x20000')
    A('buffer_load_dwordx4 v[8:11], v1, s[16:19], 0 offen')
    A('s_add_u32 s12, s4, s10'); A('s_addc_u32 s13, s5, 0'); A('s_mov_b32 s14, 12800'); A('s_mov_b32 s15, 0x20000')
    A('buffer_load_dwordx4 v[12:15], v1, s[12:15], 0 offen')
    if not ENV('NO_XPF'):
        A(f's_mov_b32 s46, {N*128}'); A('s_mov_b32 s47, 0x20000')
        A('s_lshr_b32 s10, s2, 3'); A('s_mul_i32 s10, s10, 404'); A('v_add_u32 v36, s10, v0'); A('v_lshlrev_b32 v36, 7, v36')
        A('v_cmp_gt_u32 vcc, 404, v0'); A('v_mov_b32 v37, 0x7fffffff'); A('s_nop 0'); A('v_cndmask_b32 v36, v37, v36, vcc')
        A('buffer_load_dword v38, v36, s[44:47], 0 offen')
    for r in range(4,8): A(f'v_mov_b32 v{r}, 0')
    A('ds_write_b128 v1, v[4:7]'); A('ds_write_b128 v1, v[4:7] offset:16384'); A('ds_write_b128 v1, v[4:7] offset:32768')
    A('s_mul_i32 s10, s2, 25600')
    A(f's_add_u32 s24, s8, {WS_OVFL}'); A('s_addc_u32 s25, s9, 0'); A('s_add_u32 s24, s24, s10'); A('s_addc_u32 s25, s25, 0')
    A('s_mov_b32 s26, 25600'); A('s_mov_b32 s27, 0x20000')
    A('s_mov_b32 s32, s8'); A('s_mov_b32 s33, s9'); A('s_mov_b32 s34, 0x800000'); A('s_mov_b32 s35, 0x20000')
    A('s_lshl_b32 s36, s2, 7'); A('s_add_u32 s37, s36, 0x400000')
    A(f's_add_u32 s40, s8, {WS_OVFCNT}'); A('s_addc_u32 s41, s9, 0'); A('s_mov_b32 s42, 1000'); A('s_mov_b32 s43, 0x20000')
    A('v_mov_b32 v2, 1'); A('v_mov_b32 v3, 37888')
    A('s_waitcnt lgkmcnt(0)'); A('s_barrier')
    A('v_cmp_gt_u32 vcc, 800, v0'); A('s_and_saveexec_b64 s[20:21], vcc'); A('s_cbranch_execz K1_SKIP')
    A('s_mov_b64 s[28:29], exec')
    NP=0 if ENV('NO_XPF') else 1
    A(f's_waitcnt vmcnt({1+NP})')
    for j in range(4):
        A(f'v_and_b32 v{16+j}, 255, v{8+j}')
        A(f'v_lshlrev_b32 v{24+j}, 2, v{16+j}')
        A(f'ds_add_rtn_u32 v{28+j}, v{24+j}, v2 offset:36864')
    A(f's_waitcnt vmcnt({NP})')
    for j in range(4):
        A(f'v_lshrrev_b32 v{20+j}, 8, v{8+j}')
        A(f'v_lshl_or_b32 v{20+j}, v{12+j}, 6, v{20+j}')
        A(f'v_lshl_add_u32 v32, v0, 2, {j+1}')
        A(f'v_lshl_or_b32 v{20+j}, v32, 20, v{20+j}')
        A(f'v_mul_u32_u24 v{24+j}, 144, v{16+j}')
    A('s_waitcnt lgkmcnt(0)')
    for j in range(4):
        A(f'v_lshl_add_u32 v{24+j}, v{28+j}, 2, v{24+j}')
        A(f'v_cmp_gt_u32 vcc, 32, v{28+j}')
        A('s_mov_b64 exec, vcc')
        A(f'ds_write_b32 v{24+j}, v{20+j}')
        A('s_andn2_b64 exec, s[28:29], vcc')
        A(f's_cbranch_execz K1_NOV{j}')
        A('ds_add_rtn_u32 v33, v3, v2')
        A(f'v_mov_b32 v34, v{20+j}'); A(f'v_mov_b32 v35, v{16+j}')
        A('s_waitcnt lgkmcnt(0)')
        A('v_lshlrev_b32 v33, 3, v33')
        A('buffer_store_dwordx2 v[34:35], v33, s[24:27], 0 offen')
        A('s_nop 1')
        lab(f'K1_NOV{j}')
        A('s_mov_b64 exec, s[28:29]')
    lab('K1_SKIP')
    A('s_mov_b64 exec, -1')
    A(f's_waitcnt vmcnt({NP})')
    A('v_lshrrev_b32 v4, 3, v0'); A('v_and_b32 v5, 7, v0')
    A('v_mul_u32_u24 v6, 144, v4'); A('v_lshl_add_u32 v6, v5, 4, v6')
    A('v_lshlrev_b32 v7, 15, v4'); A('v_lshl_add_u32 v7, v5, 4, v7')
    A('s_waitcnt lgkmcnt(0)'); A('s_barrier')
    A('ds_read_b128 v[8:11], v6'); A('ds_read_b128 v[12:15], v6 offset:18432'); A('ds_read_b32 v16, v3')
    A('s_waitcnt lgkmcnt(2)')
    A('buffer_store_dwordx4 v[8:11], v7, s[32:35], s36 offen')
    A('s_waitcnt lgkmcnt(1)')
    A('buffer_store_dwordx4 v[12:15], v7, s[32:35], s37 offen')
    A('v_cmp_eq_u32 vcc, 0, v0'); A('s_and_saveexec_b64 s[20:21], vcc'); A('s_cbranch_execz K1_END')
    A('s_lshl_b32 s10, s2, 2'); A('v_mov_b32 v17, s10')
    A('s_waitcnt lgkmcnt(0)')
    A('buffer_store_dword v16, v17, s[40:43], 0 offen')
    A('s_branch K1_END')
    lab('K1_W')
    A('s_load_dwordx8 s[12:19], s[0:1], 32')
    A('s_load_dwordx2 s[20:21], s[0:1], 64')
    A('v_lshrrev_b32 v1, 6, v0'); A('s_nop 0'); A('v_readfirstlane_b32 s10, v1')
    A(f's_sub_u32 s11, s2, {NCH}'); A('s_lshl_b32 s11, s11, 4'); A('s_nop 2'); A('s_add_u32 s10, s10, s11')
    A('s_cmp_ge_u32 s10, 34'); A('s_cbranch_scc1 K1_END')
    A('s_waitcnt lgkmcnt(0)')
    A('s_mov_b32 s24, s14'); A('s_mov_b32 s25, s15'); A('s_mov_b32 s26, 8192'); A('s_mov_b32 s27, 0x20000')
    A(f's_mov_b32 s28, 0x{NLOG2E:08x}'); A('s_mov_b32 s29, s10')
    A('s_cmp_ge_u32 s10, 8'); A('s_cbranch_scc0 K1_WSEL')
    A('s_mov_b32 s24, s20'); A('s_mov_b32 s25, s21'); A('s_mov_b32 s28, 0x3f800000'); A('s_sub_u32 s29, s10, 8')
    A('s_cmp_ge_u32 s10, 16'); A('s_cbranch_scc0 K1_WSEL')
    A('s_mov_b32 s24, s16'); A('s_mov_b32 s25, s17'); A('s_mov_b32 s26, 2048'); A(f's_mov_b32 s28, 0x{NLOG2E:08x}')
    A('s_sub_u32 s29, s10, 16'); A('s_lshl_b32 s29, s29, 2')
    A('s_cmp_ge_u32 s10, 18'); A('s_cbranch_scc0 K1_WSEL')
    A('s_mov_b32 s24, s12'); A('s_mov_b32 s25, s13'); A('s_mov_b32 s26, 8192'); A('s_mov_b32 s28, 0x3f800000'); A('s_sub_u32 s29, s10, 18')
    A('s_cmp_ge_u32 s10, 26'); A('s_cbranch_scc0 K1_WSEL')
    A('s_mov_b32 s24, s18'); A('s_mov_b32 s25, s19'); A('s_sub_u32 s29, s10, 26')
    lab('K1_WSEL')
    A('s_lshr_b32 s30, s29, 2'); A('s_and_b32 s31, s29, 3')
    A('s_lshl_b32 s30, s30, 6'); A('s_lshl_b32 s31, s31, 11'); A('s_add_u32 s30, s30, s31')
    A('v_and_b32 v2, 63, v0'); A('v_and_b32 v3, 31, v0'); A('v_lshrrev_b32 v4, 5, v2')
    A('v_lshlrev_b32 v4, 10, v4'); A('v_lshl_add_u32 v4, v3, 1, v4'); A('v_add_u32 v4, s30, v4')
    for t in range(8): A(f'buffer_load_ushort v{8+t}, v4, s[24:27], 0 offen offset:{128*t}')
    A(f's_add_u32 s32, s8, {WS_WPREP}'); A('s_addc_u32 s33, s9, 0'); A('s_mov_b32 s34, 34816'); A('s_mov_b32 s35, 0x20000')
    A('s_lshl_b32 s36, s10, 10'); A('v_lshlrev_b32 v5, 4, v2')
    A('s_waitcnt vmcnt(0)')
    for t in range(8):
        A(f'v_lshlrev_b32 v{8+t}, 16, v{8+t}'); A(f'v_mul_f32 v{8+t}, s28, v{8+t}')
    for t in range(4): A(f'v_cvt_pk_bf16_f32 v{16+t}, v{8+2*t}, v{9+2*t}')
    A('buffer_store_dwordx4 v[16:19], v5, s[32:35], s36 offen')
    lab('K1_END')
    A('s_endpgm')

XST=0; REC=65536; RECSZ=1408; XS=REC+50*RECSZ; ES=XS+8192; GRP=ES+16384; CNT=GRP+1024; NBT=CNT+256; LDS_END=NBT+256
OWNX=32768; WSTG=40960
O_DEN=256; O_NUM=768; O_U=1280
CAPG=512
DUMMY=49*22
EPAD=0x700FFFFF; EFLAG=0x40000000
cXE=2; cXO=3; aXS=4; aES=5; cKG=6; aGRP=7; cRA=8; cRB=9; aAX=10
WB=16; WV=48; WC=80; XB=88; AZ0=92; AZ1=96; ONEB=100; ONEA=[104,108]; AX=112; AE=[128,132]; G0=136; G1=152; H0=168; H1=184
XI=200; XV=202; EI=206; EV=207; GR=[208,209]; RA0=210; RA1=211; RB0=212; RB1=213; SD=214; SN=215; PD=216; PN=218
vONE=220; kXS=221; kES=222; kGRP=223; kAX=224; vL16=228; T0=230; NGB=236
NVGPR=252
EN=G0; RK=G1; EB=H0; AD=H0+4
sB=3; X_=4; EA_=8; CE_=12; WP_=16; OU_=20; MI_=24; sWS=28; sWAVE=30; sNT=31; sTI=32; sX0=33; sX1=34; sMODE=36; sFIRST=37; sOVF=38; sU=39
MK=40
sCNT=72; sXS=73; sES=74; sT0=75; sT1=76; sT2=77; sOC=78; sOP=79; sON=80; s128=83
STAMPS=int(os.environ.get('STAMPS','0'))
STR=8
SSET=os.environ.get('SSET','main')
SMAP={'main':{'start':0,'bar1':1,'hist':2,'prefix':3,'bar3':4,'ng':5,'loop':6,'bar5':7,'end':8},
      'pro':{'start':0,'issued':1,'consts':2,'vmw':3,'bar1':4,'hist':5,'bar3':6,'ng':7,'entd':8},
      'pro2':{'bar3':0,'dma1':1,'wread':2,'ngm':3,'ng':4,'entw':5,'entd':6,'loop':7,'end':8}}[SSET]
def stamp(name):
    if STAMPS and name in SMAP:
        i=SMAP[name]
        A('s_memtime s[98:99]' if STAMPS==1 else 's_memrealtime s[98:99]'); A('s_waitcnt lgkmcnt(0)'); A(f's_mov_b32 s{86+i}, s98')
def stamp_store():
    if STAMPS:
        A('s_memrealtime s[98:99]'); A('s_waitcnt lgkmcnt(0)'); A('s_mov_b32 s97, s98')
        A(f's_add_u32 s24, s{sWS}, 0x2000000'); A(f's_addc_u32 s25, s{sWS+1}, 0'); A('s_mov_b32 s26, 0x100000'); A('s_mov_b32 s27, 0x20000')
        A(f's_lshl_b32 s75, s2, 3'); A(f's_add_u32 s75, s75, s{sWAVE}'); A('s_lshl_b32 s75, s75, 6')
        for i in range(12):
            A(f'v_mov_b32 v1, s{86+i}'); A(f'v_mov_b32 v14, {4*i}'); A('buffer_store_dword v1, v14, s[24:27], s75 offen')
def x_dma(sbase):
    o=[]
    for m in range(4):
        o.append(f's_mov_b32 m0, s{sbase}' if m==0 else 's_add_u32 m0, m0, 1024')
        o.append(f'v_mad_u32_u16 v{XV+m}, v{XI+(m>>1)}, s{s128}, v{cXO if m&1 else cXE} op_sel:[{m&1},0,0,0]')
        o.append(f'buffer_load_dwordx4 v{XV+m}, s[{X_}:{X_+3}], 0 offen lds')
    return o
ENT='' if ENV('NO_NT') else ' nt'
def e_issue(p):
    return [f'v_mad_u32_u24 v{EV}, v{EI}, 32, v{cKG}', f'buffer_load_dwordx4 {q(AE[p])}, v{EV}, s[{EA_}:{EA_+3}], 0 offen{ENT}']
def e_flag(p): return [f'v_and_b32 v{ONEA[p]}, 0xff000000, v{EI}']
def summ(G,H,b,rb,ct):
    o=[f'v_mul_f32 v{SN}, v{G+b}, v{H+b}', f'v_add_f32 v{SD}, v{G+b}, v{G+b+1}']
    for r in range(1,8):
        o.append(f'v_fmac_f32 v{SN}, v{G+b+r}, v{H+b+r}')
        if r>=2: o.append(f'v_add_f32 v{SD}, v{SD}, v{G+b+r}')
    o.append(f'v_cvt_f64_f32 v[{PD}:{PD+1}], v{SD}'); o.append(f'v_cvt_f64_f32 v[{PN}:{PN+1}], v{SN}')
    if not ENV('NO_DSADD'):
        o.append(f'ds_add_f64 v{rb}, v[{PD}:{PD+1}] offset:{ct*256}'); o.append(f'ds_add_f64 v{rb}, v[{PN}:{PN+1}] offset:{512+ct*256}')
    return o
def inter(v, m, every):
    o=[]; m=list(m)
    for i,x in enumerate(v):
        if m and i%every==0: o+=m.pop(0)
        o.append(x)
    for g in m: o+=g
    return o
def gchain(G,ct,p):
    return [[mf(G,AX,WB+16*ct,'0')],[mf(G,AX+4,WB+16*ct+4,G)],[mf(G,AX+8,WB+16*ct+8,G)],[mf(G,AX+12,WB+16*ct+12,G)],
            [mf(G,AE[p],WC+4*ct,G)],[mf(G,AZ1 if ct else AZ0,XB,G)]]
def xb_reads(): return [f'ds_read2_b32 v[{XB}:{XB+1}], v{RA0} offset0:0 offset1:32', f'ds_read2_b32 v[{XB+2}:{XB+3}], v{RA1} offset0:0 offset1:32']
def ra_mads(g): return [f'v_mad_u32_u16 v{RA0}, v{g}, 64, v{cRA} op_sel:[0,0,0,0]', f'v_mad_u32_u16 v{RA1}, v{g}, 64, v{cRA} op_sel:[1,0,0,0]']
def body(p):
    o=[]
    ex=lambda G:[f'v_exp_f32 v{G+r}, v{G+r}' for r in range(16)]
    rc=lambda G:[f'v_rcp_f32 v{G+r}, v{G+r}' for r in range(16)]
    o+=inter(ex(G0), [[mf(H0,AX+4*s,WV+4*s,'0' if s==0 else H0)] for s in range(4)], 4)
    sb=summ(G1,H1,8,RB1,1)
    o+=sb[:2]+[mf(G0,ONEA[p],ONEB,G0)]+sb[2:]
    o+=[f'v_mad_u32_u16 v{RB0}, v{GR[p]}, 64, v{cRB} op_sel:[0,0,0,0]', f'v_mad_u32_u16 v{RB1}, v{GR[p]}, 64, v{cRB} op_sel:[1,0,0,0]']
    o+=inter(rc(G0), gchain(G1,1,p), 3)
    o+=summ(G0,H0,0,RB0,0)
    o+=['s_waitcnt vmcnt(5)',
        f'ds_read2_b32 v[{XI}:{XI+1}], v{aXS} offset0:{16*STR*p} offset1:{16*STR*p+4}',
        f'ds_read_b32 v{EI}, v{aES} offset:{128*STR*p}', f'ds_read_b32 v{GR[p^1]}, v{aGRP} offset:{8*STR*p}']
    o+=inter(ex(G1), [[mf(H1,AX+4*s,WV+16+4*s,'0' if s==0 else H1), f'ds_read_b128 {q(AX+4*s)}, v{aAX+s} offset:{32768*(p^1)}'] for s in range(4)], 4)
    sb=summ(G0,H0,8,RB1,0)
    o+=sb[:2]+[mf(G1,ONEA[p],ONEB,G1)]
    o+=['s_waitcnt lgkmcnt(4)']+ra_mads(GR[p^1])
    o+=(e_issue(p) if not ENV('NO_EDMA') else [])+xb_reads()+e_flag(p)
    o+=sb[2:]
    o+=['s_waitcnt vmcnt(5) lgkmcnt(4)']+(x_dma(sX1 if p==0 else sX0) if not ENV('NO_XDMA') else [])
    gc=gchain(G0,0,p^1)
    gc[5]=['s_waitcnt lgkmcnt(2)']+gc[5]
    o+=inter(rc(G1), gc, 3)
    o+=summ(G1,H1,0,RB0,1)
    if p==1:
        o+=[f'v_add_u32 v{aXS}, {128*STR}, v{aXS}', f'v_add_u32 v{aES}, {256*STR}, v{aES}', f'v_add_u32 v{aGRP}, {16*STR}, v{aGRP}']
    if ENV('NO_XMFMA'):
        o=[i for i in o if not (i.startswith('v_mfma') and any(f', {q(AX+4*s)}, ' in i for s in range(4)))]
    if ENV('NO_MFMA'): o=[i for i in o if not i.startswith('v_mfma')]
    if ENV('NO_TRANS'): o=[i for i in o if not (i.startswith('v_exp') or i.startswith('v_rcp'))]
    return o

def k2():
    lab('standalone__edge_featured_mpnn_gatedgcn__graph_kernel')
    A('s_cmp_ge_u32 s2, 256'); A('s_cbranch_scc1 K2_END')
    A(f's_load_dwordx2 s[{sWS}:{sWS+1}], s[0:1], 88')
    A('s_load_dwordx4 s[4:7], s[0:1], 0')
    A('s_load_dwordx2 s[20:21], s[0:1], 72')
    A(f's_and_b32 s{sB}, s2, 7'); A(f's_lshl_b32 s{sB}, s{sB}, 5'); A(f's_lshr_b32 s{sT0}, s2, 3'); A(f's_or_b32 s{sB}, s{sB}, s{sT0}')
    A('v_lshrrev_b32 v1, 6, v0'); A('v_and_b32 v15, 63, v0')
    A(f'v_readfirstlane_b32 s{sWAVE}, v1')
    A('v_lshlrev_b32 v1, 4, v0')
    A(f'v_lshlrev_b32 v{vL16}, 4, v15')
    A(f's_lshl_b32 s{sT0}, s{sB}, 15')
    A('s_waitcnt lgkmcnt(0)')
    if STAMPS:
        A('s_memrealtime s[98:99]'); A('s_waitcnt lgkmcnt(0)'); A('s_mov_b32 s96, s98')
    stamp('start')
    A(f's_add_u32 s12, s{sWS}, s{sT0}'); A(f's_addc_u32 s13, s{sWS+1}, 0'); A('s_mov_b32 s14, 32000'); A('s_mov_b32 s15, 0x20000')
    for u in range(4):
        if u: A(f's_mov_b32 s{sT0}, {u*8192}')
        A(f'buffer_load_dwordx4 {q(EN+4*u)}, v1, s[12:15], {("s%d"%sT0) if u else "0"} offen')
    def init_a():
        A('v_lshlrev_b32 v1, 4, v0')
        for r in range(4): A(f'v_mov_b32 v{AX+r}, -1')
        A(f'v_add_u32 v14, {XS}, v1'); A(f'ds_write_b128 v14, {q(AX)}')
        for r in range(4): A(f'v_mov_b32 v{AX+4+r}, 0x{EPAD:08x}')
        A(f'ds_write_b128 v14, {q(AX+4)} offset:8192'); A(f'ds_write_b128 v14, {q(AX+4)} offset:16384')
        for r in range(4): A(f'v_mov_b32 v{AX+8+r}, 0x{(DUMMY<<16)|DUMMY:08x}')
        for r in range(4): A(f'v_mov_b32 v{AX+12+r}, 0')
        A('v_cmp_gt_u32 vcc, 64, v0'); A('s_nop 1')
        for r in range(4): A(f'v_cndmask_b32 v{AX+8+r}, v{AX+12+r}, v{AX+8+r}, vcc')
        A('v_cmp_gt_u32 vcc, 96, v0'); A(f's_and_saveexec_b64 s[{MK}:{MK+1}], vcc'); A(f'ds_write_b128 v14, {q(AX+8)} offset:{GRP-XS}'); A(f's_mov_b64 exec, s[{MK}:{MK+1}]')
    init_a()
    A('s_mov_b32 s8, s6'); A('s_mov_b32 s9, s7'); A(f's_mov_b32 s10, {E*32}'); A('s_mov_b32 s11, 0x20000')
    A(f's_mov_b32 s6, {N*128}'); A('s_mov_b32 s7, 0x20000')
    A(f's_mov_b32 s22, {N*128}'); A('s_mov_b32 s23, 0x20000')
    A(f's_add_u32 s16, s{sWS}, {WS_WPREP}'); A(f's_addc_u32 s17, s{sWS+1}, 0'); A('s_mov_b32 s18, 34816'); A('s_mov_b32 s19, 0x20000')
    A(f's_add_u32 s24, s{sWS}, {WS_OVFCNT}'); A(f's_addc_u32 s25, s{sWS+1}, 0'); A('s_mov_b32 s26, 1000'); A('s_mov_b32 s27, 0x20000')
    A(f'v_lshrrev_b32 v14, 3, v15'); A(f's_lshl_b32 s{sT0}, s{sWAVE}, 3'); A(f'v_add_u32 v14, s{sT0}, v14')
    A(f'v_lshlrev_b32 v14, 8, v14'); A(f'v_add_u32 v14, s{sB}, v14'); A('v_lshlrev_b32 v14, 7, v14')
    A('v_lshrrev_b32 v4, 4, v15'); A('v_and_b32 v5, 7, v15'); A('v_xor_b32 v4, v4, v5'); A(f'v_lshlrev_b32 v{cXE}, 4, v4'); A(f'v_xor_b32 v{cXO}, 64, v{cXE}')
    A(f's_and_b32 s{sT0}, s{sWAVE}, 1'); A(f's_cmp_eq_u32 s{sT0}, 0'); A('s_cselect_b64 vcc, -1, 0')
    A(f'v_cndmask_b32 v4, v{cXO}, v{cXE}, vcc'); A('v_add_u32 v4, v14, v4')
    A(f's_lshl_b32 s{sT0}, s{sWAVE}, 10'); A(f's_add_u32 m0, s{sT0}, {OWNX}'); A('s_nop 0')
    A(f'buffer_load_dwordx4 v4, s[{X_}:{X_+3}], 0 offen lds')
    for i in range(3):
        A(f's_add_u32 s{sT1}, s{sT0}, {8192*i}'); A(f's_add_u32 m0, s{sT1}, {WSTG}'); A('s_nop 0')
        A(f'buffer_load_dwordx4 v{vL16}, s[16:19], s{sT1} offen lds')
    stamp('issued')
    A('v_lshrrev_b32 v14, 6, v0'); A(f'v_mul_u32_u24 v14, {RECSZ}, v14'); A(f'v_add_u32 v14, v14, v{vL16}'); A(f'v_add_u32 v14, {REC+O_DEN}, v14')
    for r in range(4): A(f'v_mov_b32 v{AX+r}, 0')
    for i in range(5): A(f'ds_write_b128 v14, {q(AX)} offset:{8*RECSZ*i}')
    A(f'v_add_u32 v14, {8*RECSZ*5}, v14'); A(f'ds_write_b128 v14, {q(AX)}')
    A('v_cmp_gt_u32 vcc, 128, v0'); A(f's_and_saveexec_b64 s[{MK}:{MK+1}], vcc'); A(f'ds_write_b128 v14, {q(AX)} offset:{8*RECSZ}'); A(f's_mov_b64 exec, s[{MK}:{MK+1}]')
    A(f'v_mov_b32 v{vONE}, 1')
    A(f's_mov_b32 s{sCNT}, {CNT}'); A(f's_mov_b32 s{sXS}, {XS}'); A(f's_mov_b32 s{sES}, {ES}'); A(f's_mov_b32 s{s128}, 128')
    A(f's_mov_b32 s{sMODE}, 0'); A(f's_mov_b32 s{sFIRST}, 1'); A(f's_mov_b32 s{sU}, 0')
    A('v_lshrrev_b32 v4, 3, v0'); A('v_mul_u32_u24 v4, 3200, v4')
    for u in range(4): A(f'v_add_u32 v{EB+u}, 0x{(64*u*3200-1+EFLAG)&0xffffffff:08x}, v4')
    def lane_consts():
        C('lane constants (v1 = kg)')
        A('v_lshrrev_b32 v1, 5, v15'); A(f'v_lshlrev_b32 v{cKG}, 4, v1')
        A('v_bfe_u32 v5, v15, 3, 2'); A('v_lshlrev_b32 v4, 5, v1'); A('v_lshl_add_u32 v4, v5, 2, v4'); A(f'v_add_u32 v{kXS}, {XS}, v4')
        A('v_bfe_u32 v4, v15, 2, 1'); A('v_lshlrev_b32 v4, 4, v4'); A('v_bfe_u32 v5, v15, 4, 1'); A('v_lshl_add_u32 v4, v5, 3, v4')
        A('v_and_b32 v5, 3, v15'); A('v_lshl_add_u32 v4, v5, 1, v4'); A('v_bfe_u32 v5, v15, 3, 1'); A('v_add_u32 v4, v4, v5')
        A('v_lshlrev_b32 v4, 2, v4'); A(f'v_add_u32 v{kES}, {ES}, v4')
        A('v_lshlrev_b32 v4, 2, v1'); A(f'v_add_u32 v{kGRP}, {GRP}, v4')
        A('v_and_b32 v4, 31, v15'); A('v_lshlrev_b32 v5, 2, v4'); A(f'v_add_u32 v{cRA}, {REC}, v5'); A('v_lshlrev_b32 v5, 3, v4'); A(f'v_add_u32 v{cRB}, {REC+O_DEN}, v5')
        A('v_bfe_u32 v5, v15, 1, 3'); A('v_xor_b32 v5, v5, v1'); A('v_lshlrev_b32 v5, 4, v5'); A('v_lshl_add_u32 v4, v4, 7, v5')
        for s in range(4): A(f'v_xor_b32 v{kAX+s}, {32*s}, v4')
        A(f's_lshl_b32 s{sX0}, s{sWAVE}, 12'); A(f's_add_u32 s{sX1}, s{sX0}, 32768')
        A('v_bfe_u32 v4, v15, 2, 1'); A('v_cmp_eq_u32 vcc, v4, v1'); A('v_mov_b32 v5, 0x3f803f80'); A('s_nop 0'); A('v_cndmask_b32 v5, 0, v5, vcc')
        A('v_bfe_u32 v4, v15, 4, 1'); A('v_cmp_eq_u32 vcc, 0, v4'); A('s_nop 1'); A(f'v_cndmask_b32 v{AZ0}, 0, v5, vcc')
        A(f'v_sub_u32 v{AZ0+2}, v5, v{AZ0}'); A(f'v_mov_b32 v{AZ0+1}, 0'); A(f'v_mov_b32 v{AZ0+3}, 0')
        A(f'v_mov_b32 v{AZ1}, 0'); A(f'v_mov_b32 v{AZ1+1}, v{AZ0}'); A(f'v_mov_b32 v{AZ1+2}, 0'); A(f'v_mov_b32 v{AZ1+3}, v{AZ0+2}')
        A('v_cmp_eq_u32 vcc, 0, v1'); A('v_mov_b32 v5, 0x3f000000'); A('s_nop 0'); A(f'v_cndmask_b32 v{ONEB}, 0, v5, vcc')
        for r in range(1,4): A(f'v_mov_b32 v{ONEB+r}, 0'); A(f'v_mov_b32 v{ONEA[0]+r}, 0'); A(f'v_mov_b32 v{ONEA[1]+r}, 0')
    lane_consts()
    stamp('consts')
    A('s_waitcnt vmcnt(4)')
    A('s_branch K2_WD')
    lab('K2_ROUND')
    init_a()
    A('s_waitcnt vmcnt(0)')
    lab('K2_WD')
    stamp('vmw')
    for k in range(16): A(f'v_cmp_ne_u32 s[{MK+2*k}:{MK+2*k+1}], 0, v{EN+k}')
    for k in range(16):
        A(f'v_and_b32 v{AD+k}, 63, v{EN+k}'); A(f'v_lshl_add_u32 v{AD+k}, v{AD+k}, 2, s{sCNT}')
    A('s_waitcnt lgkmcnt(0)'); A('s_barrier')
    stamp('bar1')
    for k in range(16):
        A(f's_mov_b64 exec, s[{MK+2*k}:{MK+2*k+1}]'); A(f'ds_add_rtn_u32 v{RK+k}, v{AD+k}, v{vONE}')
    A('s_mov_b64 exec, -1')
    A(f's_cmp_eq_u32 s{sFIRST}, 1'); A('s_cbranch_scc0 K2_NF1')
    A(f'buffer_load_dwordx4 {q(T0)}, v{vL16}, s[24:27], 0 offen')
    A(f's_lshr_b32 s{sT0}, s{sWAVE}, 1'); A(f's_lshl_b32 s{sT0}, s{sT0}, 12'); A(f's_add_u32 s{sT0}, s{sT0}, {18*1024}')
    for s in range(4): A(f'buffer_load_dwordx4 {q(NGB+4*s)}, v{vL16}, s[16:19], s{sT0} offen offset:{1024*s}')
    lab('K2_NF1')
    A('s_waitcnt lgkmcnt(0)'); A('s_barrier')
    stamp('hist')
    A(f'v_lshl_add_u32 v4, v15, 2, s{sCNT}'); A('ds_read_b32 v5, v4'); A('s_waitcnt lgkmcnt(0)')
    A('v_add_u32 v5, 7, v5'); A('v_lshrrev_b32 v5, 3, v5'); A('v_mov_b32 v1, v5'); A('s_nop 1')
    for sh in (1,2,4,8):
        A(f'v_add_u32_dpp v1, v1, v1 row_shr:{sh} row_mask:0xf bank_mask:0xf bound_ctrl:0'); A('s_nop 1')
    A('v_add_u32_dpp v1, v1, v1 row_bcast:15 row_mask:0xa bank_mask:0xf'); A('s_nop 1')
    A('v_add_u32_dpp v1, v1, v1 row_bcast:31 row_mask:0xc bank_mask:0xf'); A('s_nop 1')
    A(f'v_readlane_b32 s{sNT}, v1, 63')
    A('v_sub_u32 v1, v1, v5')
    A(f'v_lshlrev_b32 v{T0+4}, 3, v1'); A(f'ds_write_b32 v4, v{T0+4} offset:256')
    A(f's_cmp_gt_u32 s{sNT}, {CAPG}'); A('s_cbranch_scc1 K2_SPLIT')
    for k in range(16): A(f'ds_read_b32 v{AD+k}, v{AD+k} offset:256')
    A(f'v_mul_u32_u24 v{XV}, 22, v15'); A(f'v_mov_b32 v{XV+1}, s{sWAVE}')
    lab('K2_GL')
    A(f'v_cmp_lt_u32 vcc, v{XV+1}, v5'); A('s_and_saveexec_b64 s[84:85], vcc'); A('s_cbranch_execz K2_GLD')
    A(f'v_add_u32 v{XV+2}, v1, v{XV+1}'); A(f'v_lshlrev_b32 v{XV+2}, 1, v{XV+2}'); A(f'v_add_u32 v{XV+2}, {GRP}, v{XV+2}')
    A(f'ds_write_b16 v{XV+2}, v{XV}'); A(f'v_add_u32 v{XV+1}, 8, v{XV+1}')
    A('s_mov_b64 exec, s[84:85]'); A('s_branch K2_GL')
    lab('K2_GLD'); A('s_mov_b64 exec, -1')
    A('s_waitcnt lgkmcnt(0)')
    stamp('prefix')
    for k in range(16):
        A(f'v_add_u32 v{RK+k}, v{RK+k}, v{AD+k}')
        A(f'v_lshl_add_u32 v{AD+k}, v{RK+k}, 1, s{sXS}')
        A(f'v_lshl_add_u32 v{RK+k}, v{RK+k}, 2, s{sES}')
        A(f'v_lshrrev_b32 v1, 20, v{EN+k}')
        A(f'v_bfe_u32 v{EN+k}, v{EN+k}, 6, 14')
        A(f'v_add_u32 v1, v1, v{EB+k//4}')
        A(f's_mov_b64 exec, s[{MK+2*k}:{MK+2*k+1}]')
        A(f'ds_write_b16 v{AD+k}, v{EN+k}'); A(f'ds_write_b32 v{RK+k}, v1')
        A('s_mov_b64 exec, -1')
    A(f's_add_u32 s{sNT}, s{sNT}, 3'); A(f's_lshr_b32 s{sNT}, s{sNT}, 2')
    A('s_waitcnt vmcnt(0) lgkmcnt(0)'); A('s_barrier')
    stamp('bar3')
    A(f's_mov_b32 s{sTI}, s{sWAVE}')
    A(f's_lshl_b32 s{sT0}, s{sWAVE}, 6'); A(f'v_add_u32 v{aXS}, s{sT0}, v{kXS}')
    A(f's_lshl_b32 s{sT0}, s{sWAVE}, 7'); A(f'v_add_u32 v{aES}, s{sT0}, v{kES}')
    A(f's_lshl_b32 s{sT0}, s{sWAVE}, 3'); A(f'v_add_u32 v{aGRP}, s{sT0}, v{kGRP}')
    A(f'ds_read_b32 v{EI}, v{aES}'); A(f'ds_read2_b32 v[{XI}:{XI+1}], v{aXS} offset0:0 offset1:4'); A(f'ds_read_b32 v{GR[0]}, v{aGRP}')
    for s in range(4): A(f'v_add_u32 v{aAX+s}, s{sX0}, v{kAX+s}')
    A('s_waitcnt lgkmcnt(0)')
    for i in x_dma(sX0)+e_issue(0)+e_flag(0): A(i)
    stamp('dma1')
    A(f's_cmp_eq_u32 s{sFIRST}, 0'); A('s_cbranch_scc1 K2_NG_DONE')
    A(f'v_add_u32 v1, {WSTG}, v{vL16}')
    A(f's_and_b32 s{sT0}, s{sWAVE}, 1'); A(f's_lshl_b32 s{sT0}, s{sT0}, 12'); A(f's_add_u32 s{sT0}, s{sT0}, {OWNX}')
    for s in range(4): A(f'v_add_u32 v{XV+s}, s{sT0}, v{kAX+s}')
    for s in range(4): A(f'ds_read_b128 {q(AX+4*s)}, v{XV+s}')
    for i in range(18): A(f'ds_read_b128 {q(WB+4*i)}, v1 offset:{1024*i}')
    A(f'v_or_b32 v{T0}, v{T0}, v{T0+1}'); A(f'v_or_b32 v{T0+2}, v{T0+2}, v{T0+3}'); A(f'v_or_b32 v{T0}, v{T0}, v{T0+2}')
    A(f'v_cmp_ne_u32 vcc, 0, v{T0}'); A('s_nop 3'); A('s_cmp_lg_u64 vcc, 0'); A(f's_cselect_b32 s{sOVF}, 1, 0')
    A('s_waitcnt lgkmcnt(0)')
    stamp('wread')
    for s in range(4): A(mf(G0, AX+4*s, NGB+4*s, '0' if s==0 else G0))
    A(f's_and_b32 s{sT0}, s{sWAVE}, 1'); A(f's_lshl_b32 s{sT0}, s{sT0}, 5'); A(f'v_lshrrev_b32 v1, 5, v15'); A(f'v_lshl_add_u32 v1, v1, 2, s{sT0}')
    A(f'v_mul_u32_u24 v1, {RECSZ}, v1')
    A(f's_bfe_u32 s{sT1}, s{sWAVE}, 0x10001')
    A(f's_cmp_ge_u32 s{sWAVE}, 4'); A('s_cbranch_scc1 K2_NG_U')
    A(f's_lshl_b32 s{sT1}, s{sT1}, 7'); A(f'v_add_u32 v1, v1, v{cRA}'); A(f'v_add_u32 v1, s{sT1}, v1')
    A(f's_mov_b32 s{sT2}, 0x{NLOG2E:08x}'); A('s_nop 7')
    for r in range(16):
        A(f'v_mul_f32 v{G0+r}, s{sT2}, v{G0+r}')
        A(f'v_cvt_pk_bf16_f32 v{SD}, v{G0+r}, v{G0+r}'); A(f'v_lshlrev_b32 v{SD}, 16, v{SD}'); A(f'v_sub_f32 v{SN}, v{G0+r}, v{SD}'); A(f'v_cvt_pk_bf16_f32 v{G0+r}, v{SD}, v{SN}')
    def wr_a(r): A(f'ds_write_b32 v1, v{G0+r} offset:{(8*(r//4)+(r%4))*RECSZ}')
    for r in range(8): wr_a(r)
    A(f's_and_b32 s{sT0}, s{sWAVE}, 1'); A(f's_cmp_eq_u32 s{sT0}, 0'); A('s_cbranch_scc0 K2_NG_A1')
    for r in range(8,16): wr_a(r)
    A('s_branch K2_NG_BAR')
    lab('K2_NG_A1')
    A('s_mov_b32 exec_lo, -1'); A('s_mov_b32 exec_hi, 0'); wr_a(8); wr_a(9); A('s_mov_b64 exec, -1'); A('s_branch K2_NG_BAR')
    lab('K2_NG_U')
    A(f's_lshl_b32 s{sT1}, s{sT1}, 6'); A(f'v_and_b32 v{SD}, 31, v15'); A(f'v_lshl_add_u32 v1, v{SD}, 1, v1'); A(f'v_add_u32 v1, s{sT1}, v1'); A(f'v_add_u32 v1, {REC+O_U}, v1')
    A('s_nop 7')
    for r in range(16): A(f'v_cvt_pk_bf16_f32 v{G0+r}, v{G0+r}, v{G0+r}')
    def wr_u(r): A(f'ds_write_b16 v1, v{G0+r} offset:{(8*(r//4)+(r%4))*RECSZ}')
    for r in range(8): wr_u(r)
    A(f's_and_b32 s{sT0}, s{sWAVE}, 1'); A(f's_cmp_eq_u32 s{sT0}, 0'); A('s_cbranch_scc0 K2_NG_U1')
    for r in range(8,16): wr_u(r)
    A('s_branch K2_NG_BAR')
    lab('K2_NG_U1')
    A('s_mov_b32 exec_lo, -1'); A('s_mov_b32 exec_hi, 0'); wr_u(8); wr_u(9); A('s_mov_b64 exec, -1')
    lab('K2_NG_BAR')
    stamp('ngm')
    A('s_waitcnt lgkmcnt(0)'); A('s_barrier')
    lab('K2_NG_DONE')
    stamp('ng')
    A(f's_mov_b32 s{sFIRST}, 0')
    A(f's_cmp_lt_u32 s{sTI}, s{sNT}'); A('s_cbranch_scc0 K2_LOOP_END')
    A(f'ds_read2_b32 v[{XI}:{XI+1}], v{aXS} offset0:{16*STR} offset1:{16*STR+4}'); A(f'ds_read_b32 v{EI}, v{aES} offset:{128*STR}')
    for i in ra_mads(GR[0]): A(i)
    A(f'v_mad_u32_u16 v{RB1}, v{GR[0]}, 64, v{cRB} op_sel:[1,0,0,0]')
    for i in xb_reads(): A(i)
    for r in range(8,16): A(f'v_mov_b32 v{G1+r}, 0'); A(f'v_mov_b32 v{H1+r}, 0')
    A('s_waitcnt lgkmcnt(2)')
    for i in x_dma(sX1)+e_issue(1)+e_flag(1): A(i)
    A(f'v_add_u32 v{aXS}, {128*STR}, v{aXS}')
    A(f'ds_read2_b32 v[{XI}:{XI+1}], v{aXS} offset0:0 offset1:4')
    A('s_waitcnt vmcnt(5)')
    stamp('entw')
    for s in range(4): A(f'ds_read_b128 {q(AX+4*s)}, v{aAX+s}')
    A(f'v_add_u32 v{aXS}, {64*STR}, v{aXS}'); A(f'v_add_u32 v{aES}, {256*STR}, v{aES}'); A(f'v_add_u32 v{aGRP}, {8*STR}, v{aGRP}')
    A('s_waitcnt lgkmcnt(0)')
    for g in gchain(G0,0,0):
        for i in g: A(i)
    for i in x_dma(sX0): A(i)
    stamp('entd')
    lab('K2_LOOP')
    for i in body(0): A(i)
    A(f's_add_u32 s{sTI}, s{sTI}, {STR}'); A(f's_cmp_lt_u32 s{sTI}, s{sNT}'); A('s_cbranch_scc0 K2_TAIL')
    for i in body(1): A(i)
    A(f's_add_u32 s{sTI}, s{sTI}, {STR}'); A(f's_cmp_lt_u32 s{sTI}, s{sNT}'); A('s_cbranch_scc1 K2_LOOP')
    lab('K2_TAIL')
    for i in summ(G1,H1,8,RB1,1): A(i)
    lab('K2_LOOP_END')
    stamp('loop')
    A('s_waitcnt vmcnt(0) lgkmcnt(0)'); A('s_barrier')
    stamp('bar5')
    A(f's_cmp_eq_u32 s{sMODE}, 1'); A('s_cbranch_scc1 K2_NEXT_SPLIT')
    A(f's_cmp_eq_u32 s{sMODE}, 2'); A('s_cbranch_scc1 K2_NEXT_OVF')
    lab('K2_CHECK_OVF')
    A(f's_cmp_eq_u32 s{sOVF}, 0'); A('s_cbranch_scc1 K2_EPI')
    A(f's_mov_b32 s{sMODE}, 2'); A(f's_mov_b32 s{sOC}, 0'); A(f's_mov_b32 s{sOP}, 0'); A('s_branch K2_OVF_FIND')
    lab('K2_SPLIT')
    A(f's_mov_b32 s{sMODE}, 1'); A(f's_mov_b32 s{sU}, 0')
    A('s_waitcnt lgkmcnt(0)'); A('s_barrier')
    A('s_branch K2_LOADQ')
    lab('K2_NEXT_SPLIT')
    A(f's_add_u32 s{sU}, s{sU}, 1'); A(f's_cmp_ge_u32 s{sU}, 4'); A('s_cbranch_scc1 K2_CHECK_OVF')
    lab('K2_LOADQ')
    A(f's_lshl_b32 s{sT0}, s{sU}, 13'); A('v_lshlrev_b32 v1, 4, v0')
    A('s_waitcnt vmcnt(0)')
    A(f'buffer_load_dwordx4 {q(EN)}, v1, s[12:15], s{sT0} offen')
    for k in range(4,16): A(f'v_mov_b32 v{EN+k}, 0')
    A(f's_mul_i32 s{sT0}, s{sU}, {64*3200}'); A(f's_add_u32 s{sT0}, s{sT0}, 0x{EFLAG-1:08x}')
    A('v_lshrrev_b32 v4, 3, v0'); A('v_mul_u32_u24 v4, 3200, v4'); A(f'v_add_u32 v{EB}, s{sT0}, v4')
    A('s_branch K2_ROUND')
    lab('K2_NEXT_OVF')
    A(f's_add_u32 s{sOP}, s{sOP}, 2048')
    lab('K2_OVF_FIND')
    A(f's_cmp_ge_u32 s{sOC}, {NCH}'); A('s_cbranch_scc1 K2_EPI')
    A(f's_lshl_b32 s{sT0}, s{sOC}, 2'); A(f's_add_u32 s{sT0}, s{sT0}, {WS_OVFCNT}')
    A(f's_load_dword s{sON}, s[{sWS}:{sWS+1}], s{sT0}'); A('s_waitcnt lgkmcnt(0)')
    A(f's_cmp_gt_u32 s{sON}, s{sOP}'); A('s_cbranch_scc1 K2_OVF_LOAD')
    A(f's_add_u32 s{sOC}, s{sOC}, 1'); A(f's_mov_b32 s{sOP}, 0'); A('s_branch K2_OVF_FIND')
    lab('K2_OVF_LOAD')
    A(f's_mul_i32 s{sT0}, s{sOC}, 25600'); A(f's_add_u32 s{sT0}, s{sT0}, {WS_OVFL}')
    A(f's_add_u32 s24, s{sWS}, s{sT0}'); A(f's_addc_u32 s25, s{sWS+1}, 0'); A(f's_lshl_b32 s26, s{sON}, 3'); A('s_mov_b32 s27, 0x20000')
    A(f'v_add_u32 v1, s{sOP}, v0'); A('v_lshlrev_b32 v1, 3, v1')
    A(f'buffer_load_dwordx2 v[{AX}:{AX+1}], v1, s[24:27], 0 offen')
    for j in range(1,4):
        A(f's_mov_b32 s{sT0}, {4096*j}'); A(f'buffer_load_dwordx2 v[{AX+2*j}:{AX+2*j+1}], v1, s[24:27], s{sT0} offen')
    A('s_waitcnt vmcnt(0)')
    for j in range(4):
        A(f'v_cmp_eq_u32 vcc, s{sB}, v{AX+2*j+1}'); A('s_nop 1'); A(f'v_cndmask_b32 v{EN+j}, 0, v{AX+2*j}, vcc')
    for k in range(4,16): A(f'v_mov_b32 v{EN+k}, 0')
    A(f's_mul_i32 s{sT0}, s{sOC}, 3200'); A(f's_add_u32 s{sT0}, s{sT0}, 0x{EFLAG-1:08x}'); A(f'v_mov_b32 v{EB}, s{sT0}')
    A('s_branch K2_ROUND')
    lab('K2_EPI')
    A('v_lshrrev_b32 v1, 3, v0'); A('v_and_b32 v2, 7, v0')
    A(f'v_lshlrev_b32 v3, 8, v1'); A(f'v_add_u32 v3, s{sB}, v3'); A('v_lshlrev_b32 v3, 7, v3'); A('v_lshl_add_u32 v3, v2, 4, v3')
    A(f'buffer_load_dwordx4 v[16:19], v3, s[{X_}:{X_+3}], 0 offen')
    A(f'v_mul_u32_u24 v4, {RECSZ}, v1'); A(f'v_add_u32 v4, {REC}, v4'); A('v_lshl_add_u32 v5, v2, 6, v4'); A('v_lshl_add_u32 v6, v2, 4, v4')
    for i in range(4): A(f'ds_read_b128 {q(48+4*i)}, v5 offset:{O_DEN+16*i}')
    for i in range(4): A(f'ds_read_b128 {q(64+4*i)}, v5 offset:{O_NUM+16*i}')
    A(f'ds_read_b128 v[36:39], v6 offset:{O_U}')
    A('s_mov_b32 s40, 0x358637bd')
    A('s_waitcnt lgkmcnt(0)')
    for i in range(8): A(f'v_cvt_f32_f64 v{20+i}, v[{48+2*i}:{49+2*i}]'); A(f'v_cvt_f32_f64 v{28+i}, v[{64+2*i}:{65+2*i}]')
    for i in range(8): A(f'v_add_f32 v{20+i}, s40, v{20+i}')
    for i in range(8): A(f'v_rcp_f32 v{20+i}, v{20+i}')
    for i in range(4):
        A(f'v_lshlrev_b32 v{40+2*i}, 16, v{36+i}'); A(f'v_and_b32 v{41+2*i}, 0xffff0000, v{36+i}')
    for i in range(8): A(f'v_fmac_f32 v{40+i}, v{28+i}, v{20+i}')
    for i in range(8):
        A(f'v_mul_f32 v{28+i}, 0, v{40+i}'); A(f'v_cmp_lt_f32 vcc, 0, v{40+i}'); A('s_nop 1'); A(f'v_cndmask_b32 v{28+i}, v{28+i}, v{40+i}, vcc')
    A('s_waitcnt vmcnt(0)')
    for i in range(4):
        A(f'v_lshlrev_b32 v{40+2*i}, 16, v{16+i}'); A(f'v_and_b32 v{41+2*i}, 0xffff0000, v{16+i}')
    for i in range(8): A(f'v_add_f32 v{28+i}, v{28+i}, v{40+i}')
    for i in range(4): A(f'v_cvt_pk_bf16_f32 v{20+i}, v{28+2*i}, v{29+2*i}')
    A(f'buffer_store_dwordx4 v[20:23], v3, s[{OU_}:{OU_+3}], 0 offen')
    stamp('end')
    stamp_store()
    lab('K2_END')
    A('s_endpgm')

hdr = f'''; GatedGCN edge-featured MPNN: K1 buckets edges by destination, K2 gathers + MFMA + segment-reduces in LDS.
; @launch kernel=gcn_sort_kernel grid=({K1_GRID},1,1) block=(1024,1,1) lds={K1_LDS}
; @launch kernel=standalone__edge_featured_mpnn_gatedgcn__graph_kernel grid=(256,1,1) block=(512,1,1) lds={LDS_END}
.amdgcn_target "amdgcn-amd-amdhsa--gfx950"
.text
'''
def kd(name, nv, ns):
    return f'''.p2align 6
.amdhsa_kernel {name}
  .amdhsa_next_free_vgpr {nv}
  .amdhsa_next_free_sgpr {ns}
  .amdhsa_accum_offset {(nv+3)//4*4}
  .amdhsa_group_segment_fixed_size 0
  .amdhsa_kernarg_size 96
  .amdhsa_user_sgpr_count 2
  .amdhsa_user_sgpr_kernarg_segment_ptr 1
  .amdhsa_system_sgpr_workgroup_id_x 1
.end_amdhsa_kernel
'''
out=[hdr]
out.append('.globl gcn_sort_kernel\n.p2align 8\n.type gcn_sort_kernel,@function')
k1(); out+=L; L=[]
out.append('.globl standalone__edge_featured_mpnn_gatedgcn__graph_kernel\n.p2align 8\n.type standalone__edge_featured_mpnn_gatedgcn__graph_kernel,@function')
k2(); out+=L
out.append('.section .rodata,"a"')
out.append(kd('gcn_sort_kernel', 40, 64))
out.append(kd('standalone__edge_featured_mpnn_gatedgcn__graph_kernel', NVGPR, 102 if STAMPS else 96))
open(sys.argv[1] if len(sys.argv)>1 else 'out.s','w').write('\n'.join(out)+'\n')
print('LDS_END',LDS_END)
```

```python
import sys, os
N=12500; E=800000; CH=3200; NCH=250; NBK=256
WS_CELLS=0; WS_OVFCNT=0x800000; WS_WPREP=0x801000; WS_OVFL=0x810000; WS_T=0x1000000
NLOG2E=0xBFB8AA3B
L=[]
def A(s): L.append(s if s.endswith(':') else '    '+s)
def lab(s): L.append(s+':')
def C(s): L.append('    ; '+s)
ENV=lambda k: os.environ.get(k)
def q(base,n=4): return f'v[{base}:{base+n-1}]'
def mf(d,a,b,c): return f'v_mfma_f32_32x32x16_bf16 {q(d,16)}, {q(a)}, {q(b)}, {c if c=="0" else q(c,16)}'
K1_GRID=NCH+3
K1_LDS=49152
S1=ENV('S1')
def k1():
    lab('gcn_sort_kernel')
    if ENV('DBG'): A('s_memrealtime s[50:51]')
    A(f's_cmp_ge_u32 s2, {K1_GRID}'); A('s_cbranch_scc1 K1_END3' if ENV('DBG') else 's_cbranch_scc1 K1_END')
    A('s_load_dwordx2 s[8:9], s[0:1], 88')
    A(f's_cmp_ge_u32 s2, {NCH}'); A('s_cbranch_scc1 K1_W')
    A('s_load_dwordx4 s[4:7], s[0:1], 16')
    A('s_load_dwordx2 s[44:45], s[0:1], 0')
    A('v_lshlrev_b32 v1, 4, v0')
    A('s_mul_i32 s10, s2, 12800')
    A('s_waitcnt lgkmcnt(0)')
    A('s_add_u32 s16, s6, s10'); A('s_addc_u32 s17, s7, 0'); A('s_mov_b32 s18, 12800'); A('s_mov_b32 s19, 0x20000')
    A('buffer_load_dwordx4 v[8:11], v1, s[16:19], 0 offen')
    A('s_add_u32 s12, s4, s10'); A('s_addc_u32 s13, s5, 0'); A('s_mov_b32 s14, 12800'); A('s_mov_b32 s15, 0x20000')
    A('buffer_load_dwordx4 v[12:15], v1, s[12:15], 0 offen')
    if not ENV('NO_XPF'):
        A(f's_mov_b32 s46, {N*128}'); A('s_mov_b32 s47, 0x20000')
        A('s_lshr_b32 s10, s2, 3'); A('s_mul_i32 s10, s10, 404'); A('v_add_u32 v36, s10, v0'); A('v_lshlrev_b32 v36, 7, v36')
        A('v_cmp_gt_u32 vcc, 404, v0'); A('v_mov_b32 v37, 0x7fffffff'); A('s_nop 0'); A('v_cndmask_b32 v36, v37, v36, vcc')
        A('buffer_load_dword v38, v36, s[44:47], 0 offen')
    for r in range(4,8): A(f'v_mov_b32 v{r}, 0')
    A('ds_write_b128 v1, v[4:7]'); A('ds_write_b128 v1, v[4:7] offset:16384'); A('ds_write_b128 v1, v[4:7] offset:32768')
    A('s_mul_i32 s10, s2, 25600')
    A(f's_add_u32 s24, s8, {WS_OVFL}'); A('s_addc_u32 s25, s9, 0'); A('s_add_u32 s24, s24, s10'); A('s_addc_u32 s25, s25, 0')
    A('s_mov_b32 s26, 25600'); A('s_mov_b32 s27, 0x20000')
    A('s_mov_b32 s32, s8'); A('s_mov_b32 s33, s9'); A('s_mov_b32 s34, 0x800000'); A('s_mov_b32 s35, 0x20000')
    A('s_lshl_b32 s36, s2, 7'); A('s_add_u32 s37, s36, 0x400000')
    A(f's_add_u32 s40, s8, {WS_OVFCNT}'); A('s_addc_u32 s41, s9, 0'); A('s_mov_b32 s42, 1000'); A('s_mov_b32 s43, 0x20000')
    A('v_mov_b32 v2, 1'); A('v_mov_b32 v3, 37888')
    A('s_waitcnt lgkmcnt(0)'); A('s_barrier')
    A('v_cmp_gt_u32 vcc, 800, v0'); A('s_and_saveexec_b64 s[20:21], vcc'); A('s_cbranch_execz K1_SKIP')
    A('s_mov_b64 s[28:29], exec')
    NP=0 if ENV('NO_XPF') else 1
    A(f's_waitcnt vmcnt({1+NP})')
    for j in range(4):
        A(f'v_and_b32 v{16+j}, 255, v{8+j}')
        A(f'v_lshlrev_b32 v{24+j}, 2, v{16+j}')
        A(f'ds_add_rtn_u32 v{28+j}, v{24+j}, v2 offset:36864')
    A(f's_waitcnt vmcnt({NP})')
    for j in range(4):
        A(f'v_lshrrev_b32 v{20+j}, 8, v{8+j}')
        A(f'v_lshl_or_b32 v{20+j}, v{12+j}, 6, v{20+j}')
        A(f'v_lshl_add_u32 v32, v0, 2, {j+1}')
        A(f'v_lshl_or_b32 v{20+j}, v32, 20, v{20+j}')
        A(f'v_mul_u32_u24 v{24+j}, 144, v{16+j}')
    A('s_waitcnt lgkmcnt(0)')
    for j in range(4):
        A(f'v_lshl_add_u32 v{24+j}, v{28+j}, 2, v{24+j}')
        A(f'v_cmp_gt_u32 vcc, 32, v{28+j}')
        A('s_mov_b64 exec, vcc')
        A(f'ds_write_b32 v{24+j}, v{20+j}')
        A('s_andn2_b64 exec, s[28:29], vcc')
        A(f's_cbranch_execz K1_NOV{j}')
        A('ds_add_rtn_u32 v33, v3, v2')
        A(f'v_mov_b32 v34, v{20+j}'); A(f'v_mov_b32 v35, v{16+j}')
        A('s_waitcnt lgkmcnt(0)')
        A('v_lshlrev_b32 v33, 3, v33')
        A('buffer_store_dwordx2 v[34:35], v33, s[24:27], 0 offen')
        A('s_nop 1')
        lab(f'K1_NOV{j}')
        A('s_mov_b64 exec, s[28:29]')
    lab('K1_SKIP')
    A('s_mov_b64 exec, -1')
    A(f's_waitcnt vmcnt({NP})')
    A('v_lshrrev_b32 v4, 3, v0'); A('v_and_b32 v5, 7, v0')
    A('v_mul_u32_u24 v6, 144, v4'); A('v_lshl_add_u32 v6, v5, 4, v6')
    A('v_lshlrev_b32 v7, 15, v4'); A('v_lshl_add_u32 v7, v5, 4, v7')
    A('s_waitcnt lgkmcnt(0)'); A('s_barrier')
    A('ds_read_b128 v[8:11], v6'); A('ds_read_b128 v[12:15], v6 offset:18432'); A('ds_read_b32 v16, v3')
    A('s_waitcnt lgkmcnt(2)')
    A('buffer_store_dwordx4 v[8:11], v7, s[32:35], s36 offen')
    A('s_waitcnt lgkmcnt(1)')
    A('buffer_store_dwordx4 v[12:15], v7, s[32:35], s37 offen')
    A('v_cmp_eq_u32 vcc, 0, v0'); A('s_and_saveexec_b64 s[20:21], vcc'); A('s_cbranch_execz K1_END')
    A('s_lshl_b32 s10, s2, 2'); A('v_mov_b32 v17, s10')
    A('s_waitcnt lgkmcnt(0)')
    A('buffer_store_dword v16, v17, s[40:43], 0 offen')
    A('s_branch K1_END')
    lab('K1_W')
    A('s_load_dwordx8 s[12:19], s[0:1], 32')
    A('s_load_dwordx2 s[20:21], s[0:1], 64')
    A('v_lshrrev_b32 v1, 6, v0'); A('s_nop 0'); A('v_readfirstlane_b32 s10, v1')
    A(f's_sub_u32 s11, s2, {NCH}'); A('s_lshl_b32 s11, s11, 4'); A('s_nop 2'); A('s_add_u32 s10, s10, s11')
    A('s_cmp_ge_u32 s10, 34'); A('s_cbranch_scc1 K1_END')
    A('s_waitcnt lgkmcnt(0)')
    A('s_mov_b32 s24, s14'); A('s_mov_b32 s25, s15'); A('s_mov_b32 s26, 8192'); A('s_mov_b32 s27, 0x20000')
    A(f's_mov_b32 s28, 0x{NLOG2E:08x}'); A('s_mov_b32 s29, s10')
    A('s_cmp_ge_u32 s10, 8'); A('s_cbranch_scc0 K1_WSEL')
    A('s_mov_b32 s24, s20'); A('s_mov_b32 s25, s21'); A('s_mov_b32 s28, 0x3f800000'); A('s_sub_u32 s29, s10, 8')
    A('s_cmp_ge_u32 s10, 16'); A('s_cbranch_scc0 K1_WSEL')
    A('s_mov_b32 s24, s16'); A('s_mov_b32 s25, s17'); A('s_mov_b32 s26, 2048'); A(f's_mov_b32 s28, 0x{NLOG2E:08x}')
    A('s_sub_u32 s29, s10, 16'); A('s_lshl_b32 s29, s29, 2')
    A('s_cmp_ge_u32 s10, 18'); A('s_cbranch_scc0 K1_WSEL')
    A('s_mov_b32 s24, s12'); A('s_mov_b32 s25, s13'); A('s_mov_b32 s26, 8192'); A('s_mov_b32 s28, 0x3f800000'); A('s_sub_u32 s29, s10, 18')
    A('s_cmp_ge_u32 s10, 26'); A('s_cbranch_scc0 K1_WSEL')
    A('s_mov_b32 s24, s18'); A('s_mov_b32 s25, s19'); A('s_sub_u32 s29, s10, 26')
    lab('K1_WSEL')
    A('s_lshr_b32 s30, s29, 2'); A('s_and_b32 s31, s29, 3')
    A('s_lshl_b32 s30, s30, 6'); A('s_lshl_b32 s31, s31, 11'); A('s_add_u32 s30, s30, s31')
    A('v_and_b32 v2, 63, v0'); A('v_and_b32 v3, 31, v0'); A('v_lshrrev_b32 v4, 5, v2')
    A('v_lshlrev_b32 v4, 10, v4'); A('v_lshl_add_u32 v4, v3, 1, v4'); A('v_add_u32 v4, s30, v4')
    for t in range(8): A(f'buffer_load_ushort v{8+t}, v4, s[24:27], 0 offen offset:{128*t}')
    A(f's_add_u32 s32, s8, {WS_WPREP}'); A('s_addc_u32 s33, s9, 0'); A('s_mov_b32 s34, 34816'); A('s_mov_b32 s35, 0x20000')
    A('s_lshl_b32 s36, s10, 10'); A('v_lshlrev_b32 v5, 4, v2')
    A('s_waitcnt vmcnt(0)')
    for t in range(8):
        A(f'v_lshlrev_b32 v{8+t}, 16, v{8+t}'); A(f'v_mul_f32 v{8+t}, s28, v{8+t}')
    for t in range(4): A(f'v_cvt_pk_bf16_f32 v{16+t}, v{8+2*t}, v{9+2*t}')
    A('buffer_store_dwordx4 v[16:19], v5, s[32:35], s36 offen')
    lab('K1_END')
    if ENV('DBG'):
        A('s_cmp_eq_u32 s2, 7'); A('s_cbranch_scc0 K1_END2')
        A('s_load_dwordx2 s[52:53], s[0:1], 80'); A('s_memrealtime s[54:55]'); A('s_waitcnt lgkmcnt(0)')
        A('s_mov_b64 exec, 1'); A('s_mov_b32 s56, s54'); A('s_mov_b32 s54, 256'); A('s_mov_b32 s55, 0x20000')
        A('v_mov_b32 v20, s56'); A('v_mov_b32 v21, s50'); A('v_mov_b32 v22, 0')
        A('buffer_store_dword v21, v22, s[52:55], 0 offen'); A('buffer_store_dword v20, v22, s[52:55], 0 offen offset:4')
        lab('K1_END2')
        lab('K1_END3')
    A('s_endpgm')

XST=0; REC=65536; RECSZ=1408; XS=REC+50*RECSZ; ES=XS+8192; GRP=ES+16384; CNT=GRP+1024; NBT=CNT+256; LDS_END=NBT+256
OWNX=32768; WSTG=40960
O_DEN=256; O_NUM=768; O_U=1280
CAPG=512
DUMMY=49*22
EPAD=0x700FFFFF; EFLAG=0x40000000
cXE=2; cXO=3; aXS=4; aES=5; cKG=6; aGRP=7; cRA=8; cRB=9; aAX=10
WB=16; WV=48; WC=80; XB=88; AZ0=92; AZ1=96; ONEB=100; ONEA=[104,108]; AX=112; AE=[128,132]; G0=136; G1=152; H0=168; H1=184
XI=200; XV=202; EI=206; EV=207; GR=[208,209]; RA0=210; RA1=211; RB0=212; RB1=213; SD=214; SN=215; PD=216; PN=218
vONE=220; kXS=221; kES=222; kGRP=223; kAX=224; vL16=228; T0=230; NGB=236
NVGPR=252
EN=G0; RK=G1; EB=H0; AD=H0+4
sB=3; X_=4; EA_=8; CE_=12; WP_=16; OU_=20; MI_=24; sWS=28; sWAVE=30; sNT=31; sTI=32; sX0=33; sX1=34; sMODE=36; sFIRST=37; sOVF=38; sU=39
MK=40
sCNT=72; sXS=73; sES=74; sT0=75; sT1=76; sT2=77; sOC=78; sOP=79; sON=80; s128=83
STAMPS=int(os.environ.get('STAMPS','0'))
STR=8
SSET=os.environ.get('SSET','main')
SMAP={'main':{'start':0,'bar1':1,'hist':2,'prefix':3,'bar3':4,'ng':5,'loop':6,'bar5':7,'end':8},
      'pro':{'start':0,'issued':1,'consts':2,'vmw':3,'bar1':4,'hist':5,'bar3':6,'ng':7,'entd':8},
      'pro2':{'bar3':0,'dma1':1,'wread':2,'ngm':3,'ng':4,'entw':5,'entd':6,'loop':7,'end':8}}[SSET]
def stamp(name):
    if STAMPS and name in SMAP:
        i=SMAP[name]
        A('s_memtime s[98:99]' if STAMPS==1 else 's_memrealtime s[98:99]'); A('s_waitcnt lgkmcnt(0)'); A(f's_mov_b32 s{86+i}, s98')
def stamp_store():
    if STAMPS and ENV('DBG'):
        A('s_memrealtime s[98:99]'); A('s_waitcnt lgkmcnt(0)'); A('s_mov_b32 s97, s98')
        A('s_cmp_eq_u32 s2, 7'); A('s_cbranch_scc0 K2_DBGE'); A(f's_cmp_eq_u32 s{sWAVE}, 0'); A('s_cbranch_scc0 K2_DBGE')
        A('s_load_dwordx2 s[24:25], s[0:1], 80'); A('s_waitcnt lgkmcnt(0)'); A('s_mov_b64 exec, 1'); A('v_mov_b32 v14, 0'); A('s_mov_b32 s26, 256'); A('s_mov_b32 s27, 0x20000')
        for i in range(12):
            A(f'v_mov_b32 v1, s{86+i}'); A(f'buffer_store_dword v1, v14, s[24:27], 0 offen offset:{8+4*i}')
        lab('K2_DBGE')
    elif STAMPS:
        A('s_memrealtime s[98:99]'); A('s_waitcnt lgkmcnt(0)'); A('s_mov_b32 s97, s98')
        A(f's_add_u32 s24, s{sWS}, 0x2000000'); A(f's_addc_u32 s25, s{sWS+1}, 0'); A('s_mov_b32 s26, 0x100000'); A('s_mov_b32 s27, 0x20000')
        A(f's_lshl_b32 s75, s2, 3'); A(f's_add_u32 s75, s75, s{sWAVE}'); A('s_lshl_b32 s75, s75, 6')
        for i in range(12):
            A(f'v_mov_b32 v1, s{86+i}'); A(f'v_mov_b32 v14, {4*i}'); A('buffer_store_dword v1, v14, s[24:27], s75 offen')
def x_dma(sbase):
    o=[]
    for m in range(4):
        o.append(f's_mov_b32 m0, s{sbase}' if m==0 else 's_add_u32 m0, m0, 1024')
        o.append(f'v_mad_u32_u16 v{XV+m}, v{XI+(m>>1)}, s{s128}, v{cXO if m&1 else cXE} op_sel:[{m&1},0,0,0]')
        o.append(f'buffer_load_dwordx4 v{XV+m}, s[{X_}:{X_+3}], 0 offen lds')
    return o
ENT='' if ENV('NO_NT') else ' nt'
def e_issue(p):
    return [f'v_mad_u32_u24 v{EV}, v{EI}, 32, v{cKG}', f'buffer_load_dwordx4 {q(AE[p])}, v{EV}, s[{EA_}:{EA_+3}], 0 offen{ENT}']
def e_flag(p): return [f'v_and_b32 v{ONEA[p]}, 0xff000000, v{EI}']
def summ(G,H,b,rb,ct):
    o=[f'v_mul_f32 v{SN}, v{G+b}, v{H+b}', f'v_add_f32 v{SD}, v{G+b}, v{G+b+1}']
    for r in range(1,8):
        o.append(f'v_fmac_f32 v{SN}, v{G+b+r}, v{H+b+r}')
        if r>=2: o.append(f'v_add_f32 v{SD}, v{SD}, v{G+b+r}')
    o.append(f'v_cvt_f64_f32 v[{PD}:{PD+1}], v{SD}'); o.append(f'v_cvt_f64_f32 v[{PN}:{PN+1}], v{SN}')
    if not ENV('NO_DSADD'):
        o.append(f'ds_add_f64 v{rb}, v[{PD}:{PD+1}] offset:{ct*256}'); o.append(f'ds_add_f64 v{rb}, v[{PN}:{PN+1}] offset:{512+ct*256}')
    return o
def inter(v, m, every):
    o=[]; m=list(m)
    for i,x in enumerate(v):
        if m and i%every==0: o+=m.pop(0)
        o.append(x)
    for g in m: o+=g
    return o
def gchain(G,ct,p):
    return [[mf(G,AX,WB+16*ct,'0')],[mf(G,AX+4,WB+16*ct+4,G)],[mf(G,AX+8,WB+16*ct+8,G)],[mf(G,AX+12,WB+16*ct+12,G)],
            [mf(G,AE[p],WC+4*ct,G)],[mf(G,AZ1 if ct else AZ0,XB,G)]]
def xb_reads(): return [f'ds_read2_b32 v[{XB}:{XB+1}], v{RA0} offset0:0 offset1:32', f'ds_read2_b32 v[{XB+2}:{XB+3}], v{RA1} offset0:0 offset1:32']
def ra_mads(g): return [f'v_mad_u32_u16 v{RA0}, v{g}, 64, v{cRA} op_sel:[0,0,0,0]', f'v_mad_u32_u16 v{RA1}, v{g}, 64, v{cRA} op_sel:[1,0,0,0]']
def body(p):
    o=[]
    ex=lambda G:[f'v_exp_f32 v{G+r}, v{G+r}' for r in range(16)]
    rc=lambda G:[f'v_rcp_f32 v{G+r}, v{G+r}' for r in range(16)]
    o+=inter(ex(G0), [[mf(H0,AX+4*s,WV+4*s,'0' if s==0 else H0)] for s in range(4)], 4)
    sb=summ(G1,H1,8,RB1,1)
    o+=sb[:2]+[mf(G0,ONEA[p],ONEB,G0)]+sb[2:]
    o+=[f'v_mad_u32_u16 v{RB0}, v{GR[p]}, 64, v{cRB} op_sel:[0,0,0,0]', f'v_mad_u32_u16 v{RB1}, v{GR[p]}, 64, v{cRB} op_sel:[1,0,0,0]']
    o+=inter(rc(G0), gchain(G1,1,p), 3)
    o+=summ(G0,H0,0,RB0,0)
    o+=['s_waitcnt vmcnt(5)',
        f'ds_read2_b32 v[{XI}:{XI+1}], v{aXS} offset0:{16*STR*p} offset1:{16*STR*p+4}',
        f'ds_read_b32 v{EI}, v{aES} offset:{128*STR*p}', f'ds_read_b32 v{GR[p^1]}, v{aGRP} offset:{8*STR*p}']
    o+=inter(ex(G1), [[mf(H1,AX+4*s,WV+16+4*s,'0' if s==0 else H1), f'ds_read_b128 {q(AX+4*s)}, v{aAX+s} offset:{32768*(p^1)}'] for s in range(4)], 4)
    sb=summ(G0,H0,8,RB1,0)
    o+=sb[:2]+[mf(G1,ONEA[p],ONEB,G1)]
    o+=['s_waitcnt lgkmcnt(4)']+ra_mads(GR[p^1])
    o+=(e_issue(p) if not ENV('NO_EDMA') else [])+xb_reads()+e_flag(p)
    o+=sb[2:]
    o+=['s_waitcnt vmcnt(5) lgkmcnt(4)']+(x_dma(sX1 if p==0 else sX0) if not ENV('NO_XDMA') else [])
    gc=gchain(G0,0,p^1)
    gc[5]=['s_waitcnt lgkmcnt(2)']+gc[5]
    o+=inter(rc(G1), gc, 3)
    o+=summ(G1,H1,0,RB0,1)
    if p==1:
        o+=[f'v_add_u32 v{aXS}, {128*STR}, v{aXS}', f'v_add_u32 v{aES}, {256*STR}, v{aES}', f'v_add_u32 v{aGRP}, {16*STR}, v{aGRP}']
    if ENV('NO_XMFMA'):
        o=[i for i in o if not (i.startswith('v_mfma') and any(f', {q(AX+4*s)}, ' in i for s in range(4)))]
    if ENV('NO_MFMA'): o=[i for i in o if not i.startswith('v_mfma')]
    if ENV('NO_TRANS'): o=[i for i in o if not (i.startswith('v_exp') or i.startswith('v_rcp'))]
    return o

def k2():
    lab('standalone__edge_featured_mpnn_gatedgcn__graph_kernel')
    A('s_cmp_ge_u32 s2, 256'); A('s_cbranch_scc1 K2_END')
    A(f's_load_dwordx2 s[{sWS}:{sWS+1}], s[0:1], 88')
    A('s_load_dwordx4 s[4:7], s[0:1], 0')
    A('s_load_dwordx2 s[20:21], s[0:1], 72')
    A(f's_and_b32 s{sB}, s2, 7'); A(f's_lshl_b32 s{sB}, s{sB}, 5'); A(f's_lshr_b32 s{sT0}, s2, 3'); A(f's_or_b32 s{sB}, s{sB}, s{sT0}')
    A('v_lshrrev_b32 v1, 6, v0'); A('v_and_b32 v15, 63, v0')
    A(f'v_readfirstlane_b32 s{sWAVE}, v1')
    A('v_lshlrev_b32 v1, 4, v0')
    A(f'v_lshlrev_b32 v{vL16}, 4, v15')
    A(f's_lshl_b32 s{sT0}, s{sB}, 15')
    A('s_waitcnt lgkmcnt(0)')
    if STAMPS:
        A('s_memrealtime s[98:99]'); A('s_waitcnt lgkmcnt(0)'); A('s_mov_b32 s96, s98')
    stamp('start')
    A(f's_add_u32 s12, s{sWS}, s{sT0}'); A(f's_addc_u32 s13, s{sWS+1}, 0'); A('s_mov_b32 s14, 32000'); A('s_mov_b32 s15, 0x20000')
    for u in range(4):
        if u: A(f's_mov_b32 s{sT0}, {u*8192}')
        A(f'buffer_load_dwordx4 {q(EN+4*u)}, v1, s[12:15], {("s%d"%sT0) if u else "0"} offen')
    def init_a():
        A('v_lshlrev_b32 v1, 4, v0')
        for r in range(4): A(f'v_mov_b32 v{AX+r}, -1')
        A(f'v_add_u32 v14, {XS}, v1'); A(f'ds_write_b128 v14, {q(AX)}')
        for r in range(4): A(f'v_mov_b32 v{AX+4+r}, 0x{EPAD:08x}')
        A(f'ds_write_b128 v14, {q(AX+4)} offset:8192'); A(f'ds_write_b128 v14, {q(AX+4)} offset:16384')
        for r in range(4): A(f'v_mov_b32 v{AX+8+r}, 0x{(DUMMY<<16)|DUMMY:08x}')
        for r in range(4): A(f'v_mov_b32 v{AX+12+r}, 0')
        A('v_cmp_gt_u32 vcc, 64, v0'); A('s_nop 1')
        for r in range(4): A(f'v_cndmask_b32 v{AX+8+r}, v{AX+12+r}, v{AX+8+r}, vcc')
        A('v_cmp_gt_u32 vcc, 96, v0'); A(f's_and_saveexec_b64 s[{MK}:{MK+1}], vcc'); A(f'ds_write_b128 v14, {q(AX+8)} offset:{GRP-XS}'); A(f's_mov_b64 exec, s[{MK}:{MK+1}]')
    init_a()
    A('s_mov_b32 s8, s6'); A('s_mov_b32 s9, s7'); A(f's_mov_b32 s10, {E*32}'); A('s_mov_b32 s11, 0x20000')
    A(f's_mov_b32 s6, {N*128}'); A('s_mov_b32 s7, 0x20000')
    A(f's_mov_b32 s22, {N*128}'); A('s_mov_b32 s23, 0x20000')
    A(f's_add_u32 s16, s{sWS}, {WS_WPREP}'); A(f's_addc_u32 s17, s{sWS+1}, 0'); A('s_mov_b32 s18, 34816'); A('s_mov_b32 s19, 0x20000')
    A(f's_add_u32 s24, s{sWS}, {WS_OVFCNT}'); A(f's_addc_u32 s25, s{sWS+1}, 0'); A('s_mov_b32 s26, 1000'); A('s_mov_b32 s27, 0x20000')
    A(f'v_lshrrev_b32 v14, 3, v15'); A(f's_lshl_b32 s{sT0}, s{sWAVE}, 3'); A(f'v_add_u32 v14, s{sT0}, v14')
    A(f'v_lshlrev_b32 v14, 8, v14'); A(f'v_add_u32 v14, s{sB}, v14'); A('v_lshlrev_b32 v14, 7, v14')
    A('v_lshrrev_b32 v4, 4, v15'); A('v_and_b32 v5, 7, v15'); A('v_xor_b32 v4, v4, v5'); A(f'v_lshlrev_b32 v{cXE}, 4, v4'); A(f'v_xor_b32 v{cXO}, 64, v{cXE}')
    A(f's_and_b32 s{sT0}, s{sWAVE}, 1'); A(f's_cmp_eq_u32 s{sT0}, 0'); A('s_cselect_b64 vcc, -1, 0')
    A(f'v_cndmask_b32 v4, v{cXO}, v{cXE}, vcc'); A('v_add_u32 v4, v14, v4')
    A(f's_lshl_b32 s{sT0}, s{sWAVE}, 10'); A(f's_add_u32 m0, s{sT0}, {OWNX}'); A('s_nop 0')
    A(f'buffer_load_dwordx4 v4, s[{X_}:{X_+3}], 0 offen lds')
    for i in range(3):
        A(f's_add_u32 s{sT1}, s{sT0}, {8192*i}'); A(f's_add_u32 m0, s{sT1}, {WSTG}'); A('s_nop 0')
        A(f'buffer_load_dwordx4 v{vL16}, s[16:19], s{sT1} offen lds')
    stamp('issued')
    A('v_lshrrev_b32 v14, 6, v0'); A(f'v_mul_u32_u24 v14, {RECSZ}, v14'); A(f'v_add_u32 v14, v14, v{vL16}'); A(f'v_add_u32 v14, {REC+O_DEN}, v14')
    for r in range(4): A(f'v_mov_b32 v{AX+r}, 0')
    for i in range(5): A(f'ds_write_b128 v14, {q(AX)} offset:{8*RECSZ*i}')
    A(f'v_add_u32 v14, {8*RECSZ*5}, v14'); A(f'ds_write_b128 v14, {q(AX)}')
    A('v_cmp_gt_u32 vcc, 128, v0'); A(f's_and_saveexec_b64 s[{MK}:{MK+1}], vcc'); A(f'ds_write_b128 v14, {q(AX)} offset:{8*RECSZ}'); A(f's_mov_b64 exec, s[{MK}:{MK+1}]')
    A(f'v_mov_b32 v{vONE}, 1')
    A(f's_mov_b32 s{sCNT}, {CNT}'); A(f's_mov_b32 s{sXS}, {XS}'); A(f's_mov_b32 s{sES}, {ES}'); A(f's_mov_b32 s{s128}, 128')
    A(f's_mov_b32 s{sMODE}, 0'); A(f's_mov_b32 s{sFIRST}, 1'); A(f's_mov_b32 s{sU}, 0')
    A('v_lshrrev_b32 v4, 3, v0'); A('v_mul_u32_u24 v4, 3200, v4')
    for u in range(4): A(f'v_add_u32 v{EB+u}, 0x{(64*u*3200-1+EFLAG)&0xffffffff:08x}, v4')
    def lane_consts():
        C('lane constants (v1 = kg)')
        A('v_lshrrev_b32 v1, 5, v15'); A(f'v_lshlrev_b32 v{cKG}, 4, v1')
        A('v_bfe_u32 v5, v15, 3, 2'); A('v_lshlrev_b32 v4, 5, v1'); A('v_lshl_add_u32 v4, v5, 2, v4'); A(f'v_add_u32 v{kXS}, {XS}, v4')
        A('v_bfe_u32 v4, v15, 2, 1'); A('v_lshlrev_b32 v4, 4, v4'); A('v_bfe_u32 v5, v15, 4, 1'); A('v_lshl_add_u32 v4, v5, 3, v4')
        A('v_and_b32 v5, 3, v15'); A('v_lshl_add_u32 v4, v5, 1, v4'); A('v_bfe_u32 v5, v15, 3, 1'); A('v_add_u32 v4, v4, v5')
        A('v_lshlrev_b32 v4, 2, v4'); A(f'v_add_u32 v{kES}, {ES}, v4')
        A('v_lshlrev_b32 v4, 2, v1'); A(f'v_add_u32 v{kGRP}, {GRP}, v4')
        A('v_and_b32 v4, 31, v15'); A('v_lshlrev_b32 v5, 2, v4'); A(f'v_add_u32 v{cRA}, {REC}, v5'); A('v_lshlrev_b32 v5, 3, v4'); A(f'v_add_u32 v{cRB}, {REC+O_DEN}, v5')
        A('v_bfe_u32 v5, v15, 1, 3'); A('v_xor_b32 v5, v5, v1'); A('v_lshlrev_b32 v5, 4, v5'); A('v_lshl_add_u32 v4, v4, 7, v5')
        for s in range(4): A(f'v_xor_b32 v{kAX+s}, {32*s}, v4')
        A(f's_lshl_b32 s{sX0}, s{sWAVE}, 12'); A(f's_add_u32 s{sX1}, s{sX0}, 32768')
        A('v_bfe_u32 v4, v15, 2, 1'); A('v_cmp_eq_u32 vcc, v4, v1'); A('v_mov_b32 v5, 0x3f803f80'); A('s_nop 0'); A('v_cndmask_b32 v5, 0, v5, vcc')
        A('v_bfe_u32 v4, v15, 4, 1'); A('v_cmp_eq_u32 vcc, 0, v4'); A('s_nop 1'); A(f'v_cndmask_b32 v{AZ0}, 0, v5, vcc')
        A(f'v_sub_u32 v{AZ0+2}, v5, v{AZ0}'); A(f'v_mov_b32 v{AZ0+1}, 0'); A(f'v_mov_b32 v{AZ0+3}, 0')
        A(f'v_mov_b32 v{AZ1}, 0'); A(f'v_mov_b32 v{AZ1+1}, v{AZ0}'); A(f'v_mov_b32 v{AZ1+2}, 0'); A(f'v_mov_b32 v{AZ1+3}, v{AZ0+2}')
        A('v_cmp_eq_u32 vcc, 0, v1'); A('v_mov_b32 v5, 0x3f000000'); A('s_nop 0'); A(f'v_cndmask_b32 v{ONEB}, 0, v5, vcc')
        for r in range(1,4): A(f'v_mov_b32 v{ONEB+r}, 0'); A(f'v_mov_b32 v{ONEA[0]+r}, 0'); A(f'v_mov_b32 v{ONEA[1]+r}, 0')
    lane_consts()
    stamp('consts')
    A('s_waitcnt vmcnt(4)')
    A('s_branch K2_WD')
    lab('K2_ROUND')
    init_a()
    A('s_waitcnt vmcnt(0)')
    lab('K2_WD')
    stamp('vmw')
    for k in range(16): A(f'v_cmp_ne_u32 s[{MK+2*k}:{MK+2*k+1}], 0, v{EN+k}')
    for k in range(16):
        A(f'v_and_b32 v{AD+k}, 63, v{EN+k}'); A(f'v_lshl_add_u32 v{AD+k}, v{AD+k}, 2, s{sCNT}')
    A('s_waitcnt lgkmcnt(0)'); A('s_barrier')
    stamp('bar1')
    for k in range(16):
        A(f's_mov_b64 exec, s[{MK+2*k}:{MK+2*k+1}]'); A(f'ds_add_rtn_u32 v{RK+k}, v{AD+k}, v{vONE}')
    A('s_mov_b64 exec, -1')
    A(f's_cmp_eq_u32 s{sFIRST}, 1'); A('s_cbranch_scc0 K2_NF1')
    A(f'buffer_load_dwordx4 {q(T0)}, v{vL16}, s[24:27], 0 offen')
    A(f's_lshr_b32 s{sT0}, s{sWAVE}, 1'); A(f's_lshl_b32 s{sT0}, s{sT0}, 12'); A(f's_add_u32 s{sT0}, s{sT0}, {18*1024}')
    for s in range(4): A(f'buffer_load_dwordx4 {q(NGB+4*s)}, v{vL16}, s[16:19], s{sT0} offen offset:{1024*s}')
    lab('K2_NF1')
    A('s_waitcnt lgkmcnt(0)'); A('s_barrier')
    stamp('hist')
    A(f'v_lshl_add_u32 v4, v15, 2, s{sCNT}'); A('ds_read_b32 v5, v4'); A('s_waitcnt lgkmcnt(0)')
    A('v_add_u32 v5, 7, v5'); A('v_lshrrev_b32 v5, 3, v5'); A('v_mov_b32 v1, v5'); A('s_nop 1')
    for sh in (1,2,4,8):
        A(f'v_add_u32_dpp v1, v1, v1 row_shr:{sh} row_mask:0xf bank_mask:0xf bound_ctrl:0'); A('s_nop 1')
    A('v_add_u32_dpp v1, v1, v1 row_bcast:15 row_mask:0xa bank_mask:0xf'); A('s_nop 1')
    A('v_add_u32_dpp v1, v1, v1 row_bcast:31 row_mask:0xc bank_mask:0xf'); A('s_nop 1')
    A(f'v_readlane_b32 s{sNT}, v1, 63')
    A('v_sub_u32 v1, v1, v5')
    A(f'v_lshlrev_b32 v{T0+4}, 3, v1'); A(f'ds_write_b32 v4, v{T0+4} offset:256')
    A(f's_cmp_gt_u32 s{sNT}, {CAPG}'); A('s_cbranch_scc1 K2_SPLIT')
    for k in range(16): A(f'ds_read_b32 v{AD+k}, v{AD+k} offset:256')
    A(f'v_mul_u32_u24 v{XV}, 22, v15'); A(f'v_mov_b32 v{XV+1}, s{sWAVE}')
    lab('K2_GL')
    A(f'v_cmp_lt_u32 vcc, v{XV+1}, v5'); A('s_and_saveexec_b64 s[84:85], vcc'); A('s_cbranch_execz K2_GLD')
    A(f'v_add_u32 v{XV+2}, v1, v{XV+1}'); A(f'v_lshlrev_b32 v{XV+2}, 1, v{XV+2}'); A(f'v_add_u32 v{XV+2}, {GRP}, v{XV+2}')
    A(f'ds_write_b16 v{XV+2}, v{XV}'); A(f'v_add_u32 v{XV+1}, 8, v{XV+1}')
    A('s_mov_b64 exec, s[84:85]'); A('s_branch K2_GL')
    lab('K2_GLD'); A('s_mov_b64 exec, -1')
    A('s_waitcnt lgkmcnt(0)')
    stamp('prefix')
    for k in range(16):
        A(f'v_add_u32 v{RK+k}, v{RK+k}, v{AD+k}')
        A(f'v_lshl_add_u32 v{AD+k}, v{RK+k}, 1, s{sXS}')
        A(f'v_lshl_add_u32 v{RK+k}, v{RK+k}, 2, s{sES}')
        A(f'v_lshrrev_b32 v1, 20, v{EN+k}')
        A(f'v_bfe_u32 v{EN+k}, v{EN+k}, 6, 14')
        A(f'v_add_u32 v1, v1, v{EB+k//4}')
        A(f's_mov_b64 exec, s[{MK+2*k}:{MK+2*k+1}]')
        A(f'ds_write_b16 v{AD+k}, v{EN+k}'); A(f'ds_write_b32 v{RK+k}, v1')
        A('s_mov_b64 exec, -1')
    A(f's_add_u32 s{sNT}, s{sNT}, 3'); A(f's_lshr_b32 s{sNT}, s{sNT}, 2')
    A('s_waitcnt vmcnt(0) lgkmcnt(0)'); A('s_barrier')
    stamp('bar3')
    A(f's_mov_b32 s{sTI}, s{sWAVE}')
    A(f's_lshl_b32 s{sT0}, s{sWAVE}, 6'); A(f'v_add_u32 v{aXS}, s{sT0}, v{kXS}')
    A(f's_lshl_b32 s{sT0}, s{sWAVE}, 7'); A(f'v_add_u32 v{aES}, s{sT0}, v{kES}')
    A(f's_lshl_b32 s{sT0}, s{sWAVE}, 3'); A(f'v_add_u32 v{aGRP}, s{sT0}, v{kGRP}')
    A(f'ds_read_b32 v{EI}, v{aES}'); A(f'ds_read2_b32 v[{XI}:{XI+1}], v{aXS} offset0:0 offset1:4'); A(f'ds_read_b32 v{GR[0]}, v{aGRP}')
    for s in range(4): A(f'v_add_u32 v{aAX+s}, s{sX0}, v{kAX+s}')
    A('s_waitcnt lgkmcnt(0)')
    for i in x_dma(sX0)+e_issue(0)+e_flag(0): A(i)
    stamp('dma1')
    A(f's_cmp_eq_u32 s{sFIRST}, 0'); A('s_cbranch_scc1 K2_NG_DONE')
    A(f'v_add_u32 v1, {WSTG}, v{vL16}')
    A(f's_and_b32 s{sT0}, s{sWAVE}, 1'); A(f's_lshl_b32 s{sT0}, s{sT0}, 12'); A(f's_add_u32 s{sT0}, s{sT0}, {OWNX}')
    for s in range(4): A(f'v_add_u32 v{XV+s}, s{sT0}, v{kAX+s}')
    for s in range(4): A(f'ds_read_b128 {q(AX+4*s)}, v{XV+s}')
    for i in range(18): A(f'ds_read_b128 {q(WB+4*i)}, v1 offset:{1024*i}')
    A(f'v_or_b32 v{T0}, v{T0}, v{T0+1}'); A(f'v_or_b32 v{T0+2}, v{T0+2}, v{T0+3}'); A(f'v_or_b32 v{T0}, v{T0}, v{T0+2}')
    A(f'v_cmp_ne_u32 vcc, 0, v{T0}'); A('s_nop 3'); A('s_cmp_lg_u64 vcc, 0'); A(f's_cselect_b32 s{sOVF}, 1, 0')
    A('s_waitcnt lgkmcnt(0)')
    stamp('wread')
    for s in range(4): A(mf(G0, AX+4*s, NGB+4*s, '0' if s==0 else G0))
    A(f's_and_b32 s{sT0}, s{sWAVE}, 1'); A(f's_lshl_b32 s{sT0}, s{sT0}, 5'); A(f'v_lshrrev_b32 v1, 5, v15'); A(f'v_lshl_add_u32 v1, v1, 2, s{sT0}')
    A(f'v_mul_u32_u24 v1, {RECSZ}, v1')
    A(f's_bfe_u32 s{sT1}, s{sWAVE}, 0x10001')
    A(f's_cmp_ge_u32 s{sWAVE}, 4'); A('s_cbranch_scc1 K2_NG_U')
    A(f's_lshl_b32 s{sT1}, s{sT1}, 7'); A(f'v_add_u32 v1, v1, v{cRA}'); A(f'v_add_u32 v1, s{sT1}, v1')
    A(f's_mov_b32 s{sT2}, 0x{NLOG2E:08x}'); A('s_nop 7')
    for r in range(16):
        A(f'v_mul_f32 v{G0+r}, s{sT2}, v{G0+r}')
        A(f'v_cvt_pk_bf16_f32 v{SD}, v{G0+r}, v{G0+r}'); A(f'v_lshlrev_b32 v{SD}, 16, v{SD}'); A(f'v_sub_f32 v{SN}, v{G0+r}, v{SD}'); A(f'v_cvt_pk_bf16_f32 v{G0+r}, v{SD}, v{SN}')
    def wr_a(r): A(f'ds_write_b32 v1, v{G0+r} offset:{(8*(r//4)+(r%4))*RECSZ}')
    for r in range(8): wr_a(r)
    A(f's_and_b32 s{sT0}, s{sWAVE}, 1'); A(f's_cmp_eq_u32 s{sT0}, 0'); A('s_cbranch_scc0 K2_NG_A1')
    for r in range(8,16): wr_a(r)
    A('s_branch K2_NG_BAR')
    lab('K2_NG_A1')
    A('s_mov_b32 exec_lo, -1'); A('s_mov_b32 exec_hi, 0'); wr_a(8); wr_a(9); A('s_mov_b64 exec, -1'); A('s_branch K2_NG_BAR')
    lab('K2_NG_U')
    A(f's_lshl_b32 s{sT1}, s{sT1}, 6'); A(f'v_and_b32 v{SD}, 31, v15'); A(f'v_lshl_add_u32 v1, v{SD}, 1, v1'); A(f'v_add_u32 v1, s{sT1}, v1'); A(f'v_add_u32 v1, {REC+O_U}, v1')
    A('s_nop 7')
    for r in range(16): A(f'v_cvt_pk_bf16_f32 v{G0+r}, v{G0+r}, v{G0+r}')
    def wr_u(r): A(f'ds_write_b16 v1, v{G0+r} offset:{(8*(r//4)+(r%4))*RECSZ}')
    for r in range(8): wr_u(r)
    A(f's_and_b32 s{sT0}, s{sWAVE}, 1'); A(f's_cmp_eq_u32 s{sT0}, 0'); A('s_cbranch_scc0 K2_NG_U1')
    for r in range(8,16): wr_u(r)
    A('s_branch K2_NG_BAR')
    lab('K2_NG_U1')
    A('s_mov_b32 exec_lo, -1'); A('s_mov_b32 exec_hi, 0'); wr_u(8); wr_u(9); A('s_mov_b64 exec, -1')
    lab('K2_NG_BAR')
    stamp('ngm')
    A('s_waitcnt lgkmcnt(0)'); A('s_barrier')
    lab('K2_NG_DONE')
    stamp('ng')
    A(f's_mov_b32 s{sFIRST}, 0')
    A(f's_cmp_lt_u32 s{sTI}, s{sNT}'); A('s_cbranch_scc0 K2_LOOP_END')
    A(f'ds_read2_b32 v[{XI}:{XI+1}], v{aXS} offset0:{16*STR} offset1:{16*STR+4}'); A(f'ds_read_b32 v{EI}, v{aES} offset:{128*STR}')
    for i in ra_mads(GR[0]): A(i)
    A(f'v_mad_u32_u16 v{RB1}, v{GR[0]}, 64, v{cRB} op_sel:[1,0,0,0]')
    for i in xb_reads(): A(i)
    for r in range(8,16): A(f'v_mov_b32 v{G1+r}, 0'); A(f'v_mov_b32 v{H1+r}, 0')
    A('s_waitcnt lgkmcnt(2)')
    for i in x_dma(sX1)+e_issue(1)+e_flag(1): A(i)
    A(f'v_add_u32 v{aXS}, {128*STR}, v{aXS}')
    A(f'ds_read2_b32 v[{XI}:{XI+1}], v{aXS} offset0:0 offset1:4')
    A('s_waitcnt vmcnt(5)')
    stamp('entw')
    for s in range(4): A(f'ds_read_b128 {q(AX+4*s)}, v{aAX+s}')
    A(f'v_add_u32 v{aXS}, {64*STR}, v{aXS}'); A(f'v_add_u32 v{aES}, {256*STR}, v{aES}'); A(f'v_add_u32 v{aGRP}, {8*STR}, v{aGRP}')
    A('s_waitcnt lgkmcnt(0)')
    for g in gchain(G0,0,0):
        for i in g: A(i)
    for i in x_dma(sX0): A(i)
    stamp('entd')
    lab('K2_LOOP')
    for i in body(0): A(i)
    A(f's_add_u32 s{sTI}, s{sTI}, {STR}'); A(f's_cmp_lt_u32 s{sTI}, s{sNT}'); A('s_cbranch_scc0 K2_TAIL')
    for i in body(1): A(i)
    A(f's_add_u32 s{sTI}, s{sTI}, {STR}'); A(f's_cmp_lt_u32 s{sTI}, s{sNT}'); A('s_cbranch_scc1 K2_LOOP')
    lab('K2_TAIL')
    for i in summ(G1,H1,8,RB1,1): A(i)
    lab('K2_LOOP_END')
    stamp('loop')
    A('s_waitcnt vmcnt(0) lgkmcnt(0)'); A('s_barrier')
    stamp('bar5')
    A(f's_cmp_eq_u32 s{sMODE}, 1'); A('s_cbranch_scc1 K2_NEXT_SPLIT')
    A(f's_cmp_eq_u32 s{sMODE}, 2'); A('s_cbranch_scc1 K2_NEXT_OVF')
    lab('K2_CHECK_OVF')
    A(f's_cmp_eq_u32 s{sOVF}, 0'); A('s_cbranch_scc1 K2_EPI')
    A(f's_mov_b32 s{sMODE}, 2'); A(f's_mov_b32 s{sOC}, 0'); A(f's_mov_b32 s{sOP}, 0'); A('s_branch K2_OVF_FIND')
    lab('K2_SPLIT')
    A(f's_mov_b32 s{sMODE}, 1'); A(f's_mov_b32 s{sU}, 0')
    A('s_waitcnt lgkmcnt(0)'); A('s_barrier')
    A('s_branch K2_LOADQ')
    lab('K2_NEXT_SPLIT')
    A(f's_add_u32 s{sU}, s{sU}, 1'); A(f's_cmp_ge_u32 s{sU}, 4'); A('s_cbranch_scc1 K2_CHECK_OVF')
    lab('K2_LOADQ')
    A(f's_lshl_b32 s{sT0}, s{sU}, 13'); A('v_lshlrev_b32 v1, 4, v0')
    A('s_waitcnt vmcnt(0)')
    A(f'buffer_load_dwordx4 {q(EN)}, v1, s[12:15], s{sT0} offen')
    for k in range(4,16): A(f'v_mov_b32 v{EN+k}, 0')
    A(f's_mul_i32 s{sT0}, s{sU}, {64*3200}'); A(f's_add_u32 s{sT0}, s{sT0}, 0x{EFLAG-1:08x}')
    A('v_lshrrev_b32 v4, 3, v0'); A('v_mul_u32_u24 v4, 3200, v4'); A(f'v_add_u32 v{EB}, s{sT0}, v4')
    A('s_branch K2_ROUND')
    lab('K2_NEXT_OVF')
    A(f's_add_u32 s{sOP}, s{sOP}, 2048')
    lab('K2_OVF_FIND')
    A(f's_cmp_ge_u32 s{sOC}, {NCH}'); A('s_cbranch_scc1 K2_EPI')
    A(f's_lshl_b32 s{sT0}, s{sOC}, 2'); A(f's_add_u32 s{sT0}, s{sT0}, {WS_OVFCNT}')
    A(f's_load_dword s{sON}, s[{sWS}:{sWS+1}], s{sT0}'); A('s_waitcnt lgkmcnt(0)')
    A(f's_cmp_gt_u32 s{sON}, s{sOP}'); A('s_cbranch_scc1 K2_OVF_LOAD')
    A(f's_add_u32 s{sOC}, s{sOC}, 1'); A(f's_mov_b32 s{sOP}, 0'); A('s_branch K2_OVF_FIND')
    lab('K2_OVF_LOAD')
    A(f's_mul_i32 s{sT0}, s{sOC}, 25600'); A(f's_add_u32 s{sT0}, s{sT0}, {WS_OVFL}')
    A(f's_add_u32 s24, s{sWS}, s{sT0}'); A(f's_addc_u32 s25, s{sWS+1}, 0'); A(f's_lshl_b32 s26, s{sON}, 3'); A('s_mov_b32 s27, 0x20000')
    A(f'v_add_u32 v1, s{sOP}, v0'); A('v_lshlrev_b32 v1, 3, v1')
    A(f'buffer_load_dwordx2 v[{AX}:{AX+1}], v1, s[24:27], 0 offen')
    for j in range(1,4):
        A(f's_mov_b32 s{sT0}, {4096*j}'); A(f'buffer_load_dwordx2 v[{AX+2*j}:{AX+2*j+1}], v1, s[24:27], s{sT0} offen')
    A('s_waitcnt vmcnt(0)')
    for j in range(4):
        A(f'v_cmp_eq_u32 vcc, s{sB}, v{AX+2*j+1}'); A('s_nop 1'); A(f'v_cndmask_b32 v{EN+j}, 0, v{AX+2*j}, vcc')
    for k in range(4,16): A(f'v_mov_b32 v{EN+k}, 0')
    A(f's_mul_i32 s{sT0}, s{sOC}, 3200'); A(f's_add_u32 s{sT0}, s{sT0}, 0x{EFLAG-1:08x}'); A(f'v_mov_b32 v{EB}, s{sT0}')
    A('s_branch K2_ROUND')
    lab('K2_EPI')
    A('v_lshrrev_b32 v1, 3, v0'); A('v_and_b32 v2, 7, v0')
    A(f'v_lshlrev_b32 v3, 8, v1'); A(f'v_add_u32 v3, s{sB}, v3'); A('v_lshlrev_b32 v3, 7, v3'); A('v_lshl_add_u32 v3, v2, 4, v3')
    A(f'buffer_load_dwordx4 v[16:19], v3, s[{X_}:{X_+3}], 0 offen')
    A(f'v_mul_u32_u24 v4, {RECSZ}, v1'); A(f'v_add_u32 v4, {REC}, v4'); A('v_lshl_add_u32 v5, v2, 6, v4'); A('v_lshl_add_u32 v6, v2, 4, v4')
    for i in range(4): A(f'ds_read_b128 {q(48+4*i)}, v5 offset:{O_DEN+16*i}')
    for i in range(4): A(f'ds_read_b128 {q(64+4*i)}, v5 offset:{O_NUM+16*i}')
    A(f'ds_read_b128 v[36:39], v6 offset:{O_U}')
    A('s_mov_b32 s40, 0x358637bd')
    A('s_waitcnt lgkmcnt(0)')
    for i in range(8): A(f'v_cvt_f32_f64 v{20+i}, v[{48+2*i}:{49+2*i}]'); A(f'v_cvt_f32_f64 v{28+i}, v[{64+2*i}:{65+2*i}]')
    for i in range(8): A(f'v_add_f32 v{20+i}, s40, v{20+i}')
    for i in range(8): A(f'v_rcp_f32 v{20+i}, v{20+i}')
    for i in range(4):
        A(f'v_lshlrev_b32 v{40+2*i}, 16, v{36+i}'); A(f'v_and_b32 v{41+2*i}, 0xffff0000, v{36+i}')
    for i in range(8): A(f'v_fmac_f32 v{40+i}, v{28+i}, v{20+i}')
    for i in range(8):
        A(f'v_mul_f32 v{28+i}, 0, v{40+i}'); A(f'v_cmp_lt_f32 vcc, 0, v{40+i}'); A('s_nop 1'); A(f'v_cndmask_b32 v{28+i}, v{28+i}, v{40+i}, vcc')
    A('s_waitcnt vmcnt(0)')
    for i in range(4):
        A(f'v_lshlrev_b32 v{40+2*i}, 16, v{16+i}'); A(f'v_and_b32 v{41+2*i}, 0xffff0000, v{16+i}')
    for i in range(8): A(f'v_add_f32 v{28+i}, v{28+i}, v{40+i}')
    for i in range(4): A(f'v_cvt_pk_bf16_f32 v{20+i}, v{28+2*i}, v{29+2*i}')
    A(f'buffer_store_dwordx4 v[20:23], v3, s[{OU_}:{OU_+3}], 0 offen')
    stamp('end')
    stamp_store()
    lab('K2_END')
    A('s_endpgm')

hdr = f'''; GatedGCN edge-featured MPNN: K1 buckets edges by destination, K2 gathers + MFMA + segment-reduces in LDS.
; @launch kernel=gcn_sort_kernel grid=({K1_GRID},1,1) block=(1024,1,1) lds={K1_LDS}
; @launch kernel=standalone__edge_featured_mpnn_gatedgcn__graph_kernel grid=(256,1,1) block=(512,1,1) lds={LDS_END}
.amdgcn_target "amdgcn-amd-amdhsa--gfx950"
.text
'''
def kd(name, nv, ns):
    return f'''.p2align 6
.amdhsa_kernel {name}
  .amdhsa_next_free_vgpr {nv}
  .amdhsa_next_free_sgpr {ns}
  .amdhsa_accum_offset {(nv+3)//4*4}
  .amdhsa_group_segment_fixed_size 0
  .amdhsa_kernarg_size 96
  .amdhsa_user_sgpr_count 2
  .amdhsa_user_sgpr_kernarg_segment_ptr 1
  .amdhsa_system_sgpr_workgroup_id_x 1
.end_amdhsa_kernel
'''
out=[hdr]
out.append('.globl gcn_sort_kernel\n.p2align 8\n.type gcn_sort_kernel,@function')
k1(); out+=L; L=[]
out.append('.globl standalone__edge_featured_mpnn_gatedgcn__graph_kernel\n.p2align 8\n.type standalone__edge_featured_mpnn_gatedgcn__graph_kernel,@function')
k2(); out+=L
out.append('.section .rodata,"a"')
out.append(kd('gcn_sort_kernel', 40, 64))
out.append(kd('standalone__edge_featured_mpnn_gatedgcn__graph_kernel', NVGPR, 102 if STAMPS else 96))
open(sys.argv[1] if len(sys.argv)>1 else 'out.s','w').write('\n'.join(out)+'\n')
print('LDS_END',LDS_END)
```

```python
import sys, os
N=12500; E=800000; CH=3200; NCH=250; NBK=256
WS_CELLS=0; WS_OVFCNT=0x800000; WS_WPREP=0x801000; WS_OVFL=0x810000; WS_T=0x1000000
NLOG2E=0xBFB8AA3B
L=[]
def A(s): L.append(s if s.endswith(':') else '    '+s)
def lab(s): L.append(s+':')
def C(s): L.append('    ; '+s)
ENV=lambda k: os.environ.get(k)
def q(base,n=4): return f'v[{base}:{base+n-1}]'
def mf(d,a,b,c): return f'v_mfma_f32_32x32x16_bf16 {q(d,16)}, {q(a)}, {q(b)}, {c if c=="0" else q(c,16)}'
K1_GRID=NCH+3
K1_LDS=49152
S1=ENV('S1')
def k1():
    lab('gcn_sort_kernel')
    if ENV('DBG') or int(os.environ.get('STAMPS','0')): A('s_memrealtime s[50:51]')
    A(f's_cmp_ge_u32 s2, {K1_GRID}'); A('s_cbranch_scc1 K1_END3' if ENV('DBG') else 's_cbranch_scc1 K1_END')
    A('s_load_dwordx2 s[8:9], s[0:1], 88')
    A(f's_cmp_ge_u32 s2, {NCH}'); A('s_cbranch_scc1 K1_W')
    A('s_load_dwordx4 s[4:7], s[0:1], 16')
    A('s_load_dwordx2 s[44:45], s[0:1], 0')
    A('v_lshlrev_b32 v1, 4, v0')
    A('s_mul_i32 s10, s2, 12800')
    A('s_waitcnt lgkmcnt(0)')
    if int(os.environ.get('STAMPS','0')):
        A('s_add_u32 s56, s8, 0x2080000'); A('s_addc_u32 s57, s9, 0'); A('s_mov_b32 s58, 1024'); A('s_mov_b32 s59, 0x20000')
        A('s_lshl_b32 s60, s2, 2'); A('v_mov_b32 v20, s50'); A('v_mov_b32 v21, s60'); A('buffer_store_dword v20, v21, s[56:59], 0 offen')
    A('s_add_u32 s16, s6, s10'); A('s_addc_u32 s17, s7, 0'); A('s_mov_b32 s18, 12800'); A('s_mov_b32 s19, 0x20000')
    A('buffer_load_dwordx4 v[8:11], v1, s[16:19], 0 offen')
    A('s_add_u32 s12, s4, s10'); A('s_addc_u32 s13, s5, 0'); A('s_mov_b32 s14, 12800'); A('s_mov_b32 s15, 0x20000')
    A('buffer_load_dwordx4 v[12:15], v1, s[12:15], 0 offen')
    if ENV('K1_XPF'):
        A(f's_mov_b32 s46, {N*128}'); A('s_mov_b32 s47, 0x20000')
        A('s_lshr_b32 s10, s2, 3'); A('s_mul_i32 s10, s10, 404'); A('v_add_u32 v36, s10, v0'); A('v_lshlrev_b32 v36, 7, v36')
        A('v_cmp_gt_u32 vcc, 404, v0'); A('v_mov_b32 v37, 0x7fffffff'); A('s_nop 0'); A('v_cndmask_b32 v36, v37, v36, vcc')
        A('buffer_load_dword v38, v36, s[44:47], 0 offen')
    for r in range(4,8): A(f'v_mov_b32 v{r}, 0')
    A('ds_write_b128 v1, v[4:7]'); A('ds_write_b128 v1, v[4:7] offset:16384'); A('ds_write_b128 v1, v[4:7] offset:32768')
    A('s_mul_i32 s10, s2, 25600')
    A(f's_add_u32 s24, s8, {WS_OVFL}'); A('s_addc_u32 s25, s9, 0'); A('s_add_u32 s24, s24, s10'); A('s_addc_u32 s25, s25, 0')
    A('s_mov_b32 s26, 25600'); A('s_mov_b32 s27, 0x20000')
    A('s_mov_b32 s32, s8'); A('s_mov_b32 s33, s9'); A('s_mov_b32 s34, 0x800000'); A('s_mov_b32 s35, 0x20000')
    A('s_lshl_b32 s36, s2, 7'); A('s_add_u32 s37, s36, 0x400000')
    A(f's_add_u32 s40, s8, {WS_OVFCNT}'); A('s_addc_u32 s41, s9, 0'); A('s_mov_b32 s42, 1000'); A('s_mov_b32 s43, 0x20000')
    A('v_mov_b32 v2, 1'); A('v_mov_b32 v3, 37888')
    A('s_waitcnt lgkmcnt(0)'); A('s_barrier')
    A('v_cmp_gt_u32 vcc, 800, v0'); A('s_and_saveexec_b64 s[20:21], vcc'); A('s_cbranch_execz K1_SKIP')
    A('s_mov_b64 s[28:29], exec')
    NP=1 if ENV('K1_XPF') else 0
    A(f's_waitcnt vmcnt({1+NP})')
    for j in range(4):
        A(f'v_and_b32 v{16+j}, 255, v{8+j}')
        A(f'v_lshlrev_b32 v{24+j}, 2, v{16+j}')
        A(f'ds_add_rtn_u32 v{28+j}, v{24+j}, v2 offset:36864')
    A(f's_waitcnt vmcnt({NP})')
    for j in range(4):
        A(f'v_lshrrev_b32 v{20+j}, 8, v{8+j}')
        A(f'v_lshl_or_b32 v{20+j}, v{12+j}, 6, v{20+j}')
        A(f'v_lshl_add_u32 v32, v0, 2, {j+1}')
        A(f'v_lshl_or_b32 v{20+j}, v32, 20, v{20+j}')
        A(f'v_mul_u32_u24 v{24+j}, 144, v{16+j}')
    A('s_waitcnt lgkmcnt(0)')
    for j in range(4):
        A(f'v_lshl_add_u32 v{24+j}, v{28+j}, 2, v{24+j}')
        A(f'v_cmp_gt_u32 vcc, 32, v{28+j}')
        A('s_mov_b64 exec, vcc')
        A(f'ds_write_b32 v{24+j}, v{20+j}')
        A('s_andn2_b64 exec, s[28:29], vcc')
        A(f's_cbranch_execz K1_NOV{j}')
        A('ds_add_rtn_u32 v33, v3, v2')
        A(f'v_mov_b32 v34, v{20+j}'); A(f'v_mov_b32 v35, v{16+j}')
        A('s_waitcnt lgkmcnt(0)')
        A('v_lshlrev_b32 v33, 3, v33')
        A('buffer_store_dwordx2 v[34:35], v33, s[24:27], 0 offen')
        A('s_nop 1')
        lab(f'K1_NOV{j}')
        A('s_mov_b64 exec, s[28:29]')
    lab('K1_SKIP')
    A('s_mov_b64 exec, -1')
    A(f's_waitcnt vmcnt({NP})')
    A('v_lshrrev_b32 v4, 3, v0'); A('v_and_b32 v5, 7, v0')
    A('v_mul_u32_u24 v6, 144, v4'); A('v_lshl_add_u32 v6, v5, 4, v6')
    A('v_lshlrev_b32 v7, 15, v4'); A('v_lshl_add_u32 v7, v5, 4, v7')
    A('s_waitcnt lgkmcnt(0)'); A('s_barrier')
    A('ds_read_b128 v[8:11], v6'); A('ds_read_b128 v[12:15], v6 offset:18432'); A('ds_read_b32 v16, v3')
    A('s_waitcnt lgkmcnt(2)')
    CST=os.environ.get('CST','sc1')
    if CST!='none':
        A(f'buffer_store_dwordx4 v[8:11], v7, s[32:35], s36 offen {CST}')
        A('s_waitcnt lgkmcnt(1)')
        A(f'buffer_store_dwordx4 v[12:15], v7, s[32:35], s37 offen {CST}')
    A('v_cmp_eq_u32 vcc, 0, v0'); A('s_and_saveexec_b64 s[20:21], vcc'); A('s_cbranch_execz K1_END')
    A('s_lshl_b32 s10, s2, 2'); A('v_mov_b32 v17, s10')
    A('s_waitcnt lgkmcnt(0)')
    A('buffer_store_dword v16, v17, s[40:43], 0 offen')
    A('s_branch K1_END')
    lab('K1_W')
    A('s_load_dwordx8 s[12:19], s[0:1], 32')
    A('s_load_dwordx2 s[20:21], s[0:1], 64')
    A('v_lshrrev_b32 v1, 6, v0'); A('s_nop 0'); A('v_readfirstlane_b32 s10, v1')
    A(f's_sub_u32 s11, s2, {NCH}'); A('s_lshl_b32 s11, s11, 4'); A('s_nop 2'); A('s_add_u32 s10, s10, s11')
    A('s_cmp_ge_u32 s10, 34'); A('s_cbranch_scc1 K1_END')
    A('s_waitcnt lgkmcnt(0)')
    A('s_mov_b32 s24, s14'); A('s_mov_b32 s25, s15'); A('s_mov_b32 s26, 8192'); A('s_mov_b32 s27, 0x20000')
    A(f's_mov_b32 s28, 0x{NLOG2E:08x}'); A('s_mov_b32 s29, s10')
    A('s_cmp_ge_u32 s10, 8'); A('s_cbranch_scc0 K1_WSEL')
    A('s_mov_b32 s24, s20'); A('s_mov_b32 s25, s21'); A('s_mov_b32 s28, 0x3f800000'); A('s_sub_u32 s29, s10, 8')
    A('s_cmp_ge_u32 s10, 16'); A('s_cbranch_scc0 K1_WSEL')
    A('s_mov_b32 s24, s16'); A('s_mov_b32 s25, s17'); A('s_mov_b32 s26, 2048'); A(f's_mov_b32 s28, 0x{NLOG2E:08x}')
    A('s_sub_u32 s29, s10, 16'); A('s_lshl_b32 s29, s29, 2')
    A('s_cmp_ge_u32 s10, 18'); A('s_cbranch_scc0 K1_WSEL')
    A('s_mov_b32 s24, s12'); A('s_mov_b32 s25, s13'); A('s_mov_b32 s26, 8192'); A('s_mov_b32 s28, 0x3f800000'); A('s_sub_u32 s29, s10, 18')
    A('s_cmp_ge_u32 s10, 26'); A('s_cbranch_scc0 K1_WSEL')
    A('s_mov_b32 s24, s18'); A('s_mov_b32 s25, s19'); A('s_sub_u32 s29, s10, 26')
    lab('K1_WSEL')
    A('s_lshr_b32 s30, s29, 2'); A('s_and_b32 s31, s29, 3')
    A('s_lshl_b32 s30, s30, 6'); A('s_lshl_b32 s31, s31, 11'); A('s_add_u32 s30, s30, s31')
    A('v_and_b32 v2, 63, v0'); A('v_and_b32 v3, 31, v0'); A('v_lshrrev_b32 v4, 5, v2')
    A('v_lshlrev_b32 v4, 10, v4'); A('v_lshl_add_u32 v4, v3, 1, v4'); A('v_add_u32 v4, s30, v4')
    for t in range(8): A(f'buffer_load_ushort v{8+t}, v4, s[24:27], 0 offen offset:{128*t}')
    A(f's_add_u32 s32, s8, {WS_WPREP}'); A('s_addc_u32 s33, s9, 0'); A('s_mov_b32 s34, 34816'); A('s_mov_b32 s35, 0x20000')
    A('s_lshl_b32 s36, s10, 10'); A('v_lshlrev_b32 v5, 4, v2')
    A('s_waitcnt vmcnt(0)')
    for t in range(8):
        A(f'v_lshlrev_b32 v{8+t}, 16, v{8+t}'); A(f'v_mul_f32 v{8+t}, s28, v{8+t}')
    for t in range(4): A(f'v_cvt_pk_bf16_f32 v{16+t}, v{8+2*t}, v{9+2*t}')
    A('buffer_store_dwordx4 v[16:19], v5, s[32:35], s36 offen')
    lab('K1_END')
    if ENV('DBG'):
        A('s_cmp_eq_u32 s2, 7'); A('s_cbranch_scc0 K1_END2')
        A('s_load_dwordx2 s[52:53], s[0:1], 80'); A('s_memrealtime s[54:55]'); A('s_waitcnt lgkmcnt(0)')
        A('s_mov_b64 exec, 1'); A('s_mov_b32 s56, s54'); A('s_mov_b32 s54, 256'); A('s_mov_b32 s55, 0x20000')
        A('v_mov_b32 v20, s56'); A('v_mov_b32 v21, s50'); A('v_mov_b32 v22, 0')
        A('buffer_store_dword v21, v22, s[52:55], 0 offen'); A('buffer_store_dword v20, v22, s[52:55], 0 offen offset:4')
        lab('K1_END2')
        lab('K1_END3')
    A('s_endpgm')

XST=0; REC=65536; RECSZ=1408; XS=REC+50*RECSZ; ES=XS+8192; GRP=ES+16384; CNT=GRP+1024; NBT=CNT+256; LDS_END=NBT+256
OWNX=32768; WSTG=40960
O_DEN=256; O_NUM=768; O_U=1280
CAPG=512
DUMMY=49*22
EPAD=0x700FFFFF; EFLAG=0x40000000
cXE=2; cXO=3; aXS=4; aES=5; cKG=6; aGRP=7; cRA=8; cRB=9; aAX=10
WB=16; WV=48; WC=80; XB=88; AZ0=92; AZ1=96; ONEB=100; ONEA=[104,108]; AX=112; AE=[128,132]; G0=136; G1=152; H0=168; H1=184
XI=200; XV=202; EI=206; EV=207; GR=[208,209]; RA0=210; RA1=211; RB0=212; RB1=213; SD=214; SN=215; PD=216; PN=218
vONE=220; kXS=221; kES=222; kGRP=223; kAX=224; vL16=228; T0=230; NGB=236; cXM=252
NVGPR=256
XG_=64
EN=G0; RK=G1; EB=H0; AD=H0+4; EW=AX
sB=3; X_=4; EA_=8; CE_=12; WP_=16; OU_=20; MI_=24; sWS=28; sWAVE=30; sNT=31; sTI=32; sX0=33; sX1=34; sMODE=36; sFIRST=37; sOVF=38; sU=39
MK=40
sCNT=72; sXS=73; sES=74; sT0=75; sT1=76; sT2=77; sOC=78; sOP=79; sON=80; s128=83
STAMPS=int(os.environ.get('STAMPS','0'))
STR=8
SSET=os.environ.get('SSET','main')
SMAP={'main':{'start':0,'bar1':1,'hist':2,'prefix':3,'bar3':4,'ng':5,'loop':6,'bar5':7,'end':8},
      'pro':{'start':0,'issued':1,'consts':2,'vmw':3,'bar1':4,'hist':5,'bar3':6,'ng':7,'entd':8},
      'pro2':{'bar3':0,'dma1':1,'wread':2,'ngm':3,'ng':4,'entw':5,'entd':6,'loop':7,'end':8}}[SSET]
def stamp(name):
    if STAMPS and name in SMAP:
        i=SMAP[name]
        A('s_memtime s[98:99]' if STAMPS==1 else 's_memrealtime s[98:99]'); A('s_waitcnt lgkmcnt(0)'); A(f's_mov_b32 s{86+i}, s98')
def stamp_store():
    if STAMPS and ENV('DBG'):
        A('s_memrealtime s[98:99]'); A('s_waitcnt lgkmcnt(0)'); A('s_mov_b32 s97, s98')
        A('s_cmp_eq_u32 s2, 7'); A('s_cbranch_scc0 K2_DBGE'); A(f's_cmp_eq_u32 s{sWAVE}, 0'); A('s_cbranch_scc0 K2_DBGE')
        A('s_load_dwordx2 s[24:25], s[0:1], 80'); A('s_waitcnt lgkmcnt(0)'); A('s_mov_b64 exec, 1'); A('v_mov_b32 v14, 0'); A('s_mov_b32 s26, 256'); A('s_mov_b32 s27, 0x20000')
        for i in range(12):
            A(f'v_mov_b32 v1, s{86+i}'); A(f'buffer_store_dword v1, v14, s[24:27], 0 offen offset:{8+4*i}')
        lab('K2_DBGE')
    elif STAMPS:
        A('s_memrealtime s[98:99]'); A('s_waitcnt lgkmcnt(0)'); A('s_mov_b32 s97, s98')
        A(f's_add_u32 s24, s{sWS}, 0x2000000'); A(f's_addc_u32 s25, s{sWS+1}, 0'); A('s_mov_b32 s26, 0x100000'); A('s_mov_b32 s27, 0x20000')
        A(f's_lshl_b32 s75, s2, 3'); A(f's_add_u32 s75, s75, s{sWAVE}'); A('s_lshl_b32 s75, s75, 6')
        for i in range(12):
            A(f'v_mov_b32 v1, s{86+i}'); A(f'v_mov_b32 v14, {4*i}'); A('buffer_store_dword v1, v14, s[24:27], s75 offen')
def x_dma(sbase):
    o=[f's_mov_b32 m0, s{sbase}']
    for m in range(4):
        o.append(f'v_mad_u32_u16 v{XV+m}, v{XI+(m>>1)}, s{s128}, v{cXM+m} op_sel:[{m&1},0,0,0]')
        o.append(f'buffer_load_dwordx4 v{XV+m}, s[{XG_}:{XG_+3}], 0 offen offset:{1024*m} lds')
    return o
ENT='' if ENV('NO_NT') else ' nt'
def e_issue(p):
    return [f'v_mad_u32_u24 v{EV}, v{EI}, 32, v{cKG}', f'buffer_load_dwordx4 {q(AE[p])}, v{EV}, s[{EA_}:{EA_+3}], 0 offen{ENT}']
def e_flag(p): return [f'v_and_b32 v{ONEA[p]}, 0xff000000, v{EI}']
def summ(G,H,b,rb,ct):
    if ENV('PK'):
        P=lambda x: f'v[{x}:{x+1}]'
        o=[f'v_pk_mul_f32 {P(PN)}, {P(G+b)}, {P(H+b)}', f'v_pk_add_f32 {P(PD)}, {P(G+b)}, {P(G+b+2)}']
        for r in (2,4,6):
            o.append(f'v_pk_fma_f32 {P(PN)}, {P(G+b+r)}, {P(H+b+r)}, {P(PN)}')
            if r>=4: o.append(f'v_pk_add_f32 {P(PD)}, {P(PD)}, {P(G+b+r)}')
        o.append(f'v_add_f32 v{SD}, v{PD}, v{PD+1}'); o.append(f'v_add_f32 v{SN}, v{PN}, v{PN+1}')
    else:
        o=[f'v_mul_f32 v{SN}, v{G+b}, v{H+b}', f'v_add_f32 v{SD}, v{G+b}, v{G+b+1}']
        for r in range(1,8):
            o.append(f'v_fmac_f32 v{SN}, v{G+b+r}, v{H+b+r}')
            if r>=2: o.append(f'v_add_f32 v{SD}, v{SD}, v{G+b+r}')
    o.append(f'v_cvt_f64_f32 v[{PD}:{PD+1}], v{SD}'); o.append(f'v_cvt_f64_f32 v[{PN}:{PN+1}], v{SN}')
    if not ENV('NO_DSADD'):
        o.append(f'ds_add_f64 v{rb}, v[{PD}:{PD+1}] offset:{ct*256}'); o.append(f'ds_add_f64 v{rb}, v[{PN}:{PN+1}] offset:{512+ct*256}')
    return o
def inter(v, m, every):
    o=[]; m=list(m)
    for i,x in enumerate(v):
        if m and i%every==0: o+=m.pop(0)
        o.append(x)
    for g in m: o+=g
    return o
def gchain(G,ct,p):
    return [[mf(G,AX,WB+16*ct,'0')],[mf(G,AX+4,WB+16*ct+4,G)],[mf(G,AX+8,WB+16*ct+8,G)],[mf(G,AX+12,WB+16*ct+12,G)],
            [mf(G,AE[p],WC+4*ct,G)],[mf(G,AZ1 if ct else AZ0,XB,G)]]
def xb_reads(): return [f'ds_read2_b32 v[{XB}:{XB+1}], v{RA0} offset0:0 offset1:32', f'ds_read2_b32 v[{XB+2}:{XB+3}], v{RA1} offset0:0 offset1:32']
def ra_mads(g): return [f'v_mad_u32_u16 v{RA0}, v{g}, 64, v{cRA} op_sel:[0,0,0,0]', f'v_mad_u32_u16 v{RA1}, v{g}, 64, v{cRA} op_sel:[1,0,0,0]']
def body(p):
    o=[]
    ex=lambda G:[f'v_exp_f32 v{G+r}, v{G+r}' for r in range(16)]
    rc=lambda G:[f'v_rcp_f32 v{G+r}, v{G+r}' for r in range(16)]
    xd=x_dma(sX0 if p==0 else sX1) if not ENV('NO_XDMA') else ['s_nop 0']
    grp=[[mf(H0,AX+4*s,WV+4*s,'0' if s==0 else H0)]+(xd[:3] if s==0 else xd[1+2*s:3+2*s]) for s in range(4)]
    o+=inter(ex(G0), grp, 4)
    sb=summ(G1,H1,8,RB1,1)
    o+=sb[:2]+[mf(G0,ONEA[p],ONEB,G0)]+sb[2:]
    o+=[f'v_mad_u32_u16 v{RB0}, v{GR[p]}, 64, v{cRB} op_sel:[0,0,0,0]', f'v_mad_u32_u16 v{RB1}, v{GR[p]}, 64, v{cRB} op_sel:[1,0,0,0]']
    o+=inter(rc(G0), gchain(G1,1,p), 3)
    o+=summ(G0,H0,0,RB0,0)
    o+=['s_waitcnt vmcnt(5)',
        f'ds_read2_b32 v[{XI}:{XI+1}], v{aXS} offset0:{16*STR*p} offset1:{16*STR*p+4}',
        f'ds_read_b32 v{EI}, v{aES} offset:{128*STR*p}', f'ds_read_b32 v{GR[p^1]}, v{aGRP} offset:{8*STR*p}']
    o+=inter(ex(G1), [[mf(H1,AX+4*s,WV+16+4*s,'0' if s==0 else H1), f'ds_read_b128 {q(AX+4*s)}, v{aAX+s} offset:{32768*(p^1)}'] for s in range(4)], 4)
    sb=summ(G0,H0,8,RB1,0)
    o+=sb[:2]+[mf(G1,ONEA[p],ONEB,G1)]
    o+=['s_waitcnt lgkmcnt(4)']+ra_mads(GR[p^1])
    o+=(e_issue(p) if not ENV('NO_EDMA') else [])+xb_reads()+e_flag(p)
    o+=sb[2:]
    o+=['s_waitcnt vmcnt(5) lgkmcnt(4)']
    gc=gchain(G0,0,p^1)
    gc[5]=['s_waitcnt lgkmcnt(2)']+gc[5]
    o+=inter(rc(G1), gc, 3)
    o+=summ(G1,H1,0,RB0,1)
    if p==1:
        o+=[f'v_add_u32 v{aXS}, {128*STR}, v{aXS}', f'v_add_u32 v{aES}, {256*STR}, v{aES}', f'v_add_u32 v{aGRP}, {16*STR}, v{aGRP}']
    if ENV('NO_XMFMA'):
        o=[i for i in o if not (i.startswith('v_mfma') and any(f', {q(AX+4*s)}, ' in i for s in range(4)))]
    if ENV('NO_HMFMA'): o=[i for i in o if not (i.startswith('v_mfma') and (i.startswith(f'v_mfma_f32_32x32x16_bf16 {q(H0,16)}') or i.startswith(f'v_mfma_f32_32x32x16_bf16 {q(H1,16)}')))]
    if ENV('NO_SUMS'): o=[i for i in o if not (i.startswith('v_fmac') or (i.startswith('v_add_f32')) or i.startswith('v_mul_f32'))]
    if ENV('NO_SMALLM'): o=[i for i in o if not (i.startswith('v_mfma') and not any(f', {q(AX+4*s)}, ' in i for s in range(4)))]
    if ENV('NO_MFMA'): o=[i for i in o if not i.startswith('v_mfma')]
    if ENV('NO_TRANS'): o=[i for i in o if not (i.startswith('v_exp') or i.startswith('v_rcp'))]
    return o

def k2():
    lab('standalone__edge_featured_mpnn_gatedgcn__graph_kernel')
    A('s_cmp_ge_u32 s2, 256'); A('s_cbranch_scc1 K2_END')
    A(f's_load_dwordx2 s[{sWS}:{sWS+1}], s[0:1], 88')
    A('s_load_dwordx4 s[4:7], s[0:1], 0')
    A('s_load_dwordx2 s[20:21], s[0:1], 72')
    A(f's_and_b32 s{sB}, s2, 7'); A(f's_lshl_b32 s{sB}, s{sB}, 5'); A(f's_lshr_b32 s{sT0}, s2, 3'); A(f's_or_b32 s{sB}, s{sB}, s{sT0}')
    A('v_lshrrev_b32 v1, 6, v0'); A('v_and_b32 v15, 63, v0')
    A(f'v_readfirstlane_b32 s{sWAVE}, v1')
    A('v_lshlrev_b32 v1, 4, v0')
    A(f'v_lshlrev_b32 v{vL16}, 4, v15')
    A(f's_lshl_b32 s{sT0}, s{sB}, 15')
    A('s_waitcnt lgkmcnt(0)')
    if STAMPS:
        A('s_memrealtime s[98:99]'); A('s_waitcnt lgkmcnt(0)'); A('s_mov_b32 s96, s98')
    stamp('start')
    A(f's_add_u32 s12, s{sWS}, s{sT0}'); A(f's_addc_u32 s13, s{sWS+1}, 0'); A('s_mov_b32 s14, 32000'); A('s_mov_b32 s15, 0x20000')
    for u in range(4):
        if u: A(f's_mov_b32 s{sT0}, {u*8192}')
        A(f'buffer_load_dwordx4 {q(EN+4*u)}, v1, s[12:15], {("s%d"%sT0) if u else "0"} offen')
    def init_a():
        A('v_lshlrev_b32 v1, 4, v0')
        for r in range(4): A(f'v_mov_b32 v{AX+r}, -1')
        A(f'v_add_u32 v14, {XS}, v1'); A(f'ds_write_b128 v14, {q(AX)}')
        for r in range(4): A(f'v_mov_b32 v{AX+4+r}, 0x{EPAD:08x}')
        A(f'ds_write_b128 v14, {q(AX+4)} offset:8192'); A(f'ds_write_b128 v14, {q(AX+4)} offset:16384')
        for r in range(4): A(f'v_mov_b32 v{AX+8+r}, 0x{(DUMMY<<16)|DUMMY:08x}')
        for r in range(4): A(f'v_mov_b32 v{AX+12+r}, 0')
        A('v_cmp_gt_u32 vcc, 64, v0'); A('s_nop 1')
        for r in range(4): A(f'v_cndmask_b32 v{AX+8+r}, v{AX+12+r}, v{AX+8+r}, vcc')
        A('v_cmp_gt_u32 vcc, 96, v0'); A(f's_and_saveexec_b64 s[{MK}:{MK+1}], vcc'); A(f'ds_write_b128 v14, {q(AX+8)} offset:{GRP-XS}'); A(f's_mov_b64 exec, s[{MK}:{MK+1}]')
    init_a()
    A('s_mov_b32 s8, s6'); A('s_mov_b32 s9, s7'); A(f's_mov_b32 s10, {E*32}'); A('s_mov_b32 s11, 0x20000')
    A(f's_mov_b32 s6, {N*128}'); A('s_mov_b32 s7, 0x20000')
    A(f's_mov_b32 s22, {N*128}'); A('s_mov_b32 s23, 0x20000')
    A(f's_add_u32 s16, s{sWS}, {WS_WPREP}'); A(f's_addc_u32 s17, s{sWS+1}, 0'); A('s_mov_b32 s18, 34816'); A('s_mov_b32 s19, 0x20000')
    A(f's_add_u32 s24, s{sWS}, {WS_OVFCNT}'); A(f's_addc_u32 s25, s{sWS+1}, 0'); A('s_mov_b32 s26, 1000'); A('s_mov_b32 s27, 0x20000')
    A(f'v_lshrrev_b32 v14, 3, v15'); A(f's_lshl_b32 s{sT0}, s{sWAVE}, 3'); A(f'v_add_u32 v14, s{sT0}, v14')
    A(f'v_lshlrev_b32 v14, 8, v14'); A(f'v_add_u32 v14, s{sB}, v14'); A('v_lshlrev_b32 v14, 7, v14')
    A('v_lshrrev_b32 v4, 4, v15'); A('v_and_b32 v5, 7, v15'); A('v_xor_b32 v4, v4, v5'); A(f'v_lshlrev_b32 v{cXE}, 4, v4'); A(f'v_xor_b32 v{cXO}, 64, v{cXE}')
    A(f's_and_b32 s{sT0}, s{sWAVE}, 1'); A(f's_cmp_eq_u32 s{sT0}, 0'); A('s_cselect_b64 vcc, -1, 0')
    A(f'v_cndmask_b32 v4, v{cXO}, v{cXE}, vcc'); A('v_add_u32 v4, v14, v4')
    A(f's_lshl_b32 s{sT0}, s{sWAVE}, 10'); A(f's_add_u32 m0, s{sT0}, {OWNX}'); A('s_nop 0')
    A(f'buffer_load_dwordx4 v4, s[{X_}:{X_+3}], 0 offen lds')
    for i in range(3):
        A(f's_add_u32 s{sT1}, s{sT0}, {8192*i}'); A(f's_add_u32 m0, s{sT1}, {WSTG}'); A('s_nop 0')
        A(f'buffer_load_dwordx4 v{vL16}, s[16:19], s{sT1} offen lds')
    stamp('issued')
    A('v_lshrrev_b32 v14, 6, v0'); A(f'v_mul_u32_u24 v14, {RECSZ}, v14'); A(f'v_add_u32 v14, v14, v{vL16}'); A(f'v_add_u32 v14, {REC+O_DEN}, v14')
    for r in range(4): A(f'v_mov_b32 v{AX+r}, 0')
    for i in range(5): A(f'ds_write_b128 v14, {q(AX)} offset:{8*RECSZ*i}')
    A(f'v_add_u32 v14, {8*RECSZ*5}, v14'); A(f'ds_write_b128 v14, {q(AX)}')
    A('v_cmp_gt_u32 vcc, 128, v0'); A(f's_and_saveexec_b64 s[{MK}:{MK+1}], vcc'); A(f'ds_write_b128 v14, {q(AX)} offset:{8*RECSZ}'); A(f's_mov_b64 exec, s[{MK}:{MK+1}]')
    A(f'v_mov_b32 v{vONE}, 1')
    A(f's_mov_b32 s{sCNT}, {CNT}'); A(f's_mov_b32 s{sXS}, {XS}'); A(f's_mov_b32 s{sES}, {ES}'); A(f's_mov_b32 s{s128}, 128')
    A(f's_mov_b32 s{sMODE}, 0'); A(f's_mov_b32 s{sFIRST}, 1'); A(f's_mov_b32 s{sU}, 0')
    A('v_lshrrev_b32 v4, 3, v0'); A('v_mul_u32_u24 v4, 3200, v4')
    for u in range(4): A(f'v_add_u32 v{EB+u}, 0x{(64*u*3200-1+EFLAG)&0xffffffff:08x}, v4')
    def lane_consts():
        C('lane constants (v1 = kg)')
        A('v_lshrrev_b32 v1, 5, v15'); A(f'v_lshlrev_b32 v{cKG}, 4, v1')
        A('v_bfe_u32 v5, v15, 3, 2'); A('v_lshlrev_b32 v4, 5, v1'); A('v_lshl_add_u32 v4, v5, 2, v4'); A(f'v_add_u32 v{kXS}, {XS}, v4')
        A('v_bfe_u32 v4, v15, 2, 1'); A('v_lshlrev_b32 v4, 4, v4'); A('v_bfe_u32 v5, v15, 4, 1'); A('v_lshl_add_u32 v4, v5, 3, v4')
        A('v_and_b32 v5, 3, v15'); A('v_lshl_add_u32 v4, v5, 1, v4'); A('v_bfe_u32 v5, v15, 3, 1'); A('v_add_u32 v4, v4, v5')
        A('v_lshlrev_b32 v4, 2, v4'); A(f'v_add_u32 v{kES}, {ES}, v4')
        A('v_lshlrev_b32 v4, 2, v1'); A(f'v_add_u32 v{kGRP}, {GRP}, v4')
        A('v_and_b32 v4, 31, v15'); A('v_lshlrev_b32 v5, 2, v4'); A(f'v_add_u32 v{cRA}, {REC}, v5'); A('v_lshlrev_b32 v5, 3, v4'); A(f'v_add_u32 v{cRB}, {REC+O_DEN}, v5')
        A('v_bfe_u32 v5, v15, 1, 3'); A('v_xor_b32 v5, v5, v1'); A('v_lshlrev_b32 v5, 4, v5'); A('v_lshl_add_u32 v4, v4, 7, v5')
        for s in range(4): A(f'v_xor_b32 v{kAX+s}, {32*s}, v4')
        A(f's_lshl_b32 s{sX0}, s{sWAVE}, 12'); A(f's_add_u32 s{sX1}, s{sX0}, 32768')
        for m in range(4): A(f'v_add_u32 v{cXM+m}, {4096-1024*m}, v{cXO if m&1 else cXE}')
        A('v_bfe_u32 v4, v15, 2, 1'); A('v_cmp_eq_u32 vcc, v4, v1'); A('v_mov_b32 v5, 0x3f803f80'); A('s_nop 0'); A('v_cndmask_b32 v5, 0, v5, vcc')
        A('v_bfe_u32 v4, v15, 4, 1'); A('v_cmp_eq_u32 vcc, 0, v4'); A('s_nop 1'); A(f'v_cndmask_b32 v{AZ0}, 0, v5, vcc')
        A(f'v_sub_u32 v{AZ0+2}, v5, v{AZ0}'); A(f'v_mov_b32 v{AZ0+1}, 0'); A(f'v_mov_b32 v{AZ0+3}, 0')
        A(f'v_mov_b32 v{AZ1}, 0'); A(f'v_mov_b32 v{AZ1+1}, v{AZ0}'); A(f'v_mov_b32 v{AZ1+2}, 0'); A(f'v_mov_b32 v{AZ1+3}, v{AZ0+2}')
        A('v_cmp_eq_u32 vcc, 0, v1'); A('v_mov_b32 v5, 0x3f000000'); A('s_nop 0'); A(f'v_cndmask_b32 v{ONEB}, 0, v5, vcc')
        for r in range(1,4): A(f'v_mov_b32 v{ONEB+r}, 0'); A(f'v_mov_b32 v{ONEA[0]+r}, 0'); A(f'v_mov_b32 v{ONEA[1]+r}, 0')
    lane_consts()
    stamp('consts')
    A('s_waitcnt vmcnt(4)')
    A('s_branch K2_WD')
    lab('K2_ROUND')
    init_a()
    A('s_waitcnt vmcnt(0)')
    lab('K2_WD')
    stamp('vmw')
    for k in range(16): A(f'v_cmp_ne_u32 s[{MK+2*k}:{MK+2*k+1}], 0, v{EN+k}')
    for k in range(16):
        A(f'v_and_b32 v{AD+k}, 63, v{EN+k}'); A(f'v_lshl_add_u32 v{AD+k}, v{AD+k}, 2, s{sCNT}')
    A('s_waitcnt lgkmcnt(0)'); A('s_barrier')
    stamp('bar1')
    for k in range(16):
        A(f's_mov_b64 exec, s[{MK+2*k}:{MK+2*k+1}]'); A(f'ds_add_rtn_u32 v{RK+k}, v{AD+k}, v{vONE}')
    A('s_mov_b64 exec, -1')
    for k in range(16):
        A(f'v_lshrrev_b32 v{EW+k}, 20, v{EN+k}'); A(f'v_bfe_u32 v{EN+k}, v{EN+k}, 6, 14'); A(f'v_add_u32 v{EW+k}, v{EW+k}, v{EB+k//4}')
    A('s_waitcnt lgkmcnt(0)'); A('s_barrier')
    stamp('hist')
    A(f's_cmp_eq_u32 s{sFIRST}, 1'); A('s_cbranch_scc0 K2_NF1')
    if ENV('XPF2'):
        A(f's_lshr_b32 s{sT0}, s2, 3'); A(f's_mul_i32 s{sT0}, s{sT0}, 391'); A(f'v_add_u32 v14, s{sT0}, v0'); A('v_lshlrev_b32 v14, 7, v14')
        A('v_cmp_gt_u32 vcc, 391, v0'); A(f'v_mov_b32 v{T0+5}, 0x7fffffff'); A('s_nop 0'); A(f'v_cndmask_b32 v14, v{T0+5}, v14, vcc')
        A(f'buffer_load_dword v{T0+5}, v14, s[{X_}:{X_+3}], 0 offen')
    A(f'buffer_load_dwordx4 {q(T0)}, v{vL16}, s[24:27], 0 offen')
    A(f's_lshr_b32 s{sT0}, s{sWAVE}, 1'); A(f's_lshl_b32 s{sT0}, s{sT0}, 12'); A(f's_add_u32 s{sT0}, s{sT0}, {18*1024}')
    for s in range(4): A(f'buffer_load_dwordx4 {q(NGB+4*s)}, v{vL16}, s[16:19], s{sT0} offen offset:{1024*s}')
    lab('K2_NF1')
    A(f'v_lshl_add_u32 v4, v15, 2, s{sCNT}'); A('ds_read_b32 v5, v4'); A('s_waitcnt lgkmcnt(0)')
    A('v_add_u32 v5, 7, v5'); A('v_lshrrev_b32 v5, 3, v5'); A('v_mov_b32 v1, v5'); A('s_nop 1')
    for sh in (1,2,4,8):
        A(f'v_add_u32_dpp v1, v1, v1 row_shr:{sh} row_mask:0xf bank_mask:0xf bound_ctrl:0'); A('s_nop 1')
    A('v_add_u32_dpp v1, v1, v1 row_bcast:15 row_mask:0xa bank_mask:0xf'); A('s_nop 1')
    A('v_add_u32_dpp v1, v1, v1 row_bcast:31 row_mask:0xc bank_mask:0xf'); A('s_nop 1')
    A(f'v_readlane_b32 s{sNT}, v1, 63')
    A('v_sub_u32 v1, v1, v5')
    A(f'v_lshlrev_b32 v{T0+4}, 3, v1'); A(f'ds_write_b32 v4, v{T0+4} offset:256')
    A(f's_cmp_gt_u32 s{sNT}, {CAPG}'); A('s_cbranch_scc1 K2_SPLIT')
    for k in range(16): A(f'ds_read_b32 v{AD+k}, v{AD+k} offset:256')
    A(f'v_mul_u32_u24 v{XV}, 22, v15'); A(f'v_mov_b32 v{XV+1}, s{sWAVE}')
    lab('K2_GL')
    A(f'v_cmp_lt_u32 vcc, v{XV+1}, v5'); A('s_and_saveexec_b64 s[84:85], vcc'); A('s_cbranch_execz K2_GLD')
    A(f'v_add_u32 v{XV+2}, v1, v{XV+1}'); A(f'v_lshlrev_b32 v{XV+2}, 1, v{XV+2}'); A(f'v_add_u32 v{XV+2}, {GRP}, v{XV+2}')
    A(f'ds_write_b16 v{XV+2}, v{XV}'); A(f'v_add_u32 v{XV+1}, 8, v{XV+1}')
    A('s_mov_b64 exec, s[84:85]'); A('s_branch K2_GL')
    lab('K2_GLD'); A('s_mov_b64 exec, -1')
    A('s_waitcnt lgkmcnt(0)')
    stamp('prefix')
    for k in range(16):
        A(f'v_add_u32 v{RK+k}, v{RK+k}, v{AD+k}')
        A(f'v_lshl_add_u32 v{AD+k}, v{RK+k}, 1, s{sXS}')
        A(f'v_lshl_add_u32 v{RK+k}, v{RK+k}, 2, s{sES}')
    for k in range(16):
        A(f's_mov_b64 exec, s[{MK+2*k}:{MK+2*k+1}]')
        A(f'ds_write_b16 v{AD+k}, v{EN+k}'); A(f'ds_write_b32 v{RK+k}, v{EW+k}')
    A('s_mov_b64 exec, -1')
    A(f's_add_u32 s{sNT}, s{sNT}, 3'); A(f's_lshr_b32 s{sNT}, s{sNT}, 2')
    A('s_waitcnt vmcnt(0) lgkmcnt(0)'); A('s_barrier')
    stamp('bar3')
    A(f's_sub_u32 s{XG_}, s{X_}, 4096'); A(f's_subb_u32 s{XG_+1}, s{X_+1}, 0'); A(f's_mov_b32 s{XG_+2}, {N*128+4096}'); A(f's_mov_b32 s{XG_+3}, 0x20000')
    A(f's_mov_b32 s{sTI}, s{sWAVE}')
    A(f's_lshl_b32 s{sT0}, s{sWAVE}, 6'); A(f'v_add_u32 v{aXS}, s{sT0}, v{kXS}')
    A(f's_lshl_b32 s{sT0}, s{sWAVE}, 7'); A(f'v_add_u32 v{aES}, s{sT0}, v{kES}')
    A(f's_lshl_b32 s{sT0}, s{sWAVE}, 3'); A(f'v_add_u32 v{aGRP}, s{sT0}, v{kGRP}')
    A(f'ds_read_b32 v{EI}, v{aES}'); A(f'ds_read2_b32 v[{XI}:{XI+1}], v{aXS} offset0:0 offset1:4'); A(f'ds_read_b32 v{GR[0]}, v{aGRP}')
    for s in range(4): A(f'v_add_u32 v{aAX+s}, s{sX0}, v{kAX+s}')
    A('s_waitcnt lgkmcnt(0)')
    for i in x_dma(sX0)+e_issue(0)+e_flag(0): A(i)
    stamp('dma1')
    A(f's_cmp_eq_u32 s{sFIRST}, 0'); A('s_cbranch_scc1 K2_NG_DONE')
    A(f'v_add_u32 v1, {WSTG}, v{vL16}')
    A(f's_and_b32 s{sT0}, s{sWAVE}, 1'); A(f's_lshl_b32 s{sT0}, s{sT0}, 12'); A(f's_add_u32 s{sT0}, s{sT0}, {OWNX}')
    for s in range(4): A(f'v_add_u32 v{XV+s}, s{sT0}, v{kAX+s}')
    for s in range(4): A(f'ds_read_b128 {q(AX+4*s)}, v{XV+s}')
    for i in range(18): A(f'ds_read_b128 {q(WB+4*i)}, v1 offset:{1024*i}')
    A(f'v_or_b32 v{T0}, v{T0}, v{T0+1}'); A(f'v_or_b32 v{T0+2}, v{T0+2}, v{T0+3}'); A(f'v_or_b32 v{T0}, v{T0}, v{T0+2}')
    A(f'v_cmp_ne_u32 vcc, 0, v{T0}'); A('s_nop 3'); A('s_cmp_lg_u64 vcc, 0'); A(f's_cselect_b32 s{sOVF}, 1, 0')
    A('s_waitcnt lgkmcnt(0)')
    stamp('wread')
    for s in range(4): A(mf(G0, AX+4*s, NGB+4*s, '0' if s==0 else G0))
    A(f's_and_b32 s{sT0}, s{sWAVE}, 1'); A(f's_lshl_b32 s{sT0}, s{sT0}, 5'); A(f'v_lshrrev_b32 v1, 5, v15'); A(f'v_lshl_add_u32 v1, v1, 2, s{sT0}')
    A(f'v_mul_u32_u24 v1, {RECSZ}, v1')
    A(f's_bfe_u32 s{sT1}, s{sWAVE}, 0x10001')
    A(f's_cmp_ge_u32 s{sWAVE}, 4'); A('s_cbranch_scc1 K2_NG_U')
    A(f's_lshl_b32 s{sT1}, s{sT1}, 7'); A(f'v_add_u32 v1, v1, v{cRA}'); A(f'v_add_u32 v1, s{sT1}, v1')
    A(f's_mov_b32 s{sT2}, 0x{NLOG2E:08x}'); A('s_nop 7')
    for r in range(16):
        A(f'v_mul_f32 v{G0+r}, s{sT2}, v{G0+r}')
        A(f'v_cvt_pk_bf16_f32 v{SD}, v{G0+r}, v{G0+r}'); A(f'v_lshlrev_b32 v{SD}, 16, v{SD}'); A(f'v_sub_f32 v{SN}, v{G0+r}, v{SD}'); A(f'v_cvt_pk_bf16_f32 v{G0+r}, v{SD}, v{SN}')
    def wr_a(r): A(f'ds_write_b32 v1, v{G0+r} offset:{(8*(r//4)+(r%4))*RECSZ}')
    for r in range(8): wr_a(r)
    A(f's_and_b32 s{sT0}, s{sWAVE}, 1'); A(f's_cmp_eq_u32 s{sT0}, 0'); A('s_cbranch_scc0 K2_NG_A1')
    for r in range(8,16): wr_a(r)
    A('s_branch K2_NG_BAR')
    lab('K2_NG_A1')
    A('s_mov_b32 exec_lo, -1'); A('s_mov_b32 exec_hi, 0'); wr_a(8); wr_a(9); A('s_mov_b64 exec, -1'); A('s_branch K2_NG_BAR')
    lab('K2_NG_U')
    A(f's_lshl_b32 s{sT1}, s{sT1}, 6'); A(f'v_and_b32 v{SD}, 31, v15'); A(f'v_lshl_add_u32 v1, v{SD}, 1, v1'); A(f'v_add_u32 v1, s{sT1}, v1'); A(f'v_add_u32 v1, {REC+O_U}, v1')
    A('s_nop 7')
    for r in range(16): A(f'v_cvt_pk_bf16_f32 v{G0+r}, v{G0+r}, v{G0+r}')
    def wr_u(r): A(f'ds_write_b16 v1, v{G0+r} offset:{(8*(r//4)+(r%4))*RECSZ}')
    for r in range(8): wr_u(r)
    A(f's_and_b32 s{sT0}, s{sWAVE}, 1'); A(f's_cmp_eq_u32 s{sT0}, 0'); A('s_cbranch_scc0 K2_NG_U1')
    for r in range(8,16): wr_u(r)
    A('s_branch K2_NG_BAR')
    lab('K2_NG_U1')
    A('s_mov_b32 exec_lo, -1'); A('s_mov_b32 exec_hi, 0'); wr_u(8); wr_u(9); A('s_mov_b64 exec, -1')
    lab('K2_NG_BAR')
    stamp('ngm')
    A('s_waitcnt lgkmcnt(0)'); A('s_barrier')
    lab('K2_NG_DONE')
    stamp('ng')
    A(f's_mov_b32 s{sFIRST}, 0')
    A(f's_cmp_lt_u32 s{sTI}, s{sNT}'); A('s_cbranch_scc0 K2_LOOP_END')
    A(f'ds_read2_b32 v[{XI}:{XI+1}], v{aXS} offset0:{16*STR} offset1:{16*STR+4}'); A(f'ds_read_b32 v{EI}, v{aES} offset:{128*STR}')
    for i in ra_mads(GR[0]): A(i)
    A(f'v_mad_u32_u16 v{RB1}, v{GR[0]}, 64, v{cRB} op_sel:[1,0,0,0]')
    for i in xb_reads(): A(i)
    for r in range(8,16): A(f'v_mov_b32 v{G1+r}, 0'); A(f'v_mov_b32 v{H1+r}, 0')
    A('s_waitcnt lgkmcnt(2)')
    for i in x_dma(sX1)+e_issue(1)+e_flag(1): A(i)
    A(f'v_add_u32 v{aXS}, {128*STR}, v{aXS}')
    A(f'ds_read2_b32 v[{XI}:{XI+1}], v{aXS} offset0:0 offset1:4')
    A('s_waitcnt vmcnt(5)')
    stamp('entw')
    for s in range(4): A(f'ds_read_b128 {q(AX+4*s)}, v{aAX+s}')
    A(f'v_add_u32 v{aXS}, {64*STR}, v{aXS}'); A(f'v_add_u32 v{aES}, {256*STR}, v{aES}'); A(f'v_add_u32 v{aGRP}, {8*STR}, v{aGRP}')
    A('s_waitcnt lgkmcnt(0)')
    for g in gchain(G0,0,0):
        for i in g: A(i)
    A('s_nop 7'); A('s_nop 2')
    stamp('entd')
    lab('K2_LOOP')
    for i in body(0): A(i)
    A(f's_add_u32 s{sTI}, s{sTI}, {STR}'); A(f's_cmp_lt_u32 s{sTI}, s{sNT}'); A('s_cbranch_scc0 K2_TAIL')
    for i in body(1): A(i)
    A(f's_add_u32 s{sTI}, s{sTI}, {STR}'); A(f's_cmp_lt_u32 s{sTI}, s{sNT}'); A('s_cbranch_scc1 K2_LOOP')
    lab('K2_TAIL')
    for i in summ(G1,H1,8,RB1,1): A(i)
    lab('K2_LOOP_END')
    stamp('loop')
    A('s_waitcnt vmcnt(0)')
    A('v_lshrrev_b32 v1, 3, v0'); A('v_and_b32 v2, 7, v0')
    A(f'v_lshlrev_b32 v3, 8, v1'); A(f'v_add_u32 v3, s{sB}, v3'); A('v_lshlrev_b32 v3, 7, v3'); A('v_lshl_add_u32 v3, v2, 4, v3')
    A(f'buffer_load_dwordx4 {q(NGB)}, v3, s[{X_}:{X_+3}], 0 offen')
    A('s_waitcnt lgkmcnt(0)'); A('s_barrier')
    stamp('bar5')
    A(f's_cmp_eq_u32 s{sMODE}, 1'); A('s_cbranch_scc1 K2_NEXT_SPLIT')
    A(f's_cmp_eq_u32 s{sMODE}, 2'); A('s_cbranch_scc1 K2_NEXT_OVF')
    lab('K2_CHECK_OVF')
    A(f's_cmp_eq_u32 s{sOVF}, 0'); A('s_cbranch_scc1 K2_EPI')
    A(f's_mov_b32 s{sMODE}, 2'); A(f's_mov_b32 s{sOC}, 0'); A(f's_mov_b32 s{sOP}, 0'); A('s_branch K2_OVF_FIND')
    lab('K2_SPLIT')
    A(f's_mov_b32 s{sMODE}, 1'); A(f's_mov_b32 s{sU}, 0')
    A('s_waitcnt lgkmcnt(0)'); A('s_barrier')
    A('s_branch K2_LOADQ')
    lab('K2_NEXT_SPLIT')
    A(f's_add_u32 s{sU}, s{sU}, 1'); A(f's_cmp_ge_u32 s{sU}, 4'); A('s_cbranch_scc1 K2_CHECK_OVF')
    lab('K2_LOADQ')
    A(f's_lshl_b32 s{sT0}, s{sU}, 13'); A('v_lshlrev_b32 v1, 4, v0')
    A('s_waitcnt vmcnt(0)')
    A(f'buffer_load_dwordx4 {q(EN)}, v1, s[12:15], s{sT0} offen')
    for k in range(4,16): A(f'v_mov_b32 v{EN+k}, 0')
    A(f's_mul_i32 s{sT0}, s{sU}, {64*3200}'); A(f's_add_u32 s{sT0}, s{sT0}, 0x{EFLAG-1:08x}')
    A('v_lshrrev_b32 v4, 3, v0'); A('v_mul_u32_u24 v4, 3200, v4'); A(f'v_add_u32 v{EB}, s{sT0}, v4')
    A('s_branch K2_ROUND')
    lab('K2_NEXT_OVF')
    A(f's_add_u32 s{sOP}, s{sOP}, 2048')
    lab('K2_OVF_FIND')
    A(f's_cmp_ge_u32 s{sOC}, {NCH}'); A('s_cbranch_scc1 K2_EPI')
    A(f's_lshl_b32 s{sT0}, s{sOC}, 2'); A(f's_add_u32 s{sT0}, s{sT0}, {WS_OVFCNT}')
    A(f's_load_dword s{sON}, s[{sWS}:{sWS+1}], s{sT0}'); A('s_waitcnt lgkmcnt(0)')
    A(f's_cmp_gt_u32 s{sON}, s{sOP}'); A('s_cbranch_scc1 K2_OVF_LOAD')
    A(f's_add_u32 s{sOC}, s{sOC}, 1'); A(f's_mov_b32 s{sOP}, 0'); A('s_branch K2_OVF_FIND')
    lab('K2_OVF_LOAD')
    A(f's_mul_i32 s{sT0}, s{sOC}, 25600'); A(f's_add_u32 s{sT0}, s{sT0}, {WS_OVFL}')
    A(f's_add_u32 s24, s{sWS}, s{sT0}'); A(f's_addc_u32 s25, s{sWS+1}, 0'); A(f's_lshl_b32 s26, s{sON}, 3'); A('s_mov_b32 s27, 0x20000')
    A(f'v_add_u32 v1, s{sOP}, v0'); A('v_lshlrev_b32 v1, 3, v1')
    A(f'buffer_load_dwordx2 v[{AX}:{AX+1}], v1, s[24:27], 0 offen')
    for j in range(1,4):
        A(f's_mov_b32 s{sT0}, {4096*j}'); A(f'buffer_load_dwordx2 v[{AX+2*j}:{AX+2*j+1}], v1, s[24:27], s{sT0} offen')
    A('s_waitcnt vmcnt(0)')
    for j in range(4):
        A(f'v_cmp_eq_u32 vcc, s{sB}, v{AX+2*j+1}'); A('s_nop 1'); A(f'v_cndmask_b32 v{EN+j}, 0, v{AX+2*j}, vcc')
    for k in range(4,16): A(f'v_mov_b32 v{EN+k}, 0')
    A(f's_mul_i32 s{sT0}, s{sOC}, 3200'); A(f's_add_u32 s{sT0}, s{sT0}, 0x{EFLAG-1:08x}'); A(f'v_mov_b32 v{EB}, s{sT0}')
    A('s_branch K2_ROUND')
    lab('K2_EPI')
    A(f'v_mul_u32_u24 v4, {RECSZ}, v1'); A(f'v_add_u32 v4, {REC}, v4'); A('v_lshl_add_u32 v5, v2, 6, v4'); A('v_lshl_add_u32 v6, v2, 4, v4')
    for i in range(4): A(f'ds_read_b128 {q(48+4*i)}, v5 offset:{O_DEN+16*i}')
    for i in range(4): A(f'ds_read_b128 {q(64+4*i)}, v5 offset:{O_NUM+16*i}')
    A(f'ds_read_b128 v[36:39], v6 offset:{O_U}')
    A('s_mov_b32 s40, 0x358637bd')
    A('s_waitcnt lgkmcnt(0)')
    for i in range(8): A(f'v_cvt_f32_f64 v{20+i}, v[{48+2*i}:{49+2*i}]'); A(f'v_cvt_f32_f64 v{28+i}, v[{64+2*i}:{65+2*i}]')
    for i in range(8): A(f'v_add_f32 v{20+i}, s40, v{20+i}')
    for i in range(8): A(f'v_rcp_f32 v{20+i}, v{20+i}')
    for i in range(4):
        A(f'v_lshlrev_b32 v{40+2*i}, 16, v{36+i}'); A(f'v_and_b32 v{41+2*i}, 0xffff0000, v{36+i}')
    for i in range(8): A(f'v_fmac_f32 v{40+i}, v{28+i}, v{20+i}')
    for i in range(8):
        A(f'v_mul_f32 v{28+i}, 0, v{40+i}'); A(f'v_cmp_lt_f32 vcc, 0, v{40+i}'); A('s_nop 1'); A(f'v_cndmask_b32 v{28+i}, v{28+i}, v{40+i}, vcc')
    A('s_waitcnt vmcnt(0)')
    for i in range(4):
        A(f'v_lshlrev_b32 v{40+2*i}, 16, v{NGB+i}'); A(f'v_and_b32 v{41+2*i}, 0xffff0000, v{NGB+i}')
    for i in range(8): A(f'v_add_f32 v{28+i}, v{28+i}, v{40+i}')
    for i in range(4): A(f'v_cvt_pk_bf16_f32 v{20+i}, v{28+2*i}, v{29+2*i}')
    A(f'buffer_store_dwordx4 v[20:23], v3, s[{OU_}:{OU_+3}], 0 offen')
    stamp('end')
    stamp_store()
    lab('K2_END')
    A('s_endpgm')

hdr = f'''; GatedGCN edge-featured MPNN: K1 buckets edges by destination, K2 gathers + MFMA + segment-reduces in LDS.
; @launch kernel=gcn_sort_kernel grid=({K1_GRID},1,1) block=(1024,1,1) lds={K1_LDS}
; @launch kernel=standalone__edge_featured_mpnn_gatedgcn__graph_kernel grid=(256,1,1) block=(512,1,1) lds={LDS_END}
.amdgcn_target "amdgcn-amd-amdhsa--gfx950"
.text
'''
def kd(name, nv, ns):
    return f'''.p2align 6
.amdhsa_kernel {name}
  .amdhsa_next_free_vgpr {nv}
  .amdhsa_next_free_sgpr {ns}
  .amdhsa_accum_offset {(nv+3)//4*4}
  .amdhsa_group_segment_fixed_size 0
  .amdhsa_kernarg_size 96
  .amdhsa_user_sgpr_count 2
  .amdhsa_user_sgpr_kernarg_segment_ptr 1
  .amdhsa_system_sgpr_workgroup_id_x 1
.end_amdhsa_kernel
'''
out=[hdr]
out.append('.globl gcn_sort_kernel\n.p2align 8\n.type gcn_sort_kernel,@function')
k1(); out+=L; L=[]
out.append('.globl standalone__edge_featured_mpnn_gatedgcn__graph_kernel\n.p2align 8\n.type standalone__edge_featured_mpnn_gatedgcn__graph_kernel,@function')
k2(); out+=L
out.append('.section .rodata,"a"')
out.append(kd('gcn_sort_kernel', 40, 64))
out.append(kd('standalone__edge_featured_mpnn_gatedgcn__graph_kernel', NVGPR, 102 if STAMPS else 96))
open(sys.argv[1] if len(sys.argv)>1 else 'out.s','w').write('\n'.join(out)+'\n')
print('LDS_END',LDS_END)
```

```python
import sys, os
N=12500; E=800000; CH=3200; NCH=250; NBK=256
WS_CELLS=0; WS_OVFCNT=0x800000; WS_WPREP=0x801000; WS_OVFL=0x810000; WS_T=0x1000000
NLOG2E=0xBFB8AA3B
L=[]
def A(s): L.append(s if s.endswith(':') else '    '+s)
def lab(s): L.append(s+':')
def C(s): L.append('    ; '+s)
ENV=lambda k: os.environ.get(k)
def q(base,n=4): return f'v[{base}:{base+n-1}]'
def mf(d,a,b,c): return f'v_mfma_f32_32x32x16_bf16 {q(d,16)}, {q(a)}, {q(b)}, {c if c=="0" else q(c,16)}'
K1_GRID=NCH+3
K1_LDS=49152
S1=ENV('S1')
def k1():
    lab('gcn_sort_kernel')
    if ENV('DBG') or int(os.environ.get('STAMPS','0')): A('s_memrealtime s[50:51]')
    A(f's_cmp_ge_u32 s2, {K1_GRID}'); A('s_cbranch_scc1 K1_END3' if ENV('DBG') else 's_cbranch_scc1 K1_END')
    A('s_load_dwordx2 s[8:9], s[0:1], 88')
    A(f's_cmp_ge_u32 s2, {NCH}'); A('s_cbranch_scc1 K1_W')
    A('s_load_dwordx4 s[4:7], s[0:1], 16')
    A('s_load_dwordx2 s[44:45], s[0:1], 0')
    A('v_lshlrev_b32 v1, 4, v0')
    A('s_mul_i32 s10, s2, 12800')
    A('s_waitcnt lgkmcnt(0)')
    if int(os.environ.get('STAMPS','0')):
        A('s_add_u32 s56, s8, 0x2080000'); A('s_addc_u32 s57, s9, 0'); A('s_mov_b32 s58, 1024'); A('s_mov_b32 s59, 0x20000')
        A('s_lshl_b32 s60, s2, 2'); A('v_mov_b32 v20, s50'); A('v_mov_b32 v21, s60'); A('buffer_store_dword v20, v21, s[56:59], 0 offen')
    A('s_add_u32 s16, s6, s10'); A('s_addc_u32 s17, s7, 0'); A('s_mov_b32 s18, 12800'); A('s_mov_b32 s19, 0x20000')
    A('buffer_load_dwordx4 v[8:11], v1, s[16:19], 0 offen')
    A('s_add_u32 s12, s4, s10'); A('s_addc_u32 s13, s5, 0'); A('s_mov_b32 s14, 12800'); A('s_mov_b32 s15, 0x20000')
    A('buffer_load_dwordx4 v[12:15], v1, s[12:15], 0 offen')
    if ENV('K1_XPF'):
        A(f's_mov_b32 s46, {N*128}'); A('s_mov_b32 s47, 0x20000')
        A('s_lshr_b32 s10, s2, 3'); A('s_mul_i32 s10, s10, 404'); A('v_add_u32 v36, s10, v0'); A('v_lshlrev_b32 v36, 7, v36')
        A('v_cmp_gt_u32 vcc, 404, v0'); A('v_mov_b32 v37, 0x7fffffff'); A('s_nop 0'); A('v_cndmask_b32 v36, v37, v36, vcc')
        A('buffer_load_dword v38, v36, s[44:47], 0 offen')
    for r in range(4,8): A(f'v_mov_b32 v{r}, 0')
    A('ds_write_b128 v1, v[4:7]'); A('ds_write_b128 v1, v[4:7] offset:16384'); A('ds_write_b128 v1, v[4:7] offset:32768')
    A('s_mul_i32 s10, s2, 25600')
    A(f's_add_u32 s24, s8, {WS_OVFL}'); A('s_addc_u32 s25, s9, 0'); A('s_add_u32 s24, s24, s10'); A('s_addc_u32 s25, s25, 0')
    A('s_mov_b32 s26, 25600'); A('s_mov_b32 s27, 0x20000')
    A('s_mov_b32 s32, s8'); A('s_mov_b32 s33, s9'); A('s_mov_b32 s34, 0x800000'); A('s_mov_b32 s35, 0x20000')
    A(f's_add_u32 s40, s8, {WS_OVFCNT}'); A('s_addc_u32 s41, s9, 0'); A('s_mov_b32 s42, 1000'); A('s_mov_b32 s43, 0x20000')
    A('v_mov_b32 v2, 1'); A('v_mov_b32 v3, 37888')
    A('s_waitcnt lgkmcnt(0)'); A('s_barrier')
    A('v_cmp_gt_u32 vcc, 800, v0'); A('s_and_saveexec_b64 s[20:21], vcc'); A('s_cbranch_execz K1_SKIP')
    A('s_mov_b64 s[28:29], exec')
    NP=1 if ENV('K1_XPF') else 0
    A(f's_waitcnt vmcnt({1+NP})')
    for j in range(4):
        A(f'v_and_b32 v{16+j}, 255, v{8+j}')
        A(f'v_lshlrev_b32 v{24+j}, 2, v{16+j}')
        A(f'ds_add_rtn_u32 v{28+j}, v{24+j}, v2 offset:36864')
    A(f's_waitcnt vmcnt({NP})')
    for j in range(4):
        A(f'v_lshrrev_b32 v{20+j}, 8, v{8+j}')
        A(f'v_lshl_or_b32 v{20+j}, v{12+j}, 6, v{20+j}')
        A(f'v_lshl_add_u32 v32, v0, 2, {j+1}')
        A(f'v_lshl_or_b32 v{20+j}, v32, 20, v{20+j}')
        A(f'v_mul_u32_u24 v{24+j}, 144, v{16+j}')
    A('s_waitcnt lgkmcnt(0)')
    for j in range(4):
        A(f'v_lshl_add_u32 v{24+j}, v{28+j}, 2, v{24+j}')
        A(f'v_cmp_gt_u32 vcc, 32, v{28+j}')
        A('s_mov_b64 exec, vcc')
        A(f'ds_write_b32 v{24+j}, v{20+j}')
        A('s_andn2_b64 exec, s[28:29], vcc')
        A(f's_cbranch_execz K1_NOV{j}')
        A('ds_add_rtn_u32 v33, v3, v2')
        A(f'v_mov_b32 v34, v{20+j}'); A(f'v_mov_b32 v35, v{16+j}')
        A('s_waitcnt lgkmcnt(0)')
        A('v_lshlrev_b32 v33, 3, v33')
        A('buffer_store_dwordx2 v[34:35], v33, s[24:27], 0 offen')
        A('s_nop 1')
        lab(f'K1_NOV{j}')
        A('s_mov_b64 exec, s[28:29]')
    lab('K1_SKIP')
    A('s_mov_b64 exec, -1')
    A(f's_waitcnt vmcnt({NP})')
    A('v_lshrrev_b32 v4, 3, v0'); A('v_and_b32 v5, 7, v0')
    A('v_mul_u32_u24 v6, 144, v4'); A('v_lshl_add_u32 v6, v5, 4, v6')
    A('v_add_u32 v7, s2, v4'); A('v_and_b32 v7, 255, v7'); A('v_lshlrev_b32 v7, 7, v7'); A('v_lshl_add_u32 v7, v4, 15, v7'); A('v_lshl_add_u32 v7, v5, 4, v7')
    A('v_add_u32 v21, 128, v4'); A('v_add_u32 v22, s2, v21'); A('v_and_b32 v22, 255, v22'); A('v_lshlrev_b32 v22, 7, v22'); A('v_lshl_add_u32 v22, v21, 15, v22'); A('v_lshl_add_u32 v22, v5, 4, v22')
    A('s_waitcnt lgkmcnt(0)'); A('s_barrier')
    CST=os.environ.get('CST','sc1')
    if not ENV('HALFCELL'):
        A('ds_read_b128 v[8:11], v6'); A('ds_read_b128 v[12:15], v6 offset:18432'); A('ds_read_b32 v16, v3')
        A('s_waitcnt lgkmcnt(2)')
        A(f'buffer_store_dwordx4 v[8:11], v7, s[32:35], 0 offen {CST}')
        A('s_waitcnt lgkmcnt(1)')
        A(f'buffer_store_dwordx4 v[12:15], v22, s[32:35], 0 offen {CST}')
    else:
        A('v_lshlrev_b32 v18, 2, v4')
        A('ds_read_b128 v[8:11], v6'); A('ds_read_b128 v[12:15], v6 offset:18432'); A('ds_read_b32 v16, v3')
        A('ds_read_b32 v19, v18 offset:36864'); A('ds_read_b32 v20, v18 offset:37376')
        A('v_cmp_gt_u32 s[22:23], 4, v5')
        A('s_waitcnt lgkmcnt(0)')
        A('v_cmp_le_u32 vcc, 16, v19'); A('s_or_b64 exec, vcc, s[22:23]')
        A(f'buffer_store_dwordx4 v[8:11], v7, s[32:35], 0 offen {CST}')
        A('s_mov_b64 exec, -1')
        A('v_cmp_le_u32 vcc, 16, v20'); A('s_or_b64 exec, vcc, s[22:23]')
        A(f'buffer_store_dwordx4 v[12:15], v22, s[32:35], 0 offen {CST}')
        A('s_mov_b64 exec, -1')
    if int(os.environ.get('STAMPS','0')):
        A('s_waitcnt vmcnt(0)'); A('s_memrealtime s[60:61]'); A('v_lshrrev_b32 v24, 6, v0'); A('v_lshlrev_b32 v24, 2, v24'); A('s_lshl_b32 s62, s2, 6'); A('v_add_u32 v24, s62, v24')
        A('s_mov_b32 s58, 0x8000'); A('s_waitcnt lgkmcnt(0)'); A('v_mov_b32 v23, s60'); A('v_add_u32 v24, 0x1000, v24'); A('buffer_store_dword v23, v24, s[56:59], 0 offen')
    A('v_cmp_eq_u32 vcc, 0, v0'); A('s_and_saveexec_b64 s[20:21], vcc'); A('s_cbranch_execz K1_END')
    A('s_lshl_b32 s10, s2, 2'); A('v_mov_b32 v17, s10')
    A('s_waitcnt lgkmcnt(0)')
    A('buffer_store_dword v16, v17, s[40:43], 0 offen')
    A('s_branch K1_END')
    lab('K1_W')
    A('s_load_dwordx8 s[12:19], s[0:1], 32')
    A('s_load_dwordx2 s[20:21], s[0:1], 64')
    A('v_lshrrev_b32 v1, 6, v0'); A('s_nop 0'); A('v_readfirstlane_b32 s10, v1')
    A(f's_sub_u32 s11, s2, {NCH}'); A('s_lshl_b32 s11, s11, 4'); A('s_nop 2'); A('s_add_u32 s10, s10, s11')
    A('s_cmp_ge_u32 s10, 34'); A('s_cbranch_scc1 K1_END')
    A('s_waitcnt lgkmcnt(0)')
    A('s_mov_b32 s24, s14'); A('s_mov_b32 s25, s15'); A('s_mov_b32 s26, 8192'); A('s_mov_b32 s27, 0x20000')
    A(f's_mov_b32 s28, 0x{NLOG2E:08x}'); A('s_mov_b32 s29, s10')
    A('s_cmp_ge_u32 s10, 8'); A('s_cbranch_scc0 K1_WSEL')
    A('s_mov_b32 s24, s20'); A('s_mov_b32 s25, s21'); A('s_mov_b32 s28, 0x3f800000'); A('s_sub_u32 s29, s10, 8')
    A('s_cmp_ge_u32 s10, 16'); A('s_cbranch_scc0 K1_WSEL')
    A('s_mov_b32 s24, s16'); A('s_mov_b32 s25, s17'); A('s_mov_b32 s26, 2048'); A(f's_mov_b32 s28, 0x{NLOG2E:08x}')
    A('s_sub_u32 s29, s10, 16'); A('s_lshl_b32 s29, s29, 2')
    A('s_cmp_ge_u32 s10, 18'); A('s_cbranch_scc0 K1_WSEL')
    A('s_mov_b32 s24, s12'); A('s_mov_b32 s25, s13'); A('s_mov_b32 s26, 8192'); A('s_mov_b32 s28, 0x3f800000'); A('s_sub_u32 s29, s10, 18')
    A('s_cmp_ge_u32 s10, 26'); A('s_cbranch_scc0 K1_WSEL')
    A('s_mov_b32 s24, s18'); A('s_mov_b32 s25, s19'); A('s_sub_u32 s29, s10, 26')
    lab('K1_WSEL')
    A('s_lshr_b32 s30, s29, 2'); A('s_and_b32 s31, s29, 3')
    A('s_lshl_b32 s30, s30, 6'); A('s_lshl_b32 s31, s31, 11'); A('s_add_u32 s30, s30, s31')
    A('v_and_b32 v2, 63, v0'); A('v_and_b32 v3, 31, v0'); A('v_lshrrev_b32 v4, 5, v2')
    A('v_lshlrev_b32 v4, 10, v4'); A('v_lshl_add_u32 v4, v3, 1, v4'); A('v_add_u32 v4, s30, v4')
    for t in range(8): A(f'buffer_load_ushort v{8+t}, v4, s[24:27], 0 offen offset:{128*t}')
    A(f's_add_u32 s32, s8, {WS_WPREP}'); A('s_addc_u32 s33, s9, 0'); A('s_mov_b32 s34, 34816'); A('s_mov_b32 s35, 0x20000')
    A('s_lshl_b32 s36, s10, 10'); A('v_lshlrev_b32 v5, 4, v2')
    A('s_waitcnt vmcnt(0)')
    for t in range(8):
        A(f'v_lshlrev_b32 v{8+t}, 16, v{8+t}'); A(f'v_mul_f32 v{8+t}, s28, v{8+t}')
    for t in range(4): A(f'v_cvt_pk_bf16_f32 v{16+t}, v{8+2*t}, v{9+2*t}')
    A('buffer_store_dwordx4 v[16:19], v5, s[32:35], s36 offen')
    lab('K1_END')
    if ENV('DBG'):
        A('s_cmp_eq_u32 s2, 7'); A('s_cbranch_scc0 K1_END2')
        A('s_load_dwordx2 s[52:53], s[0:1], 80'); A('s_memrealtime s[54:55]'); A('s_waitcnt lgkmcnt(0)')
        A('s_mov_b64 exec, 1'); A('s_mov_b32 s56, s54'); A('s_mov_b32 s54, 256'); A('s_mov_b32 s55, 0x20000')
        A('v_mov_b32 v20, s56'); A('v_mov_b32 v21, s50'); A('v_mov_b32 v22, 0')
        A('buffer_store_dword v21, v22, s[52:55], 0 offen'); A('buffer_store_dword v20, v22, s[52:55], 0 offen offset:4')
        lab('K1_END2')
        lab('K1_END3')
    A('s_endpgm')

XST=0; REC=65536; RECSZ=1408; XS=REC+50*RECSZ; ES=XS+8192; GRP=ES+16384; CNT=GRP+1024; NBT=CNT+256; LDS_END=NBT+256
OWNX=32768; WSTG=40960
O_DEN=256; O_NUM=768; O_U=1280
CAPG=512
DUMMY=49*22
EPAD=0x700FFFFF; EFLAG=0x40000000
cXE=2; cXO=3; aXS=4; aES=5; cKG=6; aGRP=7; cRA=8; cRB=9; aAX=10
WB=16; WV=48; WC=80; XB=88; AZ0=92; AZ1=96; ONEB=100; ONEA=[104,108]; AX=112; AE=[128,132]; G0=136; G1=152; H0=168; H1=184
XI=200; XV=202; EI=206; EV=207; GR=[208,209]; RA0=210; RA1=211; RB0=212; RB1=213; SD=214; SN=215; PD=216; PN=218
vONE=220; kXS=221; kES=222; kGRP=223; kAX=224; vL16=228; T0=230; NGB=236; cXM=252
NVGPR=256
XG_=64
EN=G0; RK=G1; EB=H0; AD=H0+4; EW=AX
sB=3; X_=4; EA_=8; CE_=12; WP_=16; OU_=20; MI_=24; sWS=28; sWAVE=30; sNT=31; sTI=32; sX0=33; sX1=34; sMODE=36; sFIRST=37; sOVF=38; sU=39
MK=40
sCNT=72; sXS=73; sES=74; sT0=75; sT1=76; sT2=77; sOC=78; sOP=79; sON=80; s128=83
STAMPS=int(os.environ.get('STAMPS','0'))
STR=8
SSET=os.environ.get('SSET','main')
SMAP={'main':{'start':0,'bar1':1,'hist':2,'prefix':3,'bar3':4,'ng':5,'loop':6,'bar5':7,'end':8},
      'pro':{'start':0,'issued':1,'consts':2,'vmw':3,'bar1':4,'hist':5,'bar3':6,'ng':7,'entd':8},
      'pro2':{'bar3':0,'dma1':1,'wread':2,'ngm':3,'ng':4,'entw':5,'entd':6,'loop':7,'end':8}}[SSET]
def stamp(name):
    if STAMPS and name in SMAP:
        i=SMAP[name]
        A('s_memtime s[98:99]' if STAMPS==1 else 's_memrealtime s[98:99]'); A('s_waitcnt lgkmcnt(0)'); A(f's_mov_b32 s{86+i}, s98')
def stamp_store():
    if STAMPS and ENV('DBG'):
        A('s_memrealtime s[98:99]'); A('s_waitcnt lgkmcnt(0)'); A('s_mov_b32 s97, s98')
        A('s_cmp_eq_u32 s2, 7'); A('s_cbranch_scc0 K2_DBGE'); A(f's_cmp_eq_u32 s{sWAVE}, 0'); A('s_cbranch_scc0 K2_DBGE')
        A('s_load_dwordx2 s[24:25], s[0:1], 80'); A('s_waitcnt lgkmcnt(0)'); A('s_mov_b64 exec, 1'); A('v_mov_b32 v14, 0'); A('s_mov_b32 s26, 256'); A('s_mov_b32 s27, 0x20000')
        for i in range(12):
            A(f'v_mov_b32 v1, s{86+i}'); A(f'buffer_store_dword v1, v14, s[24:27], 0 offen offset:{8+4*i}')
        lab('K2_DBGE')
    elif STAMPS:
        A('s_memrealtime s[98:99]'); A('s_waitcnt lgkmcnt(0)'); A('s_mov_b32 s97, s98')
        A(f's_add_u32 s24, s{sWS}, 0x2000000'); A(f's_addc_u32 s25, s{sWS+1}, 0'); A('s_mov_b32 s26, 0x100000'); A('s_mov_b32 s27, 0x20000')
        A(f's_lshl_b32 s75, s2, 3'); A(f's_add_u32 s75, s75, s{sWAVE}'); A('s_lshl_b32 s75, s75, 6')
        for i in range(12):
            A(f'v_mov_b32 v1, s{86+i}'); A(f'v_mov_b32 v14, {4*i}'); A('buffer_store_dword v1, v14, s[24:27], s75 offen')
def x_dma(sbase):
    o=[f's_mov_b32 m0, s{sbase}']
    for m in range(4):
        o.append(f'v_mad_u32_u16 v{XV+m}, v{XI+(m>>1)}, s{s128}, v{cXM+m} op_sel:[{m&1},0,0,0]')
        o.append(f'buffer_load_dwordx4 v{XV+m}, s[{XG_}:{XG_+3}], 0 offen offset:{1024*m} lds')
    return o
ENT='' if ENV('NO_NT') else ' nt'
def e_issue(p):
    return [f'v_mad_u32_u24 v{EV}, v{EI}, 32, v{cKG}', f'buffer_load_dwordx4 {q(AE[p])}, v{EV}, s[{EA_}:{EA_+3}], 0 offen{ENT}']
def e_flag(p): return [f'v_and_b32 v{ONEA[p]}, 0xff000000, v{EI}']
def summ(G,H,b,rb,ct):
    if ENV('PK'):
        P=lambda x: f'v[{x}:{x+1}]'
        o=[f'v_pk_mul_f32 {P(PN)}, {P(G+b)}, {P(H+b)}', f'v_pk_add_f32 {P(PD)}, {P(G+b)}, {P(G+b+2)}']
        for r in (2,4,6):
            o.append(f'v_pk_fma_f32 {P(PN)}, {P(G+b+r)}, {P(H+b+r)}, {P(PN)}')
            if r>=4: o.append(f'v_pk_add_f32 {P(PD)}, {P(PD)}, {P(G+b+r)}')
        o.append(f'v_add_f32 v{SD}, v{PD}, v{PD+1}'); o.append(f'v_add_f32 v{SN}, v{PN}, v{PN+1}')
    else:
        o=[f'v_mul_f32 v{SN}, v{G+b}, v{H+b}', f'v_add_f32 v{SD}, v{G+b}, v{G+b+1}']
        for r in range(1,8):
            o.append(f'v_fmac_f32 v{SN}, v{G+b+r}, v{H+b+r}')
            if r>=2: o.append(f'v_add_f32 v{SD}, v{SD}, v{G+b+r}')
    o.append(f'v_cvt_f64_f32 v[{PD}:{PD+1}], v{SD}'); o.append(f'v_cvt_f64_f32 v[{PN}:{PN+1}], v{SN}')
    if not ENV('NO_DSADD'):
        o.append(f'ds_add_f64 v{rb}, v[{PD}:{PD+1}] offset:{ct*256}'); o.append(f'ds_add_f64 v{rb}, v[{PN}:{PN+1}] offset:{512+ct*256}')
    return o
def inter(v, m, every):
    o=[]; m=list(m)
    for i,x in enumerate(v):
        if m and i%every==0: o+=m.pop(0)
        o.append(x)
    for g in m: o+=g
    return o
def gchain(G,ct,p):
    return [[mf(G,AX,WB+16*ct,'0')],[mf(G,AX+4,WB+16*ct+4,G)],[mf(G,AX+8,WB+16*ct+8,G)],[mf(G,AX+12,WB+16*ct+12,G)],
            [mf(G,AE[p],WC+4*ct,G)],[mf(G,AZ1 if ct else AZ0,XB,G)]]
def xb_reads(): return [f'ds_read2_b32 v[{XB}:{XB+1}], v{RA0} offset0:0 offset1:32', f'ds_read2_b32 v[{XB+2}:{XB+3}], v{RA1} offset0:0 offset1:32']
def ra_mads(g): return [f'v_mad_u32_u16 v{RA0}, v{g}, 64, v{cRA} op_sel:[0,0,0,0]', f'v_mad_u32_u16 v{RA1}, v{g}, 64, v{cRA} op_sel:[1,0,0,0]']
def body(p):
    o=[]
    ex=lambda G:[f'v_exp_f32 v{G+r}, v{G+r}' for r in range(16)]
    rc=lambda G:[f'v_rcp_f32 v{G+r}, v{G+r}' for r in range(16)]
    xd=x_dma(sX0 if p==0 else sX1) if not ENV('NO_XDMA') else ['s_nop 0']
    grp=[[mf(H0,AX+4*s,WV+4*s,'0' if s==0 else H0)]+(xd[:3] if s==0 else xd[1+2*s:3+2*s]) for s in range(4)]
    o+=inter(ex(G0), grp, 4)
    sb=summ(G1,H1,8,RB1,1)
    o+=sb[:2]+[mf(G0,ONEA[p],ONEB,G0)]+sb[2:]
    o+=[f'v_mad_u32_u16 v{RB0}, v{GR[p]}, 64, v{cRB} op_sel:[0,0,0,0]', f'v_mad_u32_u16 v{RB1}, v{GR[p]}, 64, v{cRB} op_sel:[1,0,0,0]']
    o+=inter(rc(G0), gchain(G1,1,p), 3)
    o+=summ(G0,H0,0,RB0,0)
    o+=['s_waitcnt vmcnt(5)',
        f'ds_read2_b32 v[{XI}:{XI+1}], v{aXS} offset0:{16*STR*p} offset1:{16*STR*p+4}',
        f'ds_read_b32 v{EI}, v{aES} offset:{128*STR*p}', f'ds_read_b32 v{GR[p^1]}, v{aGRP} offset:{8*STR*p}']
    o+=inter(ex(G1), [[mf(H1,AX+4*s,WV+16+4*s,'0' if s==0 else H1), f'ds_read_b128 {q(AX+4*s)}, v{aAX+s} offset:{32768*(p^1)}'] for s in range(4)], 4)
    sb=summ(G0,H0,8,RB1,0)
    o+=sb[:2]+[mf(G1,ONEA[p],ONEB,G1)]
    o+=['s_waitcnt lgkmcnt(4)']+ra_mads(GR[p^1])
    o+=(e_issue(p) if not ENV('NO_EDMA') else [])+xb_reads()+e_flag(p)
    o+=sb[2:]
    o+=['s_waitcnt vmcnt(5) lgkmcnt(4)']
    gc=gchain(G0,0,p^1)
    gc[5]=['s_waitcnt lgkmcnt(2)']+gc[5]
    o+=inter(rc(G1), gc, 3)
    o+=summ(G1,H1,0,RB0,1)
    if p==1:
        o+=[f'v_add_u32 v{aXS}, {128*STR}, v{aXS}', f'v_add_u32 v{aES}, {256*STR}, v{aES}', f'v_add_u32 v{aGRP}, {16*STR}, v{aGRP}']
    if ENV('NO_XMFMA'):
        o=[i for i in o if not (i.startswith('v_mfma') and any(f', {q(AX+4*s)}, ' in i for s in range(4)))]
    if ENV('NO_HMFMA'): o=[i for i in o if not (i.startswith('v_mfma') and (i.startswith(f'v_mfma_f32_32x32x16_bf16 {q(H0,16)}') or i.startswith(f'v_mfma_f32_32x32x16_bf16 {q(H1,16)}')))]
    if ENV('NO_SUMS'): o=[i for i in o if not (i.startswith('v_fmac') or (i.startswith('v_add_f32')) or i.startswith('v_mul_f32'))]
    if ENV('NO_SMALLM'): o=[i for i in o if not (i.startswith('v_mfma') and not any(f', {q(AX+4*s)}, ' in i for s in range(4)))]
    if ENV('NO_MFMA'): o=[i for i in o if not i.startswith('v_mfma')]
    if ENV('NO_TRANS'): o=[i for i in o if not (i.startswith('v_exp') or i.startswith('v_rcp'))]
    return o

def cell_off_g(dst, creg):
    A(f'v_add_u32 v{dst}, s{sB}, v{creg}'); A(f'v_and_b32 v{dst}, 255, v{dst}'); A(f'v_lshlrev_b32 v{dst}, 7, v{dst}'); A(f'v_lshl_add_u32 v{dst}, v5, 4, v{dst}')
    A(f'v_cmp_gt_u32 vcc, {NCH}, v{creg}'); A('v_mov_b32 v14, 0x7fffffff'); A('s_nop 0'); A(f'v_cndmask_b32 v{dst}, v14, v{dst}, vcc')
def k2():
    lab('standalone__edge_featured_mpnn_gatedgcn__graph_kernel')
    A('s_cmp_ge_u32 s2, 256'); A('s_cbranch_scc1 K2_END')
    A(f's_load_dwordx2 s[{sWS}:{sWS+1}], s[0:1], 88')
    A('s_load_dwordx4 s[4:7], s[0:1], 0')
    A('s_load_dwordx2 s[20:21], s[0:1], 72')
    A(f's_and_b32 s{sB}, s2, 7'); A(f's_lshl_b32 s{sB}, s{sB}, 5'); A(f's_lshr_b32 s{sT0}, s2, 3'); A(f's_or_b32 s{sB}, s{sB}, s{sT0}')
    A('v_lshrrev_b32 v1, 6, v0'); A('v_and_b32 v15, 63, v0')
    A(f'v_readfirstlane_b32 s{sWAVE}, v1')
    A(f'v_lshlrev_b32 v{vL16}, 4, v15')
    def cell_off(dst, creg):
        A(f'v_add_u32 v{dst}, s{sB}, v{creg}'); A(f'v_and_b32 v{dst}, 255, v{dst}'); A(f'v_lshlrev_b32 v{dst}, 7, v{dst}'); A(f'v_lshl_add_u32 v{dst}, v5, 4, v{dst}')
        A(f'v_cmp_gt_u32 vcc, {NCH}, v{creg}'); A('v_mov_b32 v14, 0x7fffffff'); A('s_nop 0'); A(f'v_cndmask_b32 v{dst}, v14, v{dst}, vcc')
    A('v_lshrrev_b32 v4, 3, v0'); A('v_and_b32 v5, 7, v0')
    for u in range(4):
        if u: A('v_add_u32 v4, 64, v4')
        cell_off(RK+u, 4)
    A(f's_lshl_b32 s{sT0}, s{sB}, 15')
    A('s_waitcnt lgkmcnt(0)')
    if STAMPS:
        A('s_memrealtime s[98:99]'); A('s_waitcnt lgkmcnt(0)'); A('s_mov_b32 s96, s98')
    stamp('start')
    A(f's_add_u32 s12, s{sWS}, s{sT0}'); A(f's_addc_u32 s13, s{sWS+1}, 0'); A('s_mov_b32 s14, 32768'); A('s_mov_b32 s15, 0x20000')
    for u in range(4): A(f'buffer_load_dwordx4 {q(EN+4*u)}, v{RK+u}, s[12:15], 0 offen')
    def init_a():
        A('v_lshlrev_b32 v1, 4, v0')
        for r in range(4): A(f'v_mov_b32 v{AX+r}, -1')
        A(f'v_add_u32 v14, {XS}, v1'); A(f'ds_write_b128 v14, {q(AX)}')
        for r in range(4): A(f'v_mov_b32 v{AX+4+r}, 0x{EPAD:08x}')
        A(f'ds_write_b128 v14, {q(AX+4)} offset:8192'); A(f'ds_write_b128 v14, {q(AX+4)} offset:16384')
        for r in range(4): A(f'v_mov_b32 v{AX+8+r}, 0x{(DUMMY<<16)|DUMMY:08x}')
        for r in range(4): A(f'v_mov_b32 v{AX+12+r}, 0')
        A('v_cmp_gt_u32 vcc, 64, v0'); A('s_nop 1')
        for r in range(4): A(f'v_cndmask_b32 v{AX+8+r}, v{AX+12+r}, v{AX+8+r}, vcc')
        A('v_cmp_gt_u32 vcc, 96, v0'); A(f's_and_saveexec_b64 s[{MK}:{MK+1}], vcc'); A(f'ds_write_b128 v14, {q(AX+8)} offset:{GRP-XS}'); A(f's_mov_b64 exec, s[{MK}:{MK+1}]')
    init_a()
    A('s_mov_b32 s8, s6'); A('s_mov_b32 s9, s7'); A(f's_mov_b32 s10, {E*32}'); A('s_mov_b32 s11, 0x20000')
    A(f's_mov_b32 s6, {N*128}'); A('s_mov_b32 s7, 0x20000')
    A(f's_mov_b32 s22, {N*128}'); A('s_mov_b32 s23, 0x20000')
    A(f's_add_u32 s16, s{sWS}, {WS_WPREP}'); A(f's_addc_u32 s17, s{sWS+1}, 0'); A('s_mov_b32 s18, 34816'); A('s_mov_b32 s19, 0x20000')
    A(f's_add_u32 s24, s{sWS}, {WS_OVFCNT}'); A(f's_addc_u32 s25, s{sWS+1}, 0'); A('s_mov_b32 s26, 1000'); A('s_mov_b32 s27, 0x20000')
    A(f'v_lshrrev_b32 v14, 3, v15'); A(f's_lshl_b32 s{sT0}, s{sWAVE}, 3'); A(f'v_add_u32 v14, s{sT0}, v14')
    A(f'v_lshlrev_b32 v14, 8, v14'); A(f'v_add_u32 v14, s{sB}, v14'); A('v_lshlrev_b32 v14, 7, v14')
    A('v_lshrrev_b32 v4, 4, v15'); A('v_and_b32 v5, 7, v15'); A('v_xor_b32 v4, v4, v5'); A(f'v_lshlrev_b32 v{cXE}, 4, v4'); A(f'v_xor_b32 v{cXO}, 64, v{cXE}')
    A(f's_and_b32 s{sT0}, s{sWAVE}, 1'); A(f's_cmp_eq_u32 s{sT0}, 0'); A('s_cselect_b64 vcc, -1, 0')
    A(f'v_cndmask_b32 v4, v{cXO}, v{cXE}, vcc'); A('v_add_u32 v4, v14, v4')
    A(f's_lshl_b32 s{sT0}, s{sWAVE}, 10'); A(f's_add_u32 m0, s{sT0}, {OWNX}'); A('s_nop 0')
    A(f'buffer_load_dwordx4 v4, s[{X_}:{X_+3}], 0 offen lds')
    for i in range(3):
        A(f's_add_u32 s{sT1}, s{sT0}, {8192*i}'); A(f's_add_u32 m0, s{sT1}, {WSTG}'); A('s_nop 0')
        A(f'buffer_load_dwordx4 v{vL16}, s[16:19], s{sT1} offen lds')
    stamp('issued')
    A('v_lshrrev_b32 v14, 6, v0'); A(f'v_mul_u32_u24 v14, {RECSZ}, v14'); A(f'v_add_u32 v14, v14, v{vL16}'); A(f'v_add_u32 v14, {REC+O_DEN}, v14')
    for r in range(4): A(f'v_mov_b32 v{AX+r}, 0')
    for i in range(5): A(f'ds_write_b128 v14, {q(AX)} offset:{8*RECSZ*i}')
    A(f'v_add_u32 v14, {8*RECSZ*5}, v14'); A(f'ds_write_b128 v14, {q(AX)}')
    A('v_cmp_gt_u32 vcc, 128, v0'); A(f's_and_saveexec_b64 s[{MK}:{MK+1}], vcc'); A(f'ds_write_b128 v14, {q(AX)} offset:{8*RECSZ}'); A(f's_mov_b64 exec, s[{MK}:{MK+1}]')
    A(f'v_mov_b32 v{vONE}, 1')
    A(f's_mov_b32 s{sCNT}, {CNT}'); A(f's_mov_b32 s{sXS}, {XS}'); A(f's_mov_b32 s{sES}, {ES}'); A(f's_mov_b32 s{s128}, 128')
    A(f's_mov_b32 s{sMODE}, 0'); A(f's_mov_b32 s{sFIRST}, 1'); A(f's_mov_b32 s{sU}, 0')
    A('v_lshrrev_b32 v4, 3, v0'); A('v_mul_u32_u24 v4, 3200, v4')
    for u in range(4): A(f'v_add_u32 v{EB+u}, 0x{(64*u*3200-1+EFLAG)&0xffffffff:08x}, v4')
    def lane_consts():
        C('lane constants (v1 = kg)')
        A('v_lshrrev_b32 v1, 5, v15'); A(f'v_lshlrev_b32 v{cKG}, 4, v1')
        A('v_bfe_u32 v5, v15, 3, 2'); A('v_lshlrev_b32 v4, 5, v1'); A('v_lshl_add_u32 v4, v5, 2, v4'); A(f'v_add_u32 v{kXS}, {XS}, v4')
        A('v_bfe_u32 v4, v15, 2, 1'); A('v_lshlrev_b32 v4, 4, v4'); A('v_bfe_u32 v5, v15, 4, 1'); A('v_lshl_add_u32 v4, v5, 3, v4')
        A('v_and_b32 v5, 3, v15'); A('v_lshl_add_u32 v4, v5, 1, v4'); A('v_bfe_u32 v5, v15, 3, 1'); A('v_add_u32 v4, v4, v5')
        A('v_lshlrev_b32 v4, 2, v4'); A(f'v_add_u32 v{kES}, {ES}, v4')
        A('v_lshlrev_b32 v4, 2, v1'); A(f'v_add_u32 v{kGRP}, {GRP}, v4')
        A('v_and_b32 v4, 31, v15'); A('v_lshlrev_b32 v5, 2, v4'); A(f'v_add_u32 v{cRA}, {REC}, v5'); A('v_lshlrev_b32 v5, 3, v4'); A(f'v_add_u32 v{cRB}, {REC+O_DEN}, v5')
        A('v_bfe_u32 v5, v15, 1, 3'); A('v_xor_b32 v5, v5, v1'); A('v_lshlrev_b32 v5, 4, v5'); A('v_lshl_add_u32 v4, v4, 7, v5')
        for s in range(4): A(f'v_xor_b32 v{kAX+s}, {32*s}, v4')
        A(f's_lshl_b32 s{sX0}, s{sWAVE}, 12'); A(f's_add_u32 s{sX1}, s{sX0}, 32768')
        for m in range(4): A(f'v_add_u32 v{cXM+m}, {4096-1024*m}, v{cXO if m&1 else cXE}')
        A('v_bfe_u32 v4, v15, 2, 1'); A('v_cmp_eq_u32 vcc, v4, v1'); A('v_mov_b32 v5, 0x3f803f80'); A('s_nop 0'); A('v_cndmask_b32 v5, 0, v5, vcc')
        A('v_bfe_u32 v4, v15, 4, 1'); A('v_cmp_eq_u32 vcc, 0, v4'); A('s_nop 1'); A(f'v_cndmask_b32 v{AZ0}, 0, v5, vcc')
        A(f'v_sub_u32 v{AZ0+2}, v5, v{AZ0}'); A(f'v_mov_b32 v{AZ0+1}, 0'); A(f'v_mov_b32 v{AZ0+3}, 0')
        A(f'v_mov_b32 v{AZ1}, 0'); A(f'v_mov_b32 v{AZ1+1}, v{AZ0}'); A(f'v_mov_b32 v{AZ1+2}, 0'); A(f'v_mov_b32 v{AZ1+3}, v{AZ0+2}')
        A('v_cmp_eq_u32 vcc, 0, v1'); A('v_mov_b32 v5, 0x3f000000'); A('s_nop 0'); A(f'v_cndmask_b32 v{ONEB}, 0, v5, vcc')
        for r in range(1,4): A(f'v_mov_b32 v{ONEB+r}, 0'); A(f'v_mov_b32 v{ONEA[0]+r}, 0'); A(f'v_mov_b32 v{ONEA[1]+r}, 0')
    lane_consts()
    stamp('consts')
    A('s_waitcnt vmcnt(4)')
    A('s_branch K2_WD')
    lab('K2_ROUND')
    init_a()
    A('s_waitcnt vmcnt(0)')
    lab('K2_WD')
    stamp('vmw')
    if ENV('HALFCELL'):
        A(f's_cmp_eq_u32 s{sMODE}, 2'); A('s_cbranch_scc1 K2_NOMASK')
        A('v_and_b32 v14, 4, v15'); A('v_cmp_eq_u32 s[84:85], 0, v14')
        for u in range(4):
            A(f'v_mov_b32_dpp v1, v{EN+4*u+3} quad_perm:[3,3,3,3] row_mask:0xf bank_mask:0xf'); A('s_nop 1')
            A('v_mov_b32_dpp v14, v1 row_shr:4 row_mask:0xf bank_mask:0xf bound_ctrl:0'); A('s_nop 0')
            A('v_cmp_ne_u32 vcc, 0, v14'); A('s_or_b64 vcc, vcc, s[84:85]')
            for k in range(4): A(f'v_cndmask_b32 v{EN+4*u+k}, 0, v{EN+4*u+k}, vcc')
        lab('K2_NOMASK')
    for k in range(16): A(f'v_cmp_ne_u32 s[{MK+2*k}:{MK+2*k+1}], 0, v{EN+k}')
    for k in range(16):
        A(f'v_and_b32 v{AD+k}, 63, v{EN+k}'); A(f'v_lshl_add_u32 v{AD+k}, v{AD+k}, 2, s{sCNT}')
    A('s_waitcnt lgkmcnt(0)'); A('s_barrier')
    stamp('bar1')
    for k in range(16):
        A(f's_mov_b64 exec, s[{MK+2*k}:{MK+2*k+1}]'); A(f'ds_add_rtn_u32 v{RK+k}, v{AD+k}, v{vONE}')
    A('s_mov_b64 exec, -1')
    for k in range(16):
        A(f'v_lshrrev_b32 v{EW+k}, 20, v{EN+k}'); A(f'v_bfe_u32 v{EN+k}, v{EN+k}, 6, 14'); A(f'v_add_u32 v{EW+k}, v{EW+k}, v{EB+k//4}')
    A('s_waitcnt lgkmcnt(0)'); A('s_barrier')
    stamp('hist')
    A(f's_cmp_eq_u32 s{sFIRST}, 1'); A('s_cbranch_scc0 K2_NF1')
    if ENV('XPF2'):
        A(f's_lshr_b32 s{sT0}, s2, 3'); A(f's_mul_i32 s{sT0}, s{sT0}, 391'); A(f'v_add_u32 v14, s{sT0}, v0'); A('v_lshlrev_b32 v14, 7, v14')
        A('v_cmp_gt_u32 vcc, 391, v0'); A(f'v_mov_b32 v{T0+5}, 0x7fffffff'); A('s_nop 0'); A(f'v_cndmask_b32 v14, v{T0+5}, v14, vcc')
        A(f'buffer_load_dword v{T0+5}, v14, s[{X_}:{X_+3}], 0 offen')
    A(f'buffer_load_dwordx4 {q(T0)}, v{vL16}, s[24:27], 0 offen')
    A(f's_lshr_b32 s{sT0}, s{sWAVE}, 1'); A(f's_lshl_b32 s{sT0}, s{sT0}, 12'); A(f's_add_u32 s{sT0}, s{sT0}, {18*1024}')
    for s in range(4): A(f'buffer_load_dwordx4 {q(NGB+4*s)}, v{vL16}, s[16:19], s{sT0} offen offset:{1024*s}')
    lab('K2_NF1')
    A(f'v_lshl_add_u32 v4, v15, 2, s{sCNT}'); A('ds_read_b32 v5, v4'); A('s_waitcnt lgkmcnt(0)')
    A('v_add_u32 v5, 7, v5'); A('v_lshrrev_b32 v5, 3, v5'); A('v_mov_b32 v1, v5'); A('s_nop 1')
    for sh in (1,2,4,8):
        A(f'v_add_u32_dpp v1, v1, v1 row_shr:{sh} row_mask:0xf bank_mask:0xf bound_ctrl:0'); A('s_nop 1')
    A('v_add_u32_dpp v1, v1, v1 row_bcast:15 row_mask:0xa bank_mask:0xf'); A('s_nop 1')
    A('v_add_u32_dpp v1, v1, v1 row_bcast:31 row_mask:0xc bank_mask:0xf'); A('s_nop 1')
    A(f'v_readlane_b32 s{sNT}, v1, 63')
    A('v_sub_u32 v1, v1, v5')
    A(f'v_lshlrev_b32 v{T0+4}, 3, v1')
    if not ENV('BPERM'): A(f'ds_write_b32 v4, v{T0+4} offset:256')
    A(f's_cmp_gt_u32 s{sNT}, {CAPG}'); A('s_cbranch_scc1 K2_SPLIT')
    if ENV('BPERM'):
        for k in range(16): A(f'ds_bpermute_b32 v{AD+k}, v{AD+k}, v{T0+4}')
    else:
        for k in range(16): A(f'ds_read_b32 v{AD+k}, v{AD+k} offset:256')
    A(f'v_mul_u32_u24 v{XV}, 22, v15'); A(f'v_mov_b32 v{XV+1}, s{sWAVE}')
    lab('K2_GL')
    A(f'v_cmp_lt_u32 vcc, v{XV+1}, v5'); A('s_and_saveexec_b64 s[84:85], vcc'); A('s_cbranch_execz K2_GLD')
    A(f'v_add_u32 v{XV+2}, v1, v{XV+1}'); A(f'v_lshlrev_b32 v{XV+2}, 1, v{XV+2}'); A(f'v_add_u32 v{XV+2}, {GRP}, v{XV+2}')
    A(f'ds_write_b16 v{XV+2}, v{XV}'); A(f'v_add_u32 v{XV+1}, 8, v{XV+1}')
    A('s_mov_b64 exec, s[84:85]'); A('s_branch K2_GL')
    lab('K2_GLD'); A('s_mov_b64 exec, -1')
    A('s_waitcnt lgkmcnt(0)')
    stamp('prefix')
    for k in range(16):
        A(f'v_add_u32 v{RK+k}, v{RK+k}, v{AD+k}')
        A(f'v_lshl_add_u32 v{AD+k}, v{RK+k}, 1, s{sXS}')
        A(f'v_lshl_add_u32 v{RK+k}, v{RK+k}, 2, s{sES}')
    for k in range(16):
        A(f's_mov_b64 exec, s[{MK+2*k}:{MK+2*k+1}]')
        A(f'ds_write_b16 v{AD+k}, v{EN+k}'); A(f'ds_write_b32 v{RK+k}, v{EW+k}')
    A('s_mov_b64 exec, -1')
    A(f's_add_u32 s{sNT}, s{sNT}, 3'); A(f's_lshr_b32 s{sNT}, s{sNT}, 2')
    A('s_waitcnt vmcnt(0) lgkmcnt(0)'); A('s_barrier')
    stamp('bar3')
    A(f's_sub_u32 s{XG_}, s{X_}, 4096'); A(f's_subb_u32 s{XG_+1}, s{X_+1}, 0'); A(f's_mov_b32 s{XG_+2}, {N*128+4096}'); A(f's_mov_b32 s{XG_+3}, 0x20000')
    A(f's_mov_b32 s{sTI}, s{sWAVE}')
    A(f's_lshl_b32 s{sT0}, s{sWAVE}, 6'); A(f'v_add_u32 v{aXS}, s{sT0}, v{kXS}')
    A(f's_lshl_b32 s{sT0}, s{sWAVE}, 7'); A(f'v_add_u32 v{aES}, s{sT0}, v{kES}')
    A(f's_lshl_b32 s{sT0}, s{sWAVE}, 3'); A(f'v_add_u32 v{aGRP}, s{sT0}, v{kGRP}')
    A(f'ds_read_b32 v{EI}, v{aES}'); A(f'ds_read2_b32 v[{XI}:{XI+1}], v{aXS} offset0:0 offset1:4'); A(f'ds_read_b32 v{GR[0]}, v{aGRP}')
    for s in range(4): A(f'v_add_u32 v{aAX+s}, s{sX0}, v{kAX+s}')
    A('s_waitcnt lgkmcnt(0)')
    for i in x_dma(sX0)+e_issue(0)+e_flag(0): A(i)
    stamp('dma1')
    A(f's_cmp_eq_u32 s{sFIRST}, 0'); A('s_cbranch_scc1 K2_NG_DONE')
    A(f'v_add_u32 v1, {WSTG}, v{vL16}')
    A(f's_and_b32 s{sT0}, s{sWAVE}, 1'); A(f's_lshl_b32 s{sT0}, s{sT0}, 12'); A(f's_add_u32 s{sT0}, s{sT0}, {OWNX}')
    for s in range(4): A(f'v_add_u32 v{XV+s}, s{sT0}, v{kAX+s}')
    for s in range(4): A(f'ds_read_b128 {q(AX+4*s)}, v{XV+s}')
    for i in range(18): A(f'ds_read_b128 {q(WB+4*i)}, v1 offset:{1024*i}')
    A(f'v_or_b32 v{T0}, v{T0}, v{T0+1}'); A(f'v_or_b32 v{T0+2}, v{T0+2}, v{T0+3}'); A(f'v_or_b32 v{T0}, v{T0}, v{T0+2}')
    A(f'v_cmp_ne_u32 vcc, 0, v{T0}'); A('s_nop 3'); A('s_cmp_lg_u64 vcc, 0'); A(f's_cselect_b32 s{sOVF}, 1, 0')
    A('s_waitcnt lgkmcnt(0)')
    stamp('wread')
    for s in range(4): A(mf(G0, AX+4*s, NGB+4*s, '0' if s==0 else G0))
    A(f's_and_b32 s{sT0}, s{sWAVE}, 1'); A(f's_lshl_b32 s{sT0}, s{sT0}, 5'); A(f'v_lshrrev_b32 v1, 5, v15'); A(f'v_lshl_add_u32 v1, v1, 2, s{sT0}')
    A(f'v_mul_u32_u24 v1, {RECSZ}, v1')
    A(f's_bfe_u32 s{sT1}, s{sWAVE}, 0x10001')
    A(f's_cmp_ge_u32 s{sWAVE}, 4'); A('s_cbranch_scc1 K2_NG_U')
    A(f's_lshl_b32 s{sT1}, s{sT1}, 7'); A(f'v_add_u32 v1, v1, v{cRA}'); A(f'v_add_u32 v1, s{sT1}, v1')
    A(f's_mov_b32 s{sT2}, 0x{NLOG2E:08x}'); A('s_nop 7')
    for r in range(16):
        A(f'v_mul_f32 v{G0+r}, s{sT2}, v{G0+r}')
        A(f'v_cvt_pk_bf16_f32 v{SD}, v{G0+r}, v{G0+r}'); A(f'v_lshlrev_b32 v{SD}, 16, v{SD}'); A(f'v_sub_f32 v{SN}, v{G0+r}, v{SD}'); A(f'v_cvt_pk_bf16_f32 v{G0+r}, v{SD}, v{SN}')
    def wr_a(r): A(f'ds_write_b32 v1, v{G0+r} offset:{(8*(r//4)+(r%4))*RECSZ}')
    for r in range(8): wr_a(r)
    A(f's_and_b32 s{sT0}, s{sWAVE}, 1'); A(f's_cmp_eq_u32 s{sT0}, 0'); A('s_cbranch_scc0 K2_NG_A1')
    for r in range(8,16): wr_a(r)
    A('s_branch K2_NG_BAR')
    lab('K2_NG_A1')
    A('s_mov_b32 exec_lo, -1'); A('s_mov_b32 exec_hi, 0'); wr_a(8); wr_a(9); A('s_mov_b64 exec, -1'); A('s_branch K2_NG_BAR')
    lab('K2_NG_U')
    A(f's_lshl_b32 s{sT1}, s{sT1}, 6'); A(f'v_and_b32 v{SD}, 31, v15'); A(f'v_lshl_add_u32 v1, v{SD}, 1, v1'); A(f'v_add_u32 v1, s{sT1}, v1'); A(f'v_add_u32 v1, {REC+O_U}, v1')
    A('s_nop 7')
    for r in range(16): A(f'v_cvt_pk_bf16_f32 v{G0+r}, v{G0+r}, v{G0+r}')
    def wr_u(r): A(f'ds_write_b16 v1, v{G0+r} offset:{(8*(r//4)+(r%4))*RECSZ}')
    for r in range(8): wr_u(r)
    A(f's_and_b32 s{sT0}, s{sWAVE}, 1'); A(f's_cmp_eq_u32 s{sT0}, 0'); A('s_cbranch_scc0 K2_NG_U1')
    for r in range(8,16): wr_u(r)
    A('s_branch K2_NG_BAR')
    lab('K2_NG_U1')
    A('s_mov_b32 exec_lo, -1'); A('s_mov_b32 exec_hi, 0'); wr_u(8); wr_u(9); A('s_mov_b64 exec, -1')
    lab('K2_NG_BAR')
    stamp('ngm')
    A('s_waitcnt lgkmcnt(0)'); A('s_barrier')
    lab('K2_NG_DONE')
    stamp('ng')
    A(f's_mov_b32 s{sFIRST}, 0')
    A(f's_cmp_lt_u32 s{sTI}, s{sNT}'); A('s_cbranch_scc0 K2_LOOP_END')
    A(f'ds_read2_b32 v[{XI}:{XI+1}], v{aXS} offset0:{16*STR} offset1:{16*STR+4}'); A(f'ds_read_b32 v{EI}, v{aES} offset:{128*STR}')
    for i in ra_mads(GR[0]): A(i)
    A(f'v_mad_u32_u16 v{RB1}, v{GR[0]}, 64, v{cRB} op_sel:[1,0,0,0]')
    for i in xb_reads(): A(i)
    for r in range(8,16): A(f'v_mov_b32 v{G1+r}, 0'); A(f'v_mov_b32 v{H1+r}, 0')
    A('s_waitcnt lgkmcnt(2)')
    for i in x_dma(sX1)+e_issue(1)+e_flag(1): A(i)
    A(f'v_add_u32 v{aXS}, {128*STR}, v{aXS}')
    A(f'ds_read2_b32 v[{XI}:{XI+1}], v{aXS} offset0:0 offset1:4')
    A('s_waitcnt vmcnt(5)')
    stamp('entw')
    for s in range(4): A(f'ds_read_b128 {q(AX+4*s)}, v{aAX+s}')
    A(f'v_add_u32 v{aXS}, {64*STR}, v{aXS}'); A(f'v_add_u32 v{aES}, {256*STR}, v{aES}'); A(f'v_add_u32 v{aGRP}, {8*STR}, v{aGRP}')
    A('s_waitcnt lgkmcnt(0)')
    for g in gchain(G0,0,0):
        for i in g: A(i)
    A('s_nop 7'); A('s_nop 2')
    stamp('entd')
    lab('K2_LOOP')
    for i in body(0): A(i)
    A(f's_add_u32 s{sTI}, s{sTI}, {STR}'); A(f's_cmp_lt_u32 s{sTI}, s{sNT}'); A('s_cbranch_scc0 K2_TAIL')
    for i in body(1): A(i)
    A(f's_add_u32 s{sTI}, s{sTI}, {STR}'); A(f's_cmp_lt_u32 s{sTI}, s{sNT}'); A('s_cbranch_scc1 K2_LOOP')
    lab('K2_TAIL')
    for i in summ(G1,H1,8,RB1,1): A(i)
    lab('K2_LOOP_END')
    stamp('loop')
    A('s_waitcnt vmcnt(0)')
    A('v_lshrrev_b32 v1, 3, v0'); A('v_and_b32 v2, 7, v0')
    A(f'v_lshlrev_b32 v3, 8, v1'); A(f'v_add_u32 v3, s{sB}, v3'); A('v_lshlrev_b32 v3, 7, v3'); A('v_lshl_add_u32 v3, v2, 4, v3')
    A(f'buffer_load_dwordx4 {q(NGB)}, v3, s[{X_}:{X_+3}], 0 offen')
    A('s_waitcnt lgkmcnt(0)'); A('s_barrier')
    stamp('bar5')
    A(f's_cmp_eq_u32 s{sMODE}, 1'); A('s_cbranch_scc1 K2_NEXT_SPLIT')
    A(f's_cmp_eq_u32 s{sMODE}, 2'); A('s_cbranch_scc1 K2_NEXT_OVF')
    lab('K2_CHECK_OVF')
    A(f's_cmp_eq_u32 s{sOVF}, 0'); A('s_cbranch_scc1 K2_EPI')
    A(f's_mov_b32 s{sMODE}, 2'); A(f's_mov_b32 s{sOC}, 0'); A(f's_mov_b32 s{sOP}, 0'); A('s_branch K2_OVF_FIND')
    lab('K2_SPLIT')
    A(f's_mov_b32 s{sMODE}, 1'); A(f's_mov_b32 s{sU}, 0')
    A('s_waitcnt lgkmcnt(0)'); A('s_barrier')
    A('s_branch K2_LOADQ')
    lab('K2_NEXT_SPLIT')
    A(f's_add_u32 s{sU}, s{sU}, 1'); A(f's_cmp_ge_u32 s{sU}, 4'); A('s_cbranch_scc1 K2_CHECK_OVF')
    lab('K2_LOADQ')
    A(f's_lshl_b32 s{sT0}, s{sU}, 6'); A('v_lshrrev_b32 v4, 3, v0'); A(f'v_add_u32 v4, s{sT0}, v4'); A('v_and_b32 v5, 7, v0')
    cell_off_g(RK, 4)
    A('s_waitcnt vmcnt(0)')
    A(f'buffer_load_dwordx4 {q(EN)}, v{RK}, s[12:15], 0 offen')
    for k in range(4,16): A(f'v_mov_b32 v{EN+k}, 0')
    A(f's_mul_i32 s{sT0}, s{sU}, {64*3200}'); A(f's_add_u32 s{sT0}, s{sT0}, 0x{EFLAG-1:08x}')
    A('v_lshrrev_b32 v4, 3, v0'); A('v_mul_u32_u24 v4, 3200, v4'); A(f'v_add_u32 v{EB}, s{sT0}, v4')
    A('s_branch K2_ROUND')
    lab('K2_NEXT_OVF')
    A(f's_add_u32 s{sOP}, s{sOP}, 2048')
    lab('K2_OVF_FIND')
    A(f's_cmp_ge_u32 s{sOC}, {NCH}'); A('s_cbranch_scc1 K2_EPI')
    A(f's_lshl_b32 s{sT0}, s{sOC}, 2'); A(f's_add_u32 s{sT0}, s{sT0}, {WS_OVFCNT}')
    A(f's_load_dword s{sON}, s[{sWS}:{sWS+1}], s{sT0}'); A('s_waitcnt lgkmcnt(0)')
    A(f's_cmp_gt_u32 s{sON}, s{sOP}'); A('s_cbranch_scc1 K2_OVF_LOAD')
    A(f's_add_u32 s{sOC}, s{sOC}, 1'); A(f's_mov_b32 s{sOP}, 0'); A('s_branch K2_OVF_FIND')
    lab('K2_OVF_LOAD')
    A(f's_mul_i32 s{sT0}, s{sOC}, 25600'); A(f's_add_u32 s{sT0}, s{sT0}, {WS_OVFL}')
    A(f's_add_u32 s24, s{sWS}, s{sT0}'); A(f's_addc_u32 s25, s{sWS+1}, 0'); A(f's_lshl_b32 s26, s{sON}, 3'); A('s_mov_b32 s27, 0x20000')
    A(f'v_add_u32 v1, s{sOP}, v0'); A('v_lshlrev_b32 v1, 3, v1')
    A(f'buffer_load_dwordx2 v[{AX}:{AX+1}], v1, s[24:27], 0 offen')
    for j in range(1,4):
        A(f's_mov_b32 s{sT0}, {4096*j}'); A(f'buffer_load_dwordx2 v[{AX+2*j}:{AX+2*j+1}], v1, s[24:27], s{sT0} offen')
    A('s_waitcnt vmcnt(0)')
    for j in range(4):
        A(f'v_cmp_eq_u32 vcc, s{sB}, v{AX+2*j+1}'); A('s_nop 1'); A(f'v_cndmask_b32 v{EN+j}, 0, v{AX+2*j}, vcc')
    for k in range(4,16): A(f'v_mov_b32 v{EN+k}, 0')
    A(f's_mul_i32 s{sT0}, s{sOC}, 3200'); A(f's_add_u32 s{sT0}, s{sT0}, 0x{EFLAG-1:08x}'); A(f'v_mov_b32 v{EB}, s{sT0}')
    A('s_branch K2_ROUND')
    lab('K2_EPI')
    A(f'v_mul_u32_u24 v4, {RECSZ}, v1'); A(f'v_add_u32 v4, {REC}, v4'); A('v_lshl_add_u32 v5, v2, 6, v4'); A('v_lshl_add_u32 v6, v2, 4, v4')
    for i in range(4): A(f'ds_read_b128 {q(48+4*i)}, v5 offset:{O_DEN+16*i}')
    for i in range(4): A(f'ds_read_b128 {q(64+4*i)}, v5 offset:{O_NUM+16*i}')
    A(f'ds_read_b128 v[36:39], v6 offset:{O_U}')
    A('s_mov_b32 s40, 0x358637bd')
    A('s_waitcnt lgkmcnt(0)')
    for i in range(8): A(f'v_cvt_f32_f64 v{20+i}, v[{48+2*i}:{49+2*i}]'); A(f'v_cvt_f32_f64 v{28+i}, v[{64+2*i}:{65+2*i}]')
    for i in range(8): A(f'v_add_f32 v{20+i}, s40, v{20+i}')
    for i in range(8): A(f'v_rcp_f32 v{20+i}, v{20+i}')
    for i in range(4):
        A(f'v_lshlrev_b32 v{40+2*i}, 16, v{36+i}'); A(f'v_and_b32 v{41+2*i}, 0xffff0000, v{36+i}')
    for i in range(8): A(f'v_fmac_f32 v{40+i}, v{28+i}, v{20+i}')
    for i in range(8):
        A(f'v_mul_f32 v{28+i}, 0, v{40+i}'); A(f'v_cmp_lt_f32 vcc, 0, v{40+i}'); A('s_nop 1'); A(f'v_cndmask_b32 v{28+i}, v{28+i}, v{40+i}, vcc')
    A('s_waitcnt vmcnt(0)')
    for i in range(4):
        A(f'v_lshlrev_b32 v{40+2*i}, 16, v{NGB+i}'); A(f'v_and_b32 v{41+2*i}, 0xffff0000, v{NGB+i}')
    for i in range(8): A(f'v_add_f32 v{28+i}, v{28+i}, v{40+i}')
    for i in range(4): A(f'v_cvt_pk_bf16_f32 v{20+i}, v{28+2*i}, v{29+2*i}')
    A(f"buffer_store_dwordx4 v[20:23], v3, s[{OU_}:{OU_+3}], 0 offen {os.environ.get('OST','sc1')}")
    stamp('end')
    stamp_store()
    lab('K2_END')
    A('s_endpgm')

hdr = f'''; GatedGCN edge-featured MPNN: K1 buckets edges by destination, K2 gathers + MFMA + segment-reduces in LDS.
; @launch kernel=gcn_sort_kernel grid=({K1_GRID},1,1) block=(1024,1,1) lds={K1_LDS}
; @launch kernel=standalone__edge_featured_mpnn_gatedgcn__graph_kernel grid=(256,1,1) block=(512,1,1) lds={LDS_END}
.amdgcn_target "amdgcn-amd-amdhsa--gfx950"
.text
'''
def kd(name, nv, ns):
    return f'''.p2align 6
.amdhsa_kernel {name}
  .amdhsa_next_free_vgpr {nv}
  .amdhsa_next_free_sgpr {ns}
  .amdhsa_accum_offset {(nv+3)//4*4}
  .amdhsa_group_segment_fixed_size 0
  .amdhsa_kernarg_size 96
  .amdhsa_user_sgpr_count 2
  .amdhsa_user_sgpr_kernarg_segment_ptr 1
  .amdhsa_system_sgpr_workgroup_id_x 1
.end_amdhsa_kernel
'''
out=[hdr]
out.append('.globl gcn_sort_kernel\n.p2align 8\n.type gcn_sort_kernel,@function')
k1(); out+=L; L=[]
out.append('.globl standalone__edge_featured_mpnn_gatedgcn__graph_kernel\n.p2align 8\n.type standalone__edge_featured_mpnn_gatedgcn__graph_kernel,@function')
k2(); out+=L
out.append('.section .rodata,"a"')
out.append(kd('gcn_sort_kernel', 40, 64))
out.append(kd('standalone__edge_featured_mpnn_gatedgcn__graph_kernel', NVGPR, 102 if STAMPS else 96))
open(sys.argv[1] if len(sys.argv)>1 else 'out.s','w').write('\n'.join(out)+'\n')
print('LDS_END',LDS_END)
```

```python
import sys, os
N=12500; E=800000; CH=3200; NCH=250; NBK=256
WS_CELLS=0; WS_OVFCNT=0x800000; WS_WPREP=0x801000; WS_OVFL=0x810000; WS_T=0x1000000
NLOG2E=0xBFB8AA3B
L=[]
def A(s): L.append(s if s.endswith(':') else '    '+s)
def lab(s): L.append(s+':')
def C(s): L.append('    ; '+s)
ENV=lambda k: os.environ.get(k)
def q(base,n=4): return f'v[{base}:{base+n-1}]'
def mf(d,a,b,c): return f'v_mfma_f32_32x32x16_bf16 {q(d,16)}, {q(a)}, {q(b)}, {c if c=="0" else q(c,16)}'
K1_GRID=NCH+3
K1_LDS=49152
S1=ENV('S1')
def k1():
    lab('gcn_sort_kernel')
    if ENV('DBG') or int(os.environ.get('STAMPS','0')): A('s_memrealtime s[50:51]')
    A(f's_cmp_ge_u32 s2, {K1_GRID}'); A('s_cbranch_scc1 K1_END3' if ENV('DBG') else 's_cbranch_scc1 K1_END')
    A('s_load_dwordx2 s[8:9], s[0:1], 88')
    A(f's_cmp_ge_u32 s2, {NCH}'); A('s_cbranch_scc1 K1_W')
    A('s_load_dwordx4 s[4:7], s[0:1], 16')
    A('s_load_dwordx2 s[44:45], s[0:1], 0')
    A('v_lshlrev_b32 v1, 4, v0')
    A('s_mul_i32 s10, s2, 12800')
    A('s_waitcnt lgkmcnt(0)')
    if int(os.environ.get('STAMPS','0')):
        A('s_add_u32 s56, s8, 0x2080000'); A('s_addc_u32 s57, s9, 0'); A('s_mov_b32 s58, 1024'); A('s_mov_b32 s59, 0x20000')
        A('s_lshl_b32 s60, s2, 2'); A('v_mov_b32 v20, s50'); A('v_mov_b32 v21, s60'); A('buffer_store_dword v20, v21, s[56:59], 0 offen')
    A('s_add_u32 s16, s6, s10'); A('s_addc_u32 s17, s7, 0'); A('s_mov_b32 s18, 12800'); A('s_mov_b32 s19, 0x20000')
    A('buffer_load_dwordx4 v[8:11], v1, s[16:19], 0 offen')
    A('s_add_u32 s12, s4, s10'); A('s_addc_u32 s13, s5, 0'); A('s_mov_b32 s14, 12800'); A('s_mov_b32 s15, 0x20000')
    A('buffer_load_dwordx4 v[12:15], v1, s[12:15], 0 offen')
    if ENV('K1_XPF'):
        A(f's_mov_b32 s46, {N*128}'); A('s_mov_b32 s47, 0x20000')
        A('s_lshr_b32 s10, s2, 3'); A('s_mul_i32 s10, s10, 404'); A('v_add_u32 v36, s10, v0'); A('v_lshlrev_b32 v36, 7, v36')
        A('v_cmp_gt_u32 vcc, 404, v0'); A('v_mov_b32 v37, 0x7fffffff'); A('s_nop 0'); A('v_cndmask_b32 v36, v37, v36, vcc')
        A('buffer_load_dword v38, v36, s[44:47], 0 offen')
    for r in range(4,8): A(f'v_mov_b32 v{r}, 0')
    A('ds_write_b128 v1, v[4:7]'); A('ds_write_b128 v1, v[4:7] offset:16384'); A('ds_write_b128 v1, v[4:7] offset:32768')
    A('s_mul_i32 s10, s2, 25600')
    A(f's_add_u32 s24, s8, {WS_OVFL}'); A('s_addc_u32 s25, s9, 0'); A('s_add_u32 s24, s24, s10'); A('s_addc_u32 s25, s25, 0')
    A('s_mov_b32 s26, 25600'); A('s_mov_b32 s27, 0x20000')
    A('s_mov_b32 s32, s8'); A('s_mov_b32 s33, s9'); A('s_mov_b32 s34, 0x800000'); A('s_mov_b32 s35, 0x20000')
    A(f's_add_u32 s40, s8, {WS_OVFCNT}'); A('s_addc_u32 s41, s9, 0'); A('s_mov_b32 s42, 1000'); A('s_mov_b32 s43, 0x20000')
    A('v_mov_b32 v2, 1'); A('v_mov_b32 v3, 37888')
    A('s_waitcnt lgkmcnt(0)'); A('s_barrier')
    A('v_cmp_gt_u32 vcc, 800, v0'); A('s_and_saveexec_b64 s[20:21], vcc'); A('s_cbranch_execz K1_SKIP')
    A('s_mov_b64 s[28:29], exec')
    NP=1 if ENV('K1_XPF') else 0
    A(f's_waitcnt vmcnt({1+NP})')
    for j in range(4):
        A(f'v_and_b32 v{16+j}, 255, v{8+j}')
        A(f'v_lshlrev_b32 v{24+j}, 2, v{16+j}')
        A(f'ds_add_rtn_u32 v{28+j}, v{24+j}, v2 offset:36864')
    A(f's_waitcnt vmcnt({NP})')
    for j in range(4):
        A(f'v_lshrrev_b32 v{20+j}, 8, v{8+j}')
        A(f'v_lshl_or_b32 v{20+j}, v{12+j}, 6, v{20+j}')
        A(f'v_lshl_add_u32 v32, v0, 2, {j+1}')
        A(f'v_lshl_or_b32 v{20+j}, v32, 20, v{20+j}')
        A(f'v_mul_u32_u24 v{24+j}, 144, v{16+j}')
    A('s_waitcnt lgkmcnt(0)')
    for j in range(4):
        A(f'v_lshl_add_u32 v{24+j}, v{28+j}, 2, v{24+j}')
        A(f'v_cmp_gt_u32 vcc, 32, v{28+j}')
        A('s_mov_b64 exec, vcc')
        A(f'ds_write_b32 v{24+j}, v{20+j}')
        A('s_andn2_b64 exec, s[28:29], vcc')
        A(f's_cbranch_execz K1_NOV{j}')
        A('ds_add_rtn_u32 v33, v3, v2')
        A(f'v_mov_b32 v34, v{20+j}'); A(f'v_mov_b32 v35, v{16+j}')
        A('s_waitcnt lgkmcnt(0)')
        A('v_lshlrev_b32 v33, 3, v33')
        A('buffer_store_dwordx2 v[34:35], v33, s[24:27], 0 offen')
        A('s_nop 1')
        lab(f'K1_NOV{j}')
        A('s_mov_b64 exec, s[28:29]')
    lab('K1_SKIP')
    A('s_mov_b64 exec, -1')
    if ENV('TLBW'):
        STEP=int(ENV('TLBW'))
        A(f's_waitcnt vmcnt({NP})')
        A('s_cmp_lt_u32 s2, 8'); A('s_cbranch_scc0 K1_NOTLB')
        A('v_readfirstlane_b32 s48, v0'); A('s_nop 3'); A('s_cmp_ge_u32 s48, 832'); A('s_cbranch_scc0 K1_NOTLB')
        A('s_load_dwordx2 s[52:53], s[0:1], 8'); A('s_load_dwordx2 s[44:45], s[0:1], 0')
        A('v_subrev_u32 v36, 832, v0'); A(f'v_lshlrev_b32 v36, {STEP}, v36')
        A('s_waitcnt lgkmcnt(0)')
        A(f's_mov_b32 s54, {E*32}'); A('s_mov_b32 s55, 0x20000'); A(f's_mov_b32 s46, {N*128}'); A('s_mov_b32 s47, 0x20000')
        for i in range(-(-(E*32>>STEP)//192)):
            A(f's_mov_b32 s49, {(192*i)<<STEP}'); A('buffer_load_dword v37, v36, s[52:55], s49 offen')
        A('buffer_load_dword v38, v36, s[44:47], 0 offen')
        lab('K1_NOTLB')
        A('s_branch K1_AFTERW')
    A(f's_waitcnt vmcnt({NP})')
    if ENV('TLBW'): lab('K1_AFTERW')
    A('v_lshrrev_b32 v4, 3, v0'); A('v_and_b32 v5, 7, v0')
    A('v_mul_u32_u24 v6, 144, v4'); A('v_lshl_add_u32 v6, v5, 4, v6')
    A('v_add_u32 v7, s2, v4'); A('v_and_b32 v7, 255, v7'); A('v_lshlrev_b32 v7, 7, v7'); A('v_lshl_add_u32 v7, v4, 15, v7'); A('v_lshl_add_u32 v7, v5, 4, v7')
    A('v_add_u32 v21, 128, v4'); A('v_add_u32 v22, s2, v21'); A('v_and_b32 v22, 255, v22'); A('v_lshlrev_b32 v22, 7, v22'); A('v_lshl_add_u32 v22, v21, 15, v22'); A('v_lshl_add_u32 v22, v5, 4, v22')
    A('s_waitcnt lgkmcnt(0)'); A('s_barrier')
    CST=os.environ.get('CST','sc1')
    if not ENV('HALFCELL'):
        A('ds_read_b128 v[8:11], v6'); A('ds_read_b128 v[12:15], v6 offset:18432'); A('ds_read_b32 v16, v3')
        A('s_waitcnt lgkmcnt(2)')
        A(f'buffer_store_dwordx4 v[8:11], v7, s[32:35], 0 offen {CST}')
        A('s_waitcnt lgkmcnt(1)')
        A(f'buffer_store_dwordx4 v[12:15], v22, s[32:35], 0 offen {CST}')
    else:
        A('v_lshlrev_b32 v18, 2, v4')
        A('ds_read_b128 v[8:11], v6'); A('ds_read_b128 v[12:15], v6 offset:18432'); A('ds_read_b32 v16, v3')
        A('ds_read_b32 v19, v18 offset:36864'); A('ds_read_b32 v20, v18 offset:37376')
        A('v_cmp_gt_u32 s[22:23], 4, v5')
        A('s_waitcnt lgkmcnt(0)')
        A('v_cmp_le_u32 vcc, 16, v19'); A('s_or_b64 exec, vcc, s[22:23]')
        A(f'buffer_store_dwordx4 v[8:11], v7, s[32:35], 0 offen {CST}')
        A('s_mov_b64 exec, -1')
        A('v_cmp_le_u32 vcc, 16, v20'); A('s_or_b64 exec, vcc, s[22:23]')
        A(f'buffer_store_dwordx4 v[12:15], v22, s[32:35], 0 offen {CST}')
        A('s_mov_b64 exec, -1')
    if int(os.environ.get('STAMPS','0')):
        A('s_waitcnt vmcnt(0)'); A('s_memrealtime s[60:61]'); A('v_lshrrev_b32 v24, 6, v0'); A('v_lshlrev_b32 v24, 2, v24'); A('s_lshl_b32 s62, s2, 6'); A('v_add_u32 v24, s62, v24')
        A('s_mov_b32 s58, 0x8000'); A('s_waitcnt lgkmcnt(0)'); A('v_mov_b32 v23, s60'); A('v_add_u32 v24, 0x1000, v24'); A('buffer_store_dword v23, v24, s[56:59], 0 offen')
    A('v_cmp_eq_u32 vcc, 0, v0'); A('s_and_saveexec_b64 s[20:21], vcc'); A('s_cbranch_execz K1_END')
    A('s_lshl_b32 s10, s2, 2'); A('v_mov_b32 v17, s10')
    A('s_waitcnt lgkmcnt(0)')
    A('buffer_store_dword v16, v17, s[40:43], 0 offen')
    A('s_branch K1_END')
    lab('K1_W')
    A('s_load_dwordx8 s[12:19], s[0:1], 32')
    A('s_load_dwordx2 s[20:21], s[0:1], 64')
    A('v_lshrrev_b32 v1, 6, v0'); A('s_nop 0'); A('v_readfirstlane_b32 s10, v1')
    A(f's_sub_u32 s11, s2, {NCH}'); A('s_lshl_b32 s11, s11, 4'); A('s_nop 2'); A('s_add_u32 s10, s10, s11')
    A('s_cmp_ge_u32 s10, 34'); A('s_cbranch_scc1 K1_END')
    A('s_waitcnt lgkmcnt(0)')
    A('s_mov_b32 s24, s14'); A('s_mov_b32 s25, s15'); A('s_mov_b32 s26, 8192'); A('s_mov_b32 s27, 0x20000')
    A(f's_mov_b32 s28, 0x{NLOG2E:08x}'); A('s_mov_b32 s29, s10')
    A('s_cmp_ge_u32 s10, 8'); A('s_cbranch_scc0 K1_WSEL')
    A('s_mov_b32 s24, s20'); A('s_mov_b32 s25, s21'); A('s_mov_b32 s28, 0x3f800000'); A('s_sub_u32 s29, s10, 8')
    A('s_cmp_ge_u32 s10, 16'); A('s_cbranch_scc0 K1_WSEL')
    A('s_mov_b32 s24, s16'); A('s_mov_b32 s25, s17'); A('s_mov_b32 s26, 2048'); A(f's_mov_b32 s28, 0x{NLOG2E:08x}')
    A('s_sub_u32 s29, s10, 16'); A('s_lshl_b32 s29, s29, 2')
    A('s_cmp_ge_u32 s10, 18'); A('s_cbranch_scc0 K1_WSEL')
    A('s_mov_b32 s24, s12'); A('s_mov_b32 s25, s13'); A('s_mov_b32 s26, 8192'); A('s_mov_b32 s28, 0x3f800000'); A('s_sub_u32 s29, s10, 18')
    A('s_cmp_ge_u32 s10, 26'); A('s_cbranch_scc0 K1_WSEL')
    A('s_mov_b32 s24, s18'); A('s_mov_b32 s25, s19'); A('s_sub_u32 s29, s10, 26')
    lab('K1_WSEL')
    A('s_lshr_b32 s30, s29, 2'); A('s_and_b32 s31, s29, 3')
    A('s_lshl_b32 s30, s30, 6'); A('s_lshl_b32 s31, s31, 11'); A('s_add_u32 s30, s30, s31')
    A('v_and_b32 v2, 63, v0'); A('v_and_b32 v3, 31, v0'); A('v_lshrrev_b32 v4, 5, v2')
    A('v_lshlrev_b32 v4, 10, v4'); A('v_lshl_add_u32 v4, v3, 1, v4'); A('v_add_u32 v4, s30, v4')
    for t in range(8): A(f'buffer_load_ushort v{8+t}, v4, s[24:27], 0 offen offset:{128*t}')
    A(f's_add_u32 s32, s8, {WS_WPREP}'); A('s_addc_u32 s33, s9, 0'); A('s_mov_b32 s34, 34816'); A('s_mov_b32 s35, 0x20000')
    A('s_lshl_b32 s36, s10, 10'); A('v_lshlrev_b32 v5, 4, v2')
    A('s_waitcnt vmcnt(0)')
    for t in range(8):
        A(f'v_lshlrev_b32 v{8+t}, 16, v{8+t}'); A(f'v_mul_f32 v{8+t}, s28, v{8+t}')
    for t in range(4): A(f'v_cvt_pk_bf16_f32 v{16+t}, v{8+2*t}, v{9+2*t}')
    A('buffer_store_dwordx4 v[16:19], v5, s[32:35], s36 offen')
    lab('K1_END')
    if ENV('DBG'):
        A('s_cmp_eq_u32 s2, 7'); A('s_cbranch_scc0 K1_END2')
        A('s_load_dwordx2 s[52:53], s[0:1], 80'); A('s_memrealtime s[54:55]'); A('s_waitcnt lgkmcnt(0)')
        A('s_mov_b64 exec, 1'); A('s_mov_b32 s56, s54'); A('s_mov_b32 s54, 256'); A('s_mov_b32 s55, 0x20000')
        A('v_mov_b32 v20, s56'); A('v_mov_b32 v21, s50'); A('v_mov_b32 v22, 0')
        A('buffer_store_dword v21, v22, s[52:55], 0 offen'); A('buffer_store_dword v20, v22, s[52:55], 0 offen offset:4')
        lab('K1_END2')
        lab('K1_END3')
    A('s_endpgm')

XST=0; REC=65536; RECSZ=1408; XS=REC+50*RECSZ; ES=XS+8192; GRP=ES+16384; CNT=GRP+1024; NBT=CNT+256; LDS_END=NBT+256
OWNX=32768; WSTG=40960
O_DEN=256; O_NUM=768; O_U=1280
CAPG=512
DUMMY=49*22
EPAD=0x700FFFFF; EFLAG=0x40000000
cXE=2; cXO=3; aXS=4; aES=5; cKG=6; aGRP=7; cRA=8; cRB=9; aAX=10
WB=16; WV=48; WC=80; XB=88; AZ0=92; AZ1=96; ONEB=100; ONEA=[104,108]; AX=112; AE=[128,132]; G0=136; G1=152; H0=168; H1=184
XI=200; XV=202; EI=206; EV=207; GR=[208,209]; RA0=210; RA1=211; RB0=212; RB1=213; SD=214; SN=215; PD=216; PN=218
vONE=220; kXS=221; kES=222; kGRP=223; kAX=224; vL16=228; T0=230; NGB=236; cXM=252
NVGPR=256
XG_=64
EN=G0; RK=G1; EB=H0; AD=H0+4; EW=AX
sB=3; X_=4; EA_=8; CE_=12; WP_=16; OU_=20; MI_=24; sWS=28; sWAVE=30; sNT=31; sTI=32; sX0=33; sX1=34; sMODE=36; sFIRST=37; sOVF=38; sU=39
MK=40
sCNT=72; sXS=73; sES=74; sT0=75; sT1=76; sT2=77; sOC=78; sOP=79; sON=80; s128=83
STAMPS=int(os.environ.get('STAMPS','0'))
STR=8
SSET=os.environ.get('SSET','main')
SMAP={'main':{'start':0,'bar1':1,'hist':2,'prefix':3,'bar3':4,'ng':5,'loop':6,'bar5':7,'end':8},
      'pro':{'start':0,'issued':1,'consts':2,'vmw':3,'bar1':4,'hist':5,'bar3':6,'ng':7,'entd':8},
      'pro2':{'bar3':0,'dma1':1,'wread':2,'ngm':3,'ng':4,'entw':5,'entd':6,'loop':7,'end':8}}[SSET]
def stamp(name):
    if STAMPS and name in SMAP:
        i=SMAP[name]
        A('s_memtime s[98:99]' if STAMPS==1 else 's_memrealtime s[98:99]'); A('s_waitcnt lgkmcnt(0)'); A(f's_mov_b32 s{86+i}, s98')
def stamp_store():
    if STAMPS and ENV('DBG'):
        A('s_memrealtime s[98:99]'); A('s_waitcnt lgkmcnt(0)'); A('s_mov_b32 s97, s98')
        A('s_cmp_eq_u32 s2, 7'); A('s_cbranch_scc0 K2_DBGE'); A(f's_cmp_eq_u32 s{sWAVE}, 0'); A('s_cbranch_scc0 K2_DBGE')
        A('s_load_dwordx2 s[24:25], s[0:1], 80'); A('s_waitcnt lgkmcnt(0)'); A('s_mov_b64 exec, 1'); A('v_mov_b32 v14, 0'); A('s_mov_b32 s26, 256'); A('s_mov_b32 s27, 0x20000')
        for i in range(12):
            A(f'v_mov_b32 v1, s{86+i}'); A(f'buffer_store_dword v1, v14, s[24:27], 0 offen offset:{8+4*i}')
        lab('K2_DBGE')
    elif STAMPS:
        A('s_memrealtime s[98:99]'); A('s_waitcnt lgkmcnt(0)'); A('s_mov_b32 s97, s98')
        A(f's_add_u32 s24, s{sWS}, 0x2000000'); A(f's_addc_u32 s25, s{sWS+1}, 0'); A('s_mov_b32 s26, 0x100000'); A('s_mov_b32 s27, 0x20000')
        A(f's_lshl_b32 s75, s2, 3'); A(f's_add_u32 s75, s75, s{sWAVE}'); A('s_lshl_b32 s75, s75, 6')
        for i in range(12):
            A(f'v_mov_b32 v1, s{86+i}'); A(f'v_mov_b32 v14, {4*i}'); A('buffer_store_dword v1, v14, s[24:27], s75 offen')
def x_dma(sbase):
    o=[f's_mov_b32 m0, s{sbase}']
    for m in range(4):
        o.append(f'v_mad_u32_u16 v{XV+m}, v{XI+(m>>1)}, s{s128}, v{cXM+m} op_sel:[{m&1},0,0,0]')
        o.append(f'buffer_load_dwordx4 v{XV+m}, s[{XG_}:{XG_+3}], 0 offen offset:{1024*m} lds')
    return o
ENT='' if ENV('NO_NT') else ' nt'
def e_issue(p):
    return [f'v_mad_u32_u24 v{EV}, v{EI}, 32, v{cKG}', f'buffer_load_dwordx4 {q(AE[p])}, v{EV}, s[{EA_}:{EA_+3}], 0 offen{ENT}']
def e_flag(p): return [f'v_and_b32 v{ONEA[p]}, 0xff000000, v{EI}']
def summ(G,H,b,rb,ct):
    if ENV('PK'):
        P=lambda x: f'v[{x}:{x+1}]'
        o=[f'v_pk_mul_f32 {P(PN)}, {P(G+b)}, {P(H+b)}', f'v_pk_add_f32 {P(PD)}, {P(G+b)}, {P(G+b+2)}']
        for r in (2,4,6):
            o.append(f'v_pk_fma_f32 {P(PN)}, {P(G+b+r)}, {P(H+b+r)}, {P(PN)}')
            if r>=4: o.append(f'v_pk_add_f32 {P(PD)}, {P(PD)}, {P(G+b+r)}')
        o.append(f'v_add_f32 v{SD}, v{PD}, v{PD+1}'); o.append(f'v_add_f32 v{SN}, v{PN}, v{PN+1}')
    else:
        o=[f'v_mul_f32 v{SN}, v{G+b}, v{H+b}', f'v_add_f32 v{SD}, v{G+b}, v{G+b+1}']
        for r in range(1,8):
            o.append(f'v_fmac_f32 v{SN}, v{G+b+r}, v{H+b+r}')
            if r>=2: o.append(f'v_add_f32 v{SD}, v{SD}, v{G+b+r}')
    o.append(f'v_cvt_f64_f32 v[{PD}:{PD+1}], v{SD}'); o.append(f'v_cvt_f64_f32 v[{PN}:{PN+1}], v{SN}')
    if not ENV('NO_DSADD'):
        o.append(f'ds_add_f64 v{rb}, v[{PD}:{PD+1}] offset:{ct*256}'); o.append(f'ds_add_f64 v{rb}, v[{PN}:{PN+1}] offset:{512+ct*256}')
    return o
def inter(v, m, every):
    o=[]; m=list(m)
    for i,x in enumerate(v):
        if m and i%every==0: o+=m.pop(0)
        o.append(x)
    for g in m: o+=g
    return o
def gchain(G,ct,p):
    return [[mf(G,AX,WB+16*ct,'0')],[mf(G,AX+4,WB+16*ct+4,G)],[mf(G,AX+8,WB+16*ct+8,G)],[mf(G,AX+12,WB+16*ct+12,G)],
            [mf(G,AE[p],WC+4*ct,G)],[mf(G,AZ1 if ct else AZ0,XB,G)]]
def xb_reads(): return [f'ds_read2_b32 v[{XB}:{XB+1}], v{RA0} offset0:0 offset1:32', f'ds_read2_b32 v[{XB+2}:{XB+3}], v{RA1} offset0:0 offset1:32']
def ra_mads(g): return [f'v_mad_u32_u16 v{RA0}, v{g}, 64, v{cRA} op_sel:[0,0,0,0]', f'v_mad_u32_u16 v{RA1}, v{g}, 64, v{cRA} op_sel:[1,0,0,0]']
def body(p):
    o=[]
    ex=lambda G:[f'v_exp_f32 v{G+r}, v{G+r}' for r in range(16)]
    rc=lambda G:[f'v_rcp_f32 v{G+r}, v{G+r}' for r in range(16)]
    xd=x_dma(sX0 if p==0 else sX1) if not ENV('NO_XDMA') else ['s_nop 0']
    grp=[[mf(H0,AX+4*s,WV+4*s,'0' if s==0 else H0)]+(xd[:3] if s==0 else xd[1+2*s:3+2*s]) for s in range(4)]
    o+=inter(ex(G0), grp, 4)
    sb=summ(G1,H1,8,RB1,1)
    o+=sb[:2]+[mf(G0,ONEA[p],ONEB,G0)]+sb[2:]
    o+=[f'v_mad_u32_u16 v{RB0}, v{GR[p]}, 64, v{cRB} op_sel:[0,0,0,0]', f'v_mad_u32_u16 v{RB1}, v{GR[p]}, 64, v{cRB} op_sel:[1,0,0,0]']
    o+=inter(rc(G0), gchain(G1,1,p), 3)
    o+=summ(G0,H0,0,RB0,0)
    o+=['s_waitcnt vmcnt(5)',
        f'ds_read2_b32 v[{XI}:{XI+1}], v{aXS} offset0:{16*STR*p} offset1:{16*STR*p+4}',
        f'ds_read_b32 v{EI}, v{aES} offset:{128*STR*p}', f'ds_read_b32 v{GR[p^1]}, v{aGRP} offset:{8*STR*p}']
    o+=inter(ex(G1), [[mf(H1,AX+4*s,WV+16+4*s,'0' if s==0 else H1), f'ds_read_b128 {q(AX+4*s)}, v{aAX+s} offset:{32768*(p^1)}'] for s in range(4)], 4)
    sb=summ(G0,H0,8,RB1,0)
    o+=sb[:2]+[mf(G1,ONEA[p],ONEB,G1)]
    o+=['s_waitcnt lgkmcnt(4)']+ra_mads(GR[p^1])
    o+=(e_issue(p) if not ENV('NO_EDMA') else [])+xb_reads()+e_flag(p)
    o+=sb[2:]
    o+=['s_waitcnt vmcnt(5) lgkmcnt(4)']
    gc=gchain(G0,0,p^1)
    gc[5]=['s_waitcnt lgkmcnt(2)']+gc[5]
    o+=inter(rc(G1), gc, 3)
    o+=summ(G1,H1,0,RB0,1)
    if p==1:
        o+=[f'v_add_u32 v{aXS}, {128*STR}, v{aXS}', f'v_add_u32 v{aES}, {256*STR}, v{aES}', f'v_add_u32 v{aGRP}, {16*STR}, v{aGRP}']
    if ENV('NO_XMFMA'):
        o=[i for i in o if not (i.startswith('v_mfma') and any(f', {q(AX+4*s)}, ' in i for s in range(4)))]
    if ENV('NO_HMFMA'): o=[i for i in o if not (i.startswith('v_mfma') and (i.startswith(f'v_mfma_f32_32x32x16_bf16 {q(H0,16)}') or i.startswith(f'v_mfma_f32_32x32x16_bf16 {q(H1,16)}')))]
    if ENV('NO_SUMS'): o=[i for i in o if not (i.startswith('v_fmac') or (i.startswith('v_add_f32')) or i.startswith('v_mul_f32'))]
    if ENV('NO_SMALLM'): o=[i for i in o if not (i.startswith('v_mfma') and not any(f', {q(AX+4*s)}, ' in i for s in range(4)))]
    if ENV('NO_MFMA'): o=[i for i in o if not i.startswith('v_mfma')]
    if ENV('NO_TRANS'): o=[i for i in o if not (i.startswith('v_exp') or i.startswith('v_rcp'))]
    return o

def cell_off_g(dst, creg):
    A(f'v_add_u32 v{dst}, s{sB}, v{creg}'); A(f'v_and_b32 v{dst}, 255, v{dst}'); A(f'v_lshlrev_b32 v{dst}, 7, v{dst}'); A(f'v_lshl_add_u32 v{dst}, v5, 4, v{dst}')
    A(f'v_cmp_gt_u32 vcc, {NCH}, v{creg}'); A('v_mov_b32 v14, 0x7fffffff'); A('s_nop 0'); A(f'v_cndmask_b32 v{dst}, v14, v{dst}, vcc')
def k2():
    lab('standalone__edge_featured_mpnn_gatedgcn__graph_kernel')
    A('s_cmp_ge_u32 s2, 256'); A('s_cbranch_scc1 K2_END')
    A(f's_load_dwordx2 s[{sWS}:{sWS+1}], s[0:1], 88')
    A('s_load_dwordx4 s[4:7], s[0:1], 0')
    A('s_load_dwordx2 s[20:21], s[0:1], 72')
    A(f's_and_b32 s{sB}, s2, 7'); A(f's_lshl_b32 s{sB}, s{sB}, 5'); A(f's_lshr_b32 s{sT0}, s2, 3'); A(f's_or_b32 s{sB}, s{sB}, s{sT0}')
    A('v_lshrrev_b32 v1, 6, v0'); A('v_and_b32 v15, 63, v0')
    A(f'v_readfirstlane_b32 s{sWAVE}, v1')
    A(f'v_lshlrev_b32 v{vL16}, 4, v15')
    def cell_off(dst, creg):
        A(f'v_add_u32 v{dst}, s{sB}, v{creg}'); A(f'v_and_b32 v{dst}, 255, v{dst}'); A(f'v_lshlrev_b32 v{dst}, 7, v{dst}'); A(f'v_lshl_add_u32 v{dst}, v5, 4, v{dst}')
        A(f'v_cmp_gt_u32 vcc, {NCH}, v{creg}'); A('v_mov_b32 v14, 0x7fffffff'); A('s_nop 0'); A(f'v_cndmask_b32 v{dst}, v14, v{dst}, vcc')
    A('v_lshrrev_b32 v4, 3, v0'); A('v_and_b32 v5, 7, v0')
    for u in range(4):
        if u: A('v_add_u32 v4, 64, v4')
        cell_off(RK+u, 4)
    A(f's_lshl_b32 s{sT0}, s{sB}, 15')
    A('s_waitcnt lgkmcnt(0)')
    if STAMPS:
        A('s_memrealtime s[98:99]'); A('s_waitcnt lgkmcnt(0)'); A('s_mov_b32 s96, s98')
    stamp('start')
    A(f's_add_u32 s12, s{sWS}, s{sT0}'); A(f's_addc_u32 s13, s{sWS+1}, 0'); A('s_mov_b32 s14, 32768'); A('s_mov_b32 s15, 0x20000')
    for u in range(4): A(f'buffer_load_dwordx4 {q(EN+4*u)}, v{RK+u}, s[12:15], 0 offen')
    def init_a():
        A('v_lshlrev_b32 v1, 4, v0')
        for r in range(4): A(f'v_mov_b32 v{AX+r}, -1')
        A(f'v_add_u32 v14, {XS}, v1'); A(f'ds_write_b128 v14, {q(AX)}')
        for r in range(4): A(f'v_mov_b32 v{AX+4+r}, 0x{EPAD:08x}')
        A(f'ds_write_b128 v14, {q(AX+4)} offset:8192'); A(f'ds_write_b128 v14, {q(AX+4)} offset:16384')
        for r in range(4): A(f'v_mov_b32 v{AX+8+r}, 0x{(DUMMY<<16)|DUMMY:08x}')
        for r in range(4): A(f'v_mov_b32 v{AX+12+r}, 0')
        A('v_cmp_gt_u32 vcc, 64, v0'); A('s_nop 1')
        for r in range(4): A(f'v_cndmask_b32 v{AX+8+r}, v{AX+12+r}, v{AX+8+r}, vcc')
        A('v_cmp_gt_u32 vcc, 96, v0'); A(f's_and_saveexec_b64 s[{MK}:{MK+1}], vcc'); A(f'ds_write_b128 v14, {q(AX+8)} offset:{GRP-XS}'); A(f's_mov_b64 exec, s[{MK}:{MK+1}]')
    init_a()
    A('s_mov_b32 s8, s6'); A('s_mov_b32 s9, s7'); A(f's_mov_b32 s10, {E*32}'); A('s_mov_b32 s11, 0x20000')
    A(f's_mov_b32 s6, {N*128}'); A('s_mov_b32 s7, 0x20000')
    A(f's_mov_b32 s22, {N*128}'); A('s_mov_b32 s23, 0x20000')
    A(f's_add_u32 s16, s{sWS}, {WS_WPREP}'); A(f's_addc_u32 s17, s{sWS+1}, 0'); A('s_mov_b32 s18, 34816'); A('s_mov_b32 s19, 0x20000')
    A(f's_add_u32 s24, s{sWS}, {WS_OVFCNT}'); A(f's_addc_u32 s25, s{sWS+1}, 0'); A('s_mov_b32 s26, 1000'); A('s_mov_b32 s27, 0x20000')
    A(f'v_lshrrev_b32 v14, 3, v15'); A(f's_lshl_b32 s{sT0}, s{sWAVE}, 3'); A(f'v_add_u32 v14, s{sT0}, v14')
    A(f'v_lshlrev_b32 v14, 8, v14'); A(f'v_add_u32 v14, s{sB}, v14'); A('v_lshlrev_b32 v14, 7, v14')
    A('v_lshrrev_b32 v4, 4, v15'); A('v_and_b32 v5, 7, v15'); A('v_xor_b32 v4, v4, v5'); A(f'v_lshlrev_b32 v{cXE}, 4, v4'); A(f'v_xor_b32 v{cXO}, 64, v{cXE}')
    A(f's_and_b32 s{sT0}, s{sWAVE}, 1'); A(f's_cmp_eq_u32 s{sT0}, 0'); A('s_cselect_b64 vcc, -1, 0')
    A(f'v_cndmask_b32 v4, v{cXO}, v{cXE}, vcc'); A('v_add_u32 v4, v14, v4')
    A(f's_lshl_b32 s{sT0}, s{sWAVE}, 10'); A(f's_add_u32 m0, s{sT0}, {OWNX}'); A('s_nop 0')
    A(f'buffer_load_dwordx4 v4, s[{X_}:{X_+3}], 0 offen lds')
    for i in range(3):
        A(f's_add_u32 s{sT1}, s{sT0}, {8192*i}'); A(f's_add_u32 m0, s{sT1}, {WSTG}'); A('s_nop 0')
        A(f'buffer_load_dwordx4 v{vL16}, s[16:19], s{sT1} offen lds')
    stamp('issued')
    A('v_lshrrev_b32 v14, 6, v0'); A(f'v_mul_u32_u24 v14, {RECSZ}, v14'); A(f'v_add_u32 v14, v14, v{vL16}'); A(f'v_add_u32 v14, {REC+O_DEN}, v14')
    for r in range(4): A(f'v_mov_b32 v{AX+r}, 0')
    for i in range(5): A(f'ds_write_b128 v14, {q(AX)} offset:{8*RECSZ*i}')
    A(f'v_add_u32 v14, {8*RECSZ*5}, v14'); A(f'ds_write_b128 v14, {q(AX)}')
    A('v_cmp_gt_u32 vcc, 128, v0'); A(f's_and_saveexec_b64 s[{MK}:{MK+1}], vcc'); A(f'ds_write_b128 v14, {q(AX)} offset:{8*RECSZ}'); A(f's_mov_b64 exec, s[{MK}:{MK+1}]')
    A(f'v_mov_b32 v{vONE}, 1')
    A(f's_mov_b32 s{sCNT}, {CNT}'); A(f's_mov_b32 s{sXS}, {XS}'); A(f's_mov_b32 s{sES}, {ES}'); A(f's_mov_b32 s{s128}, 128')
    A(f's_mov_b32 s{sMODE}, 0'); A(f's_mov_b32 s{sFIRST}, 1'); A(f's_mov_b32 s{sU}, 0')
    A('v_lshrrev_b32 v4, 3, v0'); A('v_mul_u32_u24 v4, 3200, v4')
    for u in range(4): A(f'v_add_u32 v{EB+u}, 0x{(64*u*3200-1+EFLAG)&0xffffffff:08x}, v4')
    def lane_consts():
        C('lane constants (v1 = kg)')
        A('v_lshrrev_b32 v1, 5, v15'); A(f'v_lshlrev_b32 v{cKG}, 4, v1')
        A('v_bfe_u32 v5, v15, 3, 2'); A('v_lshlrev_b32 v4, 5, v1'); A('v_lshl_add_u32 v4, v5, 2, v4'); A(f'v_add_u32 v{kXS}, {XS}, v4')
        A('v_bfe_u32 v4, v15, 2, 1'); A('v_lshlrev_b32 v4, 4, v4'); A('v_bfe_u32 v5, v15, 4, 1'); A('v_lshl_add_u32 v4, v5, 3, v4')
        A('v_and_b32 v5, 3, v15'); A('v_lshl_add_u32 v4, v5, 1, v4'); A('v_bfe_u32 v5, v15, 3, 1'); A('v_add_u32 v4, v4, v5')
        A('v_lshlrev_b32 v4, 2, v4'); A(f'v_add_u32 v{kES}, {ES}, v4')
        A('v_lshlrev_b32 v4, 2, v1'); A(f'v_add_u32 v{kGRP}, {GRP}, v4')
        A('v_and_b32 v4, 31, v15'); A('v_lshlrev_b32 v5, 2, v4'); A(f'v_add_u32 v{cRA}, {REC}, v5'); A('v_lshlrev_b32 v5, 3, v4'); A(f'v_add_u32 v{cRB}, {REC+O_DEN}, v5')
        A('v_bfe_u32 v5, v15, 1, 3'); A('v_xor_b32 v5, v5, v1'); A('v_lshlrev_b32 v5, 4, v5'); A('v_lshl_add_u32 v4, v4, 7, v5')
        for s in range(4): A(f'v_xor_b32 v{kAX+s}, {32*s}, v4')
        A(f's_lshl_b32 s{sX0}, s{sWAVE}, 12'); A(f's_add_u32 s{sX1}, s{sX0}, 32768')
        for m in range(4): A(f'v_add_u32 v{cXM+m}, {4096-1024*m}, v{cXO if m&1 else cXE}')
        A('v_bfe_u32 v4, v15, 2, 1'); A('v_cmp_eq_u32 vcc, v4, v1'); A('v_mov_b32 v5, 0x3f803f80'); A('s_nop 0'); A('v_cndmask_b32 v5, 0, v5, vcc')
        A('v_bfe_u32 v4, v15, 4, 1'); A('v_cmp_eq_u32 vcc, 0, v4'); A('s_nop 1'); A(f'v_cndmask_b32 v{AZ0}, 0, v5, vcc')
        A(f'v_sub_u32 v{AZ0+2}, v5, v{AZ0}'); A(f'v_mov_b32 v{AZ0+1}, 0'); A(f'v_mov_b32 v{AZ0+3}, 0')
        A(f'v_mov_b32 v{AZ1}, 0'); A(f'v_mov_b32 v{AZ1+1}, v{AZ0}'); A(f'v_mov_b32 v{AZ1+2}, 0'); A(f'v_mov_b32 v{AZ1+3}, v{AZ0+2}')
        A('v_cmp_eq_u32 vcc, 0, v1'); A('v_mov_b32 v5, 0x3f000000'); A('s_nop 0'); A(f'v_cndmask_b32 v{ONEB}, 0, v5, vcc')
        for r in range(1,4): A(f'v_mov_b32 v{ONEB+r}, 0'); A(f'v_mov_b32 v{ONEA[0]+r}, 0'); A(f'v_mov_b32 v{ONEA[1]+r}, 0')
    lane_consts()
    stamp('consts')
    A('s_waitcnt vmcnt(4)')
    A('s_branch K2_WD')
    lab('K2_ROUND')
    init_a()
    A('s_waitcnt vmcnt(0)')
    lab('K2_WD')
    stamp('vmw')
    if ENV('HALFCELL'):
        A(f's_cmp_eq_u32 s{sMODE}, 2'); A('s_cbranch_scc1 K2_NOMASK')
        A('v_and_b32 v14, 4, v15'); A('v_cmp_eq_u32 s[84:85], 0, v14')
        for u in range(4):
            A(f'v_mov_b32_dpp v1, v{EN+4*u+3} quad_perm:[3,3,3,3] row_mask:0xf bank_mask:0xf'); A('s_nop 1')
            A('v_mov_b32_dpp v14, v1 row_shr:4 row_mask:0xf bank_mask:0xf bound_ctrl:0'); A('s_nop 0')
            A('v_cmp_ne_u32 vcc, 0, v14'); A('s_or_b64 vcc, vcc, s[84:85]')
            for k in range(4): A(f'v_cndmask_b32 v{EN+4*u+k}, 0, v{EN+4*u+k}, vcc')
        lab('K2_NOMASK')
    for k in range(16): A(f'v_cmp_ne_u32 s[{MK+2*k}:{MK+2*k+1}], 0, v{EN+k}')
    for k in range(16):
        A(f'v_and_b32 v{AD+k}, 63, v{EN+k}'); A(f'v_lshl_add_u32 v{AD+k}, v{AD+k}, 2, s{sCNT}')
    A('s_waitcnt lgkmcnt(0)'); A('s_barrier')
    stamp('bar1')
    for k in range(16):
        A(f's_mov_b64 exec, s[{MK+2*k}:{MK+2*k+1}]'); A(f'ds_add_rtn_u32 v{RK+k}, v{AD+k}, v{vONE}')
    A('s_mov_b64 exec, -1')
    for k in range(16):
        A(f'v_lshrrev_b32 v{EW+k}, 20, v{EN+k}'); A(f'v_bfe_u32 v{EN+k}, v{EN+k}, 6, 14'); A(f'v_add_u32 v{EW+k}, v{EW+k}, v{EB+k//4}')
    A('s_waitcnt lgkmcnt(0)'); A('s_barrier')
    stamp('hist')
    A(f's_cmp_eq_u32 s{sFIRST}, 1'); A('s_cbranch_scc0 K2_NF1')
    if ENV('XPF2'):
        A(f's_lshr_b32 s{sT0}, s2, 3'); A(f's_mul_i32 s{sT0}, s{sT0}, 391'); A(f'v_add_u32 v14, s{sT0}, v0'); A('v_lshlrev_b32 v14, 7, v14')
        A('v_cmp_gt_u32 vcc, 391, v0'); A(f'v_mov_b32 v{T0+5}, 0x7fffffff'); A('s_nop 0'); A(f'v_cndmask_b32 v14, v{T0+5}, v14, vcc')
        A(f'buffer_load_dword v{T0+5}, v14, s[{X_}:{X_+3}], 0 offen')
    A(f'buffer_load_dwordx4 {q(T0)}, v{vL16}, s[24:27], 0 offen')
    A(f's_lshr_b32 s{sT0}, s{sWAVE}, 1'); A(f's_lshl_b32 s{sT0}, s{sT0}, 12'); A(f's_add_u32 s{sT0}, s{sT0}, {18*1024}')
    for s in range(4): A(f'buffer_load_dwordx4 {q(NGB+4*s)}, v{vL16}, s[16:19], s{sT0} offen offset:{1024*s}')
    lab('K2_NF1')
    A(f'v_lshl_add_u32 v4, v15, 2, s{sCNT}'); A('ds_read_b32 v5, v4'); A('s_waitcnt lgkmcnt(0)')
    A('v_add_u32 v5, 7, v5'); A('v_lshrrev_b32 v5, 3, v5'); A('v_mov_b32 v1, v5'); A('s_nop 1')
    for sh in (1,2,4,8):
        A(f'v_add_u32_dpp v1, v1, v1 row_shr:{sh} row_mask:0xf bank_mask:0xf bound_ctrl:0'); A('s_nop 1')
    A('v_add_u32_dpp v1, v1, v1 row_bcast:15 row_mask:0xa bank_mask:0xf'); A('s_nop 1')
    A('v_add_u32_dpp v1, v1, v1 row_bcast:31 row_mask:0xc bank_mask:0xf'); A('s_nop 1')
    A(f'v_readlane_b32 s{sNT}, v1, 63')
    A('v_sub_u32 v1, v1, v5')
    A(f'v_lshlrev_b32 v{T0+4}, 3, v1')
    if not ENV('BPERM'): A(f'ds_write_b32 v4, v{T0+4} offset:256')
    A(f's_cmp_gt_u32 s{sNT}, {CAPG}'); A('s_cbranch_scc1 K2_SPLIT')
    if ENV('BPERM'):
        for k in range(16): A(f'ds_bpermute_b32 v{AD+k}, v{AD+k}, v{T0+4}')
    else:
        for k in range(16): A(f'ds_read_b32 v{AD+k}, v{AD+k} offset:256')
    A(f'v_mul_u32_u24 v{XV}, 22, v15'); A(f'v_mov_b32 v{XV+1}, s{sWAVE}')
    lab('K2_GL')
    A(f'v_cmp_lt_u32 vcc, v{XV+1}, v5'); A('s_and_saveexec_b64 s[84:85], vcc'); A('s_cbranch_execz K2_GLD')
    A(f'v_add_u32 v{XV+2}, v1, v{XV+1}'); A(f'v_lshlrev_b32 v{XV+2}, 1, v{XV+2}'); A(f'v_add_u32 v{XV+2}, {GRP}, v{XV+2}')
    A(f'ds_write_b16 v{XV+2}, v{XV}'); A(f'v_add_u32 v{XV+1}, 8, v{XV+1}')
    A('s_mov_b64 exec, s[84:85]'); A('s_branch K2_GL')
    lab('K2_GLD'); A('s_mov_b64 exec, -1')
    A('s_waitcnt lgkmcnt(0)')
    stamp('prefix')
    for k in range(16):
        A(f'v_add_u32 v{RK+k}, v{RK+k}, v{AD+k}')
        A(f'v_lshl_add_u32 v{AD+k}, v{RK+k}, 1, s{sXS}')
        A(f'v_lshl_add_u32 v{RK+k}, v{RK+k}, 2, s{sES}')
    for k in range(16):
        A(f's_mov_b64 exec, s[{MK+2*k}:{MK+2*k+1}]')
        A(f'ds_write_b16 v{AD+k}, v{EN+k}'); A(f'ds_write_b32 v{RK+k}, v{EW+k}')
    A('s_mov_b64 exec, -1')
    A(f's_add_u32 s{sNT}, s{sNT}, 3'); A(f's_lshr_b32 s{sNT}, s{sNT}, 2')
    A('s_waitcnt vmcnt(0) lgkmcnt(0)'); A('s_barrier')
    stamp('bar3')
    A(f's_sub_u32 s{XG_}, s{X_}, 4096'); A(f's_subb_u32 s{XG_+1}, s{X_+1}, 0'); A(f's_mov_b32 s{XG_+2}, {N*128+4096}'); A(f's_mov_b32 s{XG_+3}, 0x20000')
    A(f's_mov_b32 s{sTI}, s{sWAVE}')
    A(f's_lshl_b32 s{sT0}, s{sWAVE}, 6'); A(f'v_add_u32 v{aXS}, s{sT0}, v{kXS}')
    A(f's_lshl_b32 s{sT0}, s{sWAVE}, 7'); A(f'v_add_u32 v{aES}, s{sT0}, v{kES}')
    A(f's_lshl_b32 s{sT0}, s{sWAVE}, 3'); A(f'v_add_u32 v{aGRP}, s{sT0}, v{kGRP}')
    A(f'ds_read_b32 v{EI}, v{aES}'); A(f'ds_read2_b32 v[{XI}:{XI+1}], v{aXS} offset0:0 offset1:4'); A(f'ds_read_b32 v{GR[0]}, v{aGRP}')
    for s in range(4): A(f'v_add_u32 v{aAX+s}, s{sX0}, v{kAX+s}')
    A('s_waitcnt lgkmcnt(0)')
    for i in x_dma(sX0)+e_issue(0)+e_flag(0): A(i)
    stamp('dma1')
    A(f's_cmp_eq_u32 s{sFIRST}, 0'); A('s_cbranch_scc1 K2_NG_DONE')
    A(f'v_add_u32 v1, {WSTG}, v{vL16}')
    A(f's_and_b32 s{sT0}, s{sWAVE}, 1'); A(f's_lshl_b32 s{sT0}, s{sT0}, 12'); A(f's_add_u32 s{sT0}, s{sT0}, {OWNX}')
    for s in range(4): A(f'v_add_u32 v{XV+s}, s{sT0}, v{kAX+s}')
    for s in range(4): A(f'ds_read_b128 {q(AX+4*s)}, v{XV+s}')
    for i in range(18): A(f'ds_read_b128 {q(WB+4*i)}, v1 offset:{1024*i}')
    A(f'v_or_b32 v{T0}, v{T0}, v{T0+1}'); A(f'v_or_b32 v{T0+2}, v{T0+2}, v{T0+3}'); A(f'v_or_b32 v{T0}, v{T0}, v{T0+2}')
    A(f'v_cmp_ne_u32 vcc, 0, v{T0}'); A('s_nop 3'); A('s_cmp_lg_u64 vcc, 0'); A(f's_cselect_b32 s{sOVF}, 1, 0')
    A('s_waitcnt lgkmcnt(0)')
    stamp('wread')
    for s in range(4): A(mf(G0, AX+4*s, NGB+4*s, '0' if s==0 else G0))
    A(f's_and_b32 s{sT0}, s{sWAVE}, 1'); A(f's_lshl_b32 s{sT0}, s{sT0}, 5'); A(f'v_lshrrev_b32 v1, 5, v15'); A(f'v_lshl_add_u32 v1, v1, 2, s{sT0}')
    A(f'v_mul_u32_u24 v1, {RECSZ}, v1')
    A(f's_bfe_u32 s{sT1}, s{sWAVE}, 0x10001')
    A(f's_cmp_ge_u32 s{sWAVE}, 4'); A('s_cbranch_scc1 K2_NG_U')
    A(f's_lshl_b32 s{sT1}, s{sT1}, 7'); A(f'v_add_u32 v1, v1, v{cRA}'); A(f'v_add_u32 v1, s{sT1}, v1')
    A(f's_mov_b32 s{sT2}, 0x{NLOG2E:08x}'); A('s_nop 7')
    for r in range(16):
        A(f'v_mul_f32 v{G0+r}, s{sT2}, v{G0+r}')
        A(f'v_cvt_pk_bf16_f32 v{SD}, v{G0+r}, v{G0+r}'); A(f'v_lshlrev_b32 v{SD}, 16, v{SD}'); A(f'v_sub_f32 v{SN}, v{G0+r}, v{SD}'); A(f'v_cvt_pk_bf16_f32 v{G0+r}, v{SD}, v{SN}')
    def wr_a(r): A(f'ds_write_b32 v1, v{G0+r} offset:{(8*(r//4)+(r%4))*RECSZ}')
    for r in range(8): wr_a(r)
    A(f's_and_b32 s{sT0}, s{sWAVE}, 1'); A(f's_cmp_eq_u32 s{sT0}, 0'); A('s_cbranch_scc0 K2_NG_A1')
    for r in range(8,16): wr_a(r)
    A('s_branch K2_NG_BAR')
    lab('K2_NG_A1')
    A('s_mov_b32 exec_lo, -1'); A('s_mov_b32 exec_hi, 0'); wr_a(8); wr_a(9); A('s_mov_b64 exec, -1'); A('s_branch K2_NG_BAR')
    lab('K2_NG_U')
    A(f's_lshl_b32 s{sT1}, s{sT1}, 6'); A(f'v_and_b32 v{SD}, 31, v15'); A(f'v_lshl_add_u32 v1, v{SD}, 1, v1'); A(f'v_add_u32 v1, s{sT1}, v1'); A(f'v_add_u32 v1, {REC+O_U}, v1')
    A('s_nop 7')
    for r in range(16): A(f'v_cvt_pk_bf16_f32 v{G0+r}, v{G0+r}, v{G0+r}')
    def wr_u(r): A(f'ds_write_b16 v1, v{G0+r} offset:{(8*(r//4)+(r%4))*RECSZ}')
    for r in range(8): wr_u(r)
    A(f's_and_b32 s{sT0}, s{sWAVE}, 1'); A(f's_cmp_eq_u32 s{sT0}, 0'); A('s_cbranch_scc0 K2_NG_U1')
    for r in range(8,16): wr_u(r)
    A('s_branch K2_NG_BAR')
    lab('K2_NG_U1')
    A('s_mov_b32 exec_lo, -1'); A('s_mov_b32 exec_hi, 0'); wr_u(8); wr_u(9); A('s_mov_b64 exec, -1')
    lab('K2_NG_BAR')
    stamp('ngm')
    A('s_waitcnt lgkmcnt(0)'); A('s_barrier')
    lab('K2_NG_DONE')
    stamp('ng')
    A(f's_mov_b32 s{sFIRST}, 0')
    A(f's_cmp_lt_u32 s{sTI}, s{sNT}'); A('s_cbranch_scc0 K2_LOOP_END')
    A(f'ds_read2_b32 v[{XI}:{XI+1}], v{aXS} offset0:{16*STR} offset1:{16*STR+4}'); A(f'ds_read_b32 v{EI}, v{aES} offset:{128*STR}')
    for i in ra_mads(GR[0]): A(i)
    A(f'v_mad_u32_u16 v{RB1}, v{GR[0]}, 64, v{cRB} op_sel:[1,0,0,0]')
    for i in xb_reads(): A(i)
    for r in range(8,16): A(f'v_mov_b32 v{G1+r}, 0'); A(f'v_mov_b32 v{H1+r}, 0')
    A('s_waitcnt lgkmcnt(2)')
    for i in x_dma(sX1)+e_issue(1)+e_flag(1): A(i)
    A(f'v_add_u32 v{aXS}, {128*STR}, v{aXS}')
    A(f'ds_read2_b32 v[{XI}:{XI+1}], v{aXS} offset0:0 offset1:4')
    A('s_waitcnt vmcnt(5)')
    stamp('entw')
    for s in range(4): A(f'ds_read_b128 {q(AX+4*s)}, v{aAX+s}')
    A(f'v_add_u32 v{aXS}, {64*STR}, v{aXS}'); A(f'v_add_u32 v{aES}, {256*STR}, v{aES}'); A(f'v_add_u32 v{aGRP}, {8*STR}, v{aGRP}')
    A('s_waitcnt lgkmcnt(0)')
    for g in gchain(G0,0,0):
        for i in g: A(i)
    A('s_nop 7'); A('s_nop 2')
    stamp('entd')
    lab('K2_LOOP')
    for i in body(0): A(i)
    A(f's_add_u32 s{sTI}, s{sTI}, {STR}'); A(f's_cmp_lt_u32 s{sTI}, s{sNT}'); A('s_cbranch_scc0 K2_TAIL')
    for i in body(1): A(i)
    A(f's_add_u32 s{sTI}, s{sTI}, {STR}'); A(f's_cmp_lt_u32 s{sTI}, s{sNT}'); A('s_cbranch_scc1 K2_LOOP')
    lab('K2_TAIL')
    for i in summ(G1,H1,8,RB1,1): A(i)
    lab('K2_LOOP_END')
    stamp('loop')
    A('s_waitcnt vmcnt(0)')
    A('v_lshrrev_b32 v1, 3, v0'); A('v_and_b32 v2, 7, v0')
    A(f'v_lshlrev_b32 v3, 8, v1'); A(f'v_add_u32 v3, s{sB}, v3'); A('v_lshlrev_b32 v3, 7, v3'); A('v_lshl_add_u32 v3, v2, 4, v3')
    A(f'buffer_load_dwordx4 {q(NGB)}, v3, s[{X_}:{X_+3}], 0 offen')
    A('s_waitcnt lgkmcnt(0)'); A('s_barrier')
    stamp('bar5')
    A(f's_cmp_eq_u32 s{sMODE}, 1'); A('s_cbranch_scc1 K2_NEXT_SPLIT')
    A(f's_cmp_eq_u32 s{sMODE}, 2'); A('s_cbranch_scc1 K2_NEXT_OVF')
    lab('K2_CHECK_OVF')
    A(f's_cmp_eq_u32 s{sOVF}, 0'); A('s_cbranch_scc1 K2_EPI')
    A(f's_mov_b32 s{sMODE}, 2'); A(f's_mov_b32 s{sOC}, 0'); A(f's_mov_b32 s{sOP}, 0'); A('s_branch K2_OVF_FIND')
    lab('K2_SPLIT')
    A(f's_mov_b32 s{sMODE}, 1'); A(f's_mov_b32 s{sU}, 0')
    A('s_waitcnt lgkmcnt(0)'); A('s_barrier')
    A('s_branch K2_LOADQ')
    lab('K2_NEXT_SPLIT')
    A(f's_add_u32 s{sU}, s{sU}, 1'); A(f's_cmp_ge_u32 s{sU}, 4'); A('s_cbranch_scc1 K2_CHECK_OVF')
    lab('K2_LOADQ')
    A(f's_lshl_b32 s{sT0}, s{sU}, 6'); A('v_lshrrev_b32 v4, 3, v0'); A(f'v_add_u32 v4, s{sT0}, v4'); A('v_and_b32 v5, 7, v0')
    cell_off_g(RK, 4)
    A('s_waitcnt vmcnt(0)')
    A(f'buffer_load_dwordx4 {q(EN)}, v{RK}, s[12:15], 0 offen')
    for k in range(4,16): A(f'v_mov_b32 v{EN+k}, 0')
    A(f's_mul_i32 s{sT0}, s{sU}, {64*3200}'); A(f's_add_u32 s{sT0}, s{sT0}, 0x{EFLAG-1:08x}')
    A('v_lshrrev_b32 v4, 3, v0'); A('v_mul_u32_u24 v4, 3200, v4'); A(f'v_add_u32 v{EB}, s{sT0}, v4')
    A('s_branch K2_ROUND')
    lab('K2_NEXT_OVF')
    A(f's_add_u32 s{sOP}, s{sOP}, 2048')
    lab('K2_OVF_FIND')
    A(f's_cmp_ge_u32 s{sOC}, {NCH}'); A('s_cbranch_scc1 K2_EPI')
    A(f's_lshl_b32 s{sT0}, s{sOC}, 2'); A(f's_add_u32 s{sT0}, s{sT0}, {WS_OVFCNT}')
    A(f's_load_dword s{sON}, s[{sWS}:{sWS+1}], s{sT0}'); A('s_waitcnt lgkmcnt(0)')
    A(f's_cmp_gt_u32 s{sON}, s{sOP}'); A('s_cbranch_scc1 K2_OVF_LOAD')
    A(f's_add_u32 s{sOC}, s{sOC}, 1'); A(f's_mov_b32 s{sOP}, 0'); A('s_branch K2_OVF_FIND')
    lab('K2_OVF_LOAD')
    A(f's_mul_i32 s{sT0}, s{sOC}, 25600'); A(f's_add_u32 s{sT0}, s{sT0}, {WS_OVFL}')
    A(f's_add_u32 s24, s{sWS}, s{sT0}'); A(f's_addc_u32 s25, s{sWS+1}, 0'); A(f's_lshl_b32 s26, s{sON}, 3'); A('s_mov_b32 s27, 0x20000')
    A(f'v_add_u32 v1, s{sOP}, v0'); A('v_lshlrev_b32 v1, 3, v1')
    A(f'buffer_load_dwordx2 v[{AX}:{AX+1}], v1, s[24:27], 0 offen')
    for j in range(1,4):
        A(f's_mov_b32 s{sT0}, {4096*j}'); A(f'buffer_load_dwordx2 v[{AX+2*j}:{AX+2*j+1}], v1, s[24:27], s{sT0} offen')
    A('s_waitcnt vmcnt(0)')
    for j in range(4):
        A(f'v_cmp_eq_u32 vcc, s{sB}, v{AX+2*j+1}'); A('s_nop 1'); A(f'v_cndmask_b32 v{EN+j}, 0, v{AX+2*j}, vcc')
    for k in range(4,16): A(f'v_mov_b32 v{EN+k}, 0')
    A(f's_mul_i32 s{sT0}, s{sOC}, 3200'); A(f's_add_u32 s{sT0}, s{sT0}, 0x{EFLAG-1:08x}'); A(f'v_mov_b32 v{EB}, s{sT0}')
    A('s_branch K2_ROUND')
    lab('K2_EPI')
    A(f'v_mul_u32_u24 v4, {RECSZ}, v1'); A(f'v_add_u32 v4, {REC}, v4'); A('v_lshl_add_u32 v5, v2, 6, v4'); A('v_lshl_add_u32 v6, v2, 4, v4')
    for i in range(4): A(f'ds_read_b128 {q(48+4*i)}, v5 offset:{O_DEN+16*i}')
    for i in range(4): A(f'ds_read_b128 {q(64+4*i)}, v5 offset:{O_NUM+16*i}')
    A(f'ds_read_b128 v[36:39], v6 offset:{O_U}')
    A('s_mov_b32 s40, 0x358637bd')
    A('s_waitcnt lgkmcnt(0)')
    for i in range(8): A(f'v_cvt_f32_f64 v{20+i}, v[{48+2*i}:{49+2*i}]'); A(f'v_cvt_f32_f64 v{28+i}, v[{64+2*i}:{65+2*i}]')
    for i in range(8): A(f'v_add_f32 v{20+i}, s40, v{20+i}')
    for i in range(8): A(f'v_rcp_f32 v{20+i}, v{20+i}')
    for i in range(4):
        A(f'v_lshlrev_b32 v{40+2*i}, 16, v{36+i}'); A(f'v_and_b32 v{41+2*i}, 0xffff0000, v{36+i}')
    for i in range(8): A(f'v_fmac_f32 v{40+i}, v{28+i}, v{20+i}')
    for i in range(8):
        A(f'v_mul_f32 v{28+i}, 0, v{40+i}'); A(f'v_cmp_lt_f32 vcc, 0, v{40+i}'); A('s_nop 1'); A(f'v_cndmask_b32 v{28+i}, v{28+i}, v{40+i}, vcc')
    A('s_waitcnt vmcnt(0)')
    for i in range(4):
        A(f'v_lshlrev_b32 v{40+2*i}, 16, v{NGB+i}'); A(f'v_and_b32 v{41+2*i}, 0xffff0000, v{NGB+i}')
    for i in range(8): A(f'v_add_f32 v{28+i}, v{28+i}, v{40+i}')
    for i in range(4): A(f'v_cvt_pk_bf16_f32 v{20+i}, v{28+2*i}, v{29+2*i}')
    A(f"buffer_store_dwordx4 v[20:23], v3, s[{OU_}:{OU_+3}], 0 offen {os.environ.get('OST','sc1')}")
    stamp('end')
    stamp_store()
    lab('K2_END')
    A('s_endpgm')

hdr = f'''; GatedGCN edge-featured MPNN: K1 buckets edges by destination, K2 gathers + MFMA + segment-reduces in LDS.
; @launch kernel=gcn_sort_kernel grid=({K1_GRID},1,1) block=(1024,1,1) lds={K1_LDS}
; @launch kernel=standalone__edge_featured_mpnn_gatedgcn__graph_kernel grid=(256,1,1) block=(512,1,1) lds={LDS_END}
.amdgcn_target "amdgcn-amd-amdhsa--gfx950"
.text
'''
def kd(name, nv, ns):
    return f'''.p2align 6
.amdhsa_kernel {name}
  .amdhsa_next_free_vgpr {nv}
  .amdhsa_next_free_sgpr {ns}
  .amdhsa_accum_offset {(nv+3)//4*4}
  .amdhsa_group_segment_fixed_size 0
  .amdhsa_kernarg_size 96
  .amdhsa_user_sgpr_count 2
  .amdhsa_user_sgpr_kernarg_segment_ptr 1
  .amdhsa_system_sgpr_workgroup_id_x 1
.end_amdhsa_kernel
'''
out=[hdr]
out.append('.globl gcn_sort_kernel\n.p2align 8\n.type gcn_sort_kernel,@function')
k1(); out+=L; L=[]
out.append('.globl standalone__edge_featured_mpnn_gatedgcn__graph_kernel\n.p2align 8\n.type standalone__edge_featured_mpnn_gatedgcn__graph_kernel,@function')
k2(); out+=L
out.append('.section .rodata,"a"')
out.append(kd('gcn_sort_kernel', 40, 72))
out.append(kd('standalone__edge_featured_mpnn_gatedgcn__graph_kernel', NVGPR, 102 if STAMPS else 96))
open(sys.argv[1] if len(sys.argv)>1 else 'out.s','w').write('\n'.join(out)+'\n')
print('LDS_END',LDS_END)
```

```python
import sys, os
N=12500; E=800000; CH=3200; NCH=250; NBK=256
WS_CELLS=0; WS_OVFCNT=0x800000; WS_WPREP=0x801000; WS_OVFL=0x810000; WS_T=0x1000000
NLOG2E=0xBFB8AA3B
L=[]
def A(s): L.append(s if s.endswith(':') else '    '+s)
def lab(s): L.append(s+':')
def C(s): L.append('    ; '+s)
ENV=lambda k: os.environ.get(k)
def q(base,n=4): return f'v[{base}:{base+n-1}]'
def mf(d,a,b,c): return f'v_mfma_f32_32x32x16_bf16 {q(d,16)}, {q(a)}, {q(b)}, {c if c=="0" else q(c,16)}'
K1_GRID=NCH+3
K1_LDS=49152
S1=ENV('S1')
def k1():
    lab('gcn_sort_kernel')
    if ENV('DBG') or int(os.environ.get('STAMPS','0')): A('s_memrealtime s[50:51]')
    A(f's_cmp_ge_u32 s2, {K1_GRID}'); A('s_cbranch_scc1 K1_END3' if ENV('DBG') else 's_cbranch_scc1 K1_END')
    A('s_load_dwordx2 s[8:9], s[0:1], 88')
    A(f's_cmp_ge_u32 s2, {NCH}'); A('s_cbranch_scc1 K1_W')
    A('s_load_dwordx4 s[4:7], s[0:1], 16')
    A('s_load_dwordx2 s[44:45], s[0:1], 0')
    A('v_lshlrev_b32 v1, 4, v0')
    A('s_mul_i32 s10, s2, 12800')
    A('s_waitcnt lgkmcnt(0)')
    if int(os.environ.get('STAMPS','0')):
        A('s_add_u32 s56, s8, 0x2080000'); A('s_addc_u32 s57, s9, 0'); A('s_mov_b32 s58, 1024'); A('s_mov_b32 s59, 0x20000')
        A('s_lshl_b32 s60, s2, 2'); A('v_mov_b32 v20, s50'); A('v_mov_b32 v21, s60'); A('buffer_store_dword v20, v21, s[56:59], 0 offen')
    A('s_add_u32 s16, s6, s10'); A('s_addc_u32 s17, s7, 0'); A('s_mov_b32 s18, 12800'); A('s_mov_b32 s19, 0x20000')
    A('buffer_load_dwordx4 v[8:11], v1, s[16:19], 0 offen')
    A('s_add_u32 s12, s4, s10'); A('s_addc_u32 s13, s5, 0'); A('s_mov_b32 s14, 12800'); A('s_mov_b32 s15, 0x20000')
    A('buffer_load_dwordx4 v[12:15], v1, s[12:15], 0 offen')
    if ENV('K1_XPF'):
        A(f's_mov_b32 s46, {N*128}'); A('s_mov_b32 s47, 0x20000')
        A('s_lshr_b32 s10, s2, 3'); A('s_mul_i32 s10, s10, 404'); A('v_add_u32 v36, s10, v0'); A('v_lshlrev_b32 v36, 7, v36')
        A('v_cmp_gt_u32 vcc, 404, v0'); A('v_mov_b32 v37, 0x7fffffff'); A('s_nop 0'); A('v_cndmask_b32 v36, v37, v36, vcc')
        A('buffer_load_dword v38, v36, s[44:47], 0 offen')
    for r in range(4,8): A(f'v_mov_b32 v{r}, 0')
    A('ds_write_b128 v1, v[4:7]'); A('ds_write_b128 v1, v[4:7] offset:16384'); A('ds_write_b128 v1, v[4:7] offset:32768')
    A('s_mul_i32 s10, s2, 25600')
    A(f's_add_u32 s24, s8, {WS_OVFL}'); A('s_addc_u32 s25, s9, 0'); A('s_add_u32 s24, s24, s10'); A('s_addc_u32 s25, s25, 0')
    A('s_mov_b32 s26, 25600'); A('s_mov_b32 s27, 0x20000')
    A('s_mov_b32 s32, s8'); A('s_mov_b32 s33, s9'); A('s_mov_b32 s34, 0x800000'); A('s_mov_b32 s35, 0x20000')
    A(f's_add_u32 s40, s8, {WS_OVFCNT}'); A('s_addc_u32 s41, s9, 0'); A('s_mov_b32 s42, 1000'); A('s_mov_b32 s43, 0x20000')
    A('v_mov_b32 v2, 1'); A('v_mov_b32 v3, 37888')
    A('s_waitcnt lgkmcnt(0)'); A('s_barrier')
    A('v_cmp_gt_u32 vcc, 800, v0'); A('s_and_saveexec_b64 s[20:21], vcc'); A('s_cbranch_execz K1_SKIP')
    A('s_mov_b64 s[28:29], exec')
    NP=1 if ENV('K1_XPF') else 0
    A(f's_waitcnt vmcnt({1+NP})')
    for j in range(4):
        A(f'v_and_b32 v{16+j}, 255, v{8+j}')
        A(f'v_lshlrev_b32 v{24+j}, 2, v{16+j}')
        A(f'ds_add_rtn_u32 v{28+j}, v{24+j}, v2 offset:36864')
    A(f's_waitcnt vmcnt({NP})')
    for j in range(4):
        A(f'v_lshrrev_b32 v{20+j}, 8, v{8+j}')
        A(f'v_lshl_or_b32 v{20+j}, v{12+j}, 6, v{20+j}')
        A(f'v_lshl_add_u32 v32, v0, 2, {j+1}')
        A(f'v_lshl_or_b32 v{20+j}, v32, 20, v{20+j}')
        A(f'v_mul_u32_u24 v{24+j}, 144, v{16+j}')
    A('s_waitcnt lgkmcnt(0)')
    for j in range(4):
        A(f'v_lshl_add_u32 v{24+j}, v{28+j}, 2, v{24+j}')
        A(f'v_cmp_gt_u32 vcc, 32, v{28+j}')
        A('s_mov_b64 exec, vcc')
        A(f'ds_write_b32 v{24+j}, v{20+j}')
        A('s_andn2_b64 exec, s[28:29], vcc')
        A(f's_cbranch_execz K1_NOV{j}')
        A('ds_add_rtn_u32 v33, v3, v2')
        A(f'v_mov_b32 v34, v{20+j}'); A(f'v_mov_b32 v35, v{16+j}')
        A('s_waitcnt lgkmcnt(0)')
        A('v_lshlrev_b32 v33, 3, v33')
        A('buffer_store_dwordx2 v[34:35], v33, s[24:27], 0 offen')
        A('s_nop 1')
        lab(f'K1_NOV{j}')
        A('s_mov_b64 exec, s[28:29]')
    lab('K1_SKIP')
    A('s_mov_b64 exec, -1')
    if ENV('TLBW'):
        STEP=int(ENV('TLBW'))
        A(f's_waitcnt vmcnt({NP})')
        A('s_cmp_lt_u32 s2, 8'); A('s_cbranch_scc0 K1_NOTLB')
        A('v_readfirstlane_b32 s48, v0'); A('s_nop 3'); A('s_cmp_ge_u32 s48, 832'); A('s_cbranch_scc0 K1_NOTLB')
        A('s_load_dwordx2 s[52:53], s[0:1], 8'); A('s_load_dwordx2 s[44:45], s[0:1], 0')
        A('v_subrev_u32 v36, 832, v0'); A(f'v_lshlrev_b32 v36, {STEP}, v36')
        A('s_waitcnt lgkmcnt(0)')
        A(f's_mov_b32 s54, {E*32}'); A('s_mov_b32 s55, 0x20000'); A(f's_mov_b32 s46, {N*128}'); A('s_mov_b32 s47, 0x20000')
        for i in range(-(-(E*32>>STEP)//192)):
            A(f's_mov_b32 s49, {(192*i)<<STEP}'); A('buffer_load_dword v37, v36, s[52:55], s49 offen')
        A('buffer_load_dword v38, v36, s[44:47], 0 offen')
        lab('K1_NOTLB')
        A('s_branch K1_AFTERW')
    A(f's_waitcnt vmcnt({NP})')
    if ENV('TLBW'): lab('K1_AFTERW')
    A('v_lshrrev_b32 v4, 3, v0'); A('v_and_b32 v5, 7, v0')
    A('v_mul_u32_u24 v6, 144, v4'); A('v_lshl_add_u32 v6, v5, 4, v6')
    A('v_and_b32 v23, 3, v5'); A('v_lshrrev_b32 v24, 2, v5'); A('v_lshlrev_b32 v24, 22, v24'); A('v_lshl_add_u32 v24, v23, 4, v24')
    A('v_add_u32 v7, s2, v4'); A('v_and_b32 v7, 255, v7'); A('v_lshlrev_b32 v7, 6, v7'); A('v_lshl_add_u32 v7, v4, 14, v7'); A('v_add_u32 v7, v7, v24')
    A('v_add_u32 v21, 128, v4'); A('v_add_u32 v22, s2, v21'); A('v_and_b32 v22, 255, v22'); A('v_lshlrev_b32 v22, 6, v22'); A('v_lshl_add_u32 v22, v21, 14, v22'); A('v_add_u32 v22, v22, v24')
    A('v_lshlrev_b32 v18, 2, v4'); A('v_cmp_gt_u32 s[22:23], 4, v5')
    A('s_waitcnt lgkmcnt(0)'); A('s_barrier')
    CST=os.environ.get('CST','sc1')
    A('ds_read_b128 v[8:11], v6'); A('ds_read_b128 v[12:15], v6 offset:18432'); A('ds_read_b32 v16, v3')
    A('ds_read_b32 v19, v18 offset:36864'); A('ds_read_b32 v20, v18 offset:37376')
    A('s_waitcnt lgkmcnt(0)')
    A('v_cmp_le_u32 vcc, 16, v19'); A('s_or_b64 exec, vcc, s[22:23]')
    A(f'buffer_store_dwordx4 v[8:11], v7, s[32:35], 0 offen {CST}')
    A('s_mov_b64 exec, -1')
    A('v_cmp_le_u32 vcc, 16, v20'); A('s_or_b64 exec, vcc, s[22:23]')
    A(f'buffer_store_dwordx4 v[12:15], v7+0, s[32:35], 0 offen {CST}'.replace('v7+0','v22'))
    A('s_mov_b64 exec, -1')
    if int(os.environ.get('STAMPS','0')):
        A('s_waitcnt vmcnt(0)'); A('s_memrealtime s[60:61]'); A('v_lshrrev_b32 v24, 6, v0'); A('v_lshlrev_b32 v24, 2, v24'); A('s_lshl_b32 s62, s2, 6'); A('v_add_u32 v24, s62, v24')
        A('s_mov_b32 s58, 0x8000'); A('s_waitcnt lgkmcnt(0)'); A('v_mov_b32 v23, s60'); A('v_add_u32 v24, 0x1000, v24'); A('buffer_store_dword v23, v24, s[56:59], 0 offen')
    A('v_cmp_eq_u32 vcc, 0, v0'); A('s_and_saveexec_b64 s[20:21], vcc'); A('s_cbranch_execz K1_END')
    A('s_lshl_b32 s10, s2, 2'); A('v_mov_b32 v17, s10')
    A('s_waitcnt lgkmcnt(0)')
    A('buffer_store_dword v16, v17, s[40:43], 0 offen')
    A('s_branch K1_END')
    lab('K1_W')
    A('s_load_dwordx8 s[12:19], s[0:1], 32')
    A('s_load_dwordx2 s[20:21], s[0:1], 64')
    A('v_lshrrev_b32 v1, 6, v0'); A('s_nop 0'); A('v_readfirstlane_b32 s10, v1')
    A(f's_sub_u32 s11, s2, {NCH}'); A('s_lshl_b32 s11, s11, 4'); A('s_nop 2'); A('s_add_u32 s10, s10, s11')
    A('s_cmp_ge_u32 s10, 34'); A('s_cbranch_scc1 K1_END')
    A('s_waitcnt lgkmcnt(0)')
    A('s_mov_b32 s24, s14'); A('s_mov_b32 s25, s15'); A('s_mov_b32 s26, 8192'); A('s_mov_b32 s27, 0x20000')
    A(f's_mov_b32 s28, 0x{NLOG2E:08x}'); A('s_mov_b32 s29, s10')
    A('s_cmp_ge_u32 s10, 8'); A('s_cbranch_scc0 K1_WSEL')
    A('s_mov_b32 s24, s20'); A('s_mov_b32 s25, s21'); A('s_mov_b32 s28, 0x3f800000'); A('s_sub_u32 s29, s10, 8')
    A('s_cmp_ge_u32 s10, 16'); A('s_cbranch_scc0 K1_WSEL')
    A('s_mov_b32 s24, s16'); A('s_mov_b32 s25, s17'); A('s_mov_b32 s26, 2048'); A(f's_mov_b32 s28, 0x{NLOG2E:08x}')
    A('s_sub_u32 s29, s10, 16'); A('s_lshl_b32 s29, s29, 2')
    A('s_cmp_ge_u32 s10, 18'); A('s_cbranch_scc0 K1_WSEL')
    A('s_mov_b32 s24, s12'); A('s_mov_b32 s25, s13'); A('s_mov_b32 s26, 8192'); A('s_mov_b32 s28, 0x3f800000'); A('s_sub_u32 s29, s10, 18')
    A('s_cmp_ge_u32 s10, 26'); A('s_cbranch_scc0 K1_WSEL')
    A('s_mov_b32 s24, s18'); A('s_mov_b32 s25, s19'); A('s_sub_u32 s29, s10, 26')
    lab('K1_WSEL')
    A('s_lshr_b32 s30, s29, 2'); A('s_and_b32 s31, s29, 3')
    A('s_lshl_b32 s30, s30, 6'); A('s_lshl_b32 s31, s31, 11'); A('s_add_u32 s30, s30, s31')
    A('v_and_b32 v2, 63, v0'); A('v_and_b32 v3, 31, v0'); A('v_lshrrev_b32 v4, 5, v2')
    A('v_lshlrev_b32 v4, 10, v4'); A('v_lshl_add_u32 v4, v3, 1, v4'); A('v_add_u32 v4, s30, v4')
    for t in range(8): A(f'buffer_load_ushort v{8+t}, v4, s[24:27], 0 offen offset:{128*t}')
    A(f's_add_u32 s32, s8, {WS_WPREP}'); A('s_addc_u32 s33, s9, 0'); A('s_mov_b32 s34, 34816'); A('s_mov_b32 s35, 0x20000')
    A('s_lshl_b32 s36, s10, 10'); A('v_lshlrev_b32 v5, 4, v2')
    A('s_waitcnt vmcnt(0)')
    for t in range(8):
        A(f'v_lshlrev_b32 v{8+t}, 16, v{8+t}'); A(f'v_mul_f32 v{8+t}, s28, v{8+t}')
    for t in range(4): A(f'v_cvt_pk_bf16_f32 v{16+t}, v{8+2*t}, v{9+2*t}')
    A('buffer_store_dwordx4 v[16:19], v5, s[32:35], s36 offen')
    lab('K1_END')
    if ENV('DBG'):
        A('s_cmp_eq_u32 s2, 7'); A('s_cbranch_scc0 K1_END2')
        A('s_load_dwordx2 s[52:53], s[0:1], 80'); A('s_memrealtime s[54:55]'); A('s_waitcnt lgkmcnt(0)')
        A('s_mov_b64 exec, 1'); A('s_mov_b32 s56, s54'); A('s_mov_b32 s54, 256'); A('s_mov_b32 s55, 0x20000')
        A('v_mov_b32 v20, s56'); A('v_mov_b32 v21, s50'); A('v_mov_b32 v22, 0')
        A('buffer_store_dword v21, v22, s[52:55], 0 offen'); A('buffer_store_dword v20, v22, s[52:55], 0 offen offset:4')
        lab('K1_END2')
        lab('K1_END3')
    A('s_endpgm')

XST=0; REC=65536; RECSZ=1408; XS=REC+50*RECSZ; ES=XS+8192; GRP=ES+16384; CNT=GRP+1024; NBT=CNT+256; LDS_END=NBT+256
OWNX=32768; WSTG=40960
O_DEN=256; O_NUM=768; O_U=1280
CAPG=512
DUMMY=49*22
EPAD=0x700FFFFF; EFLAG=0x40000000
cXE=2; cXO=3; aXS=4; aES=5; cKG=6; aGRP=7; cRA=8; cRB=9; aAX=10
WB=16; WV=48; WC=80; XB=88; AZ0=92; AZ1=96; ONEB=100; ONEA=[104,108]; AX=112; AE=[128,132]; G0=136; G1=152; H0=168; H1=184
XI=200; XV=202; EI=206; EV=207; GR=[208,209]; RA0=210; RA1=211; RB0=212; RB1=213; SD=214; SN=215; PD=216; PN=218
vONE=220; kXS=221; kES=222; kGRP=223; kAX=224; vL16=228; T0=230; NGB=236; cXM=252
NVGPR=256
XG_=64
CO=198; EN=G0; RK=G1; EB=H0; AD=H0+4; EW=AX
sB=3; X_=4; EA_=8; CE_=12; WP_=16; OU_=20; MI_=24; sWS=28; sWAVE=30; sNT=31; sTI=32; sX0=33; sX1=34; sMODE=36; sFIRST=37; sOVF=38; sU=39
MK=40
sCNT=72; sXS=73; sES=74; sT0=75; sT1=76; sT2=77; sOC=78; sOP=79; sON=80; sPB=81; sPW=82; s128=83
STAMPS=int(os.environ.get('STAMPS','0'))
STR=8
SSET=os.environ.get('SSET','main')
SMAP={'main':{'start':0,'bar1':1,'hist':2,'prefix':3,'bar3':4,'ng':5,'loop':6,'bar5':7,'end':8},
      'pro':{'start':0,'issued':1,'consts':2,'vmw':3,'bar1':4,'hist':5,'bar3':6,'ng':7,'entd':8},
      'pro2':{'bar3':0,'dma1':1,'wread':2,'ngm':3,'ng':4,'entw':5,'entd':6,'loop':7,'end':8}}[SSET]
def stamp(name):
    if STAMPS and name in SMAP:
        i=SMAP[name]
        A('s_memtime s[98:99]' if STAMPS==1 else 's_memrealtime s[98:99]'); A('s_waitcnt lgkmcnt(0)'); A(f's_mov_b32 s{86+i}, s98')
def stamp_store():
    if STAMPS and ENV('DBG'):
        A('s_memrealtime s[98:99]'); A('s_waitcnt lgkmcnt(0)'); A('s_mov_b32 s97, s98')
        A('s_cmp_eq_u32 s2, 7'); A('s_cbranch_scc0 K2_DBGE'); A(f's_cmp_eq_u32 s{sWAVE}, 0'); A('s_cbranch_scc0 K2_DBGE')
        A('s_load_dwordx2 s[24:25], s[0:1], 80'); A('s_waitcnt lgkmcnt(0)'); A('s_mov_b64 exec, 1'); A('v_mov_b32 v14, 0'); A('s_mov_b32 s26, 256'); A('s_mov_b32 s27, 0x20000')
        for i in range(12):
            A(f'v_mov_b32 v1, s{86+i}'); A(f'buffer_store_dword v1, v14, s[24:27], 0 offen offset:{8+4*i}')
        lab('K2_DBGE')
    elif STAMPS:
        A('s_memrealtime s[98:99]'); A('s_waitcnt lgkmcnt(0)'); A('s_mov_b32 s97, s98')
        A(f's_add_u32 s24, s{sWS}, 0x2000000'); A(f's_addc_u32 s25, s{sWS+1}, 0'); A('s_mov_b32 s26, 0x100000'); A('s_mov_b32 s27, 0x20000')
        A(f's_lshl_b32 s75, s2, 3'); A(f's_add_u32 s75, s75, s{sWAVE}'); A('s_lshl_b32 s75, s75, 6')
        for i in range(12):
            A(f'v_mov_b32 v1, s{86+i}'); A(f'v_mov_b32 v14, {4*i}'); A('buffer_store_dword v1, v14, s[24:27], s75 offen')
def x_dma(sbase):
    o=[f's_mov_b32 m0, s{sbase}']
    for m in range(4):
        o.append(f'v_mad_u32_u16 v{XV+m}, v{XI+(m>>1)}, s{s128}, v{cXM+m} op_sel:[{m&1},0,0,0]')
        o.append(f'buffer_load_dwordx4 v{XV+m}, s[{XG_}:{XG_+3}], 0 offen offset:{1024*m} lds')
    return o
ENT='' if ENV('NO_NT') else ' nt'
def e_issue(p):
    return [f'v_mad_u32_u24 v{EV}, v{EI}, 32, v{cKG}', f'buffer_load_dwordx4 {q(AE[p])}, v{EV}, s[{EA_}:{EA_+3}], 0 offen{ENT}']
def e_flag(p): return [f'v_and_b32 v{ONEA[p]}, 0xff000000, v{EI}']
def summ(G,H,b,rb,ct):
    if ENV('PK'):
        P=lambda x: f'v[{x}:{x+1}]'
        o=[f'v_pk_mul_f32 {P(PN)}, {P(G+b)}, {P(H+b)}', f'v_pk_add_f32 {P(PD)}, {P(G+b)}, {P(G+b+2)}']
        for r in (2,4,6):
            o.append(f'v_pk_fma_f32 {P(PN)}, {P(G+b+r)}, {P(H+b+r)}, {P(PN)}')
            if r>=4: o.append(f'v_pk_add_f32 {P(PD)}, {P(PD)}, {P(G+b+r)}')
        o.append(f'v_add_f32 v{SD}, v{PD}, v{PD+1}'); o.append(f'v_add_f32 v{SN}, v{PN}, v{PN+1}')
    else:
        o=[f'v_mul_f32 v{SN}, v{G+b}, v{H+b}', f'v_add_f32 v{SD}, v{G+b}, v{G+b+1}']
        for r in range(1,8):
            o.append(f'v_fmac_f32 v{SN}, v{G+b+r}, v{H+b+r}')
            if r>=2: o.append(f'v_add_f32 v{SD}, v{SD}, v{G+b+r}')
    o.append(f'v_cvt_f64_f32 v[{PD}:{PD+1}], v{SD}'); o.append(f'v_cvt_f64_f32 v[{PN}:{PN+1}], v{SN}')
    if not ENV('NO_DSADD'):
        o.append(f'ds_add_f64 v{rb}, v[{PD}:{PD+1}] offset:{ct*256}'); o.append(f'ds_add_f64 v{rb}, v[{PN}:{PN+1}] offset:{512+ct*256}')
    return o
def inter(v, m, every):
    o=[]; m=list(m)
    for i,x in enumerate(v):
        if m and i%every==0: o+=m.pop(0)
        o.append(x)
    for g in m: o+=g
    return o
def gchain(G,ct,p):
    return [[mf(G,AX,WB+16*ct,'0')],[mf(G,AX+4,WB+16*ct+4,G)],[mf(G,AX+8,WB+16*ct+8,G)],[mf(G,AX+12,WB+16*ct+12,G)],
            [mf(G,AE[p],WC+4*ct,G)],[mf(G,AZ1 if ct else AZ0,XB,G)]]
def xb_reads(): return [f'ds_read2_b32 v[{XB}:{XB+1}], v{RA0} offset0:0 offset1:32', f'ds_read2_b32 v[{XB+2}:{XB+3}], v{RA1} offset0:0 offset1:32']
def ra_mads(g): return [f'v_mad_u32_u16 v{RA0}, v{g}, 64, v{cRA} op_sel:[0,0,0,0]', f'v_mad_u32_u16 v{RA1}, v{g}, 64, v{cRA} op_sel:[1,0,0,0]']
def body(p):
    o=[]
    ex=lambda G:[f'v_exp_f32 v{G+r}, v{G+r}' for r in range(16)]
    rc=lambda G:[f'v_rcp_f32 v{G+r}, v{G+r}' for r in range(16)]
    XN=ENV('XNEAR')
    xd=x_dma((sX1 if p==0 else sX0) if XN else (sX0 if p==0 else sX1)) if not ENV('NO_XDMA') else ['s_nop 0']
    grp=[[mf(H0,AX+4*s,WV+4*s,'0' if s==0 else H0)]+(xd[:3] if s==0 else xd[1+2*s:3+2*s]) for s in range(4)]
    o+=inter(ex(G0), grp, 4)
    sb=summ(G1,H1,8,RB1,1)
    o+=sb[:2]+[mf(G0,ONEA[p],ONEB,G0)]+sb[2:]
    o+=[f'v_mad_u32_u16 v{RB0}, v{GR[p]}, 64, v{cRB} op_sel:[0,0,0,0]', f'v_mad_u32_u16 v{RB1}, v{GR[p]}, 64, v{cRB} op_sel:[1,0,0,0]']
    o+=inter(rc(G0), gchain(G1,1,p), 3)
    o+=summ(G0,H0,0,RB0,0)
    o+=['s_waitcnt vmcnt(0)' if XN else 's_waitcnt vmcnt(5)',
        f'ds_read2_b32 v[{XI}:{XI+1}], v{aXS} offset0:{16*STR*p} offset1:{16*STR*p+4}',
        f'ds_read_b32 v{EI}, v{aES} offset:{128*STR*p}', f'ds_read_b32 v{GR[p^1]}, v{aGRP} offset:{8*STR*p}']
    o+=inter(ex(G1), [[mf(H1,AX+4*s,WV+16+4*s,'0' if s==0 else H1), f'ds_read_b128 {q(AX+4*s)}, v{aAX+s} offset:{32768*(p^1)}'] for s in range(4)], 4)
    sb=summ(G0,H0,8,RB1,0)
    o+=sb[:2]+[mf(G1,ONEA[p],ONEB,G1)]
    o+=['s_waitcnt lgkmcnt(4)']+ra_mads(GR[p^1])
    o+=(e_issue(p) if not ENV('NO_EDMA') else [])+xb_reads()+e_flag(p)
    o+=sb[2:]
    o+=['s_waitcnt lgkmcnt(4)' if XN else 's_waitcnt vmcnt(5) lgkmcnt(4)']
    gc=gchain(G0,0,p^1)
    gc[5]=['s_waitcnt lgkmcnt(2)']+gc[5]
    o+=inter(rc(G1), gc, 3)
    o+=summ(G1,H1,0,RB0,1)
    if p==1:
        o+=[f'v_add_u32 v{aXS}, {128*STR}, v{aXS}', f'v_add_u32 v{aES}, {256*STR}, v{aES}', f'v_add_u32 v{aGRP}, {16*STR}, v{aGRP}']
    if ENV('NO_XMFMA'):
        o=[i for i in o if not (i.startswith('v_mfma') and any(f', {q(AX+4*s)}, ' in i for s in range(4)))]
    if ENV('NO_HMFMA'): o=[i for i in o if not (i.startswith('v_mfma') and (i.startswith(f'v_mfma_f32_32x32x16_bf16 {q(H0,16)}') or i.startswith(f'v_mfma_f32_32x32x16_bf16 {q(H1,16)}')))]
    if ENV('NO_SUMS'): o=[i for i in o if not (i.startswith('v_fmac') or (i.startswith('v_add_f32')) or i.startswith('v_mul_f32'))]
    if ENV('NO_SMALLM'): o=[i for i in o if not (i.startswith('v_mfma') and not any(f', {q(AX+4*s)}, ' in i for s in range(4)))]
    if ENV('NO_MFMA'): o=[i for i in o if not i.startswith('v_mfma')]
    if ENV('NO_TRANS'): o=[i for i in o if not (i.startswith('v_exp') or i.startswith('v_rcp'))]
    return o

def cell_off_g(dst, creg):
    A(f'v_add_u32 v{dst}, s{sB}, v{creg}'); A(f'v_and_b32 v{dst}, 255, v{dst}'); A(f'v_lshlrev_b32 v{dst}, 6, v{dst}'); A(f'v_lshl_add_u32 v{dst}, v5, 4, v{dst}')
    A(f'v_cmp_gt_u32 vcc, {NCH}, v{creg}'); A('v_mov_b32 v14, 0x7fffffff'); A('s_nop 0'); A(f'v_cndmask_b32 v{dst}, v14, v{dst}, vcc')
def k2():
    lab('standalone__edge_featured_mpnn_gatedgcn__graph_kernel')
    A('s_cmp_ge_u32 s2, 256'); A('s_cbranch_scc1 K2_END')
    A(f's_load_dwordx2 s[{sWS}:{sWS+1}], s[0:1], 88')
    A('s_load_dwordx4 s[4:7], s[0:1], 0')
    A('s_load_dwordx2 s[20:21], s[0:1], 72')
    A(f's_and_b32 s{sB}, s2, 7'); A(f's_lshl_b32 s{sB}, s{sB}, 5'); A(f's_lshr_b32 s{sT0}, s2, 3'); A(f's_or_b32 s{sB}, s{sB}, s{sT0}')
    A('v_lshrrev_b32 v1, 6, v0'); A('v_and_b32 v15, 63, v0')
    A(f'v_readfirstlane_b32 s{sWAVE}, v1')
    A(f'v_lshlrev_b32 v{vL16}, 4, v15')
    A('v_lshrrev_b32 v4, 2, v0'); A('v_and_b32 v5, 3, v0')
    cell_off_g(CO, 4); A('v_add_u32 v4, 128, v4'); cell_off_g(CO+1, 4)
    A(f's_lshl_b32 s{sT0}, s{sB}, 14')
    A('s_waitcnt lgkmcnt(0)')
    if STAMPS:
        A('s_memrealtime s[98:99]'); A('s_waitcnt lgkmcnt(0)'); A('s_mov_b32 s96, s98')
    stamp('start')
    A(f's_add_u32 s12, s{sWS}, s{sT0}'); A(f's_addc_u32 s13, s{sWS+1}, 0'); A(f's_mov_b32 s14, {0x400000+16384}'); A('s_mov_b32 s15, 0x20000')
    for u in range(2): A(f'buffer_load_dwordx4 {q(EN+4*u)}, v{CO+u}, s[12:15], 0 offen')
    A(f's_mov_b32 s{sPB}, 0x400000')
    def init_a():
        A('v_lshlrev_b32 v1, 4, v0')
        for r in range(4): A(f'v_mov_b32 v{AX+r}, -1')
        A(f'v_add_u32 v14, {XS}, v1'); A(f'ds_write_b128 v14, {q(AX)}')
        for r in range(4): A(f'v_mov_b32 v{AX+4+r}, 0x{EPAD:08x}')
        A(f'ds_write_b128 v14, {q(AX+4)} offset:8192'); A(f'ds_write_b128 v14, {q(AX+4)} offset:16384')
        for r in range(4): A(f'v_mov_b32 v{AX+8+r}, 0x{(DUMMY<<16)|DUMMY:08x}')
        for r in range(4): A(f'v_mov_b32 v{AX+12+r}, 0')
        A('v_cmp_gt_u32 vcc, 64, v0'); A('s_nop 1')
        for r in range(4): A(f'v_cndmask_b32 v{AX+8+r}, v{AX+12+r}, v{AX+8+r}, vcc')
        A('v_cmp_gt_u32 vcc, 96, v0'); A(f's_and_saveexec_b64 s[{MK}:{MK+1}], vcc'); A(f'ds_write_b128 v14, {q(AX+8)} offset:{GRP-XS}'); A(f's_mov_b64 exec, s[{MK}:{MK+1}]')
    init_a()
    A('s_mov_b32 s8, s6'); A('s_mov_b32 s9, s7'); A(f's_mov_b32 s10, {E*32}'); A('s_mov_b32 s11, 0x20000')
    A(f's_mov_b32 s6, {N*128}'); A('s_mov_b32 s7, 0x20000')
    A(f's_mov_b32 s22, {N*128}'); A('s_mov_b32 s23, 0x20000')
    A(f's_add_u32 s16, s{sWS}, {WS_WPREP}'); A(f's_addc_u32 s17, s{sWS+1}, 0'); A('s_mov_b32 s18, 34816'); A('s_mov_b32 s19, 0x20000')
    A(f's_add_u32 s24, s{sWS}, {WS_OVFCNT}'); A(f's_addc_u32 s25, s{sWS+1}, 0'); A('s_mov_b32 s26, 1000'); A('s_mov_b32 s27, 0x20000')
    A(f'v_lshrrev_b32 v14, 3, v15'); A(f's_lshl_b32 s{sT0}, s{sWAVE}, 3'); A(f'v_add_u32 v14, s{sT0}, v14')
    A(f'v_lshlrev_b32 v14, 8, v14'); A(f'v_add_u32 v14, s{sB}, v14'); A('v_lshlrev_b32 v14, 7, v14')
    A('v_lshrrev_b32 v4, 4, v15'); A('v_and_b32 v5, 7, v15'); A('v_xor_b32 v4, v4, v5'); A(f'v_lshlrev_b32 v{cXE}, 4, v4'); A(f'v_xor_b32 v{cXO}, 64, v{cXE}')
    A(f's_and_b32 s{sT0}, s{sWAVE}, 1'); A(f's_cmp_eq_u32 s{sT0}, 0'); A('s_cselect_b64 vcc, -1, 0')
    A(f'v_cndmask_b32 v4, v{cXO}, v{cXE}, vcc'); A('v_add_u32 v4, v14, v4')
    A(f's_lshl_b32 s{sT0}, s{sWAVE}, 10'); A(f's_add_u32 m0, s{sT0}, {OWNX}'); A('s_nop 0')
    A(f'buffer_load_dwordx4 v4, s[{X_}:{X_+3}], 0 offen lds')
    for i in range(3):
        A(f's_add_u32 s{sT1}, s{sT0}, {8192*i}'); A(f's_add_u32 m0, s{sT1}, {WSTG}'); A('s_nop 0')
        A(f'buffer_load_dwordx4 v{vL16}, s[16:19], s{sT1} offen lds')
    stamp('issued')
    A('v_lshrrev_b32 v14, 6, v0'); A(f'v_mul_u32_u24 v14, {RECSZ}, v14'); A(f'v_add_u32 v14, v14, v{vL16}'); A(f'v_add_u32 v14, {REC+O_DEN}, v14')
    for r in range(4): A(f'v_mov_b32 v{AX+r}, 0')
    for i in range(5): A(f'ds_write_b128 v14, {q(AX)} offset:{8*RECSZ*i}')
    A(f'v_add_u32 v14, {8*RECSZ*5}, v14'); A(f'ds_write_b128 v14, {q(AX)}')
    A('v_cmp_gt_u32 vcc, 128, v0'); A(f's_and_saveexec_b64 s[{MK}:{MK+1}], vcc'); A(f'ds_write_b128 v14, {q(AX)} offset:{8*RECSZ}'); A(f's_mov_b64 exec, s[{MK}:{MK+1}]')
    A(f'v_mov_b32 v{vONE}, 1')
    A(f's_mov_b32 s{sCNT}, {CNT}'); A(f's_mov_b32 s{sXS}, {XS}'); A(f's_mov_b32 s{sES}, {ES}'); A(f's_mov_b32 s{s128}, 128')
    A(f's_mov_b32 s{sMODE}, 0'); A(f's_mov_b32 s{sFIRST}, 1'); A(f's_mov_b32 s{sU}, 0')
    A('v_lshrrev_b32 v4, 2, v0'); A('v_mul_u32_u24 v4, 3200, v4')
    for u in range(4): A(f'v_add_u32 v{EB+u}, 0x{(128*(u&1)*3200-1+EFLAG)&0xffffffff:08x}, v4')
    for k in range(8,16): A(f'v_mov_b32 v{EN+k}, 0')
    def lane_consts():
        C('lane constants (v1 = kg)')
        A('v_lshrrev_b32 v1, 5, v15'); A(f'v_lshlrev_b32 v{cKG}, 4, v1')
        A('v_bfe_u32 v5, v15, 3, 2'); A('v_lshlrev_b32 v4, 5, v1'); A('v_lshl_add_u32 v4, v5, 2, v4'); A(f'v_add_u32 v{kXS}, {XS}, v4')
        A('v_bfe_u32 v4, v15, 2, 1'); A('v_lshlrev_b32 v4, 4, v4'); A('v_bfe_u32 v5, v15, 4, 1'); A('v_lshl_add_u32 v4, v5, 3, v4')
        A('v_and_b32 v5, 3, v15'); A('v_lshl_add_u32 v4, v5, 1, v4'); A('v_bfe_u32 v5, v15, 3, 1'); A('v_add_u32 v4, v4, v5')
        A('v_lshlrev_b32 v4, 2, v4'); A(f'v_add_u32 v{kES}, {ES}, v4')
        A('v_lshlrev_b32 v4, 2, v1'); A(f'v_add_u32 v{kGRP}, {GRP}, v4')
        A('v_and_b32 v4, 31, v15'); A('v_lshlrev_b32 v5, 2, v4'); A(f'v_add_u32 v{cRA}, {REC}, v5'); A('v_lshlrev_b32 v5, 3, v4'); A(f'v_add_u32 v{cRB}, {REC+O_DEN}, v5')
        A('v_bfe_u32 v5, v15, 1, 3'); A('v_xor_b32 v5, v5, v1'); A('v_lshlrev_b32 v5, 4, v5'); A('v_lshl_add_u32 v4, v4, 7, v5')
        for s in range(4): A(f'v_xor_b32 v{kAX+s}, {32*s}, v4')
        A(f's_lshl_b32 s{sX0}, s{sWAVE}, 12'); A(f's_add_u32 s{sX1}, s{sX0}, 32768')
        for m in range(4): A(f'v_add_u32 v{cXM+m}, {4096-1024*m}, v{cXO if m&1 else cXE}')
        A('v_bfe_u32 v4, v15, 2, 1'); A('v_cmp_eq_u32 vcc, v4, v1'); A('v_mov_b32 v5, 0x3f803f80'); A('s_nop 0'); A('v_cndmask_b32 v5, 0, v5, vcc')
        A('v_bfe_u32 v4, v15, 4, 1'); A('v_cmp_eq_u32 vcc, 0, v4'); A('s_nop 1'); A(f'v_cndmask_b32 v{AZ0}, 0, v5, vcc')
        A(f'v_sub_u32 v{AZ0+2}, v5, v{AZ0}'); A(f'v_mov_b32 v{AZ0+1}, 0'); A(f'v_mov_b32 v{AZ0+3}, 0')
        A(f'v_mov_b32 v{AZ1}, 0'); A(f'v_mov_b32 v{AZ1+1}, v{AZ0}'); A(f'v_mov_b32 v{AZ1+2}, 0'); A(f'v_mov_b32 v{AZ1+3}, v{AZ0+2}')
        A('v_cmp_eq_u32 vcc, 0, v1'); A('v_mov_b32 v5, 0x3f000000'); A('s_nop 0'); A(f'v_cndmask_b32 v{ONEB}, 0, v5, vcc')
        for r in range(1,4): A(f'v_mov_b32 v{ONEB+r}, 0'); A(f'v_mov_b32 v{ONEA[0]+r}, 0'); A(f'v_mov_b32 v{ONEA[1]+r}, 0')
    lane_consts()
    stamp('consts')
    A('s_waitcnt vmcnt(4)')
    for u in range(2):
        A(f'v_mov_b32_dpp v14, v{EN+4*u+3} quad_perm:[3,3,3,3] row_mask:0xf bank_mask:0xf'); A('s_nop 0')
        A('v_cmp_ne_u32 vcc, 0, v14'); A('s_mov_b64 exec, vcc')
        A(f'buffer_load_dwordx4 {q(EN+8+4*u)}, v{CO+u}, s[12:15], s{sPB} offen'); A('s_mov_b64 exec, -1')
    A(f's_mov_b32 s{sPW}, 1')
    A('s_branch K2_WD')
    lab('K2_ROUND')
    init_a()
    A('s_waitcnt vmcnt(0)'); A(f's_mov_b32 s{sPW}, 0')
    lab('K2_WD')
    stamp('vmw')
    if ENV('HALFCELL'):
        A(f's_cmp_eq_u32 s{sMODE}, 2'); A('s_cbranch_scc1 K2_NOMASK')
        A('v_and_b32 v14, 4, v15'); A('v_cmp_eq_u32 s[84:85], 0, v14')
        for u in range(4):
            A(f'v_mov_b32_dpp v1, v{EN+4*u+3} quad_perm:[3,3,3,3] row_mask:0xf bank_mask:0xf'); A('s_nop 1')
            A('v_mov_b32_dpp v14, v1 row_shr:4 row_mask:0xf bank_mask:0xf bound_ctrl:0'); A('s_nop 0')
            A('v_cmp_ne_u32 vcc, 0, v14'); A('s_or_b64 vcc, vcc, s[84:85]')
            for k in range(4): A(f'v_cndmask_b32 v{EN+4*u+k}, 0, v{EN+4*u+k}, vcc')
        lab('K2_NOMASK')
    def pre(ks):
        for k in ks: A(f'v_cmp_ne_u32 s[{MK+2*k}:{MK+2*k+1}], 0, v{EN+k}')
        for k in ks: A(f'v_and_b32 v{AD+k}, 63, v{EN+k}'); A(f'v_lshl_add_u32 v{AD+k}, v{AD+k}, 2, s{sCNT}')
    def atom(ks):
        for k in ks: A(f's_mov_b64 exec, s[{MK+2*k}:{MK+2*k+1}]'); A(f'ds_add_rtn_u32 v{RK+k}, v{AD+k}, v{vONE}')
        A('s_mov_b64 exec, -1')
    pre(range(8))
    A('s_waitcnt lgkmcnt(0)'); A('s_barrier')
    stamp('bar1')
    atom(range(8))
    A('s_waitcnt vmcnt(0)')
    pre(range(8,16)); atom(range(8,16))
    for k in range(16):
        A(f'v_lshrrev_b32 v{EW+k}, 20, v{EN+k}'); A(f'v_bfe_u32 v{EN+k}, v{EN+k}, 6, 14'); A(f'v_add_u32 v{EW+k}, v{EW+k}, v{EB+k//4}')
    A('s_waitcnt lgkmcnt(0)'); A('s_barrier')
    stamp('hist')
    A(f's_cmp_eq_u32 s{sFIRST}, 1'); A('s_cbranch_scc0 K2_NF1')
    if ENV('XPF2'):
        A(f's_lshr_b32 s{sT0}, s2, 3'); A(f's_mul_i32 s{sT0}, s{sT0}, 391'); A(f'v_add_u32 v14, s{sT0}, v0'); A('v_lshlrev_b32 v14, 7, v14')
        A('v_cmp_gt_u32 vcc, 391, v0'); A(f'v_mov_b32 v{T0+5}, 0x7fffffff'); A('s_nop 0'); A(f'v_cndmask_b32 v14, v{T0+5}, v14, vcc')
        A(f'buffer_load_dword v{T0+5}, v14, s[{X_}:{X_+3}], 0 offen')
    A(f'buffer_load_dwordx4 {q(T0)}, v{vL16}, s[24:27], 0 offen')
    A(f's_lshr_b32 s{sT0}, s{sWAVE}, 1'); A(f's_lshl_b32 s{sT0}, s{sT0}, 12'); A(f's_add_u32 s{sT0}, s{sT0}, {18*1024}')
    for s in range(4): A(f'buffer_load_dwordx4 {q(NGB+4*s)}, v{vL16}, s[16:19], s{sT0} offen offset:{1024*s}')
    lab('K2_NF1')
    A(f'v_lshl_add_u32 v4, v15, 2, s{sCNT}'); A('ds_read_b32 v5, v4'); A('s_waitcnt lgkmcnt(0)')
    A('v_add_u32 v5, 7, v5'); A('v_lshrrev_b32 v5, 3, v5'); A('v_mov_b32 v1, v5'); A('s_nop 1')
    for sh in (1,2,4,8):
        A(f'v_add_u32_dpp v1, v1, v1 row_shr:{sh} row_mask:0xf bank_mask:0xf bound_ctrl:0'); A('s_nop 1')
    A('v_add_u32_dpp v1, v1, v1 row_bcast:15 row_mask:0xa bank_mask:0xf'); A('s_nop 1')
    A('v_add_u32_dpp v1, v1, v1 row_bcast:31 row_mask:0xc bank_mask:0xf'); A('s_nop 1')
    A(f'v_readlane_b32 s{sNT}, v1, 63')
    A('v_sub_u32 v1, v1, v5')
    A(f'v_lshlrev_b32 v{T0+4}, 3, v1')
    if not ENV('BPERM'): A(f'ds_write_b32 v4, v{T0+4} offset:256')
    A(f's_cmp_gt_u32 s{sNT}, {CAPG}'); A('s_cbranch_scc1 K2_SPLIT')
    if ENV('BPERM'):
        for k in range(16): A(f'ds_bpermute_b32 v{AD+k}, v{AD+k}, v{T0+4}')
    else:
        for k in range(16): A(f'ds_read_b32 v{AD+k}, v{AD+k} offset:256')
    A(f'v_mul_u32_u24 v{XV}, 22, v15'); A(f'v_mov_b32 v{XV+1}, s{sWAVE}')
    lab('K2_GL')
    A(f'v_cmp_lt_u32 vcc, v{XV+1}, v5'); A('s_and_saveexec_b64 s[84:85], vcc'); A('s_cbranch_execz K2_GLD')
    A(f'v_add_u32 v{XV+2}, v1, v{XV+1}'); A(f'v_lshlrev_b32 v{XV+2}, 1, v{XV+2}'); A(f'v_add_u32 v{XV+2}, {GRP}, v{XV+2}')
    A(f'ds_write_b16 v{XV+2}, v{XV}'); A(f'v_add_u32 v{XV+1}, 8, v{XV+1}')
    A('s_mov_b64 exec, s[84:85]'); A('s_branch K2_GL')
    lab('K2_GLD'); A('s_mov_b64 exec, -1')
    A('s_waitcnt lgkmcnt(0)')
    stamp('prefix')
    for k in range(16):
        A(f'v_add_u32 v{RK+k}, v{RK+k}, v{AD+k}')
        A(f'v_lshl_add_u32 v{AD+k}, v{RK+k}, 1, s{sXS}')
        A(f'v_lshl_add_u32 v{RK+k}, v{RK+k}, 2, s{sES}')
    for k in range(16):
        A(f's_mov_b64 exec, s[{MK+2*k}:{MK+2*k+1}]')
        A(f'ds_write_b16 v{AD+k}, v{EN+k}'); A(f'ds_write_b32 v{RK+k}, v{EW+k}')
    A('s_mov_b64 exec, -1')
    A(f's_add_u32 s{sNT}, s{sNT}, 3'); A(f's_lshr_b32 s{sNT}, s{sNT}, 2')
    A('s_waitcnt vmcnt(0) lgkmcnt(0)'); A('s_barrier')
    stamp('bar3')
    A(f's_sub_u32 s{XG_}, s{X_}, 4096'); A(f's_subb_u32 s{XG_+1}, s{X_+1}, 0'); A(f's_mov_b32 s{XG_+2}, {N*128+4096}'); A(f's_mov_b32 s{XG_+3}, 0x20000')
    A(f's_mov_b32 s{sTI}, s{sWAVE}')
    A(f's_lshl_b32 s{sT0}, s{sWAVE}, 6'); A(f'v_add_u32 v{aXS}, s{sT0}, v{kXS}')
    A(f's_lshl_b32 s{sT0}, s{sWAVE}, 7'); A(f'v_add_u32 v{aES}, s{sT0}, v{kES}')
    A(f's_lshl_b32 s{sT0}, s{sWAVE}, 3'); A(f'v_add_u32 v{aGRP}, s{sT0}, v{kGRP}')
    A(f'ds_read_b32 v{EI}, v{aES}'); A(f'ds_read2_b32 v[{XI}:{XI+1}], v{aXS} offset0:0 offset1:4'); A(f'ds_read_b32 v{GR[0]}, v{aGRP}')
    for s in range(4): A(f'v_add_u32 v{aAX+s}, s{sX0}, v{kAX+s}')
    A('s_waitcnt lgkmcnt(0)')
    for i in x_dma(sX0)+e_issue(0)+e_flag(0): A(i)
    stamp('dma1')
    A(f's_cmp_eq_u32 s{sFIRST}, 0'); A('s_cbranch_scc1 K2_NG_DONE')
    A(f'v_add_u32 v1, {WSTG}, v{vL16}')
    A(f's_and_b32 s{sT0}, s{sWAVE}, 1'); A(f's_lshl_b32 s{sT0}, s{sT0}, 12'); A(f's_add_u32 s{sT0}, s{sT0}, {OWNX}')
    for s in range(4): A(f'v_add_u32 v{XV+s}, s{sT0}, v{kAX+s}')
    for s in range(4): A(f'ds_read_b128 {q(AX+4*s)}, v{XV+s}')
    for i in range(18): A(f'ds_read_b128 {q(WB+4*i)}, v1 offset:{1024*i}')
    A(f'v_or_b32 v{T0}, v{T0}, v{T0+1}'); A(f'v_or_b32 v{T0+2}, v{T0+2}, v{T0+3}'); A(f'v_or_b32 v{T0}, v{T0}, v{T0+2}')
    A(f'v_cmp_ne_u32 vcc, 0, v{T0}'); A('s_nop 3'); A('s_cmp_lg_u64 vcc, 0'); A(f's_cselect_b32 s{sOVF}, 1, 0')
    A('s_waitcnt lgkmcnt(0)')
    stamp('wread')
    for s in range(4): A(mf(G0, AX+4*s, NGB+4*s, '0' if s==0 else G0))
    A(f's_and_b32 s{sT0}, s{sWAVE}, 1'); A(f's_lshl_b32 s{sT0}, s{sT0}, 5'); A(f'v_lshrrev_b32 v1, 5, v15'); A(f'v_lshl_add_u32 v1, v1, 2, s{sT0}')
    A(f'v_mul_u32_u24 v1, {RECSZ}, v1')
    A(f's_bfe_u32 s{sT1}, s{sWAVE}, 0x10001')
    A(f's_cmp_ge_u32 s{sWAVE}, 4'); A('s_cbranch_scc1 K2_NG_U')
    A(f's_lshl_b32 s{sT1}, s{sT1}, 7'); A(f'v_add_u32 v1, v1, v{cRA}'); A(f'v_add_u32 v1, s{sT1}, v1')
    A(f's_mov_b32 s{sT2}, 0x{NLOG2E:08x}'); A('s_nop 7')
    for r in range(16):
        A(f'v_mul_f32 v{G0+r}, s{sT2}, v{G0+r}')
        A(f'v_cvt_pk_bf16_f32 v{SD}, v{G0+r}, v{G0+r}'); A(f'v_lshlrev_b32 v{SD}, 16, v{SD}'); A(f'v_sub_f32 v{SN}, v{G0+r}, v{SD}'); A(f'v_cvt_pk_bf16_f32 v{G0+r}, v{SD}, v{SN}')
    def wr_a(r): A(f'ds_write_b32 v1, v{G0+r} offset:{(8*(r//4)+(r%4))*RECSZ}')
    for r in range(8): wr_a(r)
    A(f's_and_b32 s{sT0}, s{sWAVE}, 1'); A(f's_cmp_eq_u32 s{sT0}, 0'); A('s_cbranch_scc0 K2_NG_A1')
    for r in range(8,16): wr_a(r)
    A('s_branch K2_NG_BAR')
    lab('K2_NG_A1')
    A('s_mov_b32 exec_lo, -1'); A('s_mov_b32 exec_hi, 0'); wr_a(8); wr_a(9); A('s_mov_b64 exec, -1'); A('s_branch K2_NG_BAR')
    lab('K2_NG_U')
    A(f's_lshl_b32 s{sT1}, s{sT1}, 6'); A(f'v_and_b32 v{SD}, 31, v15'); A(f'v_lshl_add_u32 v1, v{SD}, 1, v1'); A(f'v_add_u32 v1, s{sT1}, v1'); A(f'v_add_u32 v1, {REC+O_U}, v1')
    A('s_nop 7')
    for r in range(16): A(f'v_cvt_pk_bf16_f32 v{G0+r}, v{G0+r}, v{G0+r}')
    def wr_u(r): A(f'ds_write_b16 v1, v{G0+r} offset:{(8*(r//4)+(r%4))*RECSZ}')
    for r in range(8): wr_u(r)
    A(f's_and_b32 s{sT0}, s{sWAVE}, 1'); A(f's_cmp_eq_u32 s{sT0}, 0'); A('s_cbranch_scc0 K2_NG_U1')
    for r in range(8,16): wr_u(r)
    A('s_branch K2_NG_BAR')
    lab('K2_NG_U1')
    A('s_mov_b32 exec_lo, -1'); A('s_mov_b32 exec_hi, 0'); wr_u(8); wr_u(9); A('s_mov_b64 exec, -1')
    lab('K2_NG_BAR')
    stamp('ngm')
    A('s_waitcnt lgkmcnt(0)'); A('s_barrier')
    lab('K2_NG_DONE')
    stamp('ng')
    A(f's_mov_b32 s{sFIRST}, 0')
    A(f's_cmp_lt_u32 s{sTI}, s{sNT}'); A('s_cbranch_scc0 K2_LOOP_END')
    A(f'ds_read2_b32 v[{XI}:{XI+1}], v{aXS} offset0:{16*STR} offset1:{16*STR+4}'); A(f'ds_read_b32 v{EI}, v{aES} offset:{128*STR}')
    for i in ra_mads(GR[0]): A(i)
    A(f'v_mad_u32_u16 v{RB1}, v{GR[0]}, 64, v{cRB} op_sel:[1,0,0,0]')
    for i in xb_reads(): A(i)
    for r in range(8,16): A(f'v_mov_b32 v{G1+r}, 0'); A(f'v_mov_b32 v{H1+r}, 0')
    A('s_waitcnt lgkmcnt(2)')
    if ENV('XNEAR'):
        for i in e_issue(1)+e_flag(1): A(i)
        A(f'v_add_u32 v{aXS}, {64*STR}, v{aXS}')
        A('s_waitcnt vmcnt(1)')
    else:
        for i in x_dma(sX1)+e_issue(1)+e_flag(1): A(i)
        A(f'v_add_u32 v{aXS}, {128*STR}, v{aXS}')
        A(f'ds_read2_b32 v[{XI}:{XI+1}], v{aXS} offset0:0 offset1:4')
        A('s_waitcnt vmcnt(5)')
    stamp('entw')
    for s in range(4): A(f'ds_read_b128 {q(AX+4*s)}, v{aAX+s}')
    A(f'v_add_u32 v{aXS}, {64*STR}, v{aXS}'); A(f'v_add_u32 v{aES}, {256*STR}, v{aES}'); A(f'v_add_u32 v{aGRP}, {8*STR}, v{aGRP}')
    A('s_waitcnt lgkmcnt(0)')
    for g in gchain(G0,0,0):
        for i in g: A(i)
    A('s_nop 7'); A('s_nop 2')
    stamp('entd')
    lab('K2_LOOP')
    for i in body(0): A(i)
    A(f's_add_u32 s{sTI}, s{sTI}, {STR}'); A(f's_cmp_lt_u32 s{sTI}, s{sNT}'); A('s_cbranch_scc0 K2_TAIL')
    for i in body(1): A(i)
    A(f's_add_u32 s{sTI}, s{sTI}, {STR}'); A(f's_cmp_lt_u32 s{sTI}, s{sNT}'); A('s_cbranch_scc1 K2_LOOP')
    lab('K2_TAIL')
    for i in summ(G1,H1,8,RB1,1): A(i)
    lab('K2_LOOP_END')
    stamp('loop')
    A('s_waitcnt vmcnt(0)')
    A('v_lshrrev_b32 v1, 3, v0'); A('v_and_b32 v2, 7, v0')
    A(f'v_lshlrev_b32 v3, 8, v1'); A(f'v_add_u32 v3, s{sB}, v3'); A('v_lshlrev_b32 v3, 7, v3'); A('v_lshl_add_u32 v3, v2, 4, v3')
    A(f'buffer_load_dwordx4 {q(NGB)}, v3, s[{X_}:{X_+3}], 0 offen')
    A('s_waitcnt lgkmcnt(0)'); A('s_barrier')
    stamp('bar5')
    A(f's_cmp_eq_u32 s{sMODE}, 1'); A('s_cbranch_scc1 K2_NEXT_SPLIT')
    A(f's_cmp_eq_u32 s{sMODE}, 2'); A('s_cbranch_scc1 K2_NEXT_OVF')
    lab('K2_CHECK_OVF')
    A(f's_cmp_eq_u32 s{sOVF}, 0'); A('s_cbranch_scc1 K2_EPI')
    A(f's_mov_b32 s{sMODE}, 2'); A(f's_mov_b32 s{sOC}, 0'); A(f's_mov_b32 s{sOP}, 0'); A('s_branch K2_OVF_FIND')
    lab('K2_SPLIT')
    A(f's_mov_b32 s{sMODE}, 1'); A(f's_mov_b32 s{sU}, 0')
    A('s_waitcnt lgkmcnt(0)'); A('s_barrier')
    A('s_branch K2_LOADQ')
    lab('K2_NEXT_SPLIT')
    A(f's_add_u32 s{sU}, s{sU}, 1'); A(f's_cmp_ge_u32 s{sU}, 4'); A('s_cbranch_scc1 K2_CHECK_OVF')
    lab('K2_LOADQ')
    A(f's_and_b32 s{sT0}, s{sU}, 1'); A(f's_lshl_b32 s{sT0}, s{sT0}, 7'); A('v_lshrrev_b32 v4, 2, v0'); A(f'v_add_u32 v4, s{sT0}, v4'); A('v_and_b32 v5, 3, v0')
    cell_off_g(CO, 4)
    A('s_waitcnt vmcnt(0)')
    A(f'buffer_load_dwordx4 {q(EN)}, v{CO}, s[12:15], 0 offen')
    for k in range(4,16): A(f'v_mov_b32 v{EN+k}, 0')
    A(f's_cmp_ge_u32 s{sU}, 2'); A('s_cbranch_scc0 K2_LOADQ_A')
    A('s_waitcnt vmcnt(0)')
    A(f'v_mov_b32_dpp v14, v{EN+3} quad_perm:[3,3,3,3] row_mask:0xf bank_mask:0xf'); A('s_nop 0')
    A('v_cmp_ne_u32 vcc, 0, v14')
    for k in range(4): A(f'v_mov_b32 v{EN+k}, 0')
    A('s_mov_b64 exec, vcc'); A('s_cbranch_execz K2_LOADQ_B')
    A(f'buffer_load_dwordx4 {q(EN)}, v{CO}, s[12:15], s{sPB} offen')
    lab('K2_LOADQ_B'); A('s_mov_b64 exec, -1')
    lab('K2_LOADQ_A')
    A('v_mul_u32_u24 v4, 3200, v4'); A(f'v_add_u32 v{EB}, 0x{EFLAG-1:08x}, v4')
    A('s_branch K2_ROUND')
    lab('K2_NEXT_OVF')
    A(f's_add_u32 s{sOP}, s{sOP}, 2048')
    lab('K2_OVF_FIND')
    A(f's_cmp_ge_u32 s{sOC}, {NCH}'); A('s_cbranch_scc1 K2_EPI')
    A(f's_lshl_b32 s{sT0}, s{sOC}, 2'); A(f's_add_u32 s{sT0}, s{sT0}, {WS_OVFCNT}')
    A(f's_load_dword s{sON}, s[{sWS}:{sWS+1}], s{sT0}'); A('s_waitcnt lgkmcnt(0)')
    A(f's_cmp_gt_u32 s{sON}, s{sOP}'); A('s_cbranch_scc1 K2_OVF_LOAD')
    A(f's_add_u32 s{sOC}, s{sOC}, 1'); A(f's_mov_b32 s{sOP}, 0'); A('s_branch K2_OVF_FIND')
    lab('K2_OVF_LOAD')
    A(f's_mul_i32 s{sT0}, s{sOC}, 25600'); A(f's_add_u32 s{sT0}, s{sT0}, {WS_OVFL}')
    A(f's_add_u32 s24, s{sWS}, s{sT0}'); A(f's_addc_u32 s25, s{sWS+1}, 0'); A(f's_lshl_b32 s26, s{sON}, 3'); A('s_mov_b32 s27, 0x20000')
    A(f'v_add_u32 v1, s{sOP}, v0'); A('v_lshlrev_b32 v1, 3, v1')
    A(f'buffer_load_dwordx2 v[{AX}:{AX+1}], v1, s[24:27], 0 offen')
    for j in range(1,4):
        A(f's_mov_b32 s{sT0}, {4096*j}'); A(f'buffer_load_dwordx2 v[{AX+2*j}:{AX+2*j+1}], v1, s[24:27], s{sT0} offen')
    A('s_waitcnt vmcnt(0)')
    for j in range(4):
        A(f'v_cmp_eq_u32 vcc, s{sB}, v{AX+2*j+1}'); A('s_nop 1'); A(f'v_cndmask_b32 v{EN+j}, 0, v{AX+2*j}, vcc')
    for k in range(4,16): A(f'v_mov_b32 v{EN+k}, 0')
    A(f's_mul_i32 s{sT0}, s{sOC}, 3200'); A(f's_add_u32 s{sT0}, s{sT0}, 0x{EFLAG-1:08x}'); A(f'v_mov_b32 v{EB}, s{sT0}')
    A('s_branch K2_ROUND')
    lab('K2_EPI')
    A(f'v_mul_u32_u24 v4, {RECSZ}, v1'); A(f'v_add_u32 v4, {REC}, v4'); A('v_lshl_add_u32 v5, v2, 6, v4'); A('v_lshl_add_u32 v6, v2, 4, v4')
    for i in range(4): A(f'ds_read_b128 {q(48+4*i)}, v5 offset:{O_DEN+16*i}')
    for i in range(4): A(f'ds_read_b128 {q(64+4*i)}, v5 offset:{O_NUM+16*i}')
    A(f'ds_read_b128 v[36:39], v6 offset:{O_U}')
    A('s_mov_b32 s40, 0x358637bd')
    A('s_waitcnt lgkmcnt(0)')
    for i in range(8): A(f'v_cvt_f32_f64 v{20+i}, v[{48+2*i}:{49+2*i}]'); A(f'v_cvt_f32_f64 v{28+i}, v[{64+2*i}:{65+2*i}]')
    for i in range(8): A(f'v_add_f32 v{20+i}, s40, v{20+i}')
    for i in range(8): A(f'v_rcp_f32 v{20+i}, v{20+i}')
    for i in range(4):
        A(f'v_lshlrev_b32 v{40+2*i}, 16, v{36+i}'); A(f'v_and_b32 v{41+2*i}, 0xffff0000, v{36+i}')
    for i in range(8): A(f'v_fmac_f32 v{40+i}, v{28+i}, v{20+i}')
    for i in range(8):
        A(f'v_mul_f32 v{28+i}, 0, v{40+i}'); A(f'v_cmp_lt_f32 vcc, 0, v{40+i}'); A('s_nop 1'); A(f'v_cndmask_b32 v{28+i}, v{28+i}, v{40+i}, vcc')
    A('s_waitcnt vmcnt(0)')
    for i in range(4):
        A(f'v_lshlrev_b32 v{40+2*i}, 16, v{NGB+i}'); A(f'v_and_b32 v{41+2*i}, 0xffff0000, v{NGB+i}')
    for i in range(8): A(f'v_add_f32 v{28+i}, v{28+i}, v{40+i}')
    for i in range(4): A(f'v_cvt_pk_bf16_f32 v{20+i}, v{28+2*i}, v{29+2*i}')
    A(f"buffer_store_dwordx4 v[20:23], v3, s[{OU_}:{OU_+3}], 0 offen {os.environ.get('OST','sc1')}")
    stamp('end')
    stamp_store()
    lab('K2_END')
    A('s_endpgm')

hdr = f'''; GatedGCN edge-featured MPNN: K1 buckets edges by destination, K2 gathers + MFMA + segment-reduces in LDS.
; @launch kernel=gcn_sort_kernel grid=({K1_GRID},1,1) block=(1024,1,1) lds={K1_LDS}
; @launch kernel=standalone__edge_featured_mpnn_gatedgcn__graph_kernel grid=(256,1,1) block=(512,1,1) lds={LDS_END}
.amdgcn_target "amdgcn-amd-amdhsa--gfx950"
.text
'''
def kd(name, nv, ns):
    return f'''.p2align 6
.amdhsa_kernel {name}
  .amdhsa_next_free_vgpr {nv}
  .amdhsa_next_free_sgpr {ns}
  .amdhsa_accum_offset {(nv+3)//4*4}
  .amdhsa_group_segment_fixed_size 0
  .amdhsa_kernarg_size 96
  .amdhsa_user_sgpr_count 2
  .amdhsa_user_sgpr_kernarg_segment_ptr 1
  .amdhsa_system_sgpr_workgroup_id_x 1
.end_amdhsa_kernel
'''
out=[hdr]
out.append('.globl gcn_sort_kernel\n.p2align 8\n.type gcn_sort_kernel,@function')
k1(); out+=L; L=[]
out.append('.globl standalone__edge_featured_mpnn_gatedgcn__graph_kernel\n.p2align 8\n.type standalone__edge_featured_mpnn_gatedgcn__graph_kernel,@function')
k2(); out+=L
out.append('.section .rodata,"a"')
out.append(kd('gcn_sort_kernel', 40, 72))
out.append(kd('standalone__edge_featured_mpnn_gatedgcn__graph_kernel', NVGPR, 102 if STAMPS else 96))
open(sys.argv[1] if len(sys.argv)>1 else 'out.s','w').write('\n'.join(out)+'\n')
print('LDS_END',LDS_END)
```

```python
import sys, os
N=12500; E=800000; CH=3200; NCH=250; NBK=256
WS_CELLS=0; WS_OVFCNT=0x800000; WS_WPREP=0x801000; WS_OVFL=0x810000; WS_T=0x1000000
NLOG2E=0xBFB8AA3B
L=[]
def A(s): L.append(s if s.endswith(':') else '    '+s)
def lab(s): L.append(s+':')
def C(s): L.append('    ; '+s)
ENV=lambda k: os.environ.get(k)
def q(base,n=4): return f'v[{base}:{base+n-1}]'
def mf(d,a,b,c): return f'v_mfma_f32_32x32x16_bf16 {q(d,16)}, {q(a)}, {q(b)}, {c if c=="0" else q(c,16)}'
K1_GRID=NCH+3
K1_LDS=49152
S1=ENV('S1')
def k1():
    lab('gcn_sort_kernel')
    if ENV('DBG') or int(os.environ.get('STAMPS','0')): A('s_memrealtime s[50:51]')
    A(f's_cmp_ge_u32 s2, {K1_GRID}'); A('s_cbranch_scc1 K1_END3' if ENV('DBG') else 's_cbranch_scc1 K1_END')
    A('s_load_dwordx2 s[8:9], s[0:1], 88')
    A(f's_cmp_ge_u32 s2, {NCH}'); A('s_cbranch_scc1 K1_W')
    A('s_load_dwordx4 s[4:7], s[0:1], 16')
    A('s_load_dwordx2 s[44:45], s[0:1], 0')
    A('v_lshlrev_b32 v1, 4, v0')
    A('s_mul_i32 s10, s2, 12800')
    A('s_waitcnt lgkmcnt(0)')
    if int(os.environ.get('STAMPS','0')):
        A('s_add_u32 s56, s8, 0x2080000'); A('s_addc_u32 s57, s9, 0'); A('s_mov_b32 s58, 1024'); A('s_mov_b32 s59, 0x20000')
        A('s_lshl_b32 s60, s2, 2'); A('v_mov_b32 v20, s50'); A('v_mov_b32 v21, s60'); A('buffer_store_dword v20, v21, s[56:59], 0 offen')
    A('s_add_u32 s16, s6, s10'); A('s_addc_u32 s17, s7, 0'); A('s_mov_b32 s18, 12800'); A('s_mov_b32 s19, 0x20000')
    A('buffer_load_dwordx4 v[8:11], v1, s[16:19], 0 offen')
    A('s_add_u32 s12, s4, s10'); A('s_addc_u32 s13, s5, 0'); A('s_mov_b32 s14, 12800'); A('s_mov_b32 s15, 0x20000')
    A('buffer_load_dwordx4 v[12:15], v1, s[12:15], 0 offen')
    if ENV('K1_XPF'):
        A(f's_mov_b32 s46, {N*128}'); A('s_mov_b32 s47, 0x20000')
        A('s_lshr_b32 s10, s2, 3'); A('s_mul_i32 s10, s10, 404'); A('v_add_u32 v36, s10, v0'); A('v_lshlrev_b32 v36, 7, v36')
        A('v_cmp_gt_u32 vcc, 404, v0'); A('v_mov_b32 v37, 0x7fffffff'); A('s_nop 0'); A('v_cndmask_b32 v36, v37, v36, vcc')
        A('buffer_load_dword v38, v36, s[44:47], 0 offen')
    for r in range(4,8): A(f'v_mov_b32 v{r}, 0')
    A('ds_write_b128 v1, v[4:7]'); A('ds_write_b128 v1, v[4:7] offset:16384'); A('ds_write_b128 v1, v[4:7] offset:32768')
    A('s_mul_i32 s10, s2, 25600')
    A(f's_add_u32 s24, s8, {WS_OVFL}'); A('s_addc_u32 s25, s9, 0'); A('s_add_u32 s24, s24, s10'); A('s_addc_u32 s25, s25, 0')
    A('s_mov_b32 s26, 25600'); A('s_mov_b32 s27, 0x20000')
    A('s_mov_b32 s32, s8'); A('s_mov_b32 s33, s9'); A('s_mov_b32 s34, 0x800000'); A('s_mov_b32 s35, 0x20000')
    A(f's_add_u32 s40, s8, {WS_OVFCNT}'); A('s_addc_u32 s41, s9, 0'); A('s_mov_b32 s42, 1000'); A('s_mov_b32 s43, 0x20000')
    A('v_mov_b32 v2, 1'); A('v_mov_b32 v3, 37888')
    A('s_waitcnt lgkmcnt(0)'); A('s_barrier')
    A('v_cmp_gt_u32 vcc, 800, v0'); A('s_and_saveexec_b64 s[20:21], vcc'); A('s_cbranch_execz K1_SKIP')
    A('s_mov_b64 s[28:29], exec')
    NP=1 if ENV('K1_XPF') else 0
    A(f's_waitcnt vmcnt({1+NP})')
    for j in range(4):
        A(f'v_and_b32 v{16+j}, 255, v{8+j}')
        A(f'v_lshlrev_b32 v{24+j}, 2, v{16+j}')
        A(f'ds_add_rtn_u32 v{28+j}, v{24+j}, v2 offset:36864')
    A(f's_waitcnt vmcnt({NP})')
    for j in range(4):
        A(f'v_lshrrev_b32 v{20+j}, 8, v{8+j}')
        A(f'v_lshl_or_b32 v{20+j}, v{12+j}, 6, v{20+j}')
        A(f'v_lshl_add_u32 v32, v0, 2, {j+1}')
        A(f'v_lshl_or_b32 v{20+j}, v32, 20, v{20+j}')
        A(f'v_mul_u32_u24 v{24+j}, 144, v{16+j}')
    A('s_waitcnt lgkmcnt(0)')
    for j in range(4):
        A(f'v_lshl_add_u32 v{24+j}, v{28+j}, 2, v{24+j}')
        A(f'v_cmp_gt_u32 vcc, 32, v{28+j}')
        A('s_mov_b64 exec, vcc')
        A(f'ds_write_b32 v{24+j}, v{20+j}')
        A('s_andn2_b64 exec, s[28:29], vcc')
        A(f's_cbranch_execz K1_NOV{j}')
        A('ds_add_rtn_u32 v33, v3, v2')
        A(f'v_mov_b32 v34, v{20+j}'); A(f'v_mov_b32 v35, v{16+j}')
        A('s_waitcnt lgkmcnt(0)')
        A('v_lshlrev_b32 v33, 3, v33')
        A('buffer_store_dwordx2 v[34:35], v33, s[24:27], 0 offen')
        A('s_nop 1')
        lab(f'K1_NOV{j}')
        A('s_mov_b64 exec, s[28:29]')
    lab('K1_SKIP')
    A('s_mov_b64 exec, -1')
    if ENV('TLBW'):
        STEP=int(ENV('TLBW'))
        A(f's_waitcnt vmcnt({NP})')
        A('s_cmp_lt_u32 s2, 8'); A('s_cbranch_scc0 K1_NOTLB')
        A('v_readfirstlane_b32 s48, v0'); A('s_nop 3'); A('s_cmp_ge_u32 s48, 832'); A('s_cbranch_scc0 K1_NOTLB')
        A('s_load_dwordx2 s[52:53], s[0:1], 8'); A('s_load_dwordx2 s[44:45], s[0:1], 0')
        A('v_subrev_u32 v36, 832, v0'); A(f'v_lshlrev_b32 v36, {STEP}, v36')
        A('s_waitcnt lgkmcnt(0)')
        A(f's_mov_b32 s54, {E*32}'); A('s_mov_b32 s55, 0x20000'); A(f's_mov_b32 s46, {N*128}'); A('s_mov_b32 s47, 0x20000')
        for i in range(-(-(E*32>>STEP)//192)):
            A(f's_mov_b32 s49, {(192*i)<<STEP}'); A('buffer_load_dword v37, v36, s[52:55], s49 offen')
        A('buffer_load_dword v38, v36, s[44:47], 0 offen')
        lab('K1_NOTLB')
        A('s_branch K1_AFTERW')
    A(f's_waitcnt vmcnt({NP})')
    if ENV('TLBW'): lab('K1_AFTERW')
    A('v_lshrrev_b32 v4, 3, v0'); A('v_and_b32 v5, 7, v0')
    A('v_lshrrev_b32 v21, 2, v0'); A('v_and_b32 v23, 3, v0')
    A('v_mul_u32_u24 v6, 144, v21'); A('v_lshl_add_u32 v6, v23, 4, v6')
    A('v_add_u32 v7, s2, v4'); A('v_and_b32 v7, 255, v7'); A('v_lshlrev_b32 v7, 7, v7'); A('v_lshl_add_u32 v7, v4, 15, v7'); A('v_lshl_add_u32 v7, v5, 4, v7')
    A('v_lshlrev_b32 v18, 2, v21'); A('s_mov_b32 s36, 0x400000')
    A('s_waitcnt lgkmcnt(0)'); A('s_barrier')
    CST=os.environ.get('CST','sc1')
    A('ds_read_b128 v[8:11], v6'); A('ds_read_b32 v19, v18 offset:36864'); A('ds_read_b128 v[12:15], v6 offset:64'); A('ds_read_b32 v16, v3')
    A('s_waitcnt lgkmcnt(3)')
    A(f'buffer_store_dwordx4 v[8:11], v7, s[32:35], 0 offen {CST}')
    A('s_waitcnt lgkmcnt(1)')
    A('v_cmp_le_u32 vcc, 16, v19'); A('s_mov_b64 exec, vcc')
    A(f'buffer_store_dwordx4 v[12:15], v7, s[32:35], s36 offen {CST}')
    A('s_mov_b64 exec, -1')
    if int(os.environ.get('STAMPS','0')):
        A('s_waitcnt vmcnt(0)'); A('s_memrealtime s[60:61]'); A('v_lshrrev_b32 v24, 6, v0'); A('v_lshlrev_b32 v24, 2, v24'); A('s_lshl_b32 s62, s2, 6'); A('v_add_u32 v24, s62, v24')
        A('s_mov_b32 s58, 0x8000'); A('s_waitcnt lgkmcnt(0)'); A('v_mov_b32 v23, s60'); A('v_add_u32 v24, 0x1000, v24'); A('buffer_store_dword v23, v24, s[56:59], 0 offen')
    A('v_cmp_eq_u32 vcc, 0, v0'); A('s_and_saveexec_b64 s[20:21], vcc'); A('s_cbranch_execz K1_END')
    A('s_lshl_b32 s10, s2, 2'); A('v_mov_b32 v17, s10')
    A('s_waitcnt lgkmcnt(0)')
    A('buffer_store_dword v16, v17, s[40:43], 0 offen')
    A('s_branch K1_END')
    lab('K1_W')
    A('s_load_dwordx8 s[12:19], s[0:1], 32')
    A('s_load_dwordx2 s[20:21], s[0:1], 64')
    A('v_lshrrev_b32 v1, 6, v0'); A('s_nop 0'); A('v_readfirstlane_b32 s10, v1')
    A(f's_sub_u32 s11, s2, {NCH}'); A('s_lshl_b32 s11, s11, 4'); A('s_nop 2'); A('s_add_u32 s10, s10, s11')
    A('s_cmp_ge_u32 s10, 34'); A('s_cbranch_scc1 K1_END')
    A('s_waitcnt lgkmcnt(0)')
    A('s_mov_b32 s24, s14'); A('s_mov_b32 s25, s15'); A('s_mov_b32 s26, 8192'); A('s_mov_b32 s27, 0x20000')
    A(f's_mov_b32 s28, 0x{NLOG2E:08x}'); A('s_mov_b32 s29, s10')
    A('s_cmp_ge_u32 s10, 8'); A('s_cbranch_scc0 K1_WSEL')
    A('s_mov_b32 s24, s20'); A('s_mov_b32 s25, s21'); A('s_mov_b32 s28, 0x3f800000'); A('s_sub_u32 s29, s10, 8')
    A('s_cmp_ge_u32 s10, 16'); A('s_cbranch_scc0 K1_WSEL')
    A('s_mov_b32 s24, s16'); A('s_mov_b32 s25, s17'); A('s_mov_b32 s26, 2048'); A(f's_mov_b32 s28, 0x{NLOG2E:08x}')
    A('s_sub_u32 s29, s10, 16'); A('s_lshl_b32 s29, s29, 2')
    A('s_cmp_ge_u32 s10, 18'); A('s_cbranch_scc0 K1_WSEL')
    A('s_mov_b32 s24, s12'); A('s_mov_b32 s25, s13'); A('s_mov_b32 s26, 8192'); A('s_mov_b32 s28, 0x3f800000'); A('s_sub_u32 s29, s10, 18')
    A('s_cmp_ge_u32 s10, 26'); A('s_cbranch_scc0 K1_WSEL')
    A('s_mov_b32 s24, s18'); A('s_mov_b32 s25, s19'); A('s_sub_u32 s29, s10, 26')
    lab('K1_WSEL')
    A('s_lshr_b32 s30, s29, 2'); A('s_and_b32 s31, s29, 3')
    A('s_lshl_b32 s30, s30, 6'); A('s_lshl_b32 s31, s31, 11'); A('s_add_u32 s30, s30, s31')
    A('v_and_b32 v2, 63, v0'); A('v_and_b32 v3, 31, v0'); A('v_lshrrev_b32 v4, 5, v2')
    A('v_lshlrev_b32 v4, 10, v4'); A('v_lshl_add_u32 v4, v3, 1, v4'); A('v_add_u32 v4, s30, v4')
    for t in range(8): A(f'buffer_load_ushort v{8+t}, v4, s[24:27], 0 offen offset:{128*t}')
    A(f's_add_u32 s32, s8, {WS_WPREP}'); A('s_addc_u32 s33, s9, 0'); A('s_mov_b32 s34, 34816'); A('s_mov_b32 s35, 0x20000')
    A('s_lshl_b32 s36, s10, 10'); A('v_lshlrev_b32 v5, 4, v2')
    A('s_waitcnt vmcnt(0)')
    for t in range(8):
        A(f'v_lshlrev_b32 v{8+t}, 16, v{8+t}'); A(f'v_mul_f32 v{8+t}, s28, v{8+t}')
    for t in range(4): A(f'v_cvt_pk_bf16_f32 v{16+t}, v{8+2*t}, v{9+2*t}')
    A('buffer_store_dwordx4 v[16:19], v5, s[32:35], s36 offen')
    lab('K1_END')
    if ENV('DBG'):
        A('s_cmp_eq_u32 s2, 7'); A('s_cbranch_scc0 K1_END2')
        A('s_load_dwordx2 s[52:53], s[0:1], 80'); A('s_memrealtime s[54:55]'); A('s_waitcnt lgkmcnt(0)')
        A('s_mov_b64 exec, 1'); A('s_mov_b32 s56, s54'); A('s_mov_b32 s54, 256'); A('s_mov_b32 s55, 0x20000')
        A('v_mov_b32 v20, s56'); A('v_mov_b32 v21, s50'); A('v_mov_b32 v22, 0')
        A('buffer_store_dword v21, v22, s[52:55], 0 offen'); A('buffer_store_dword v20, v22, s[52:55], 0 offen offset:4')
        lab('K1_END2')
        lab('K1_END3')
    A('s_endpgm')

XST=0; REC=65536; RECSZ=1408; XS=REC+50*RECSZ; ES=XS+8192; GRP=ES+16384; CNT=GRP+1024; NBT=CNT+256; LDS_END=NBT+256
OWNX=32768; WSTG=40960
O_DEN=256; O_NUM=768; O_U=1280
CAPG=512
DUMMY=49*22
EPAD=0x700FFFFF; EFLAG=0x40000000
cXE=2; cXO=3; aXS=4; aES=5; cKG=6; aGRP=7; cRA=8; cRB=9; aAX=10
WB=16; WV=48; WC=80; XB=88; AZ0=92; AZ1=96; ONEB=100; ONEA=[104,108]; AX=112; AE=[128,132]; G0=136; G1=152; H0=168; H1=184
XI=200; XV=202; EI=206; EV=207; GR=[208,209]; RA0=210; RA1=211; RB0=212; RB1=213; SD=214; SN=215; PD=216; PN=218
vONE=220; kXS=221; kES=222; kGRP=223; kAX=224; vL16=228; T0=230; NGB=236; cXM=252
NVGPR=256
XG_=64
CO=198; EN=G0; RK=G1; EB=H0; AD=H0+4; EW=AX
sB=3; X_=4; EA_=8; CE_=12; WP_=16; OU_=20; MI_=24; sWS=28; sWAVE=30; sNT=31; sTI=32; sX0=33; sX1=34; sMODE=36; sFIRST=37; sOVF=38; sU=39
MK=40
sCNT=72; sXS=73; sES=74; sT0=75; sT1=76; sT2=77; sOC=78; sOP=79; sON=80; sPB=81; sBH=82; sBL=35; s128=83
STAMPS=int(os.environ.get('STAMPS','0'))
STR=8
SSET=os.environ.get('SSET','main')
SMAP={'main':{'start':0,'bar1':1,'hist':2,'prefix':3,'bar3':4,'ng':5,'loop':6,'bar5':7,'end':8},
      'pro':{'start':0,'issued':1,'consts':2,'vmw':3,'bar1':4,'hist':5,'bar3':6,'ng':7,'entd':8},
      'pro2':{'bar3':0,'dma1':1,'wread':2,'ngm':3,'ng':4,'entw':5,'entd':6,'loop':7,'end':8}}[SSET]
def stamp(name):
    if STAMPS and name in SMAP:
        i=SMAP[name]
        A('s_memtime s[98:99]' if STAMPS==1 else 's_memrealtime s[98:99]'); A('s_waitcnt lgkmcnt(0)'); A(f's_mov_b32 s{86+i}, s98')
def stamp_store():
    if STAMPS and ENV('DBG'):
        A('s_memrealtime s[98:99]'); A('s_waitcnt lgkmcnt(0)'); A('s_mov_b32 s97, s98')
        A('s_cmp_eq_u32 s2, 7'); A('s_cbranch_scc0 K2_DBGE'); A(f's_cmp_eq_u32 s{sWAVE}, 0'); A('s_cbranch_scc0 K2_DBGE')
        A('s_load_dwordx2 s[24:25], s[0:1], 80'); A('s_waitcnt lgkmcnt(0)'); A('s_mov_b64 exec, 1'); A('v_mov_b32 v14, 0'); A('s_mov_b32 s26, 256'); A('s_mov_b32 s27, 0x20000')
        for i in range(12):
            A(f'v_mov_b32 v1, s{86+i}'); A(f'buffer_store_dword v1, v14, s[24:27], 0 offen offset:{8+4*i}')
        lab('K2_DBGE')
    elif STAMPS:
        A('s_memrealtime s[98:99]'); A('s_waitcnt lgkmcnt(0)'); A('s_mov_b32 s97, s98')
        A(f's_add_u32 s24, s{sWS}, 0x2000000'); A(f's_addc_u32 s25, s{sWS+1}, 0'); A('s_mov_b32 s26, 0x100000'); A('s_mov_b32 s27, 0x20000')
        A(f's_lshl_b32 s75, s2, 3'); A(f's_add_u32 s75, s75, s{sWAVE}'); A('s_lshl_b32 s75, s75, 6')
        for i in range(12):
            A(f'v_mov_b32 v1, s{86+i}'); A(f'v_mov_b32 v14, {4*i}'); A('buffer_store_dword v1, v14, s[24:27], s75 offen')
def x_dma(sbase):
    o=[f's_mov_b32 m0, s{sbase}']
    for m in range(4):
        o.append(f'v_mad_u32_u16 v{XV+m}, v{XI+(m>>1)}, s{s128}, v{cXM+m} op_sel:[{m&1},0,0,0]')
        o.append(f'buffer_load_dwordx4 v{XV+m}, s[{XG_}:{XG_+3}], 0 offen offset:{1024*m} lds')
    return o
ENT='' if ENV('NO_NT') else ' nt'
def e_issue(p):
    return [f'v_mad_u32_u24 v{EV}, v{EI}, 32, v{cKG}', f'buffer_load_dwordx4 {q(AE[p])}, v{EV}, s[{EA_}:{EA_+3}], 0 offen{ENT}']
def e_flag(p): return [f'v_and_b32 v{ONEA[p]}, 0xff000000, v{EI}']
def summ(G,H,b,rb,ct):
    if ENV('PK'):
        P=lambda x: f'v[{x}:{x+1}]'
        o=[f'v_pk_mul_f32 {P(PN)}, {P(G+b)}, {P(H+b)}', f'v_pk_add_f32 {P(PD)}, {P(G+b)}, {P(G+b+2)}']
        for r in (2,4,6):
            o.append(f'v_pk_fma_f32 {P(PN)}, {P(G+b+r)}, {P(H+b+r)}, {P(PN)}')
            if r>=4: o.append(f'v_pk_add_f32 {P(PD)}, {P(PD)}, {P(G+b+r)}')
        o.append(f'v_add_f32 v{SD}, v{PD}, v{PD+1}'); o.append(f'v_add_f32 v{SN}, v{PN}, v{PN+1}')
    else:
        o=[f'v_mul_f32 v{SN}, v{G+b}, v{H+b}', f'v_add_f32 v{SD}, v{G+b}, v{G+b+1}']
        for r in range(1,8):
            o.append(f'v_fmac_f32 v{SN}, v{G+b+r}, v{H+b+r}')
            if r>=2: o.append(f'v_add_f32 v{SD}, v{SD}, v{G+b+r}')
    o.append(f'v_cvt_f64_f32 v[{PD}:{PD+1}], v{SD}'); o.append(f'v_cvt_f64_f32 v[{PN}:{PN+1}], v{SN}')
    if not ENV('NO_DSADD'):
        o.append(f'ds_add_f64 v{rb}, v[{PD}:{PD+1}] offset:{ct*256}'); o.append(f'ds_add_f64 v{rb}, v[{PN}:{PN+1}] offset:{512+ct*256}')
    return o
def inter(v, m, every):
    o=[]; m=list(m)
    for i,x in enumerate(v):
        if m and i%every==0: o+=m.pop(0)
        o.append(x)
    for g in m: o+=g
    return o
def gchain(G,ct,p):
    return [[mf(G,AX,WB+16*ct,'0')],[mf(G,AX+4,WB+16*ct+4,G)],[mf(G,AX+8,WB+16*ct+8,G)],[mf(G,AX+12,WB+16*ct+12,G)],
            [mf(G,AE[p],WC+4*ct,G)],[mf(G,AZ1 if ct else AZ0,XB,G)]]
def xb_reads(): return [f'ds_read2_b32 v[{XB}:{XB+1}], v{RA0} offset0:0 offset1:32', f'ds_read2_b32 v[{XB+2}:{XB+3}], v{RA1} offset0:0 offset1:32']
def ra_mads(g): return [f'v_mad_u32_u16 v{RA0}, v{g}, 64, v{cRA} op_sel:[0,0,0,0]', f'v_mad_u32_u16 v{RA1}, v{g}, 64, v{cRA} op_sel:[1,0,0,0]']
def body(p):
    o=[]
    ex=lambda G:[f'v_exp_f32 v{G+r}, v{G+r}' for r in range(16)]
    rc=lambda G:[f'v_rcp_f32 v{G+r}, v{G+r}' for r in range(16)]
    XN=ENV('XNEAR')
    xd=x_dma((sX1 if p==0 else sX0) if XN else (sX0 if p==0 else sX1)) if not ENV('NO_XDMA') else ['s_nop 0']
    grp=[[mf(H0,AX+4*s,WV+4*s,'0' if s==0 else H0)]+(xd[:3] if s==0 else xd[1+2*s:3+2*s]) for s in range(4)]
    o+=inter(ex(G0), grp, 4)
    sb=summ(G1,H1,8,RB1,1)
    o+=sb[:2]+[mf(G0,ONEA[p],ONEB,G0)]+sb[2:]
    o+=[f'v_mad_u32_u16 v{RB0}, v{GR[p]}, 64, v{cRB} op_sel:[0,0,0,0]', f'v_mad_u32_u16 v{RB1}, v{GR[p]}, 64, v{cRB} op_sel:[1,0,0,0]']
    o+=inter(rc(G0), gchain(G1,1,p), 3)
    o+=summ(G0,H0,0,RB0,0)
    o+=['s_waitcnt vmcnt(0)' if XN else 's_waitcnt vmcnt(5)',
        f'ds_read2_b32 v[{XI}:{XI+1}], v{aXS} offset0:{16*STR*p} offset1:{16*STR*p+4}',
        f'ds_read_b32 v{EI}, v{aES} offset:{128*STR*p}', f'ds_read_b32 v{GR[p^1]}, v{aGRP} offset:{8*STR*p}']
    o+=inter(ex(G1), [[mf(H1,AX+4*s,WV+16+4*s,'0' if s==0 else H1), f'ds_read_b128 {q(AX+4*s)}, v{aAX+s} offset:{32768*(p^1)}'] for s in range(4)], 4)
    sb=summ(G0,H0,8,RB1,0)
    o+=sb[:2]+[mf(G1,ONEA[p],ONEB,G1)]
    o+=['s_waitcnt lgkmcnt(4)']+ra_mads(GR[p^1])
    o+=(e_issue(p) if not ENV('NO_EDMA') else [])+xb_reads()+e_flag(p)
    o+=sb[2:]
    o+=['s_waitcnt lgkmcnt(4)' if XN else 's_waitcnt vmcnt(5) lgkmcnt(4)']
    gc=gchain(G0,0,p^1)
    gc[5]=['s_waitcnt lgkmcnt(2)']+gc[5]
    o+=inter(rc(G1), gc, 3)
    o+=summ(G1,H1,0,RB0,1)
    if p==1:
        o+=[f'v_add_u32 v{aXS}, {128*STR}, v{aXS}', f'v_add_u32 v{aES}, {256*STR}, v{aES}', f'v_add_u32 v{aGRP}, {16*STR}, v{aGRP}']
    if ENV('NO_XMFMA'):
        o=[i for i in o if not (i.startswith('v_mfma') and any(f', {q(AX+4*s)}, ' in i for s in range(4)))]
    if ENV('NO_HMFMA'): o=[i for i in o if not (i.startswith('v_mfma') and (i.startswith(f'v_mfma_f32_32x32x16_bf16 {q(H0,16)}') or i.startswith(f'v_mfma_f32_32x32x16_bf16 {q(H1,16)}')))]
    if ENV('NO_SUMS'): o=[i for i in o if not (i.startswith('v_fmac') or (i.startswith('v_add_f32')) or i.startswith('v_mul_f32'))]
    if ENV('NO_SMALLM'): o=[i for i in o if not (i.startswith('v_mfma') and not any(f', {q(AX+4*s)}, ' in i for s in range(4)))]
    if ENV('NO_MFMA'): o=[i for i in o if not i.startswith('v_mfma')]
    if ENV('NO_TRANS'): o=[i for i in o if not (i.startswith('v_exp') or i.startswith('v_rcp'))]
    return o

def cell_off_g(dst, creg):
    A(f'v_add_u32 v{dst}, s{sBH}, v{creg}'); A(f'v_and_b32 v{dst}, 255, v{dst}'); A(f'v_lshlrev_b32 v{dst}, 7, v{dst}'); A(f'v_lshl_add_u32 v{dst}, v5, 4, v{dst}'); A(f'v_add_u32 v{dst}, s{sBL}, v{dst}')
    A(f'v_cmp_gt_u32 vcc, {NCH}, v{creg}'); A('v_mov_b32 v14, 0x7fffffff'); A('s_nop 0'); A(f'v_cndmask_b32 v{dst}, v14, v{dst}, vcc')
def k2():
    lab('standalone__edge_featured_mpnn_gatedgcn__graph_kernel')
    A('s_cmp_ge_u32 s2, 256'); A('s_cbranch_scc1 K2_END')
    A(f's_load_dwordx2 s[{sWS}:{sWS+1}], s[0:1], 88')
    A('s_load_dwordx4 s[4:7], s[0:1], 0')
    A('s_load_dwordx2 s[20:21], s[0:1], 72')
    A(f's_and_b32 s{sB}, s2, 7'); A(f's_lshl_b32 s{sB}, s{sB}, 5'); A(f's_lshr_b32 s{sT0}, s2, 3'); A(f's_or_b32 s{sB}, s{sB}, s{sT0}')
    A('v_lshrrev_b32 v1, 6, v0'); A('v_and_b32 v15, 63, v0')
    A(f'v_readfirstlane_b32 s{sWAVE}, v1')
    A(f'v_lshlrev_b32 v{vL16}, 4, v15')
    A(f's_lshr_b32 s{sBH}, s{sB}, 1'); A(f's_and_b32 s{sBL}, s{sB}, 1'); A(f's_lshl_b32 s{sBL}, s{sBL}, 6')
    A('v_lshrrev_b32 v4, 2, v0'); A('v_and_b32 v5, 3, v0')
    cell_off_g(CO, 4); A('v_add_u32 v4, 128, v4'); cell_off_g(CO+1, 4)
    A(f's_lshl_b32 s{sT0}, s{sBH}, 15')
    A('s_waitcnt lgkmcnt(0)')
    if STAMPS:
        A('s_memrealtime s[98:99]'); A('s_waitcnt lgkmcnt(0)'); A('s_mov_b32 s96, s98')
    stamp('start')
    A(f's_add_u32 s12, s{sWS}, s{sT0}'); A(f's_addc_u32 s13, s{sWS+1}, 0'); A(f's_mov_b32 s14, {0x400000+32768}'); A('s_mov_b32 s15, 0x20000')
    for u in range(2): A(f'buffer_load_dwordx4 {q(EN+4*u)}, v{CO+u}, s[12:15], 0 offen')
    A(f's_mov_b32 s{sPB}, 0x400000')
    def init_a():
        A('v_lshlrev_b32 v1, 4, v0')
        for r in range(4): A(f'v_mov_b32 v{AX+r}, -1')
        A(f'v_add_u32 v14, {XS}, v1'); A(f'ds_write_b128 v14, {q(AX)}')
        for r in range(4): A(f'v_mov_b32 v{AX+4+r}, 0x{EPAD:08x}')
        A(f'ds_write_b128 v14, {q(AX+4)} offset:8192'); A(f'ds_write_b128 v14, {q(AX+4)} offset:16384')
        for r in range(4): A(f'v_mov_b32 v{AX+8+r}, 0x{(DUMMY<<16)|DUMMY:08x}')
        for r in range(4): A(f'v_mov_b32 v{AX+12+r}, 0')
        A('v_cmp_gt_u32 vcc, 64, v0'); A('s_nop 1')
        for r in range(4): A(f'v_cndmask_b32 v{AX+8+r}, v{AX+12+r}, v{AX+8+r}, vcc')
        A('v_cmp_gt_u32 vcc, 96, v0'); A(f's_and_saveexec_b64 s[{MK}:{MK+1}], vcc'); A(f'ds_write_b128 v14, {q(AX+8)} offset:{GRP-XS}'); A(f's_mov_b64 exec, s[{MK}:{MK+1}]')
    init_a()
    A('s_mov_b32 s8, s6'); A('s_mov_b32 s9, s7'); A(f's_mov_b32 s10, {E*32}'); A('s_mov_b32 s11, 0x20000')
    A(f's_mov_b32 s6, {N*128}'); A('s_mov_b32 s7, 0x20000')
    A(f's_mov_b32 s22, {N*128}'); A('s_mov_b32 s23, 0x20000')
    A(f's_add_u32 s16, s{sWS}, {WS_WPREP}'); A(f's_addc_u32 s17, s{sWS+1}, 0'); A('s_mov_b32 s18, 34816'); A('s_mov_b32 s19, 0x20000')
    A(f's_add_u32 s24, s{sWS}, {WS_OVFCNT}'); A(f's_addc_u32 s25, s{sWS+1}, 0'); A('s_mov_b32 s26, 1000'); A('s_mov_b32 s27, 0x20000')
    A(f'v_lshrrev_b32 v14, 3, v15'); A(f's_lshl_b32 s{sT0}, s{sWAVE}, 3'); A(f'v_add_u32 v14, s{sT0}, v14')
    A(f'v_lshlrev_b32 v14, 8, v14'); A(f'v_add_u32 v14, s{sB}, v14'); A('v_lshlrev_b32 v14, 7, v14')
    A('v_lshrrev_b32 v4, 4, v15'); A('v_and_b32 v5, 7, v15'); A('v_xor_b32 v4, v4, v5'); A(f'v_lshlrev_b32 v{cXE}, 4, v4'); A(f'v_xor_b32 v{cXO}, 64, v{cXE}')
    A(f's_and_b32 s{sT0}, s{sWAVE}, 1'); A(f's_cmp_eq_u32 s{sT0}, 0'); A('s_cselect_b64 vcc, -1, 0')
    A(f'v_cndmask_b32 v4, v{cXO}, v{cXE}, vcc'); A('v_add_u32 v4, v14, v4')
    A(f's_lshl_b32 s{sT0}, s{sWAVE}, 10'); A(f's_add_u32 m0, s{sT0}, {OWNX}'); A('s_nop 0')
    A(f'buffer_load_dwordx4 v4, s[{X_}:{X_+3}], 0 offen lds')
    for i in range(3):
        A(f's_add_u32 s{sT1}, s{sT0}, {8192*i}'); A(f's_add_u32 m0, s{sT1}, {WSTG}'); A('s_nop 0')
        A(f'buffer_load_dwordx4 v{vL16}, s[16:19], s{sT1} offen lds')
    stamp('issued')
    A('v_lshrrev_b32 v14, 6, v0'); A(f'v_mul_u32_u24 v14, {RECSZ}, v14'); A(f'v_add_u32 v14, v14, v{vL16}'); A(f'v_add_u32 v14, {REC+O_DEN}, v14')
    for r in range(4): A(f'v_mov_b32 v{AX+r}, 0')
    for i in range(5): A(f'ds_write_b128 v14, {q(AX)} offset:{8*RECSZ*i}')
    A(f'v_add_u32 v14, {8*RECSZ*5}, v14'); A(f'ds_write_b128 v14, {q(AX)}')
    A('v_cmp_gt_u32 vcc, 128, v0'); A(f's_and_saveexec_b64 s[{MK}:{MK+1}], vcc'); A(f'ds_write_b128 v14, {q(AX)} offset:{8*RECSZ}'); A(f's_mov_b64 exec, s[{MK}:{MK+1}]')
    A(f'v_mov_b32 v{vONE}, 1')
    A(f's_mov_b32 s{sCNT}, {CNT}'); A(f's_mov_b32 s{sXS}, {XS}'); A(f's_mov_b32 s{sES}, {ES}'); A(f's_mov_b32 s{s128}, 128')
    A(f's_mov_b32 s{sMODE}, 0'); A(f's_mov_b32 s{sFIRST}, 1'); A(f's_mov_b32 s{sU}, 0')
    A('v_lshrrev_b32 v4, 2, v0'); A('v_mul_u32_u24 v4, 3200, v4')
    for u in range(4): A(f'v_add_u32 v{EB+u}, 0x{(128*(u&1)*3200-1+EFLAG)&0xffffffff:08x}, v4')
    for k in range(8,16): A(f'v_mov_b32 v{EN+k}, 0')
    def lane_consts():
        C('lane constants (v1 = kg)')
        A('v_lshrrev_b32 v1, 5, v15'); A(f'v_lshlrev_b32 v{cKG}, 4, v1')
        A('v_bfe_u32 v5, v15, 3, 2'); A('v_lshlrev_b32 v4, 5, v1'); A('v_lshl_add_u32 v4, v5, 2, v4'); A(f'v_add_u32 v{kXS}, {XS}, v4')
        A('v_bfe_u32 v4, v15, 2, 1'); A('v_lshlrev_b32 v4, 4, v4'); A('v_bfe_u32 v5, v15, 4, 1'); A('v_lshl_add_u32 v4, v5, 3, v4')
        A('v_and_b32 v5, 3, v15'); A('v_lshl_add_u32 v4, v5, 1, v4'); A('v_bfe_u32 v5, v15, 3, 1'); A('v_add_u32 v4, v4, v5')
        A('v_lshlrev_b32 v4, 2, v4'); A(f'v_add_u32 v{kES}, {ES}, v4')
        A('v_lshlrev_b32 v4, 2, v1'); A(f'v_add_u32 v{kGRP}, {GRP}, v4')
        A('v_and_b32 v4, 31, v15'); A('v_lshlrev_b32 v5, 2, v4'); A(f'v_add_u32 v{cRA}, {REC}, v5'); A('v_lshlrev_b32 v5, 3, v4'); A(f'v_add_u32 v{cRB}, {REC+O_DEN}, v5')
        A('v_bfe_u32 v5, v15, 1, 3'); A('v_xor_b32 v5, v5, v1'); A('v_lshlrev_b32 v5, 4, v5'); A('v_lshl_add_u32 v4, v4, 7, v5')
        for s in range(4): A(f'v_xor_b32 v{kAX+s}, {32*s}, v4')
        A(f's_lshl_b32 s{sX0}, s{sWAVE}, 12'); A(f's_add_u32 s{sX1}, s{sX0}, 32768')
        for m in range(4): A(f'v_add_u32 v{cXM+m}, {4096-1024*m}, v{cXO if m&1 else cXE}')
        A('v_bfe_u32 v4, v15, 2, 1'); A('v_cmp_eq_u32 vcc, v4, v1'); A('v_mov_b32 v5, 0x3f803f80'); A('s_nop 0'); A('v_cndmask_b32 v5, 0, v5, vcc')
        A('v_bfe_u32 v4, v15, 4, 1'); A('v_cmp_eq_u32 vcc, 0, v4'); A('s_nop 1'); A(f'v_cndmask_b32 v{AZ0}, 0, v5, vcc')
        A(f'v_sub_u32 v{AZ0+2}, v5, v{AZ0}'); A(f'v_mov_b32 v{AZ0+1}, 0'); A(f'v_mov_b32 v{AZ0+3}, 0')
        A(f'v_mov_b32 v{AZ1}, 0'); A(f'v_mov_b32 v{AZ1+1}, v{AZ0}'); A(f'v_mov_b32 v{AZ1+2}, 0'); A(f'v_mov_b32 v{AZ1+3}, v{AZ0+2}')
        A('v_cmp_eq_u32 vcc, 0, v1'); A('v_mov_b32 v5, 0x3f000000'); A('s_nop 0'); A(f'v_cndmask_b32 v{ONEB}, 0, v5, vcc')
        for r in range(1,4): A(f'v_mov_b32 v{ONEB+r}, 0'); A(f'v_mov_b32 v{ONEA[0]+r}, 0'); A(f'v_mov_b32 v{ONEA[1]+r}, 0')
    lane_consts()
    stamp('consts')
    A('s_waitcnt vmcnt(4)')
    for u in range(2):
        A(f'v_mov_b32_dpp v14, v{EN+4*u+3} quad_perm:[3,3,3,3] row_mask:0xf bank_mask:0xf'); A('s_nop 0')
        A('v_cmp_ne_u32 vcc, 0, v14'); A('s_mov_b64 exec, vcc')
        A(f'buffer_load_dwordx4 {q(EN+8+4*u)}, v{CO+u}, s[12:15], s{sPB} offen'); A('s_mov_b64 exec, -1')
    A('s_branch K2_WD')
    lab('K2_ROUND')
    init_a()
    A('s_waitcnt vmcnt(0)')
    lab('K2_WD')
    stamp('vmw')
    if ENV('HALFCELL'):
        A(f's_cmp_eq_u32 s{sMODE}, 2'); A('s_cbranch_scc1 K2_NOMASK')
        A('v_and_b32 v14, 4, v15'); A('v_cmp_eq_u32 s[84:85], 0, v14')
        for u in range(4):
            A(f'v_mov_b32_dpp v1, v{EN+4*u+3} quad_perm:[3,3,3,3] row_mask:0xf bank_mask:0xf'); A('s_nop 1')
            A('v_mov_b32_dpp v14, v1 row_shr:4 row_mask:0xf bank_mask:0xf bound_ctrl:0'); A('s_nop 0')
            A('v_cmp_ne_u32 vcc, 0, v14'); A('s_or_b64 vcc, vcc, s[84:85]')
            for k in range(4): A(f'v_cndmask_b32 v{EN+4*u+k}, 0, v{EN+4*u+k}, vcc')
        lab('K2_NOMASK')
    def pre(ks):
        for k in ks: A(f'v_cmp_ne_u32 s[{MK+2*k}:{MK+2*k+1}], 0, v{EN+k}')
        for k in ks: A(f'v_and_b32 v{AD+k}, 63, v{EN+k}'); A(f'v_lshl_add_u32 v{AD+k}, v{AD+k}, 2, s{sCNT}')
    def atom(ks):
        for k in ks: A(f's_mov_b64 exec, s[{MK+2*k}:{MK+2*k+1}]'); A(f'ds_add_rtn_u32 v{RK+k}, v{AD+k}, v{vONE}')
        A('s_mov_b64 exec, -1')
    pre(range(8))
    A('s_waitcnt lgkmcnt(0)'); A('s_barrier')
    stamp('bar1')
    atom(range(8))
    A('s_waitcnt vmcnt(0)')
    pre(range(8,16)); atom(range(8,16))
    for k in range(16):
        A(f'v_lshrrev_b32 v{EW+k}, 20, v{EN+k}'); A(f'v_bfe_u32 v{EN+k}, v{EN+k}, 6, 14'); A(f'v_add_u32 v{EW+k}, v{EW+k}, v{EB+k//4}')
    A('s_waitcnt lgkmcnt(0)'); A('s_barrier')
    stamp('hist')
    A(f's_cmp_eq_u32 s{sFIRST}, 1'); A('s_cbranch_scc0 K2_NF1')
    if ENV('XPF2'):
        A(f's_lshr_b32 s{sT0}, s2, 3'); A(f's_mul_i32 s{sT0}, s{sT0}, 391'); A(f'v_add_u32 v14, s{sT0}, v0'); A('v_lshlrev_b32 v14, 7, v14')
        A('v_cmp_gt_u32 vcc, 391, v0'); A(f'v_mov_b32 v{T0+5}, 0x7fffffff'); A('s_nop 0'); A(f'v_cndmask_b32 v14, v{T0+5}, v14, vcc')
        A(f'buffer_load_dword v{T0+5}, v14, s[{X_}:{X_+3}], 0 offen')
    A(f'buffer_load_dwordx4 {q(T0)}, v{vL16}, s[24:27], 0 offen')
    A(f's_lshr_b32 s{sT0}, s{sWAVE}, 1'); A(f's_lshl_b32 s{sT0}, s{sT0}, 12'); A(f's_add_u32 s{sT0}, s{sT0}, {18*1024}')
    for s in range(4): A(f'buffer_load_dwordx4 {q(NGB+4*s)}, v{vL16}, s[16:19], s{sT0} offen offset:{1024*s}')
    lab('K2_NF1')
    A(f'v_lshl_add_u32 v4, v15, 2, s{sCNT}'); A('ds_read_b32 v5, v4'); A('s_waitcnt lgkmcnt(0)')
    A('v_add_u32 v5, 7, v5'); A('v_lshrrev_b32 v5, 3, v5'); A('v_mov_b32 v1, v5'); A('s_nop 1')
    for sh in (1,2,4,8):
        A(f'v_add_u32_dpp v1, v1, v1 row_shr:{sh} row_mask:0xf bank_mask:0xf bound_ctrl:0'); A('s_nop 1')
    A('v_add_u32_dpp v1, v1, v1 row_bcast:15 row_mask:0xa bank_mask:0xf'); A('s_nop 1')
    A('v_add_u32_dpp v1, v1, v1 row_bcast:31 row_mask:0xc bank_mask:0xf'); A('s_nop 1')
    A(f'v_readlane_b32 s{sNT}, v1, 63')
    A('v_sub_u32 v1, v1, v5')
    A(f'v_lshlrev_b32 v{T0+4}, 3, v1')
    if not ENV('BPERM'): A(f'ds_write_b32 v4, v{T0+4} offset:256')
    A(f's_cmp_gt_u32 s{sNT}, {CAPG}'); A('s_cbranch_scc1 K2_SPLIT')
    if ENV('BPERM'):
        for k in range(16): A(f'ds_bpermute_b32 v{AD+k}, v{AD+k}, v{T0+4}')
    else:
        for k in range(16): A(f'ds_read_b32 v{AD+k}, v{AD+k} offset:256')
    A(f'v_mul_u32_u24 v{XV}, 22, v15'); A(f'v_mov_b32 v{XV+1}, s{sWAVE}')
    lab('K2_GL')
    A(f'v_cmp_lt_u32 vcc, v{XV+1}, v5'); A('s_and_saveexec_b64 s[84:85], vcc'); A('s_cbranch_execz K2_GLD')
    A(f'v_add_u32 v{XV+2}, v1, v{XV+1}'); A(f'v_lshlrev_b32 v{XV+2}, 1, v{XV+2}'); A(f'v_add_u32 v{XV+2}, {GRP}, v{XV+2}')
    A(f'ds_write_b16 v{XV+2}, v{XV}'); A(f'v_add_u32 v{XV+1}, 8, v{XV+1}')
    A('s_mov_b64 exec, s[84:85]'); A('s_branch K2_GL')
    lab('K2_GLD'); A('s_mov_b64 exec, -1')
    A('s_waitcnt lgkmcnt(0)')
    stamp('prefix')
    for k in range(16):
        A(f'v_add_u32 v{RK+k}, v{RK+k}, v{AD+k}')
        A(f'v_lshl_add_u32 v{AD+k}, v{RK+k}, 1, s{sXS}')
        A(f'v_lshl_add_u32 v{RK+k}, v{RK+k}, 2, s{sES}')
    for k in range(16):
        A(f's_mov_b64 exec, s[{MK+2*k}:{MK+2*k+1}]')
        A(f'ds_write_b16 v{AD+k}, v{EN+k}'); A(f'ds_write_b32 v{RK+k}, v{EW+k}')
    A('s_mov_b64 exec, -1')
    A(f's_add_u32 s{sNT}, s{sNT}, 3'); A(f's_lshr_b32 s{sNT}, s{sNT}, 2')
    A('s_waitcnt vmcnt(0) lgkmcnt(0)'); A('s_barrier')
    stamp('bar3')
    A(f's_sub_u32 s{XG_}, s{X_}, 4096'); A(f's_subb_u32 s{XG_+1}, s{X_+1}, 0'); A(f's_mov_b32 s{XG_+2}, {N*128+4096}'); A(f's_mov_b32 s{XG_+3}, 0x20000')
    A(f's_mov_b32 s{sTI}, s{sWAVE}')
    A(f's_lshl_b32 s{sT0}, s{sWAVE}, 6'); A(f'v_add_u32 v{aXS}, s{sT0}, v{kXS}')
    A(f's_lshl_b32 s{sT0}, s{sWAVE}, 7'); A(f'v_add_u32 v{aES}, s{sT0}, v{kES}')
    A(f's_lshl_b32 s{sT0}, s{sWAVE}, 3'); A(f'v_add_u32 v{aGRP}, s{sT0}, v{kGRP}')
    A(f'ds_read_b32 v{EI}, v{aES}'); A(f'ds_read2_b32 v[{XI}:{XI+1}], v{aXS} offset0:0 offset1:4'); A(f'ds_read_b32 v{GR[0]}, v{aGRP}')
    for s in range(4): A(f'v_add_u32 v{aAX+s}, s{sX0}, v{kAX+s}')
    A('s_waitcnt lgkmcnt(0)')
    for i in x_dma(sX0)+e_issue(0)+e_flag(0): A(i)
    stamp('dma1')
    A(f's_cmp_eq_u32 s{sFIRST}, 0'); A('s_cbranch_scc1 K2_NG_DONE')
    A(f'v_add_u32 v1, {WSTG}, v{vL16}')
    A(f's_and_b32 s{sT0}, s{sWAVE}, 1'); A(f's_lshl_b32 s{sT0}, s{sT0}, 12'); A(f's_add_u32 s{sT0}, s{sT0}, {OWNX}')
    for s in range(4): A(f'v_add_u32 v{XV+s}, s{sT0}, v{kAX+s}')
    for s in range(4): A(f'ds_read_b128 {q(AX+4*s)}, v{XV+s}')
    for i in range(18): A(f'ds_read_b128 {q(WB+4*i)}, v1 offset:{1024*i}')
    A(f'v_or_b32 v{T0}, v{T0}, v{T0+1}'); A(f'v_or_b32 v{T0+2}, v{T0+2}, v{T0+3}'); A(f'v_or_b32 v{T0}, v{T0}, v{T0+2}')
    A(f'v_cmp_ne_u32 vcc, 0, v{T0}'); A('s_nop 3'); A('s_cmp_lg_u64 vcc, 0'); A(f's_cselect_b32 s{sOVF}, 1, 0')
    A('s_waitcnt lgkmcnt(0)')
    stamp('wread')
    for s in range(4): A(mf(G0, AX+4*s, NGB+4*s, '0' if s==0 else G0))
    A(f's_and_b32 s{sT0}, s{sWAVE}, 1'); A(f's_lshl_b32 s{sT0}, s{sT0}, 5'); A(f'v_lshrrev_b32 v1, 5, v15'); A(f'v_lshl_add_u32 v1, v1, 2, s{sT0}')
    A(f'v_mul_u32_u24 v1, {RECSZ}, v1')
    A(f's_bfe_u32 s{sT1}, s{sWAVE}, 0x10001')
    A(f's_cmp_ge_u32 s{sWAVE}, 4'); A('s_cbranch_scc1 K2_NG_U')
    A(f's_lshl_b32 s{sT1}, s{sT1}, 7'); A(f'v_add_u32 v1, v1, v{cRA}'); A(f'v_add_u32 v1, s{sT1}, v1')
    A(f's_mov_b32 s{sT2}, 0x{NLOG2E:08x}'); A('s_nop 7')
    for r in range(16):
        A(f'v_mul_f32 v{G0+r}, s{sT2}, v{G0+r}')
        A(f'v_cvt_pk_bf16_f32 v{SD}, v{G0+r}, v{G0+r}'); A(f'v_lshlrev_b32 v{SD}, 16, v{SD}'); A(f'v_sub_f32 v{SN}, v{G0+r}, v{SD}'); A(f'v_cvt_pk_bf16_f32 v{G0+r}, v{SD}, v{SN}')
    def wr_a(r): A(f'ds_write_b32 v1, v{G0+r} offset:{(8*(r//4)+(r%4))*RECSZ}')
    for r in range(8): wr_a(r)
    A(f's_and_b32 s{sT0}, s{sWAVE}, 1'); A(f's_cmp_eq_u32 s{sT0}, 0'); A('s_cbranch_scc0 K2_NG_A1')
    for r in range(8,16): wr_a(r)
    A('s_branch K2_NG_BAR')
    lab('K2_NG_A1')
    A('s_mov_b32 exec_lo, -1'); A('s_mov_b32 exec_hi, 0'); wr_a(8); wr_a(9); A('s_mov_b64 exec, -1'); A('s_branch K2_NG_BAR')
    lab('K2_NG_U')
    A(f's_lshl_b32 s{sT1}, s{sT1}, 6'); A(f'v_and_b32 v{SD}, 31, v15'); A(f'v_lshl_add_u32 v1, v{SD}, 1, v1'); A(f'v_add_u32 v1, s{sT1}, v1'); A(f'v_add_u32 v1, {REC+O_U}, v1')
    A('s_nop 7')
    for r in range(16): A(f'v_cvt_pk_bf16_f32 v{G0+r}, v{G0+r}, v{G0+r}')
    def wr_u(r): A(f'ds_write_b16 v1, v{G0+r} offset:{(8*(r//4)+(r%4))*RECSZ}')
    for r in range(8): wr_u(r)
    A(f's_and_b32 s{sT0}, s{sWAVE}, 1'); A(f's_cmp_eq_u32 s{sT0}, 0'); A('s_cbranch_scc0 K2_NG_U1')
    for r in range(8,16): wr_u(r)
    A('s_branch K2_NG_BAR')
    lab('K2_NG_U1')
    A('s_mov_b32 exec_lo, -1'); A('s_mov_b32 exec_hi, 0'); wr_u(8); wr_u(9); A('s_mov_b64 exec, -1')
    lab('K2_NG_BAR')
    stamp('ngm')
    A('s_waitcnt lgkmcnt(0)'); A('s_barrier')
    lab('K2_NG_DONE')
    stamp('ng')
    A(f's_mov_b32 s{sFIRST}, 0')
    A(f's_cmp_lt_u32 s{sTI}, s{sNT}'); A('s_cbranch_scc0 K2_LOOP_END')
    A(f'ds_read2_b32 v[{XI}:{XI+1}], v{aXS} offset0:{16*STR} offset1:{16*STR+4}'); A(f'ds_read_b32 v{EI}, v{aES} offset:{128*STR}')
    for i in ra_mads(GR[0]): A(i)
    A(f'v_mad_u32_u16 v{RB1}, v{GR[0]}, 64, v{cRB} op_sel:[1,0,0,0]')
    for i in xb_reads(): A(i)
    for r in range(8,16): A(f'v_mov_b32 v{G1+r}, 0'); A(f'v_mov_b32 v{H1+r}, 0')
    A('s_waitcnt lgkmcnt(2)')
    if ENV('XNEAR'):
        for i in e_issue(1)+e_flag(1): A(i)
        A(f'v_add_u32 v{aXS}, {64*STR}, v{aXS}')
        A('s_waitcnt vmcnt(1)')
    else:
        for i in x_dma(sX1)+e_issue(1)+e_flag(1): A(i)
        A(f'v_add_u32 v{aXS}, {128*STR}, v{aXS}')
        A(f'ds_read2_b32 v[{XI}:{XI+1}], v{aXS} offset0:0 offset1:4')
        A('s_waitcnt vmcnt(5)')
    stamp('entw')
    for s in range(4): A(f'ds_read_b128 {q(AX+4*s)}, v{aAX+s}')
    A(f'v_add_u32 v{aXS}, {64*STR}, v{aXS}'); A(f'v_add_u32 v{aES}, {256*STR}, v{aES}'); A(f'v_add_u32 v{aGRP}, {8*STR}, v{aGRP}')
    A('s_waitcnt lgkmcnt(0)')
    for g in gchain(G0,0,0):
        for i in g: A(i)
    A('s_nop 7'); A('s_nop 2')
    stamp('entd')
    lab('K2_LOOP')
    for i in body(0): A(i)
    A(f's_add_u32 s{sTI}, s{sTI}, {STR}'); A(f's_cmp_lt_u32 s{sTI}, s{sNT}'); A('s_cbranch_scc0 K2_TAIL')
    for i in body(1): A(i)
    A(f's_add_u32 s{sTI}, s{sTI}, {STR}'); A(f's_cmp_lt_u32 s{sTI}, s{sNT}'); A('s_cbranch_scc1 K2_LOOP')
    lab('K2_TAIL')
    for i in summ(G1,H1,8,RB1,1): A(i)
    lab('K2_LOOP_END')
    stamp('loop')
    A('s_waitcnt vmcnt(0)')
    A('v_lshrrev_b32 v1, 3, v0'); A('v_and_b32 v2, 7, v0')
    A(f'v_lshlrev_b32 v3, 8, v1'); A(f'v_add_u32 v3, s{sB}, v3'); A('v_lshlrev_b32 v3, 7, v3'); A('v_lshl_add_u32 v3, v2, 4, v3')
    A(f'buffer_load_dwordx4 {q(NGB)}, v3, s[{X_}:{X_+3}], 0 offen')
    A('s_waitcnt lgkmcnt(0)'); A('s_barrier')
    stamp('bar5')
    A(f's_cmp_eq_u32 s{sMODE}, 1'); A('s_cbranch_scc1 K2_NEXT_SPLIT')
    A(f's_cmp_eq_u32 s{sMODE}, 2'); A('s_cbranch_scc1 K2_NEXT_OVF')
    lab('K2_CHECK_OVF')
    A(f's_cmp_eq_u32 s{sOVF}, 0'); A('s_cbranch_scc1 K2_EPI')
    A(f's_mov_b32 s{sMODE}, 2'); A(f's_mov_b32 s{sOC}, 0'); A(f's_mov_b32 s{sOP}, 0'); A('s_branch K2_OVF_FIND')
    lab('K2_SPLIT')
    A(f's_mov_b32 s{sMODE}, 1'); A(f's_mov_b32 s{sU}, 0')
    A('s_waitcnt lgkmcnt(0)'); A('s_barrier')
    A('s_branch K2_LOADQ')
    lab('K2_NEXT_SPLIT')
    A(f's_add_u32 s{sU}, s{sU}, 1'); A(f's_cmp_ge_u32 s{sU}, 4'); A('s_cbranch_scc1 K2_CHECK_OVF')
    lab('K2_LOADQ')
    A(f's_and_b32 s{sT0}, s{sU}, 1'); A(f's_lshl_b32 s{sT0}, s{sT0}, 7'); A('v_lshrrev_b32 v4, 2, v0'); A(f'v_add_u32 v4, s{sT0}, v4'); A('v_and_b32 v5, 3, v0')
    cell_off_g(CO, 4)
    A('s_waitcnt vmcnt(0)')
    A(f'buffer_load_dwordx4 {q(EN)}, v{CO}, s[12:15], 0 offen')
    for k in range(4,16): A(f'v_mov_b32 v{EN+k}, 0')
    A(f's_cmp_ge_u32 s{sU}, 2'); A('s_cbranch_scc0 K2_LOADQ_A')
    A('s_waitcnt vmcnt(0)')
    A(f'v_mov_b32_dpp v14, v{EN+3} quad_perm:[3,3,3,3] row_mask:0xf bank_mask:0xf'); A('s_nop 0')
    A('v_cmp_ne_u32 vcc, 0, v14')
    for k in range(4): A(f'v_mov_b32 v{EN+k}, 0')
    A('s_mov_b64 exec, vcc'); A('s_cbranch_execz K2_LOADQ_B')
    A(f'buffer_load_dwordx4 {q(EN)}, v{CO}, s[12:15], s{sPB} offen')
    lab('K2_LOADQ_B'); A('s_mov_b64 exec, -1')
    lab('K2_LOADQ_A')
    A('v_mul_u32_u24 v4, 3200, v4'); A(f'v_add_u32 v{EB}, 0x{EFLAG-1:08x}, v4')
    A('s_branch K2_ROUND')
    lab('K2_NEXT_OVF')
    A(f's_add_u32 s{sOP}, s{sOP}, 2048')
    lab('K2_OVF_FIND')
    A(f's_cmp_ge_u32 s{sOC}, {NCH}'); A('s_cbranch_scc1 K2_EPI')
    A(f's_lshl_b32 s{sT0}, s{sOC}, 2'); A(f's_add_u32 s{sT0}, s{sT0}, {WS_OVFCNT}')
    A(f's_load_dword s{sON}, s[{sWS}:{sWS+1}], s{sT0}'); A('s_waitcnt lgkmcnt(0)')
    A(f's_cmp_gt_u32 s{sON}, s{sOP}'); A('s_cbranch_scc1 K2_OVF_LOAD')
    A(f's_add_u32 s{sOC}, s{sOC}, 1'); A(f's_mov_b32 s{sOP}, 0'); A('s_branch K2_OVF_FIND')
    lab('K2_OVF_LOAD')
    A(f's_mul_i32 s{sT0}, s{sOC}, 25600'); A(f's_add_u32 s{sT0}, s{sT0}, {WS_OVFL}')
    A(f's_add_u32 s24, s{sWS}, s{sT0}'); A(f's_addc_u32 s25, s{sWS+1}, 0'); A(f's_lshl_b32 s26, s{sON}, 3'); A('s_mov_b32 s27, 0x20000')
    A(f'v_add_u32 v1, s{sOP}, v0'); A('v_lshlrev_b32 v1, 3, v1')
    A(f'buffer_load_dwordx2 v[{AX}:{AX+1}], v1, s[24:27], 0 offen')
    for j in range(1,4):
        A(f's_mov_b32 s{sT0}, {4096*j}'); A(f'buffer_load_dwordx2 v[{AX+2*j}:{AX+2*j+1}], v1, s[24:27], s{sT0} offen')
    A('s_waitcnt vmcnt(0)')
    for j in range(4):
        A(f'v_cmp_eq_u32 vcc, s{sB}, v{AX+2*j+1}'); A('s_nop 1'); A(f'v_cndmask_b32 v{EN+j}, 0, v{AX+2*j}, vcc')
    for k in range(4,16): A(f'v_mov_b32 v{EN+k}, 0')
    A(f's_mul_i32 s{sT0}, s{sOC}, 3200'); A(f's_add_u32 s{sT0}, s{sT0}, 0x{EFLAG-1:08x}'); A(f'v_mov_b32 v{EB}, s{sT0}')
    A('s_branch K2_ROUND')
    lab('K2_EPI')
    A(f'v_mul_u32_u24 v4, {RECSZ}, v1'); A(f'v_add_u32 v4, {REC}, v4'); A('v_lshl_add_u32 v5, v2, 6, v4'); A('v_lshl_add_u32 v6, v2, 4, v4')
    for i in range(4): A(f'ds_read_b128 {q(48+4*i)}, v5 offset:{O_DEN+16*i}')
    for i in range(4): A(f'ds_read_b128 {q(64+4*i)}, v5 offset:{O_NUM+16*i}')
    A(f'ds_read_b128 v[36:39], v6 offset:{O_U}')
    A('s_mov_b32 s40, 0x358637bd')
    A('s_waitcnt lgkmcnt(0)')
    for i in range(8): A(f'v_cvt_f32_f64 v{20+i}, v[{48+2*i}:{49+2*i}]'); A(f'v_cvt_f32_f64 v{28+i}, v[{64+2*i}:{65+2*i}]')
    for i in range(8): A(f'v_add_f32 v{20+i}, s40, v{20+i}')
    for i in range(8): A(f'v_rcp_f32 v{20+i}, v{20+i}')
    for i in range(4):
        A(f'v_lshlrev_b32 v{40+2*i}, 16, v{36+i}'); A(f'v_and_b32 v{41+2*i}, 0xffff0000, v{36+i}')
    for i in range(8): A(f'v_fmac_f32 v{40+i}, v{28+i}, v{20+i}')
    for i in range(8):
        A(f'v_mul_f32 v{28+i}, 0, v{40+i}'); A(f'v_cmp_lt_f32 vcc, 0, v{40+i}'); A('s_nop 1'); A(f'v_cndmask_b32 v{28+i}, v{28+i}, v{40+i}, vcc')
    A('s_waitcnt vmcnt(0)')
    for i in range(4):
        A(f'v_lshlrev_b32 v{40+2*i}, 16, v{NGB+i}'); A(f'v_and_b32 v{41+2*i}, 0xffff0000, v{NGB+i}')
    for i in range(8): A(f'v_add_f32 v{28+i}, v{28+i}, v{40+i}')
    for i in range(4): A(f'v_cvt_pk_bf16_f32 v{20+i}, v{28+2*i}, v{29+2*i}')
    A(f"buffer_store_dwordx4 v[20:23], v3, s[{OU_}:{OU_+3}], 0 offen {os.environ.get('OST','sc1')}")
    stamp('end')
    stamp_store()
    lab('K2_END')
    A('s_endpgm')

hdr = f'''; GatedGCN edge-featured MPNN: K1 buckets edges by destination, K2 gathers + MFMA + segment-reduces in LDS.
; @launch kernel=gcn_sort_kernel grid=({K1_GRID},1,1) block=(1024,1,1) lds={K1_LDS}
; @launch kernel=standalone__edge_featured_mpnn_gatedgcn__graph_kernel grid=(256,1,1) block=(512,1,1) lds={LDS_END}
.amdgcn_target "amdgcn-amd-amdhsa--gfx950"
.text
'''
def kd(name, nv, ns):
    return f'''.p2align 6
.amdhsa_kernel {name}
  .amdhsa_next_free_vgpr {nv}
  .amdhsa_next_free_sgpr {ns}
  .amdhsa_accum_offset {(nv+3)//4*4}
  .amdhsa_group_segment_fixed_size 0
  .amdhsa_kernarg_size 96
  .amdhsa_user_sgpr_count 2
  .amdhsa_user_sgpr_kernarg_segment_ptr 1
  .amdhsa_system_sgpr_workgroup_id_x 1
.end_amdhsa_kernel
'''
out=[hdr]
out.append('.globl gcn_sort_kernel\n.p2align 8\n.type gcn_sort_kernel,@function')
k1(); out+=L; L=[]
out.append('.globl standalone__edge_featured_mpnn_gatedgcn__graph_kernel\n.p2align 8\n.type standalone__edge_featured_mpnn_gatedgcn__graph_kernel,@function')
k2(); out+=L
out.append('.section .rodata,"a"')
out.append(kd('gcn_sort_kernel', 40, 72))
out.append(kd('standalone__edge_featured_mpnn_gatedgcn__graph_kernel', NVGPR, 102 if STAMPS else 96))
open(sys.argv[1] if len(sys.argv)>1 else 'out.s','w').write('\n'.join(out)+'\n')
print('LDS_END',LDS_END)
```

```python
import sys, os
N=12500; E=800000; CH=3200; NCH=250; NBK=256
WS_CELLS=0; WS_OVFCNT=0x800000; WS_WPREP=0x801000; WS_OVFL=0x810000; WS_T=0x1000000
NLOG2E=0xBFB8AA3B
L=[]
def A(s): L.append(s if s.endswith(':') else '    '+s)
def lab(s): L.append(s+':')
def C(s): L.append('    ; '+s)
ENV=lambda k: os.environ.get(k)
def q(base,n=4): return f'v[{base}:{base+n-1}]'
def mf(d,a,b,c): return f'v_mfma_f32_32x32x16_bf16 {q(d,16)}, {q(a)}, {q(b)}, {c if c=="0" else q(c,16)}'
K1_GRID=NCH+3
K1_LDS=49152
S1=ENV('S1')
def k1():
    lab('gcn_sort_kernel')
    if ENV('DBG') or int(os.environ.get('STAMPS','0')): A('s_memrealtime s[50:51]')
    A(f's_cmp_ge_u32 s2, {K1_GRID}'); A('s_cbranch_scc1 K1_END3' if ENV('DBG') else 's_cbranch_scc1 K1_END')
    A('s_load_dwordx2 s[8:9], s[0:1], 88')
    A(f's_cmp_ge_u32 s2, {NCH}'); A('s_cbranch_scc1 K1_W')
    A('s_load_dwordx4 s[4:7], s[0:1], 16')
    if ENV('K1_XPF'): A('s_load_dwordx2 s[44:45], s[0:1], 0')
    A('v_lshlrev_b32 v1, 4, v0')
    A('s_mul_i32 s10, s2, 12800')
    A('s_waitcnt lgkmcnt(0)')
    if int(os.environ.get('STAMPS','0')):
        A('s_add_u32 s56, s8, 0x2080000'); A('s_addc_u32 s57, s9, 0'); A('s_mov_b32 s58, 1024'); A('s_mov_b32 s59, 0x20000')
        A('s_lshl_b32 s60, s2, 2'); A('v_mov_b32 v20, s50'); A('v_mov_b32 v21, s60'); A('buffer_store_dword v20, v21, s[56:59], 0 offen')
    A('s_add_u32 s16, s6, s10'); A('s_addc_u32 s17, s7, 0'); A('s_mov_b32 s18, 12800'); A('s_mov_b32 s19, 0x20000')
    A('buffer_load_dwordx4 v[8:11], v1, s[16:19], 0 offen')
    A('s_add_u32 s12, s4, s10'); A('s_addc_u32 s13, s5, 0'); A('s_mov_b32 s14, 12800'); A('s_mov_b32 s15, 0x20000')
    A('buffer_load_dwordx4 v[12:15], v1, s[12:15], 0 offen')
    if ENV('K1_XPF'):
        A(f's_mov_b32 s46, {N*128}'); A('s_mov_b32 s47, 0x20000')
        A('s_lshr_b32 s10, s2, 3'); A('s_mul_i32 s10, s10, 404'); A('v_add_u32 v36, s10, v0'); A('v_lshlrev_b32 v36, 7, v36')
        A('v_cmp_gt_u32 vcc, 404, v0'); A('v_mov_b32 v37, 0x7fffffff'); A('s_nop 0'); A('v_cndmask_b32 v36, v37, v36, vcc')
        A('buffer_load_dword v38, v36, s[44:47], 0 offen')
    for r in range(4,8): A(f'v_mov_b32 v{r}, 0')
    A('ds_write_b128 v1, v[4:7]'); A('ds_write_b128 v1, v[4:7] offset:16384'); A('ds_write_b128 v1, v[4:7] offset:32768')
    A('s_mul_i32 s10, s2, 25600')
    A(f's_add_u32 s24, s8, {WS_OVFL}'); A('s_addc_u32 s25, s9, 0'); A('s_add_u32 s24, s24, s10'); A('s_addc_u32 s25, s25, 0')
    A('s_mov_b32 s26, 25600'); A('s_mov_b32 s27, 0x20000')
    A('s_mov_b32 s32, s8'); A('s_mov_b32 s33, s9'); A('s_mov_b32 s34, 0x800000'); A('s_mov_b32 s35, 0x20000')
    A(f's_add_u32 s40, s8, {WS_OVFCNT}'); A('s_addc_u32 s41, s9, 0'); A('s_mov_b32 s42, 1000'); A('s_mov_b32 s43, 0x20000')
    A('v_mov_b32 v2, 1'); A('v_mov_b32 v3, 37888')
    A('s_waitcnt lgkmcnt(0)'); A('s_barrier')
    A('v_cmp_gt_u32 vcc, 800, v0'); A('s_and_saveexec_b64 s[20:21], vcc'); A('s_cbranch_execz K1_SKIP')
    A('s_mov_b64 s[28:29], exec')
    NP=1 if ENV('K1_XPF') else 0
    A(f's_waitcnt vmcnt({1+NP})')
    for j in range(4):
        A(f'v_and_b32 v{16+j}, 255, v{8+j}')
        A(f'v_lshlrev_b32 v{24+j}, 2, v{16+j}')
        A(f'ds_add_rtn_u32 v{28+j}, v{24+j}, v2 offset:36864')
    A(f's_waitcnt vmcnt({NP})')
    for j in range(4):
        A(f'v_lshrrev_b32 v{20+j}, 8, v{8+j}')
        A(f'v_lshl_or_b32 v{20+j}, v{12+j}, 6, v{20+j}')
        A(f'v_lshl_add_u32 v32, v0, 2, {j+1}')
        A(f'v_lshl_or_b32 v{20+j}, v32, 20, v{20+j}')
        A(f'v_mul_u32_u24 v{24+j}, 144, v{16+j}')
    A('s_waitcnt lgkmcnt(0)')
    for j in range(4):
        A(f'v_and_b32 v32, 3, v{28+j}'); A(f'v_bfe_u32 v33, v{28+j}, 2, 2'); A('v_lshl_add_u32 v32, v32, 2, v33'); A('v_or_b32 v32, 16, v32')
        A(f'v_cmp_gt_u32 vcc, 16, v{28+j}'); A('s_nop 1'); A(f'v_cndmask_b32 v32, v32, v{28+j}, vcc')
        A(f'v_lshl_add_u32 v{24+j}, v32, 2, v{24+j}')
        A(f'v_cmp_gt_u32 vcc, 32, v{28+j}')
        A('s_mov_b64 exec, vcc')
        A(f'ds_write_b32 v{24+j}, v{20+j}')
        A('s_andn2_b64 exec, s[28:29], vcc')
        A(f's_cbranch_execz K1_NOV{j}')
        A('ds_add_rtn_u32 v33, v3, v2')
        A(f'v_mov_b32 v34, v{20+j}'); A(f'v_mov_b32 v35, v{16+j}')
        A('s_waitcnt lgkmcnt(0)')
        A('v_lshlrev_b32 v33, 3, v33')
        A('buffer_store_dwordx2 v[34:35], v33, s[24:27], 0 offen')
        A('s_nop 1')
        lab(f'K1_NOV{j}')
        A('s_mov_b64 exec, s[28:29]')
    lab('K1_SKIP')
    A('s_mov_b64 exec, -1')
    if ENV('TLBW'):
        STEP=int(ENV('TLBW'))
        A(f's_waitcnt vmcnt({NP})')
        A('s_cmp_lt_u32 s2, 8'); A('s_cbranch_scc0 K1_NOTLB')
        A('v_readfirstlane_b32 s48, v0'); A('s_nop 3'); A('s_cmp_ge_u32 s48, 832'); A('s_cbranch_scc0 K1_NOTLB')
        A('s_load_dwordx2 s[52:53], s[0:1], 8'); A('s_load_dwordx2 s[44:45], s[0:1], 0')
        A('v_subrev_u32 v36, 832, v0'); A(f'v_lshlrev_b32 v36, {STEP}, v36')
        A('s_waitcnt lgkmcnt(0)')
        A(f's_mov_b32 s54, {E*32}'); A('s_mov_b32 s55, 0x20000'); A(f's_mov_b32 s46, {N*128}'); A('s_mov_b32 s47, 0x20000')
        for i in range(-(-(E*32>>STEP)//192)):
            A(f's_mov_b32 s49, {(192*i)<<STEP}'); A('buffer_load_dword v37, v36, s[52:55], s49 offen')
        A('buffer_load_dword v38, v36, s[44:47], 0 offen')
        lab('K1_NOTLB')
        A('s_branch K1_AFTERW')
    A(f's_waitcnt vmcnt({NP})')
    if ENV('TLBW'): lab('K1_AFTERW')
    A('v_lshrrev_b32 v4, 3, v0'); A('v_and_b32 v5, 7, v0')
    A('v_lshrrev_b32 v21, 2, v0'); A('v_and_b32 v23, 3, v0')
    A('v_mul_u32_u24 v6, 144, v21'); A('v_lshl_add_u32 v6, v23, 4, v6')
    A('v_add_u32 v7, s2, v4'); A('v_and_b32 v7, 255, v7'); A('v_lshlrev_b32 v7, 7, v7'); A('v_lshl_add_u32 v7, v4, 15, v7'); A('v_lshl_add_u32 v7, v5, 4, v7')
    A('v_lshlrev_b32 v18, 2, v21'); A('s_mov_b32 s36, 0x400000')
    A('s_waitcnt lgkmcnt(0)'); A('s_barrier')
    CST=os.environ.get('CST','sc0 sc1')
    A('ds_read_b128 v[8:11], v6'); A('ds_read_b32 v19, v18 offset:36864'); A('ds_read_b128 v[12:15], v6 offset:64'); A('ds_read_b32 v16, v3')
    A('s_waitcnt lgkmcnt(3)')
    A(f'buffer_store_dwordx4 v[8:11], v7, s[32:35], 0 offen {CST}')
    A('s_waitcnt lgkmcnt(1)')
    A('v_cmp_le_u32 vcc, 16, v19'); A('s_mov_b64 exec, vcc')
    A(f'buffer_store_dwordx4 v[12:15], v7, s[32:35], s36 offen {CST}')
    A('s_mov_b64 exec, -1')
    if int(os.environ.get('STAMPS','0')):
        A('s_waitcnt vmcnt(0)'); A('s_memrealtime s[60:61]'); A('v_lshrrev_b32 v24, 6, v0'); A('v_lshlrev_b32 v24, 2, v24'); A('s_lshl_b32 s62, s2, 6'); A('v_add_u32 v24, s62, v24')
        A('s_mov_b32 s58, 0x8000'); A('s_waitcnt lgkmcnt(0)'); A('v_mov_b32 v23, s60'); A('v_add_u32 v24, 0x1000, v24'); A('buffer_store_dword v23, v24, s[56:59], 0 offen')
    A('v_cmp_eq_u32 vcc, 0, v0'); A('s_and_saveexec_b64 s[20:21], vcc'); A('s_cbranch_execz K1_END')
    A('s_lshl_b32 s10, s2, 2'); A('v_mov_b32 v17, s10')
    A('s_waitcnt lgkmcnt(0)')
    A('buffer_store_dword v16, v17, s[40:43], 0 offen')
    A('s_branch K1_END')
    lab('K1_W')
    A('s_load_dwordx8 s[12:19], s[0:1], 32')
    A('s_load_dwordx2 s[20:21], s[0:1], 64')
    A('v_lshrrev_b32 v1, 6, v0'); A('s_nop 0'); A('v_readfirstlane_b32 s10, v1')
    A(f's_sub_u32 s11, s2, {NCH}'); A('s_lshl_b32 s11, s11, 4'); A('s_nop 2'); A('s_add_u32 s10, s10, s11')
    A('s_cmp_ge_u32 s10, 34'); A('s_cbranch_scc1 K1_END')
    A('s_waitcnt lgkmcnt(0)')
    A('s_mov_b32 s24, s14'); A('s_mov_b32 s25, s15'); A('s_mov_b32 s26, 8192'); A('s_mov_b32 s27, 0x20000')
    A(f's_mov_b32 s28, 0x{NLOG2E:08x}'); A('s_mov_b32 s29, s10')
    A('s_cmp_ge_u32 s10, 8'); A('s_cbranch_scc0 K1_WSEL')
    A('s_mov_b32 s24, s20'); A('s_mov_b32 s25, s21'); A('s_mov_b32 s28, 0x3f800000'); A('s_sub_u32 s29, s10, 8')
    A('s_cmp_ge_u32 s10, 16'); A('s_cbranch_scc0 K1_WSEL')
    A('s_mov_b32 s24, s16'); A('s_mov_b32 s25, s17'); A('s_mov_b32 s26, 2048'); A(f's_mov_b32 s28, 0x{NLOG2E:08x}')
    A('s_sub_u32 s29, s10, 16'); A('s_lshl_b32 s29, s29, 2')
    A('s_cmp_ge_u32 s10, 18'); A('s_cbranch_scc0 K1_WSEL')
    A('s_mov_b32 s24, s12'); A('s_mov_b32 s25, s13'); A('s_mov_b32 s26, 8192'); A('s_mov_b32 s28, 0x3f800000'); A('s_sub_u32 s29, s10, 18')
    A('s_cmp_ge_u32 s10, 26'); A('s_cbranch_scc0 K1_WSEL')
    A('s_mov_b32 s24, s18'); A('s_mov_b32 s25, s19'); A('s_sub_u32 s29, s10, 26')
    lab('K1_WSEL')
    A('s_lshr_b32 s30, s29, 2'); A('s_and_b32 s31, s29, 3')
    A('s_lshl_b32 s30, s30, 6'); A('s_lshl_b32 s31, s31, 11'); A('s_add_u32 s30, s30, s31')
    A('v_and_b32 v2, 63, v0'); A('v_and_b32 v3, 31, v0'); A('v_lshrrev_b32 v4, 5, v2')
    A('v_lshlrev_b32 v4, 10, v4'); A('v_lshl_add_u32 v4, v3, 1, v4'); A('v_add_u32 v4, s30, v4')
    for t in range(8): A(f'buffer_load_ushort v{8+t}, v4, s[24:27], 0 offen offset:{128*t}')
    A(f's_add_u32 s32, s8, {WS_WPREP}'); A('s_addc_u32 s33, s9, 0'); A('s_mov_b32 s34, 34816'); A('s_mov_b32 s35, 0x20000')
    A('s_lshl_b32 s36, s10, 10'); A('v_lshlrev_b32 v5, 4, v2')
    A('s_waitcnt vmcnt(0)')
    for t in range(8):
        A(f'v_lshlrev_b32 v{8+t}, 16, v{8+t}'); A(f'v_mul_f32 v{8+t}, s28, v{8+t}')
    for t in range(4): A(f'v_cvt_pk_bf16_f32 v{16+t}, v{8+2*t}, v{9+2*t}')
    A('buffer_store_dwordx4 v[16:19], v5, s[32:35], s36 offen')
    lab('K1_END')
    if ENV('DBG'):
        A('s_cmp_eq_u32 s2, 7'); A('s_cbranch_scc0 K1_END2')
        A('s_load_dwordx2 s[52:53], s[0:1], 80'); A('s_memrealtime s[54:55]'); A('s_waitcnt lgkmcnt(0)')
        A('s_mov_b64 exec, 1'); A('s_mov_b32 s56, s54'); A('s_mov_b32 s54, 256'); A('s_mov_b32 s55, 0x20000')
        A('v_mov_b32 v20, s56'); A('v_mov_b32 v21, s50'); A('v_mov_b32 v22, 0')
        A('buffer_store_dword v21, v22, s[52:55], 0 offen'); A('buffer_store_dword v20, v22, s[52:55], 0 offen offset:4')
        lab('K1_END2')
        lab('K1_END3')
    A('s_endpgm')

XST=0; REC=65536; RECSZ=1408; XS=REC+50*RECSZ; ES=XS+8192; GRP=ES+16384; CNT=GRP+1024; NBT=CNT+256; LDS_END=NBT+256
OWNX=32768; WSTG=40960
O_DEN=256; O_NUM=768; O_U=1280
CAPG=512
DUMMY=49*22
EPAD=0x700FFFFF; EFLAG=0x40000000
cXE=2; cXO=3; aXS=4; aES=5; cKG=6; aGRP=7; cRA=8; cRB=9; aAX=10
WB=16; WV=48; WC=80; XB=88; AZ0=92; AZ1=96; ONEB=100; ONEA=[104,108]; AX=112; AE=[128,132]; G0=136; G1=152; H0=168; H1=184
XI=200; XV=202; EI=206; EV=207; GR=[208,209]; RA0=210; RA1=211; RB0=212; RB1=213; SD=214; SN=215; PD=216; PN=218
kP2=229; vONE=220; kXS=221; kES=222; kGRP=223; kAX=224; vL16=228; T0=230; NGB=236; cXM=252
NVGPR=256
XG_=64
CO=198; EN=G0; RK=G1; EB=H0; AD=H0+4; EW=AX
sB=3; X_=4; EA_=8; CE_=12; WP_=16; OU_=20; MI_=24; sWS=28; sWAVE=30; sNT=31; sTI=32; sX0=33; sX1=34; sMODE=36; sFIRST=37; sOVF=38; sU=39
MK=40
sCNT=72; sXS=73; sES=74; sT0=75; sT1=76; sT2=77; sOC=78; sOP=79; sON=80; sPB=81; sBH=82; sBL=35; sG1=76; sG2=77; s128=83
STAMPS=int(os.environ.get('STAMPS','0'))
STR=8
XSPLIT=int(os.environ.get('XSPLIT','4'))
B0=[8,12]; B1=[9,13]; B2=[10,11,14,15]
SSET=os.environ.get('SSET','main')
SMAP={'main':{'start':0,'bar1':1,'hist':2,'prefix':3,'bar3':4,'ng':5,'loop':6,'bar5':7,'end':8},
      'pro':{'start':0,'issued':1,'consts':2,'vmw':3,'bar1':4,'hist':5,'bar3':6,'ng':7,'entd':8},
      'pro2':{'bar3':0,'dma1':1,'wread':2,'ngm':3,'ng':4,'entw':5,'entd':6,'loop':7,'end':8}}[SSET]
def stamp(name):
    if STAMPS and name in SMAP:
        i=SMAP[name]
        A('s_memtime s[98:99]' if STAMPS==1 else 's_memrealtime s[98:99]'); A('s_waitcnt lgkmcnt(0)'); A(f's_mov_b32 s{86+i}, s98')
def stamp_store():
    if STAMPS and ENV('DBG'):
        A('s_memrealtime s[98:99]'); A('s_waitcnt lgkmcnt(0)'); A('s_mov_b32 s97, s98')
        A('s_cmp_eq_u32 s2, 7'); A('s_cbranch_scc0 K2_DBGE'); A(f's_cmp_eq_u32 s{sWAVE}, 0'); A('s_cbranch_scc0 K2_DBGE')
        A('s_load_dwordx2 s[24:25], s[0:1], 80'); A('s_waitcnt lgkmcnt(0)'); A('s_mov_b64 exec, 1'); A('v_mov_b32 v14, 0'); A('s_mov_b32 s26, 256'); A('s_mov_b32 s27, 0x20000')
        for i in range(12):
            A(f'v_mov_b32 v1, s{86+i}'); A(f'buffer_store_dword v1, v14, s[24:27], 0 offen offset:{8+4*i}')
        lab('K2_DBGE')
    elif STAMPS:
        A('s_memrealtime s[98:99]'); A('s_waitcnt lgkmcnt(0)'); A('s_mov_b32 s97, s98')
        A(f's_add_u32 s24, s{sWS}, 0x2000000'); A(f's_addc_u32 s25, s{sWS+1}, 0'); A('s_mov_b32 s26, 0x100000'); A('s_mov_b32 s27, 0x20000')
        A(f's_lshl_b32 s75, s2, 3'); A(f's_add_u32 s75, s75, s{sWAVE}'); A('s_lshl_b32 s75, s75, 6')
        for i in range(12):
            A(f'v_mov_b32 v1, s{86+i}'); A(f'v_mov_b32 v14, {4*i}'); A('buffer_store_dword v1, v14, s[24:27], s75 offen')
def x_dma(sbase):
    o=[f's_mov_b32 m0, s{sbase}']
    for m in range(4):
        o.append(f'v_mad_u32_u16 v{XV+m}, v{XI+(m>>1)}, s{s128}, v{cXM+m} op_sel:[{m&1},0,0,0]')
        o.append(f'buffer_load_dwordx4 v{XV+m}, s[{XG_}:{XG_+3}], 0 offen offset:{1024*m} lds')
    return o
ENT='' if ENV('NO_NT') else ' nt'
def e_issue(p):
    return [f'v_mad_u32_u24 v{EV}, v{EI}, 32, v{cKG}', f'buffer_load_dwordx4 {q(AE[p])}, v{EV}, s[{EA_}:{EA_+3}], 0 offen{ENT}']
def e_flag(p): return [f'v_and_b32 v{ONEA[p]}, 0xff000000, v{EI}']
def summ(G,H,b,rb,ct):
    if ENV('PK'):
        P=lambda x: f'v[{x}:{x+1}]'
        o=[f'v_pk_mul_f32 {P(PN)}, {P(G+b)}, {P(H+b)}', f'v_pk_add_f32 {P(PD)}, {P(G+b)}, {P(G+b+2)}']
        for r in (2,4,6):
            o.append(f'v_pk_fma_f32 {P(PN)}, {P(G+b+r)}, {P(H+b+r)}, {P(PN)}')
            if r>=4: o.append(f'v_pk_add_f32 {P(PD)}, {P(PD)}, {P(G+b+r)}')
        o.append(f'v_add_f32 v{SD}, v{PD}, v{PD+1}'); o.append(f'v_add_f32 v{SN}, v{PN}, v{PN+1}')
    else:
        o=[f'v_mul_f32 v{SN}, v{G+b}, v{H+b}', f'v_add_f32 v{SD}, v{G+b}, v{G+b+1}']
        for r in range(1,8):
            o.append(f'v_fmac_f32 v{SN}, v{G+b+r}, v{H+b+r}')
            if r>=2: o.append(f'v_add_f32 v{SD}, v{SD}, v{G+b+r}')
    o.append(f'v_cvt_f64_f32 v[{PD}:{PD+1}], v{SD}'); o.append(f'v_cvt_f64_f32 v[{PN}:{PN+1}], v{SN}')
    if not ENV('NO_DSADD'):
        o.append(f'ds_add_f64 v{rb}, v[{PD}:{PD+1}] offset:{ct*256}'); o.append(f'ds_add_f64 v{rb}, v[{PN}:{PN+1}] offset:{512+ct*256}')
    return o
def inter(v, m, every):
    o=[]; m=list(m)
    for i,x in enumerate(v):
        if m and i%every==0: o+=m.pop(0)
        o.append(x)
    for g in m: o+=g
    return o
def gchain(G,ct,p):
    return [[mf(G,AX,WB+16*ct,'0')],[mf(G,AX+4,WB+16*ct+4,G)],[mf(G,AX+8,WB+16*ct+8,G)],[mf(G,AX+12,WB+16*ct+12,G)],
            [mf(G,AE[p],WC+4*ct,G)],[mf(G,AZ1 if ct else AZ0,XB,G)]]
def xb_reads(): return [f'ds_read2_b32 v[{XB}:{XB+1}], v{RA0} offset0:0 offset1:32', f'ds_read2_b32 v[{XB+2}:{XB+3}], v{RA1} offset0:0 offset1:32']
def ra_mads(g): return [f'v_mad_u32_u16 v{RA0}, v{g}, 64, v{cRA} op_sel:[0,0,0,0]', f'v_mad_u32_u16 v{RA1}, v{g}, 64, v{cRA} op_sel:[1,0,0,0]']
def body(p):
    o=[]
    ex=lambda G:[f'v_exp_f32 v{G+r}, v{G+r}' for r in range(16)]
    rc=lambda G:[f'v_rcp_f32 v{G+r}, v{G+r}' for r in range(16)]
    XN=ENV('XNEAR')
    xd=x_dma((sX1 if p==0 else sX0) if XN else (sX0 if p==0 else sX1)) if not ENV('NO_XDMA') else ['s_nop 0']
    grp=[[mf(H0,AX+4*s,WV+4*s,'0' if s==0 else H0)]+(xd[:3] if s==0 else xd[1+2*s:3+2*s]) for s in range(4)]
    o+=inter(ex(G0), grp, 4)
    sb=summ(G1,H1,8,RB1,1)
    o+=sb[:2]+[mf(G0,ONEA[p],ONEB,G0)]+sb[2:]
    o+=[f'v_mad_u32_u16 v{RB0}, v{GR[p]}, 64, v{cRB} op_sel:[0,0,0,0]', f'v_mad_u32_u16 v{RB1}, v{GR[p]}, 64, v{cRB} op_sel:[1,0,0,0]']
    o+=inter(rc(G0), gchain(G1,1,p), 3)
    o+=summ(G0,H0,0,RB0,0)
    o+=['s_waitcnt vmcnt(0)' if XN else 's_waitcnt vmcnt(5)',
        f'ds_read2_b32 v[{XI}:{XI+1}], v{aXS} offset0:{16*STR*p} offset1:{16*STR*p+4}',
        f'ds_read_b32 v{EI}, v{aES} offset:{128*STR*p}', f'ds_read_b32 v{GR[p^1]}, v{aGRP} offset:{8*STR*p}']
    o+=inter(ex(G1), [[mf(H1,AX+4*s,WV+16+4*s,'0' if s==0 else H1), f'ds_read_b128 {q(AX+4*s)}, v{aAX+s} offset:{32768*(p^1)}'] for s in range(4)], 4)
    sb=summ(G0,H0,8,RB1,0)
    o+=sb[:2]+[mf(G1,ONEA[p],ONEB,G1)]
    o+=['s_waitcnt lgkmcnt(4)']+ra_mads(GR[p^1])
    o+=(e_issue(p) if not ENV('NO_EDMA') else [])+xb_reads()+e_flag(p)
    o+=sb[2:]
    o+=['s_waitcnt lgkmcnt(4)' if XN else 's_waitcnt vmcnt(5) lgkmcnt(4)']
    gc=gchain(G0,0,p^1)
    gc[5]=['s_waitcnt lgkmcnt(2)']+gc[5]
    o+=inter(rc(G1), gc, 3)
    o+=summ(G1,H1,0,RB0,1)
    if p==1:
        o+=[f'v_add_u32 v{aXS}, {128*STR}, v{aXS}', f'v_add_u32 v{aES}, {256*STR}, v{aES}', f'v_add_u32 v{aGRP}, {16*STR}, v{aGRP}']
    if ENV('NO_XMFMA'):
        o=[i for i in o if not (i.startswith('v_mfma') and any(f', {q(AX+4*s)}, ' in i for s in range(4)))]
    if ENV('NO_HMFMA'): o=[i for i in o if not (i.startswith('v_mfma') and (i.startswith(f'v_mfma_f32_32x32x16_bf16 {q(H0,16)}') or i.startswith(f'v_mfma_f32_32x32x16_bf16 {q(H1,16)}')))]
    if ENV('NO_SUMS'): o=[i for i in o if not (i.startswith('v_fmac') or (i.startswith('v_add_f32')) or i.startswith('v_mul_f32'))]
    if ENV('NO_SMALLM'): o=[i for i in o if not (i.startswith('v_mfma') and not any(f', {q(AX+4*s)}, ' in i for s in range(4)))]
    if ENV('NO_MFMA'): o=[i for i in o if not i.startswith('v_mfma')]
    if ENV('NO_TRANS'): o=[i for i in o if not (i.startswith('v_exp') or i.startswith('v_rcp'))]
    return o

def cell_off_g(dst, creg):
    A(f'v_add_u32 v{dst}, s{sBH}, v{creg}'); A(f'v_and_b32 v{dst}, 255, v{dst}'); A(f'v_lshlrev_b32 v{dst}, 7, v{dst}'); A(f'v_lshl_add_u32 v{dst}, v5, 4, v{dst}'); A(f'v_add_u32 v{dst}, s{sBL}, v{dst}')
    A(f'v_cmp_gt_u32 vcc, {NCH}, v{creg}'); A('v_mov_b32 v14, 0x7fffffff'); A('s_nop 0'); A(f'v_cndmask_b32 v{dst}, v14, v{dst}, vcc')
def k2():
    lab('standalone__edge_featured_mpnn_gatedgcn__graph_kernel')
    A('s_cmp_ge_u32 s2, 256'); A('s_cbranch_scc1 K2_END')
    A(f's_load_dwordx2 s[{sWS}:{sWS+1}], s[0:1], 88')
    A('s_load_dwordx4 s[4:7], s[0:1], 0')
    A('s_load_dwordx2 s[20:21], s[0:1], 72')
    A(f's_and_b32 s{sB}, s2, 7'); A(f's_lshl_b32 s{sB}, s{sB}, 5'); A(f's_lshr_b32 s{sT0}, s2, 3'); A(f's_or_b32 s{sB}, s{sB}, s{sT0}')
    A('v_lshrrev_b32 v1, 6, v0'); A('v_and_b32 v15, 63, v0')
    A(f'v_readfirstlane_b32 s{sWAVE}, v1')
    A(f'v_lshlrev_b32 v{vL16}, 4, v15')
    A(f's_lshr_b32 s{sBH}, s{sB}, 1'); A(f's_and_b32 s{sBL}, s{sB}, 1'); A(f's_lshl_b32 s{sBL}, s{sBL}, 6')
    A('v_lshrrev_b32 v4, 2, v0'); A('v_and_b32 v5, 3, v0')
    cell_off_g(CO, 4); A('v_add_u32 v4, 128, v4'); cell_off_g(CO+1, 4)
    A(f's_lshl_b32 s{sT0}, s{sBH}, 15')
    A('s_waitcnt lgkmcnt(0)')
    if STAMPS:
        A('s_memrealtime s[98:99]'); A('s_waitcnt lgkmcnt(0)'); A('s_mov_b32 s96, s98')
    stamp('start')
    A(f's_add_u32 s12, s{sWS}, s{sT0}'); A(f's_addc_u32 s13, s{sWS+1}, 0'); A(f's_mov_b32 s14, {0x400000+32768}'); A('s_mov_b32 s15, 0x20000')
    for u in range(2): A(f'buffer_load_dwordx4 {q(EN+4*u)}, v{CO+u}, s[12:15], 0 offen')
    A(f's_mov_b32 s{sPB}, 0x400000')
    def init_a():
        A('v_lshlrev_b32 v1, 4, v0')
        for r in range(4): A(f'v_mov_b32 v{AX+r}, -1')
        A(f'v_add_u32 v14, {XS}, v1'); A(f'ds_write_b128 v14, {q(AX)}')
        for r in range(4): A(f'v_mov_b32 v{AX+4+r}, 0x{EPAD:08x}')
        A(f'ds_write_b128 v14, {q(AX+4)} offset:8192'); A(f'ds_write_b128 v14, {q(AX+4)} offset:16384')
        for r in range(4): A(f'v_mov_b32 v{AX+8+r}, 0x{(DUMMY<<16)|DUMMY:08x}')
        for r in range(4): A(f'v_mov_b32 v{AX+12+r}, 0')
        A('v_cmp_gt_u32 vcc, 64, v0'); A('s_nop 1')
        for r in range(4): A(f'v_cndmask_b32 v{AX+8+r}, v{AX+12+r}, v{AX+8+r}, vcc')
        A('v_cmp_gt_u32 vcc, 96, v0'); A(f's_and_saveexec_b64 s[{MK}:{MK+1}], vcc'); A(f'ds_write_b128 v14, {q(AX+8)} offset:{GRP-XS}'); A(f's_mov_b64 exec, s[{MK}:{MK+1}]')
    init_a()
    A('s_mov_b32 s8, s6'); A('s_mov_b32 s9, s7'); A(f's_mov_b32 s10, {E*32}'); A('s_mov_b32 s11, 0x20000')
    A(f's_mov_b32 s6, {N*128}'); A('s_mov_b32 s7, 0x20000')
    A(f's_mov_b32 s22, {N*128}'); A('s_mov_b32 s23, 0x20000')
    A(f's_add_u32 s16, s{sWS}, {WS_WPREP}'); A(f's_addc_u32 s17, s{sWS+1}, 0'); A('s_mov_b32 s18, 34816'); A('s_mov_b32 s19, 0x20000')
    A(f's_add_u32 s24, s{sWS}, {WS_OVFCNT}'); A(f's_addc_u32 s25, s{sWS+1}, 0'); A('s_mov_b32 s26, 1000'); A('s_mov_b32 s27, 0x20000')
    A(f'v_lshrrev_b32 v14, 3, v15'); A(f's_lshl_b32 s{sT0}, s{sWAVE}, 3'); A(f'v_add_u32 v14, s{sT0}, v14')
    A(f'v_lshlrev_b32 v14, 8, v14'); A(f'v_add_u32 v14, s{sB}, v14'); A('v_lshlrev_b32 v14, 7, v14')
    A('v_lshrrev_b32 v4, 4, v15'); A('v_and_b32 v5, 7, v15'); A('v_xor_b32 v4, v4, v5'); A(f'v_lshlrev_b32 v{cXE}, 4, v4'); A(f'v_xor_b32 v{cXO}, 64, v{cXE}')
    A(f's_and_b32 s{sT0}, s{sWAVE}, 1'); A(f's_cmp_eq_u32 s{sT0}, 0'); A('s_cselect_b64 vcc, -1, 0')
    A(f'v_cndmask_b32 v4, v{cXO}, v{cXE}, vcc'); A('v_add_u32 v4, v14, v4')
    A(f'v_mov_b32 v{CO+2-2+0}, v{CO}') if False else None
    A(f'v_mov_b32 v{XV}, v4')
    stamp('issued')
    A('v_lshrrev_b32 v14, 6, v0'); A(f'v_mul_u32_u24 v14, {RECSZ}, v14'); A(f'v_add_u32 v14, v14, v{vL16}'); A(f'v_add_u32 v14, {REC+O_DEN}, v14')
    for r in range(4): A(f'v_mov_b32 v{AX+r}, 0')
    for i in range(5): A(f'ds_write_b128 v14, {q(AX)} offset:{8*RECSZ*i}')
    A(f'v_add_u32 v14, {8*RECSZ*5}, v14'); A(f'ds_write_b128 v14, {q(AX)}')
    A('v_cmp_gt_u32 vcc, 128, v0'); A(f's_and_saveexec_b64 s[{MK}:{MK+1}], vcc'); A(f'ds_write_b128 v14, {q(AX)} offset:{8*RECSZ}'); A(f's_mov_b64 exec, s[{MK}:{MK+1}]')
    A(f'v_mov_b32 v{vONE}, 1')
    A(f's_mov_b32 s{sCNT}, {CNT}'); A(f's_mov_b32 s{sXS}, {XS}'); A(f's_mov_b32 s{sES}, {ES}'); A(f's_mov_b32 s{s128}, 128')
    A(f's_mov_b32 s{sMODE}, 0'); A(f's_mov_b32 s{sFIRST}, 1'); A(f's_mov_b32 s{sU}, 0')
    A('v_lshrrev_b32 v4, 2, v0'); A('v_mul_u32_u24 v4, 3200, v4')
    for u in range(4): A(f'v_add_u32 v{EB+u}, 0x{(128*(u&1)*3200-1+EFLAG)&0xffffffff:08x}, v4')
    for k in range(8,16): A(f'v_mov_b32 v{EN+k}, 0')
    def lane_consts():
        C('lane constants (v1 = kg)')
        A('v_lshrrev_b32 v1, 5, v15'); A(f'v_lshlrev_b32 v{cKG}, 4, v1')
        A('v_bfe_u32 v5, v15, 3, 2'); A('v_lshlrev_b32 v4, 5, v1'); A('v_lshl_add_u32 v4, v5, 2, v4'); A(f'v_add_u32 v{kXS}, {XS}, v4')
        A('v_bfe_u32 v4, v15, 2, 1'); A('v_lshlrev_b32 v4, 4, v4'); A('v_bfe_u32 v5, v15, 4, 1'); A('v_lshl_add_u32 v4, v5, 3, v4')
        A('v_and_b32 v5, 3, v15'); A('v_lshl_add_u32 v4, v5, 1, v4'); A('v_bfe_u32 v5, v15, 3, 1'); A('v_add_u32 v4, v4, v5')
        A('v_lshlrev_b32 v4, 2, v4'); A(f'v_add_u32 v{kES}, {ES}, v4')
        A('v_lshlrev_b32 v4, 2, v1'); A(f'v_add_u32 v{kGRP}, {GRP}, v4')
        A('v_and_b32 v4, 31, v15'); A('v_lshlrev_b32 v5, 2, v4'); A(f'v_add_u32 v{cRA}, {REC}, v5'); A('v_lshlrev_b32 v5, 3, v4'); A(f'v_add_u32 v{cRB}, {REC+O_DEN}, v5')
        A('v_bfe_u32 v5, v15, 1, 3'); A('v_xor_b32 v5, v5, v1'); A('v_lshlrev_b32 v5, 4, v5'); A('v_lshl_add_u32 v4, v4, 7, v5')
        for s in range(4): A(f'v_xor_b32 v{kAX+s}, {32*s}, v4')
        A(f's_lshl_b32 s{sX0}, s{sWAVE}, 12'); A(f's_add_u32 s{sX1}, s{sX0}, 32768')
        for m in range(4): A(f'v_add_u32 v{cXM+m}, {4096-1024*m}, v{cXO if m&1 else cXE}')
        A('v_bfe_u32 v4, v15, 2, 1'); A('v_cmp_eq_u32 vcc, v4, v1'); A('v_mov_b32 v5, 0x3f803f80'); A('s_nop 0'); A('v_cndmask_b32 v5, 0, v5, vcc')
        A('v_bfe_u32 v4, v15, 4, 1'); A('v_cmp_eq_u32 vcc, 0, v4'); A('s_nop 1'); A(f'v_cndmask_b32 v{AZ0}, 0, v5, vcc')
        A(f'v_sub_u32 v{AZ0+2}, v5, v{AZ0}'); A(f'v_mov_b32 v{AZ0+1}, 0'); A(f'v_mov_b32 v{AZ0+3}, 0')
        A(f'v_mov_b32 v{AZ1}, 0'); A(f'v_mov_b32 v{AZ1+1}, v{AZ0}'); A(f'v_mov_b32 v{AZ1+2}, 0'); A(f'v_mov_b32 v{AZ1+3}, v{AZ0+2}')
        A('v_cmp_eq_u32 vcc, 0, v1'); A('v_mov_b32 v5, 0x3f000000'); A('s_nop 0'); A(f'v_cndmask_b32 v{ONEB}, 0, v5, vcc')
        for r in range(1,4): A(f'v_mov_b32 v{ONEB+r}, 0'); A(f'v_mov_b32 v{ONEA[0]+r}, 0'); A(f'v_mov_b32 v{ONEA[1]+r}, 0')
    lane_consts()
    stamp('consts')
    A('s_waitcnt vmcnt(0)')
    for u in range(2):
        A(f'v_mov_b32_dpp v14, v{EN+4*u+3} quad_perm:[3,3,3,3] row_mask:0xf bank_mask:0xf'); A('s_nop 0')
        A('v_cmp_ne_u32 vcc, 0, v14'); A('s_mov_b64 exec, vcc')
        A(f'buffer_load_dwordx4 {q(EN+8+4*u)}, v{CO+u}, s[12:15], s{sPB} offen'); A('s_mov_b64 exec, -1')
    A(f's_lshl_b32 s{sT0}, s{sWAVE}, 10'); A(f's_add_u32 m0, s{sT0}, {OWNX}'); A('s_nop 0')
    A(f'buffer_load_dwordx4 v{XV}, s[{X_}:{X_+3}], 0 offen lds')
    for i in range(3):
        A(f's_add_u32 s{sT1}, s{sT0}, {8192*i}'); A(f's_add_u32 m0, s{sT1}, {WSTG}'); A('s_nop 0')
        A(f'buffer_load_dwordx4 v{vL16}, s[16:19], s{sT1} offen lds')
    A('s_branch K2_WD')
    lab('K2_ROUND')
    init_a()
    A('s_waitcnt vmcnt(0)')
    lab('K2_WD')
    stamp('vmw')
    if ENV('HALFCELL'):
        A(f's_cmp_eq_u32 s{sMODE}, 2'); A('s_cbranch_scc1 K2_NOMASK')
        A('v_and_b32 v14, 4, v15'); A('v_cmp_eq_u32 s[84:85], 0, v14')
        for u in range(4):
            A(f'v_mov_b32_dpp v1, v{EN+4*u+3} quad_perm:[3,3,3,3] row_mask:0xf bank_mask:0xf'); A('s_nop 1')
            A('v_mov_b32_dpp v14, v1 row_shr:4 row_mask:0xf bank_mask:0xf bound_ctrl:0'); A('s_nop 0')
            A('v_cmp_ne_u32 vcc, 0, v14'); A('s_or_b64 vcc, vcc, s[84:85]')
            for k in range(4): A(f'v_cndmask_b32 v{EN+4*u+k}, 0, v{EN+4*u+k}, vcc')
        lab('K2_NOMASK')
    def pre(ks):
        for k in ks: A(f'v_cmp_ne_u32 s[{MK+2*k}:{MK+2*k+1}], 0, v{EN+k}')
        for k in ks: A(f'v_and_b32 v{AD+k}, 63, v{EN+k}'); A(f'v_lshl_add_u32 v{AD+k}, v{AD+k}, 2, s{sCNT}')
    def atom(ks):
        for k in ks: A(f's_mov_b64 exec, s[{MK+2*k}:{MK+2*k+1}]'); A(f'ds_add_rtn_u32 v{RK+k}, v{AD+k}, v{vONE}')
        A('s_mov_b64 exec, -1')
    pre(range(8))
    A('s_waitcnt lgkmcnt(0)'); A('s_barrier')
    stamp('bar1')
    def ew(ks):
        for k in ks: A(f'v_lshrrev_b32 v{EW+k}, 20, v{EN+k}'); A(f'v_bfe_u32 v{EN+k}, v{EN+k}, 6, 14'); A(f'v_add_u32 v{EW+k}, v{EW+k}, v{EB+k//4}')
    atom(range(8))
    A(f's_cmp_eq_u32 s{sFIRST}, 1'); A('s_cbranch_scc0 K2_NF1')
    A(f'buffer_load_dwordx4 {q(T0)}, v{vL16}, s[24:27], 0 offen')
    A(f's_lshr_b32 s{sT0}, s{sWAVE}, 1'); A(f's_lshl_b32 s{sT0}, s{sT0}, 12'); A(f's_add_u32 s{sT0}, s{sT0}, {18*1024}')
    for s_ in range(4): A(f'buffer_load_dwordx4 {q(NGB+4*s_)}, v{vL16}, s[16:19], s{sT0} offen offset:{1024*s_}')
    A(f's_lshr_b32 s{sT0}, s2, 3'); A(f's_mul_i32 s{sT0}, s{sT0}, 391'); A(f'v_add_u32 v14, s{sT0}, v0'); A('v_lshlrev_b32 v14, 7, v14')
    A('v_cmp_gt_u32 vcc, 391, v0'); A(f'v_mov_b32 v{T0+5}, 0x7fffffff'); A('s_nop 0'); A(f'v_cndmask_b32 v14, v{T0+5}, v14, vcc')
    if ENV('NOXPF'): A(f'v_mov_b32 v14, v{T0+5}')
    A(f'v_mov_b32 v{kP2}, v14'); A(f's_cmp_ge_u32 s{sWAVE}, {XSPLIT}'); A('s_cselect_b64 vcc, -1, 0')
    A(f'v_cndmask_b32 v14, v14, v{T0+5}, vcc'); A(f'v_cndmask_b32 v{kP2}, v{T0+5}, v{kP2}, vcc')
    A(f'buffer_load_dword v{T0+5}, v14, s[{X_}:{X_+3}], 0 offen')
    lab('K2_NF1')
    ew(range(8))
    A('s_waitcnt vmcnt(10)')
    for k in range(8,16): A(f'v_cmp_ne_u32 s[{MK+2*k}:{MK+2*k+1}], 0, v{EN+k}')
    def addr(ks):
        for k in ks: A(f'v_and_b32 v{AD+k}, 63, v{EN+k}'); A(f'v_lshl_add_u32 v{AD+k}, v{AD+k}, 2, s{sCNT}')
    addr(B0); atom(B0); ew(B0)
    A(f's_or_b64 s[84:85], s[{MK+18}:{MK+19}], s[{MK+26}:{MK+27}]'); A(f's_cselect_b32 s{sG1}, 1, 0')
    A(f's_or_b64 s[84:85], s[{MK+20}:{MK+21}], s[{MK+22}:{MK+23}]'); A(f's_or_b64 s[84:85], s[84:85], s[{MK+28}:{MK+29}]'); A(f's_or_b64 s[84:85], s[84:85], s[{MK+30}:{MK+31}]'); A(f's_cselect_b32 s{sG2}, 1, 0')
    def guarded(tag, fn):
        for g,(sg,ks) in enumerate(((sG1,B1),(sG2,B2))):
            A(f's_cmp_eq_u32 s{sg}, 0'); A(f's_cbranch_scc1 K2_SK{tag}{g}'); fn(ks); lab(f'K2_SK{tag}{g}')
    guarded('H', lambda ks: (addr(ks), atom(ks), ew(ks)))
    A('s_waitcnt lgkmcnt(0)'); A('s_barrier')
    stamp('hist')
    A(f's_cmp_eq_u32 s{sFIRST}, 1'); A('s_cbranch_scc0 K2_NF2')
    A(f'buffer_load_dword v{T0+5}, v{kP2}, s[{X_}:{X_+3}], 0 offen')
    lab('K2_NF2')
    A(f'v_lshl_add_u32 v4, v15, 2, s{sCNT}'); A('ds_read_b32 v5, v4'); A('s_waitcnt lgkmcnt(0)')
    A('v_add_u32 v5, 7, v5'); A('v_lshrrev_b32 v5, 3, v5'); A('v_mov_b32 v1, v5'); A('s_nop 1')
    for sh in (1,2,4,8):
        A(f'v_add_u32_dpp v1, v1, v1 row_shr:{sh} row_mask:0xf bank_mask:0xf bound_ctrl:0'); A('s_nop 1')
    A('v_add_u32_dpp v1, v1, v1 row_bcast:15 row_mask:0xa bank_mask:0xf'); A('s_nop 1')
    A('v_add_u32_dpp v1, v1, v1 row_bcast:31 row_mask:0xc bank_mask:0xf'); A('s_nop 1')
    A(f'v_readlane_b32 s{sNT}, v1, 63')
    A('v_sub_u32 v1, v1, v5')
    A(f'v_lshlrev_b32 v{T0+4}, 3, v1')
    if not ENV('BPERM'): A(f'ds_write_b32 v4, v{T0+4} offset:256')
    A(f's_cmp_gt_u32 s{sNT}, {CAPG}'); A('s_cbranch_scc1 K2_SPLIT')
    if ENV('BPERM'):
        for k in range(16): A(f'ds_bpermute_b32 v{AD+k}, v{AD+k}, v{T0+4}')
    else:
        nb=lambda ks: [A(f'ds_read_b32 v{AD+k}, v{AD+k} offset:256') for k in ks]
        nb(list(range(8))+B0); guarded('N', nb)
    A(f'v_mul_u32_u24 v{XV}, 22, v15'); A(f'v_mov_b32 v{XV+1}, s{sWAVE}')
    lab('K2_GL')
    A(f'v_cmp_lt_u32 vcc, v{XV+1}, v5'); A('s_and_saveexec_b64 s[84:85], vcc'); A('s_cbranch_execz K2_GLD')
    A(f'v_add_u32 v{XV+2}, v1, v{XV+1}'); A(f'v_lshlrev_b32 v{XV+2}, 1, v{XV+2}'); A(f'v_add_u32 v{XV+2}, {GRP}, v{XV+2}')
    A(f'ds_write_b16 v{XV+2}, v{XV}'); A(f'v_add_u32 v{XV+1}, 8, v{XV+1}')
    A('s_mov_b64 exec, s[84:85]'); A('s_branch K2_GL')
    lab('K2_GLD'); A('s_mov_b64 exec, -1')
    A('s_waitcnt lgkmcnt(0)')
    stamp('prefix')
    def slot(ks):
        for k in ks:
            A(f'v_add_u32 v{RK+k}, v{RK+k}, v{AD+k}')
            A(f'v_lshl_add_u32 v{AD+k}, v{RK+k}, 1, s{sXS}')
            A(f'v_lshl_add_u32 v{RK+k}, v{RK+k}, 2, s{sES}')
        for k in ks:
            A(f's_mov_b64 exec, s[{MK+2*k}:{MK+2*k+1}]')
            A(f'ds_write_b16 v{AD+k}, v{EN+k}'); A(f'ds_write_b32 v{RK+k}, v{EW+k}')
        A('s_mov_b64 exec, -1')
    slot(list(range(8))+B0); guarded('S', slot)
    A(f's_add_u32 s{sNT}, s{sNT}, 3'); A(f's_lshr_b32 s{sNT}, s{sNT}, 2')
    A('s_waitcnt vmcnt(2) lgkmcnt(0)'); A('s_barrier')
    stamp('bar3')
    A(f's_sub_u32 s{XG_}, s{X_}, 4096'); A(f's_subb_u32 s{XG_+1}, s{X_+1}, 0'); A(f's_mov_b32 s{XG_+2}, {N*128+4096}'); A(f's_mov_b32 s{XG_+3}, 0x20000')
    A(f's_mov_b32 s{sTI}, s{sWAVE}')
    A(f's_lshl_b32 s{sT0}, s{sWAVE}, 6'); A(f'v_add_u32 v{aXS}, s{sT0}, v{kXS}')
    A(f's_lshl_b32 s{sT0}, s{sWAVE}, 7'); A(f'v_add_u32 v{aES}, s{sT0}, v{kES}')
    A(f's_lshl_b32 s{sT0}, s{sWAVE}, 3'); A(f'v_add_u32 v{aGRP}, s{sT0}, v{kGRP}')
    A(f'ds_read_b32 v{EI}, v{aES}'); A(f'ds_read2_b32 v[{XI}:{XI+1}], v{aXS} offset0:0 offset1:4'); A(f'ds_read_b32 v{GR[0]}, v{aGRP}')
    for s in range(4): A(f'v_add_u32 v{aAX+s}, s{sX0}, v{kAX+s}')
    A('s_waitcnt lgkmcnt(0)')
    for i in x_dma(sX0)+e_issue(0)+e_flag(0): A(i)
    stamp('dma1')
    A(f's_cmp_eq_u32 s{sFIRST}, 0'); A('s_cbranch_scc1 K2_NG_DONE')
    A(f'v_add_u32 v1, {WSTG}, v{vL16}')
    A(f's_and_b32 s{sT0}, s{sWAVE}, 1'); A(f's_lshl_b32 s{sT0}, s{sT0}, 12'); A(f's_add_u32 s{sT0}, s{sT0}, {OWNX}')
    for s in range(4): A(f'v_add_u32 v{XV+s}, s{sT0}, v{kAX+s}')
    for s in range(4): A(f'ds_read_b128 {q(AX+4*s)}, v{XV+s}')
    for i in range(18): A(f'ds_read_b128 {q(WB+4*i)}, v1 offset:{1024*i}')
    A(f'v_or_b32 v{T0}, v{T0}, v{T0+1}'); A(f'v_or_b32 v{T0+2}, v{T0+2}, v{T0+3}'); A(f'v_or_b32 v{T0}, v{T0}, v{T0+2}')
    A(f'v_cmp_ne_u32 vcc, 0, v{T0}'); A('s_nop 3'); A('s_cmp_lg_u64 vcc, 0'); A(f's_cselect_b32 s{sOVF}, 1, 0')
    A('s_waitcnt lgkmcnt(0)')
    stamp('wread')
    for s in range(4): A(mf(G0, AX+4*s, NGB+4*s, '0' if s==0 else G0))
    A(f's_and_b32 s{sT0}, s{sWAVE}, 1'); A(f's_lshl_b32 s{sT0}, s{sT0}, 5'); A(f'v_lshrrev_b32 v1, 5, v15'); A(f'v_lshl_add_u32 v1, v1, 2, s{sT0}')
    A(f'v_mul_u32_u24 v1, {RECSZ}, v1')
    A(f's_bfe_u32 s{sT1}, s{sWAVE}, 0x10001')
    A(f's_cmp_ge_u32 s{sWAVE}, 4'); A('s_cbranch_scc1 K2_NG_U')
    A(f's_lshl_b32 s{sT1}, s{sT1}, 7'); A(f'v_add_u32 v1, v1, v{cRA}'); A(f'v_add_u32 v1, s{sT1}, v1')
    A(f's_mov_b32 s{sT2}, 0x{NLOG2E:08x}'); A('s_nop 7')
    for r in range(16):
        A(f'v_mul_f32 v{G0+r}, s{sT2}, v{G0+r}')
        A(f'v_cvt_pk_bf16_f32 v{SD}, v{G0+r}, v{G0+r}'); A(f'v_lshlrev_b32 v{SD}, 16, v{SD}'); A(f'v_sub_f32 v{SN}, v{G0+r}, v{SD}'); A(f'v_cvt_pk_bf16_f32 v{G0+r}, v{SD}, v{SN}')
    def wr_a(r): A(f'ds_write_b32 v1, v{G0+r} offset:{(8*(r//4)+(r%4))*RECSZ}')
    for r in range(8): wr_a(r)
    A(f's_and_b32 s{sT0}, s{sWAVE}, 1'); A(f's_cmp_eq_u32 s{sT0}, 0'); A('s_cbranch_scc0 K2_NG_A1')
    for r in range(8,16): wr_a(r)
    A('s_branch K2_NG_BAR')
    lab('K2_NG_A1')
    A('s_mov_b32 exec_lo, -1'); A('s_mov_b32 exec_hi, 0'); wr_a(8); wr_a(9); A('s_mov_b64 exec, -1'); A('s_branch K2_NG_BAR')
    lab('K2_NG_U')
    A(f's_lshl_b32 s{sT1}, s{sT1}, 6'); A(f'v_and_b32 v{SD}, 31, v15'); A(f'v_lshl_add_u32 v1, v{SD}, 1, v1'); A(f'v_add_u32 v1, s{sT1}, v1'); A(f'v_add_u32 v1, {REC+O_U}, v1')
    A('s_nop 7')
    for r in range(16): A(f'v_cvt_pk_bf16_f32 v{G0+r}, v{G0+r}, v{G0+r}')
    def wr_u(r): A(f'ds_write_b16 v1, v{G0+r} offset:{(8*(r//4)+(r%4))*RECSZ}')
    for r in range(8): wr_u(r)
    A(f's_and_b32 s{sT0}, s{sWAVE}, 1'); A(f's_cmp_eq_u32 s{sT0}, 0'); A('s_cbranch_scc0 K2_NG_U1')
    for r in range(8,16): wr_u(r)
    A('s_branch K2_NG_BAR')
    lab('K2_NG_U1')
    A('s_mov_b32 exec_lo, -1'); A('s_mov_b32 exec_hi, 0'); wr_u(8); wr_u(9); A('s_mov_b64 exec, -1')
    lab('K2_NG_BAR')
    stamp('ngm')
    A('s_waitcnt lgkmcnt(0)'); A('s_barrier')
    lab('K2_NG_DONE')
    stamp('ng')
    A(f's_mov_b32 s{sFIRST}, 0')
    A(f's_cmp_lt_u32 s{sTI}, s{sNT}'); A('s_cbranch_scc0 K2_LOOP_END')
    A(f'ds_read2_b32 v[{XI}:{XI+1}], v{aXS} offset0:{16*STR} offset1:{16*STR+4}'); A(f'ds_read_b32 v{EI}, v{aES} offset:{128*STR}')
    for i in ra_mads(GR[0]): A(i)
    A(f'v_mad_u32_u16 v{RB1}, v{GR[0]}, 64, v{cRB} op_sel:[1,0,0,0]')
    for i in xb_reads(): A(i)
    for r in range(8,16): A(f'v_mov_b32 v{G1+r}, 0'); A(f'v_mov_b32 v{H1+r}, 0')
    A('s_waitcnt lgkmcnt(2)')
    if ENV('XNEAR'):
        for i in e_issue(1)+e_flag(1): A(i)
        A(f'v_add_u32 v{aXS}, {64*STR}, v{aXS}')
        A('s_waitcnt vmcnt(1)')
    else:
        for i in x_dma(sX1)+e_issue(1)+e_flag(1): A(i)
        A(f'v_add_u32 v{aXS}, {128*STR}, v{aXS}')
        A(f'ds_read2_b32 v[{XI}:{XI+1}], v{aXS} offset0:0 offset1:4')
        A('s_waitcnt vmcnt(5)')
    stamp('entw')
    for s in range(4): A(f'ds_read_b128 {q(AX+4*s)}, v{aAX+s}')
    A(f'v_add_u32 v{aXS}, {64*STR}, v{aXS}'); A(f'v_add_u32 v{aES}, {256*STR}, v{aES}'); A(f'v_add_u32 v{aGRP}, {8*STR}, v{aGRP}')
    A('s_waitcnt lgkmcnt(0)')
    for g in gchain(G0,0,0):
        for i in g: A(i)
    A('s_nop 7'); A('s_nop 2')
    stamp('entd')
    lab('K2_LOOP')
    for i in body(0): A(i)
    A(f's_add_u32 s{sTI}, s{sTI}, {STR}'); A(f's_cmp_lt_u32 s{sTI}, s{sNT}'); A('s_cbranch_scc0 K2_TAIL')
    for i in body(1): A(i)
    A(f's_add_u32 s{sTI}, s{sTI}, {STR}'); A(f's_cmp_lt_u32 s{sTI}, s{sNT}'); A('s_cbranch_scc1 K2_LOOP')
    lab('K2_TAIL')
    for i in summ(G1,H1,8,RB1,1): A(i)
    lab('K2_LOOP_END')
    stamp('loop')
    A('s_waitcnt vmcnt(0)')
    A('v_lshrrev_b32 v1, 3, v0'); A('v_and_b32 v2, 7, v0')
    A(f'v_lshlrev_b32 v3, 8, v1'); A(f'v_add_u32 v3, s{sB}, v3'); A('v_lshlrev_b32 v3, 7, v3'); A('v_lshl_add_u32 v3, v2, 4, v3')
    A(f'buffer_load_dwordx4 {q(NGB)}, v3, s[{X_}:{X_+3}], 0 offen')
    A('s_waitcnt lgkmcnt(0)'); A('s_barrier')
    stamp('bar5')
    A(f's_cmp_eq_u32 s{sMODE}, 1'); A('s_cbranch_scc1 K2_NEXT_SPLIT')
    A(f's_cmp_eq_u32 s{sMODE}, 2'); A('s_cbranch_scc1 K2_NEXT_OVF')
    lab('K2_CHECK_OVF')
    A(f's_cmp_eq_u32 s{sOVF}, 0'); A('s_cbranch_scc1 K2_EPI')
    A(f's_mov_b32 s{sMODE}, 2'); A(f's_mov_b32 s{sOC}, 0'); A(f's_mov_b32 s{sOP}, 0'); A('s_branch K2_OVF_FIND')
    lab('K2_SPLIT')
    A(f's_mov_b32 s{sMODE}, 1'); A(f's_mov_b32 s{sU}, 0')
    A('s_waitcnt lgkmcnt(0)'); A('s_barrier')
    A('s_branch K2_LOADQ')
    lab('K2_NEXT_SPLIT')
    A(f's_add_u32 s{sU}, s{sU}, 1'); A(f's_cmp_ge_u32 s{sU}, 4'); A('s_cbranch_scc1 K2_CHECK_OVF')
    lab('K2_LOADQ')
    A(f's_and_b32 s{sT0}, s{sU}, 1'); A(f's_lshl_b32 s{sT0}, s{sT0}, 7'); A('v_lshrrev_b32 v4, 2, v0'); A(f'v_add_u32 v4, s{sT0}, v4'); A('v_and_b32 v5, 3, v0')
    cell_off_g(CO, 4)
    A('s_waitcnt vmcnt(0)')
    A(f'buffer_load_dwordx4 {q(EN)}, v{CO}, s[12:15], 0 offen')
    for k in range(4,16): A(f'v_mov_b32 v{EN+k}, 0')
    A(f's_cmp_ge_u32 s{sU}, 2'); A('s_cbranch_scc0 K2_LOADQ_A')
    A('s_waitcnt vmcnt(0)')
    A(f'v_mov_b32_dpp v14, v{EN+3} quad_perm:[3,3,3,3] row_mask:0xf bank_mask:0xf'); A('s_nop 0')
    A('v_cmp_ne_u32 vcc, 0, v14')
    for k in range(4): A(f'v_mov_b32 v{EN+k}, 0')
    A('s_mov_b64 exec, vcc'); A('s_cbranch_execz K2_LOADQ_B')
    A(f'buffer_load_dwordx4 {q(EN)}, v{CO}, s[12:15], s{sPB} offen')
    lab('K2_LOADQ_B'); A('s_mov_b64 exec, -1')
    lab('K2_LOADQ_A')
    A('v_mul_u32_u24 v4, 3200, v4'); A(f'v_add_u32 v{EB}, 0x{EFLAG-1:08x}, v4')
    A('s_branch K2_ROUND')
    lab('K2_NEXT_OVF')
    A(f's_add_u32 s{sOP}, s{sOP}, 2048')
    lab('K2_OVF_FIND')
    A(f's_cmp_ge_u32 s{sOC}, {NCH}'); A('s_cbranch_scc1 K2_EPI')
    A(f's_lshl_b32 s{sT0}, s{sOC}, 2'); A(f's_add_u32 s{sT0}, s{sT0}, {WS_OVFCNT}')
    A(f's_load_dword s{sON}, s[{sWS}:{sWS+1}], s{sT0}'); A('s_waitcnt lgkmcnt(0)')
    A(f's_cmp_gt_u32 s{sON}, s{sOP}'); A('s_cbranch_scc1 K2_OVF_LOAD')
    A(f's_add_u32 s{sOC}, s{sOC}, 1'); A(f's_mov_b32 s{sOP}, 0'); A('s_branch K2_OVF_FIND')
    lab('K2_OVF_LOAD')
    A(f's_mul_i32 s{sT0}, s{sOC}, 25600'); A(f's_add_u32 s{sT0}, s{sT0}, {WS_OVFL}')
    A(f's_add_u32 s24, s{sWS}, s{sT0}'); A(f's_addc_u32 s25, s{sWS+1}, 0'); A(f's_lshl_b32 s26, s{sON}, 3'); A('s_mov_b32 s27, 0x20000')
    A(f'v_add_u32 v1, s{sOP}, v0'); A('v_lshlrev_b32 v1, 3, v1')
    A(f'buffer_load_dwordx2 v[{AX}:{AX+1}], v1, s[24:27], 0 offen')
    for j in range(1,4):
        A(f's_mov_b32 s{sT0}, {4096*j}'); A(f'buffer_load_dwordx2 v[{AX+2*j}:{AX+2*j+1}], v1, s[24:27], s{sT0} offen')
    A('s_waitcnt vmcnt(0)')
    for j in range(4):
        A(f'v_cmp_eq_u32 vcc, s{sB}, v{AX+2*j+1}'); A('s_nop 1'); A(f'v_cndmask_b32 v{EN+j}, 0, v{AX+2*j}, vcc')
    for k in range(4,16): A(f'v_mov_b32 v{EN+k}, 0')
    A(f's_mul_i32 s{sT0}, s{sOC}, 3200'); A(f's_add_u32 s{sT0}, s{sT0}, 0x{EFLAG-1:08x}'); A(f'v_mov_b32 v{EB}, s{sT0}')
    A('s_branch K2_ROUND')
    lab('K2_EPI')
    A(f'v_mul_u32_u24 v4, {RECSZ}, v1'); A(f'v_add_u32 v4, {REC}, v4'); A('v_lshl_add_u32 v5, v2, 6, v4'); A('v_lshl_add_u32 v6, v2, 4, v4')
    for i in range(4): A(f'ds_read_b128 {q(48+4*i)}, v5 offset:{O_DEN+16*i}')
    for i in range(4): A(f'ds_read_b128 {q(64+4*i)}, v5 offset:{O_NUM+16*i}')
    A(f'ds_read_b128 v[36:39], v6 offset:{O_U}')
    A('s_mov_b32 s40, 0x358637bd')
    A('s_waitcnt lgkmcnt(0)')
    for i in range(8): A(f'v_cvt_f32_f64 v{20+i}, v[{48+2*i}:{49+2*i}]'); A(f'v_cvt_f32_f64 v{28+i}, v[{64+2*i}:{65+2*i}]')
    for i in range(8): A(f'v_add_f32 v{20+i}, s40, v{20+i}')
    for i in range(8): A(f'v_rcp_f32 v{20+i}, v{20+i}')
    for i in range(4):
        A(f'v_lshlrev_b32 v{40+2*i}, 16, v{36+i}'); A(f'v_and_b32 v{41+2*i}, 0xffff0000, v{36+i}')
    for i in range(8): A(f'v_fmac_f32 v{40+i}, v{28+i}, v{20+i}')
    for i in range(8):
        A(f'v_mul_f32 v{28+i}, 0, v{40+i}'); A(f'v_cmp_lt_f32 vcc, 0, v{40+i}'); A('s_nop 1'); A(f'v_cndmask_b32 v{28+i}, v{28+i}, v{40+i}, vcc')
    A('s_waitcnt vmcnt(0)')
    for i in range(4):
        A(f'v_lshlrev_b32 v{40+2*i}, 16, v{NGB+i}'); A(f'v_and_b32 v{41+2*i}, 0xffff0000, v{NGB+i}')
    for i in range(8): A(f'v_add_f32 v{28+i}, v{28+i}, v{40+i}')
    for i in range(4): A(f'v_cvt_pk_bf16_f32 v{20+i}, v{28+2*i}, v{29+2*i}')
    A(f"buffer_store_dwordx4 v[20:23], v3, s[{OU_}:{OU_+3}], 0 offen {os.environ.get('OST','sc1')}")
    stamp('end')
    stamp_store()
    lab('K2_END')
    A('s_endpgm')

hdr = f'''; GatedGCN edge-featured MPNN: K1 buckets edges by destination, K2 gathers + MFMA + segment-reduces in LDS.
; @launch kernel=gcn_sort_kernel grid=({K1_GRID},1,1) block=(1024,1,1) lds={K1_LDS}
; @launch kernel=standalone__edge_featured_mpnn_gatedgcn__graph_kernel grid=(256,1,1) block=(512,1,1) lds={LDS_END}
.amdgcn_target "amdgcn-amd-amdhsa--gfx950"
.text
'''
def kd(name, nv, ns):
    return f'''.p2align 6
.amdhsa_kernel {name}
  .amdhsa_next_free_vgpr {nv}
  .amdhsa_next_free_sgpr {ns}
  .amdhsa_accum_offset {(nv+3)//4*4}
  .amdhsa_group_segment_fixed_size 0
  .amdhsa_kernarg_size 96
  .amdhsa_user_sgpr_count 2
  .amdhsa_user_sgpr_kernarg_segment_ptr 1
  .amdhsa_system_sgpr_workgroup_id_x 1
.end_amdhsa_kernel
'''
out=[hdr]
out.append('.globl gcn_sort_kernel\n.p2align 8\n.type gcn_sort_kernel,@function')
k1(); out+=L; L=[]
out.append('.globl standalone__edge_featured_mpnn_gatedgcn__graph_kernel\n.p2align 8\n.type standalone__edge_featured_mpnn_gatedgcn__graph_kernel,@function')
k2(); out+=L
out.append('.section .rodata,"a"')
out.append(kd('gcn_sort_kernel', 40, 72))
out.append(kd('standalone__edge_featured_mpnn_gatedgcn__graph_kernel', NVGPR, 102 if STAMPS else 96))
open(sys.argv[1] if len(sys.argv)>1 else 'out.s','w').write('\n'.join(out)+'\n')
print('LDS_END',LDS_END)
```

```python
import sys, os
N=12500; E=800000; CH=3200; NCH=250; NBK=256
WS_CELLS=0; WS_OVFCNT=0x800000; WS_WPREP=0x801000; WS_OVFL=0x810000; WS_T=0x1000000
NLOG2E=0xBFB8AA3B
L=[]
def A(s): L.append(s if s.endswith(':') else '    '+s)
def lab(s): L.append(s+':')
def C(s): L.append('    ; '+s)
ENV=lambda k: os.environ.get(k)
def q(base,n=4): return f'v[{base}:{base+n-1}]'
def mf(d,a,b,c): return f'v_mfma_f32_32x32x16_bf16 {q(d,16)}, {q(a)}, {q(b)}, {c if c=="0" else q(c,16)}'
K1_GRID=NCH+3
K1_LDS=49152
S1=ENV('S1')
def k1():
    lab('gcn_sort_kernel')
    if ENV('DBG') or int(os.environ.get('STAMPS','0')): A('s_memrealtime s[50:51]')
    A(f's_cmp_ge_u32 s2, {K1_GRID}'); A('s_cbranch_scc1 K1_END3' if ENV('DBG') else 's_cbranch_scc1 K1_END')
    A('s_load_dwordx2 s[8:9], s[0:1], 88')
    A(f's_cmp_ge_u32 s2, {NCH}'); A('s_cbranch_scc1 K1_W')
    A('s_load_dwordx4 s[4:7], s[0:1], 16')
    if ENV('K1_XPF') or ENV('K1_MALL'): A('s_load_dwordx2 s[44:45], s[0:1], 0')
    A('v_lshlrev_b32 v1, 4, v0')
    A('s_mul_i32 s10, s2, 12800')
    A('s_waitcnt lgkmcnt(0)')
    if int(os.environ.get('STAMPS','0')):
        A('s_add_u32 s56, s8, 0x2080000'); A('s_addc_u32 s57, s9, 0'); A('s_mov_b32 s58, 1024'); A('s_mov_b32 s59, 0x20000')
        A('s_lshl_b32 s60, s2, 2'); A('v_mov_b32 v20, s50'); A('v_mov_b32 v21, s60'); A('buffer_store_dword v20, v21, s[56:59], 0 offen')
    A('s_add_u32 s16, s6, s10'); A('s_addc_u32 s17, s7, 0'); A('s_mov_b32 s18, 12800'); A('s_mov_b32 s19, 0x20000')
    A('buffer_load_dwordx4 v[8:11], v1, s[16:19], 0 offen')
    A('s_add_u32 s12, s4, s10'); A('s_addc_u32 s13, s5, 0'); A('s_mov_b32 s14, 12800'); A('s_mov_b32 s15, 0x20000')
    A('buffer_load_dwordx4 v[12:15], v1, s[12:15], 0 offen')
    if ENV('K1_XPF'):
        A(f's_mov_b32 s46, {N*128}'); A('s_mov_b32 s47, 0x20000')
        A('s_lshr_b32 s10, s2, 3'); A('s_mul_i32 s10, s10, 404'); A('v_add_u32 v36, s10, v0'); A('v_lshlrev_b32 v36, 7, v36')
        A('v_cmp_gt_u32 vcc, 404, v0'); A('v_mov_b32 v37, 0x7fffffff'); A('s_nop 0'); A('v_cndmask_b32 v36, v37, v36, vcc')
        A('buffer_load_dword v38, v36, s[44:47], 0 offen')
    if ENV('K1_MALL'):
        A(f's_mov_b32 s46, {N*128}'); A('s_mov_b32 s47, 0x20000')
        A('s_mul_i32 s10, s2, 50'); A('v_subrev_u32 v36, 832, v0'); A('v_cmp_gt_u32 vcc, 50, v36'); A('v_add_u32 v36, s10, v36'); A('v_lshlrev_b32 v36, 7, v36')
        A('v_mov_b32 v37, 0x7fffffff'); A('v_cndmask_b32 v36, v37, v36, vcc')
        A('buffer_load_dword v38, v36, s[44:47], 0 offen')
    for r in range(4,8): A(f'v_mov_b32 v{r}, 0')
    A('ds_write_b128 v1, v[4:7]'); A('ds_write_b128 v1, v[4:7] offset:16384'); A('ds_write_b128 v1, v[4:7] offset:32768')
    A('s_mul_i32 s10, s2, 25600')
    A(f's_add_u32 s24, s8, {WS_OVFL}'); A('s_addc_u32 s25, s9, 0'); A('s_add_u32 s24, s24, s10'); A('s_addc_u32 s25, s25, 0')
    A('s_mov_b32 s26, 25600'); A('s_mov_b32 s27, 0x20000')
    A('s_mov_b32 s32, s8'); A('s_mov_b32 s33, s9'); A('s_mov_b32 s34, 0x800000'); A('s_mov_b32 s35, 0x20000')
    A(f's_add_u32 s40, s8, {WS_OVFCNT}'); A('s_addc_u32 s41, s9, 0'); A('s_mov_b32 s42, 1000'); A('s_mov_b32 s43, 0x20000')
    A('v_mov_b32 v2, 1'); A('v_mov_b32 v3, 37888')
    A('s_waitcnt lgkmcnt(0)'); A('s_barrier')
    A('v_cmp_gt_u32 vcc, 800, v0'); A('s_and_saveexec_b64 s[20:21], vcc'); A('s_cbranch_execz K1_SKIP')
    A('s_mov_b64 s[28:29], exec')
    NP=1 if (ENV('K1_XPF') or ENV('K1_MALL')) else 0
    A(f's_waitcnt vmcnt({1+NP})')
    for j in range(4):
        A(f'v_and_b32 v{16+j}, 255, v{8+j}')
        A(f'v_lshlrev_b32 v{24+j}, 2, v{16+j}')
        A(f'ds_add_rtn_u32 v{28+j}, v{24+j}, v2 offset:36864')
    A(f's_waitcnt vmcnt({NP})')
    for j in range(4):
        A(f'v_lshrrev_b32 v{20+j}, 8, v{8+j}')
        A(f'v_lshl_or_b32 v{20+j}, v{12+j}, 6, v{20+j}')
        A(f'v_lshl_add_u32 v32, v0, 2, {j+1}')
        A(f'v_lshl_or_b32 v{20+j}, v32, 20, v{20+j}')
        A(f'v_mul_u32_u24 v{24+j}, 144, v{16+j}')
    A('s_waitcnt lgkmcnt(0)')
    for j in range(4):
        A(f'v_and_b32 v32, 3, v{28+j}'); A(f'v_bfe_u32 v33, v{28+j}, 2, 2'); A('v_lshl_add_u32 v32, v32, 2, v33'); A('v_or_b32 v32, 16, v32')
        A(f'v_cmp_gt_u32 vcc, 16, v{28+j}'); A('s_nop 1'); A(f'v_cndmask_b32 v32, v32, v{28+j}, vcc')
        A(f'v_lshl_add_u32 v{24+j}, v32, 2, v{24+j}')
        A(f'v_cmp_gt_u32 vcc, 32, v{28+j}')
        A('s_mov_b64 exec, vcc')
        A(f'ds_write_b32 v{24+j}, v{20+j}')
        A('s_andn2_b64 exec, s[28:29], vcc')
        A(f's_cbranch_execz K1_NOV{j}')
        A('ds_add_rtn_u32 v33, v3, v2')
        A(f'v_mov_b32 v34, v{20+j}'); A(f'v_mov_b32 v35, v{16+j}')
        A('s_waitcnt lgkmcnt(0)')
        A('v_lshlrev_b32 v33, 3, v33')
        A('buffer_store_dwordx2 v[34:35], v33, s[24:27], 0 offen')
        A('s_nop 1')
        lab(f'K1_NOV{j}')
        A('s_mov_b64 exec, s[28:29]')
    lab('K1_SKIP')
    A('s_mov_b64 exec, -1')
    if ENV('TLBW'):
        STEP=int(ENV('TLBW'))
        A(f's_waitcnt vmcnt({NP})')
        A('s_cmp_lt_u32 s2, 8'); A('s_cbranch_scc0 K1_NOTLB')
        A('v_readfirstlane_b32 s48, v0'); A('s_nop 3'); A('s_cmp_ge_u32 s48, 832'); A('s_cbranch_scc0 K1_NOTLB')
        A('s_load_dwordx2 s[52:53], s[0:1], 8'); A('s_load_dwordx2 s[44:45], s[0:1], 0')
        A('v_subrev_u32 v36, 832, v0'); A(f'v_lshlrev_b32 v36, {STEP}, v36')
        A('s_waitcnt lgkmcnt(0)')
        A(f's_mov_b32 s54, {E*32}'); A('s_mov_b32 s55, 0x20000'); A(f's_mov_b32 s46, {N*128}'); A('s_mov_b32 s47, 0x20000')
        for i in range(-(-(E*32>>STEP)//192)):
            A(f's_mov_b32 s49, {(192*i)<<STEP}'); A('buffer_load_dword v37, v36, s[52:55], s49 offen')
        A('buffer_load_dword v38, v36, s[44:47], 0 offen')
        lab('K1_NOTLB')
        A('s_branch K1_AFTERW')
    A(f's_waitcnt vmcnt({NP})')
    if ENV('TLBW'): lab('K1_AFTERW')
    A('v_lshrrev_b32 v4, 3, v0'); A('v_and_b32 v5, 7, v0')
    A('v_lshrrev_b32 v21, 2, v0'); A('v_and_b32 v23, 3, v0')
    A('v_mul_u32_u24 v6, 144, v21'); A('v_lshl_add_u32 v6, v23, 4, v6')
    A('v_add_u32 v7, s2, v4'); A('v_and_b32 v7, 255, v7'); A('v_lshlrev_b32 v7, 7, v7'); A('v_lshl_add_u32 v7, v4, 15, v7'); A('v_lshl_add_u32 v7, v5, 4, v7')
    A('v_lshlrev_b32 v18, 2, v21'); A('s_mov_b32 s36, 0x400000')
    A('s_waitcnt lgkmcnt(0)'); A('s_barrier')
    CST=os.environ.get('CST','sc0 sc1')
    A('ds_read_b128 v[8:11], v6'); A('ds_read_b32 v19, v18 offset:36864'); A('ds_read_b128 v[12:15], v6 offset:64'); A('ds_read_b32 v16, v3')
    A('s_waitcnt lgkmcnt(3)')
    A(f'buffer_store_dwordx4 v[8:11], v7, s[32:35], 0 offen {CST}')
    A('s_waitcnt lgkmcnt(1)')
    A('v_cmp_le_u32 vcc, 16, v19'); A('s_mov_b64 exec, vcc')
    A(f'buffer_store_dwordx4 v[12:15], v7, s[32:35], s36 offen {CST}')
    A('s_mov_b64 exec, -1')
    if int(os.environ.get('STAMPS','0')):
        A('s_waitcnt vmcnt(0)'); A('s_memrealtime s[60:61]'); A('v_lshrrev_b32 v24, 6, v0'); A('v_lshlrev_b32 v24, 2, v24'); A('s_lshl_b32 s62, s2, 6'); A('v_add_u32 v24, s62, v24')
        A('s_mov_b32 s58, 0x8000'); A('s_waitcnt lgkmcnt(0)'); A('v_mov_b32 v23, s60'); A('v_add_u32 v24, 0x1000, v24'); A('buffer_store_dword v23, v24, s[56:59], 0 offen')
    A('v_cmp_eq_u32 vcc, 0, v0'); A('s_and_saveexec_b64 s[20:21], vcc'); A('s_cbranch_execz K1_END')
    A('s_lshl_b32 s10, s2, 2'); A('v_mov_b32 v17, s10')
    A('s_waitcnt lgkmcnt(0)')
    A('buffer_store_dword v16, v17, s[40:43], 0 offen')
    A('s_branch K1_END')
    lab('K1_W')
    A('s_load_dwordx8 s[12:19], s[0:1], 32')
    A('s_load_dwordx2 s[20:21], s[0:1], 64')
    A('v_lshrrev_b32 v1, 6, v0'); A('s_nop 0'); A('v_readfirstlane_b32 s10, v1')
    A(f's_sub_u32 s11, s2, {NCH}'); A('s_lshl_b32 s11, s11, 4'); A('s_nop 2'); A('s_add_u32 s10, s10, s11')
    A('s_cmp_ge_u32 s10, 34'); A('s_cbranch_scc1 K1_END')
    A('s_waitcnt lgkmcnt(0)')
    A('s_mov_b32 s24, s14'); A('s_mov_b32 s25, s15'); A('s_mov_b32 s26, 8192'); A('s_mov_b32 s27, 0x20000')
    A(f's_mov_b32 s28, 0x{NLOG2E:08x}'); A('s_mov_b32 s29, s10')
    A('s_cmp_ge_u32 s10, 8'); A('s_cbranch_scc0 K1_WSEL')
    A('s_mov_b32 s24, s20'); A('s_mov_b32 s25, s21'); A('s_mov_b32 s28, 0x3f800000'); A('s_sub_u32 s29, s10, 8')
    A('s_cmp_ge_u32 s10, 16'); A('s_cbranch_scc0 K1_WSEL')
    A('s_mov_b32 s24, s16'); A('s_mov_b32 s25, s17'); A('s_mov_b32 s26, 2048'); A(f's_mov_b32 s28, 0x{NLOG2E:08x}')
    A('s_sub_u32 s29, s10, 16'); A('s_lshl_b32 s29, s29, 2')
    A('s_cmp_ge_u32 s10, 18'); A('s_cbranch_scc0 K1_WSEL')
    A('s_mov_b32 s24, s12'); A('s_mov_b32 s25, s13'); A('s_mov_b32 s26, 8192'); A('s_mov_b32 s28, 0x3f800000'); A('s_sub_u32 s29, s10, 18')
    A('s_cmp_ge_u32 s10, 26'); A('s_cbranch_scc0 K1_WSEL')
    A('s_mov_b32 s24, s18'); A('s_mov_b32 s25, s19'); A('s_sub_u32 s29, s10, 26')
    lab('K1_WSEL')
    A('s_lshr_b32 s30, s29, 2'); A('s_and_b32 s31, s29, 3')
    A('s_lshl_b32 s30, s30, 6'); A('s_lshl_b32 s31, s31, 11'); A('s_add_u32 s30, s30, s31')
    A('v_and_b32 v2, 63, v0'); A('v_and_b32 v3, 31, v0'); A('v_lshrrev_b32 v4, 5, v2')
    A('v_lshlrev_b32 v4, 10, v4'); A('v_lshl_add_u32 v4, v3, 1, v4'); A('v_add_u32 v4, s30, v4')
    for t in range(8): A(f'buffer_load_ushort v{8+t}, v4, s[24:27], 0 offen offset:{128*t}')
    A(f's_add_u32 s32, s8, {WS_WPREP}'); A('s_addc_u32 s33, s9, 0'); A('s_mov_b32 s34, 34816'); A('s_mov_b32 s35, 0x20000')
    A('s_lshl_b32 s36, s10, 10'); A('v_lshlrev_b32 v5, 4, v2')
    A('s_waitcnt vmcnt(0)')
    for t in range(8):
        A(f'v_lshlrev_b32 v{8+t}, 16, v{8+t}'); A(f'v_mul_f32 v{8+t}, s28, v{8+t}')
    for t in range(4): A(f'v_cvt_pk_bf16_f32 v{16+t}, v{8+2*t}, v{9+2*t}')
    A('buffer_store_dwordx4 v[16:19], v5, s[32:35], s36 offen')
    lab('K1_END')
    if ENV('DBG'):
        A('s_cmp_eq_u32 s2, 7'); A('s_cbranch_scc0 K1_END2')
        A('s_load_dwordx2 s[52:53], s[0:1], 80'); A('s_memrealtime s[54:55]'); A('s_waitcnt lgkmcnt(0)')
        A('s_mov_b64 exec, 1'); A('s_mov_b32 s56, s54'); A('s_mov_b32 s54, 256'); A('s_mov_b32 s55, 0x20000')
        A('v_mov_b32 v20, s56'); A('v_mov_b32 v21, s50'); A('v_mov_b32 v22, 0')
        A('buffer_store_dword v21, v22, s[52:55], 0 offen'); A('buffer_store_dword v20, v22, s[52:55], 0 offen offset:4')
        lab('K1_END2')
        lab('K1_END3')
    A('s_endpgm')

XST=0; REC=65536; RECSZ=1408; XS=REC+50*RECSZ; ES=XS+8192; GRP=ES+16384; CNT=GRP+1024; NBT=CNT+256; LDS_END=NBT+256
OWNX=32768; WSTG=40960
O_DEN=256; O_NUM=768; O_U=1280
CAPG=512
DUMMY=49*22
EPAD=0x700FFFFF; EFLAG=0x40000000
cXE=2; cXO=3; aXS=4; aES=5; cKG=6; aGRP=7; cRA=8; cRB=9; aAX=10
WB=16; WV=48; WC=80; XB=88; AZ0=92; AZ1=96; ONEB=100; ONEA=[104,108]; AX=112; AE=[128,132]; G0=136; G1=152; H0=168; H1=184
XI=200; XV=202; EI=206; EV=207; GR=[208,209]; RA0=210; RA1=211; RB0=212; RB1=213; SD=214; SN=215; PD=216; PN=218
kP2=229; kP1=199; vONE=220; kXS=221; kES=222; kGRP=223; kAX=224; vL16=228; T0=230; NGB=236; cXM=252
NVGPR=256
XG_=64
CO=198; EN=G0; RK=G1; EB=H0; AD=H0+4; EW=AX
sB=3; X_=4; EA_=8; CE_=12; WP_=16; OU_=20; MI_=24; sWS=28; sWAVE=30; sNT=31; sTI=32; sX0=33; sX1=34; sMODE=36; sFIRST=37; sOVF=38; sU=39
MK=40
sCNT=72; sXS=73; sES=74; sT0=75; sT1=76; sT2=77; sOC=78; sOP=79; sON=80; sPB=81; sBH=82; sBL=35; sG1=76; sG2=77; s128=83
STAMPS=int(os.environ.get('STAMPS','0'))
STR=8
XSPLIT=int(os.environ.get('XSPLIT','4'))
B0=[8,12]; B1=[9,13]; B2=[10,11,14,15]
SSET=os.environ.get('SSET','main')
SMAP={'main':{'start':0,'bar1':1,'hist':2,'prefix':3,'bar3':4,'ng':5,'loop':6,'bar5':7,'end':8},
      'pro':{'start':0,'issued':1,'consts':2,'vmw':3,'bar1':4,'hist':5,'bar3':6,'ng':7,'entd':8},
      'pro2':{'bar3':0,'dma1':1,'wread':2,'ngm':3,'ng':4,'entw':5,'entd':6,'loop':7,'end':8}}[SSET]
def stamp(name):
    if STAMPS and name in SMAP:
        i=SMAP[name]
        A('s_memtime s[98:99]' if STAMPS==1 else 's_memrealtime s[98:99]'); A('s_waitcnt lgkmcnt(0)'); A(f's_mov_b32 s{86+i}, s98')
def stamp_store():
    if STAMPS and ENV('DBG'):
        A('s_memrealtime s[98:99]'); A('s_waitcnt lgkmcnt(0)'); A('s_mov_b32 s97, s98')
        A('s_cmp_eq_u32 s2, 7'); A('s_cbranch_scc0 K2_DBGE'); A(f's_cmp_eq_u32 s{sWAVE}, 0'); A('s_cbranch_scc0 K2_DBGE')
        A('s_load_dwordx2 s[24:25], s[0:1], 80'); A('s_waitcnt lgkmcnt(0)'); A('s_mov_b64 exec, 1'); A('v_mov_b32 v14, 0'); A('s_mov_b32 s26, 256'); A('s_mov_b32 s27, 0x20000')
        for i in range(12):
            A(f'v_mov_b32 v1, s{86+i}'); A(f'buffer_store_dword v1, v14, s[24:27], 0 offen offset:{8+4*i}')
        lab('K2_DBGE')
    elif STAMPS:
        A('s_memrealtime s[98:99]'); A('s_waitcnt lgkmcnt(0)'); A('s_mov_b32 s97, s98')
        A(f's_add_u32 s24, s{sWS}, 0x2000000'); A(f's_addc_u32 s25, s{sWS+1}, 0'); A('s_mov_b32 s26, 0x100000'); A('s_mov_b32 s27, 0x20000')
        A(f's_lshl_b32 s75, s2, 3'); A(f's_add_u32 s75, s75, s{sWAVE}'); A('s_lshl_b32 s75, s75, 6')
        for i in range(12):
            A(f'v_mov_b32 v1, s{86+i}'); A(f'v_mov_b32 v14, {4*i}'); A('buffer_store_dword v1, v14, s[24:27], s75 offen')
def x_dma(sbase):
    o=[f's_mov_b32 m0, s{sbase}']
    for m in range(4):
        o.append(f'v_mad_u32_u16 v{XV+m}, v{XI+(m>>1)}, s{s128}, v{cXM+m} op_sel:[{m&1},0,0,0]')
        o.append(f'buffer_load_dwordx4 v{XV+m}, s[{XG_}:{XG_+3}], 0 offen offset:{1024*m} lds')
    return o
ENT=' '+os.environ.get('EFL','nt')
def e_issue(p):
    return [f'v_mad_u32_u24 v{EV}, v{EI}, 32, v{cKG}', f'buffer_load_dwordx4 {q(AE[p])}, v{EV}, s[{EA_}:{EA_+3}], 0 offen{ENT}']
def e_flag(p): return [f'v_and_b32 v{ONEA[p]}, 0xff000000, v{EI}']
def summ(G,H,b,rb,ct):
    if ENV('PK'):
        P=lambda x: f'v[{x}:{x+1}]'
        o=[f'v_pk_mul_f32 {P(PN)}, {P(G+b)}, {P(H+b)}', f'v_pk_add_f32 {P(PD)}, {P(G+b)}, {P(G+b+2)}']
        for r in (2,4,6):
            o.append(f'v_pk_fma_f32 {P(PN)}, {P(G+b+r)}, {P(H+b+r)}, {P(PN)}')
            if r>=4: o.append(f'v_pk_add_f32 {P(PD)}, {P(PD)}, {P(G+b+r)}')
        o.append(f'v_add_f32 v{SD}, v{PD}, v{PD+1}'); o.append(f'v_add_f32 v{SN}, v{PN}, v{PN+1}')
    else:
        o=[f'v_mul_f32 v{SN}, v{G+b}, v{H+b}', f'v_add_f32 v{SD}, v{G+b}, v{G+b+1}']
        for r in range(1,8):
            o.append(f'v_fmac_f32 v{SN}, v{G+b+r}, v{H+b+r}')
            if r>=2: o.append(f'v_add_f32 v{SD}, v{SD}, v{G+b+r}')
    o.append(f'v_cvt_f64_f32 v[{PD}:{PD+1}], v{SD}'); o.append(f'v_cvt_f64_f32 v[{PN}:{PN+1}], v{SN}')
    if not ENV('NO_DSADD'):
        o.append(f'ds_add_f64 v{rb}, v[{PD}:{PD+1}] offset:{ct*256}'); o.append(f'ds_add_f64 v{rb}, v[{PN}:{PN+1}] offset:{512+ct*256}')
    return o
def inter(v, m, every):
    o=[]; m=list(m)
    for i,x in enumerate(v):
        if m and i%every==0: o+=m.pop(0)
        o.append(x)
    for g in m: o+=g
    return o
def gchain(G,ct,p):
    return [[mf(G,AX,WB+16*ct,'0')],[mf(G,AX+4,WB+16*ct+4,G)],[mf(G,AX+8,WB+16*ct+8,G)],[mf(G,AX+12,WB+16*ct+12,G)],
            [mf(G,AE[p],WC+4*ct,G)],[mf(G,AZ1 if ct else AZ0,XB,G)]]
def xb_reads(): return [f'ds_read2_b32 v[{XB}:{XB+1}], v{RA0} offset0:0 offset1:32', f'ds_read2_b32 v[{XB+2}:{XB+3}], v{RA1} offset0:0 offset1:32']
def ra_mads(g): return [f'v_mad_u32_u16 v{RA0}, v{g}, 64, v{cRA} op_sel:[0,0,0,0]', f'v_mad_u32_u16 v{RA1}, v{g}, 64, v{cRA} op_sel:[1,0,0,0]']
def body(p):
    o=[]
    ex=lambda G:[f'v_exp_f32 v{G+r}, v{G+r}' for r in range(16)]
    rc=lambda G:[f'v_rcp_f32 v{G+r}, v{G+r}' for r in range(16)]
    XN=ENV('XNEAR')
    xd=x_dma((sX1 if p==0 else sX0) if XN else (sX0 if p==0 else sX1)) if not ENV('NO_XDMA') else ['s_nop 0']
    grp=[[mf(H0,AX+4*s,WV+4*s,'0' if s==0 else H0)]+(xd[:3] if s==0 else xd[1+2*s:3+2*s]) for s in range(4)]
    o+=inter(ex(G0), grp, 4)
    sb=summ(G1,H1,8,RB1,1)
    o+=sb[:2]+[mf(G0,ONEA[p],ONEB,G0)]+sb[2:]
    o+=[f'v_mad_u32_u16 v{RB0}, v{GR[p]}, 64, v{cRB} op_sel:[0,0,0,0]', f'v_mad_u32_u16 v{RB1}, v{GR[p]}, 64, v{cRB} op_sel:[1,0,0,0]']
    o+=inter(rc(G0), gchain(G1,1,p), 3)
    o+=summ(G0,H0,0,RB0,0)
    o+=['s_waitcnt vmcnt(0)' if XN else 's_waitcnt vmcnt(5)',
        f'ds_read2_b32 v[{XI}:{XI+1}], v{aXS} offset0:{16*STR*p} offset1:{16*STR*p+4}',
        f'ds_read_b32 v{EI}, v{aES} offset:{128*STR*p}', f'ds_read_b32 v{GR[p^1]}, v{aGRP} offset:{8*STR*p}']
    o+=inter(ex(G1), [[mf(H1,AX+4*s,WV+16+4*s,'0' if s==0 else H1), f'ds_read_b128 {q(AX+4*s)}, v{aAX+s} offset:{32768*(p^1)}'] for s in range(4)], 4)
    sb=summ(G0,H0,8,RB1,0)
    o+=sb[:2]+[mf(G1,ONEA[p],ONEB,G1)]
    o+=['s_waitcnt lgkmcnt(4)']+ra_mads(GR[p^1])
    o+=(e_issue(p) if not ENV('NO_EDMA') else [])+xb_reads()+e_flag(p)
    o+=sb[2:]
    o+=['s_waitcnt lgkmcnt(4)' if XN else 's_waitcnt vmcnt(5) lgkmcnt(4)']
    gc=gchain(G0,0,p^1)
    gc[5]=['s_waitcnt lgkmcnt(2)']+gc[5]
    o+=inter(rc(G1), gc, 3)
    o+=summ(G1,H1,0,RB0,1)
    if p==1:
        o+=[f'v_add_u32 v{aXS}, {128*STR}, v{aXS}', f'v_add_u32 v{aES}, {256*STR}, v{aES}', f'v_add_u32 v{aGRP}, {16*STR}, v{aGRP}']
    if ENV('NO_XMFMA'):
        o=[i for i in o if not (i.startswith('v_mfma') and any(f', {q(AX+4*s)}, ' in i for s in range(4)))]
    if ENV('NO_HMFMA'): o=[i for i in o if not (i.startswith('v_mfma') and (i.startswith(f'v_mfma_f32_32x32x16_bf16 {q(H0,16)}') or i.startswith(f'v_mfma_f32_32x32x16_bf16 {q(H1,16)}')))]
    if ENV('NO_SUMS'): o=[i for i in o if not (i.startswith('v_fmac') or (i.startswith('v_add_f32')) or i.startswith('v_mul_f32'))]
    if ENV('NO_SMALLM'): o=[i for i in o if not (i.startswith('v_mfma') and not any(f', {q(AX+4*s)}, ' in i for s in range(4)))]
    if ENV('NO_MFMA'): o=[i for i in o if not i.startswith('v_mfma')]
    if ENV('NO_TRANS'): o=[i for i in o if not (i.startswith('v_exp') or i.startswith('v_rcp'))]
    return o

def cell_off_g(dst, creg):
    A(f'v_add_u32 v{dst}, s{sBH}, v{creg}'); A(f'v_and_b32 v{dst}, 255, v{dst}'); A(f'v_lshlrev_b32 v{dst}, 7, v{dst}'); A(f'v_lshl_add_u32 v{dst}, v5, 4, v{dst}'); A(f'v_add_u32 v{dst}, s{sBL}, v{dst}')
    A(f'v_cmp_gt_u32 vcc, {NCH}, v{creg}'); A('v_mov_b32 v14, 0x7fffffff'); A('s_nop 0'); A(f'v_cndmask_b32 v{dst}, v14, v{dst}, vcc')
def k2():
    lab('standalone__edge_featured_mpnn_gatedgcn__graph_kernel')
    A('s_cmp_ge_u32 s2, 256'); A('s_cbranch_scc1 K2_END')
    A(f's_load_dwordx2 s[{sWS}:{sWS+1}], s[0:1], 88')
    A('s_load_dwordx4 s[4:7], s[0:1], 0')
    A('s_load_dwordx2 s[20:21], s[0:1], 72')
    A(f's_and_b32 s{sB}, s2, 7'); A(f's_lshl_b32 s{sB}, s{sB}, 5'); A(f's_lshr_b32 s{sT0}, s2, 3'); A(f's_or_b32 s{sB}, s{sB}, s{sT0}')
    A('v_lshrrev_b32 v1, 6, v0'); A('v_and_b32 v15, 63, v0')
    A(f'v_readfirstlane_b32 s{sWAVE}, v1')
    A(f'v_lshlrev_b32 v{vL16}, 4, v15')
    A(f's_lshr_b32 s{sBH}, s{sB}, 1'); A(f's_and_b32 s{sBL}, s{sB}, 1'); A(f's_lshl_b32 s{sBL}, s{sBL}, 6')
    A('v_lshrrev_b32 v4, 2, v0'); A('v_and_b32 v5, 3, v0')
    cell_off_g(CO, 4); A('v_add_u32 v4, 128, v4'); cell_off_g(CO+1, 4)
    A(f's_lshl_b32 s{sT0}, s{sBH}, 15')
    A('s_waitcnt lgkmcnt(0)')
    if STAMPS:
        A('s_memrealtime s[98:99]'); A('s_waitcnt lgkmcnt(0)'); A('s_mov_b32 s96, s98')
    stamp('start')
    A(f's_add_u32 s12, s{sWS}, s{sT0}'); A(f's_addc_u32 s13, s{sWS+1}, 0'); A(f's_mov_b32 s14, {0x400000+32768}'); A('s_mov_b32 s15, 0x20000')
    for u in range(2): A(f"buffer_load_dwordx4 {q(EN+4*u)}, v{CO+u}, s[12:15], 0 offen {os.environ.get('CLD','')}")
    A(f's_mov_b32 s{sPB}, 0x400000')
    def init_a():
        A('v_lshlrev_b32 v1, 4, v0')
        for r in range(4): A(f'v_mov_b32 v{AX+r}, -1')
        A(f'v_add_u32 v14, {XS}, v1'); A(f'ds_write_b128 v14, {q(AX)}')
        for r in range(4): A(f'v_mov_b32 v{AX+4+r}, 0x{EPAD:08x}')
        A(f'ds_write_b128 v14, {q(AX+4)} offset:8192'); A(f'ds_write_b128 v14, {q(AX+4)} offset:16384')
        for r in range(4): A(f'v_mov_b32 v{AX+8+r}, 0x{(DUMMY<<16)|DUMMY:08x}')
        for r in range(4): A(f'v_mov_b32 v{AX+12+r}, 0')
        A('v_cmp_gt_u32 vcc, 64, v0'); A('s_nop 1')
        for r in range(4): A(f'v_cndmask_b32 v{AX+8+r}, v{AX+12+r}, v{AX+8+r}, vcc')
        A('v_cmp_gt_u32 vcc, 96, v0'); A(f's_and_saveexec_b64 s[{MK}:{MK+1}], vcc'); A(f'ds_write_b128 v14, {q(AX+8)} offset:{GRP-XS}'); A(f's_mov_b64 exec, s[{MK}:{MK+1}]')
    init_a()
    A('s_mov_b32 s8, s6'); A('s_mov_b32 s9, s7'); A(f's_mov_b32 s10, {E*32}'); A('s_mov_b32 s11, 0x20000')
    A(f's_mov_b32 s6, {N*128}'); A('s_mov_b32 s7, 0x20000')
    A(f's_mov_b32 s22, {N*128}'); A('s_mov_b32 s23, 0x20000')
    A(f's_add_u32 s16, s{sWS}, {WS_WPREP}'); A(f's_addc_u32 s17, s{sWS+1}, 0'); A('s_mov_b32 s18, 34816'); A('s_mov_b32 s19, 0x20000')
    A(f's_add_u32 s24, s{sWS}, {WS_OVFCNT}'); A(f's_addc_u32 s25, s{sWS+1}, 0'); A('s_mov_b32 s26, 1000'); A('s_mov_b32 s27, 0x20000')
    A(f'v_lshrrev_b32 v14, 3, v15'); A(f's_lshl_b32 s{sT0}, s{sWAVE}, 3'); A(f'v_add_u32 v14, s{sT0}, v14')
    A(f'v_lshlrev_b32 v14, 8, v14'); A(f'v_add_u32 v14, s{sB}, v14'); A('v_lshlrev_b32 v14, 7, v14')
    A('v_lshrrev_b32 v4, 4, v15'); A('v_and_b32 v5, 7, v15'); A('v_xor_b32 v4, v4, v5'); A(f'v_lshlrev_b32 v{cXE}, 4, v4'); A(f'v_xor_b32 v{cXO}, 64, v{cXE}')
    A(f's_and_b32 s{sT0}, s{sWAVE}, 1'); A(f's_cmp_eq_u32 s{sT0}, 0'); A('s_cselect_b64 vcc, -1, 0')
    A(f'v_cndmask_b32 v4, v{cXO}, v{cXE}, vcc'); A('v_add_u32 v4, v14, v4')
    A(f'v_mov_b32 v{CO+2-2+0}, v{CO}') if False else None
    A(f'v_mov_b32 v{XV}, v4')
    stamp('issued')
    A('v_lshrrev_b32 v14, 6, v0'); A(f'v_mul_u32_u24 v14, {RECSZ}, v14'); A(f'v_add_u32 v14, v14, v{vL16}'); A(f'v_add_u32 v14, {REC+O_DEN}, v14')
    for r in range(4): A(f'v_mov_b32 v{AX+r}, 0')
    for i in range(5): A(f'ds_write_b128 v14, {q(AX)} offset:{8*RECSZ*i}')
    A(f'v_add_u32 v14, {8*RECSZ*5}, v14'); A(f'ds_write_b128 v14, {q(AX)}')
    A('v_cmp_gt_u32 vcc, 128, v0'); A(f's_and_saveexec_b64 s[{MK}:{MK+1}], vcc'); A(f'ds_write_b128 v14, {q(AX)} offset:{8*RECSZ}'); A(f's_mov_b64 exec, s[{MK}:{MK+1}]')
    A(f'v_mov_b32 v{vONE}, 1')
    A(f's_mov_b32 s{sCNT}, {CNT}'); A(f's_mov_b32 s{sXS}, {XS}'); A(f's_mov_b32 s{sES}, {ES}'); A(f's_mov_b32 s{s128}, 128')
    A(f's_mov_b32 s{sMODE}, 0'); A(f's_mov_b32 s{sFIRST}, 1'); A(f's_mov_b32 s{sU}, 0')
    A('v_lshrrev_b32 v4, 2, v0'); A('v_mul_u32_u24 v4, 3200, v4')
    for u in range(4): A(f'v_add_u32 v{EB+u}, 0x{(128*(u&1)*3200-1+EFLAG)&0xffffffff:08x}, v4')
    for k in range(8,16): A(f'v_mov_b32 v{EN+k}, 0')
    def lane_consts():
        C('lane constants (v1 = kg)')
        A('v_lshrrev_b32 v1, 5, v15'); A(f'v_lshlrev_b32 v{cKG}, 4, v1')
        A('v_bfe_u32 v5, v15, 3, 2'); A('v_lshlrev_b32 v4, 5, v1'); A('v_lshl_add_u32 v4, v5, 2, v4'); A(f'v_add_u32 v{kXS}, {XS}, v4')
        A('v_bfe_u32 v4, v15, 2, 1'); A('v_lshlrev_b32 v4, 4, v4'); A('v_bfe_u32 v5, v15, 4, 1'); A('v_lshl_add_u32 v4, v5, 3, v4')
        A('v_and_b32 v5, 3, v15'); A('v_lshl_add_u32 v4, v5, 1, v4'); A('v_bfe_u32 v5, v15, 3, 1'); A('v_add_u32 v4, v4, v5')
        A('v_lshlrev_b32 v4, 2, v4'); A(f'v_add_u32 v{kES}, {ES}, v4')
        A('v_lshlrev_b32 v4, 2, v1'); A(f'v_add_u32 v{kGRP}, {GRP}, v4')
        A('v_and_b32 v4, 31, v15'); A('v_lshlrev_b32 v5, 2, v4'); A(f'v_add_u32 v{cRA}, {REC}, v5'); A('v_lshlrev_b32 v5, 3, v4'); A(f'v_add_u32 v{cRB}, {REC+O_DEN}, v5')
        A('v_bfe_u32 v5, v15, 1, 3'); A('v_xor_b32 v5, v5, v1'); A('v_lshlrev_b32 v5, 4, v5'); A('v_lshl_add_u32 v4, v4, 7, v5')
        for s in range(4): A(f'v_xor_b32 v{kAX+s}, {32*s}, v4')
        A(f's_lshl_b32 s{sX0}, s{sWAVE}, 12'); A(f's_add_u32 s{sX1}, s{sX0}, 32768')
        for m in range(4): A(f'v_add_u32 v{cXM+m}, {4096-1024*m}, v{cXO if m&1 else cXE}')
        A('v_bfe_u32 v4, v15, 2, 1'); A('v_cmp_eq_u32 vcc, v4, v1'); A('v_mov_b32 v5, 0x3f803f80'); A('s_nop 0'); A('v_cndmask_b32 v5, 0, v5, vcc')
        A('v_bfe_u32 v4, v15, 4, 1'); A('v_cmp_eq_u32 vcc, 0, v4'); A('s_nop 1'); A(f'v_cndmask_b32 v{AZ0}, 0, v5, vcc')
        A(f'v_sub_u32 v{AZ0+2}, v5, v{AZ0}'); A(f'v_mov_b32 v{AZ0+1}, 0'); A(f'v_mov_b32 v{AZ0+3}, 0')
        A(f'v_mov_b32 v{AZ1}, 0'); A(f'v_mov_b32 v{AZ1+1}, v{AZ0}'); A(f'v_mov_b32 v{AZ1+2}, 0'); A(f'v_mov_b32 v{AZ1+3}, v{AZ0+2}')
        A('v_cmp_eq_u32 vcc, 0, v1'); A('v_mov_b32 v5, 0x3f000000'); A('s_nop 0'); A(f'v_cndmask_b32 v{ONEB}, 0, v5, vcc')
        for r in range(1,4): A(f'v_mov_b32 v{ONEB+r}, 0'); A(f'v_mov_b32 v{ONEA[0]+r}, 0'); A(f'v_mov_b32 v{ONEA[1]+r}, 0')
    lane_consts()
    stamp('consts')
    A('s_waitcnt vmcnt(0)')
    for u in range(2):
        A(f'v_mov_b32_dpp v14, v{EN+4*u+3} quad_perm:[3,3,3,3] row_mask:0xf bank_mask:0xf'); A('s_nop 0')
        A('v_cmp_ne_u32 vcc, 0, v14'); A('s_mov_b64 exec, vcc')
        A(f'buffer_load_dwordx4 {q(EN+8+4*u)}, v{CO+u}, s[12:15], s{sPB} offen'); A('s_mov_b64 exec, -1')
    A(f's_lshl_b32 s{sT0}, s{sWAVE}, 10'); A(f's_add_u32 m0, s{sT0}, {OWNX}'); A('s_nop 0')
    A(f'buffer_load_dwordx4 v{XV}, s[{X_}:{X_+3}], 0 offen lds')
    for i in range(3):
        A(f's_add_u32 s{sT1}, s{sT0}, {8192*i}'); A(f's_add_u32 m0, s{sT1}, {WSTG}'); A('s_nop 0')
        A(f'buffer_load_dwordx4 v{vL16}, s[16:19], s{sT1} offen lds')
    A('s_branch K2_WD')
    lab('K2_ROUND')
    init_a()
    A('s_waitcnt vmcnt(0)')
    lab('K2_WD')
    stamp('vmw')
    if ENV('HALFCELL'):
        A(f's_cmp_eq_u32 s{sMODE}, 2'); A('s_cbranch_scc1 K2_NOMASK')
        A('v_and_b32 v14, 4, v15'); A('v_cmp_eq_u32 s[84:85], 0, v14')
        for u in range(4):
            A(f'v_mov_b32_dpp v1, v{EN+4*u+3} quad_perm:[3,3,3,3] row_mask:0xf bank_mask:0xf'); A('s_nop 1')
            A('v_mov_b32_dpp v14, v1 row_shr:4 row_mask:0xf bank_mask:0xf bound_ctrl:0'); A('s_nop 0')
            A('v_cmp_ne_u32 vcc, 0, v14'); A('s_or_b64 vcc, vcc, s[84:85]')
            for k in range(4): A(f'v_cndmask_b32 v{EN+4*u+k}, 0, v{EN+4*u+k}, vcc')
        lab('K2_NOMASK')
    def pre(ks):
        for k in ks: A(f'v_cmp_ne_u32 s[{MK+2*k}:{MK+2*k+1}], 0, v{EN+k}')
        for k in ks: A(f'v_and_b32 v{AD+k}, 63, v{EN+k}'); A(f'v_lshl_add_u32 v{AD+k}, v{AD+k}, 2, s{sCNT}')
    def atom(ks):
        for k in ks: A(f's_mov_b64 exec, s[{MK+2*k}:{MK+2*k+1}]'); A(f'ds_add_rtn_u32 v{RK+k}, v{AD+k}, v{vONE}')
        A('s_mov_b64 exec, -1')
    pre(range(8))
    A('s_waitcnt lgkmcnt(0)'); A('s_barrier')
    stamp('bar1')
    def ew(ks):
        for k in ks: A(f'v_lshrrev_b32 v{EW+k}, 20, v{EN+k}'); A(f'v_bfe_u32 v{EN+k}, v{EN+k}, 6, 14'); A(f'v_add_u32 v{EW+k}, v{EW+k}, v{EB+k//4}')
    atom(range(8))
    A(f's_cmp_eq_u32 s{sFIRST}, 1'); A('s_cbranch_scc0 K2_NF1')
    A(f'buffer_load_dwordx4 {q(T0)}, v{vL16}, s[24:27], 0 offen')
    A(f's_lshr_b32 s{sT0}, s{sWAVE}, 1'); A(f's_lshl_b32 s{sT0}, s{sT0}, 12'); A(f's_add_u32 s{sT0}, s{sT0}, {18*1024}')
    for s_ in range(4): A(f'buffer_load_dwordx4 {q(NGB+4*s_)}, v{vL16}, s[16:19], s{sT0} offen offset:{1024*s_}')
    A(f's_lshr_b32 s{sT0}, s2, 3'); A(f's_mul_i32 s{sT0}, s{sT0}, 391'); A(f'v_add_u32 v14, s{sT0}, v0'); A('v_lshlrev_b32 v14, 7, v14')
    A('v_cmp_gt_u32 vcc, 391, v0'); A(f'v_mov_b32 v{T0+5}, 0x7fffffff'); A('s_nop 0'); A(f'v_cndmask_b32 v14, v{T0+5}, v14, vcc')
    if ENV('NOXPF'): A(f'v_mov_b32 v14, v{T0+5}')
    A(f'v_mov_b32 v{kP2}, v14'); A(f's_cmp_ge_u32 s{sWAVE}, {XSPLIT}'); A('s_cselect_b64 vcc, -1, 0')
    A(f'v_cndmask_b32 v14, v14, v{T0+5}, vcc'); A(f'v_cndmask_b32 v{kP2}, v{T0+5}, v{kP2}, vcc')
    if (not ENV('XEARLY')): A(f'v_mov_b32 v{kP1}, v14')
    else: A(f'buffer_load_dword v{T0+5}, v14, s[{X_}:{X_+3}], 0 offen')
    lab('K2_NF1')
    ew(range(8))
    A('s_waitcnt vmcnt(9)' if (not ENV('XEARLY')) else 's_waitcnt vmcnt(10)')
    for k in range(8,16): A(f'v_cmp_ne_u32 s[{MK+2*k}:{MK+2*k+1}], 0, v{EN+k}')
    def addr(ks):
        for k in ks: A(f'v_and_b32 v{AD+k}, 63, v{EN+k}'); A(f'v_lshl_add_u32 v{AD+k}, v{AD+k}, 2, s{sCNT}')
    addr(B0); atom(B0); ew(B0)
    A(f's_or_b64 s[84:85], s[{MK+18}:{MK+19}], s[{MK+26}:{MK+27}]'); A(f's_cselect_b32 s{sG1}, 1, 0')
    A(f's_or_b64 s[84:85], s[{MK+20}:{MK+21}], s[{MK+22}:{MK+23}]'); A(f's_or_b64 s[84:85], s[84:85], s[{MK+28}:{MK+29}]'); A(f's_or_b64 s[84:85], s[84:85], s[{MK+30}:{MK+31}]'); A(f's_cselect_b32 s{sG2}, 1, 0')
    def guarded(tag, fn):
        for g,(sg,ks) in enumerate(((sG1,B1),(sG2,B2))):
            A(f's_cmp_eq_u32 s{sg}, 0'); A(f's_cbranch_scc1 K2_SK{tag}{g}'); fn(ks); lab(f'K2_SK{tag}{g}')
    guarded('H', lambda ks: (addr(ks), atom(ks), ew(ks)))
    A('s_waitcnt lgkmcnt(0)'); A('s_barrier')
    stamp('hist')
    A(f's_cmp_eq_u32 s{sFIRST}, 1'); A('s_cbranch_scc0 K2_NF2')
    A(f"buffer_load_dword v{T0+5}, v{kP1 if (not ENV('XEARLY')) else kP2}, s[{X_}:{X_+3}], 0 offen")
    lab('K2_NF2')
    A(f'v_lshl_add_u32 v4, v15, 2, s{sCNT}'); A('ds_read_b32 v5, v4'); A('s_waitcnt lgkmcnt(0)')
    A('v_add_u32 v5, 7, v5'); A('v_lshrrev_b32 v5, 3, v5'); A('v_mov_b32 v1, v5'); A('s_nop 1')
    for sh in (1,2,4,8):
        A(f'v_add_u32_dpp v1, v1, v1 row_shr:{sh} row_mask:0xf bank_mask:0xf bound_ctrl:0'); A('s_nop 1')
    A('v_add_u32_dpp v1, v1, v1 row_bcast:15 row_mask:0xa bank_mask:0xf'); A('s_nop 1')
    A('v_add_u32_dpp v1, v1, v1 row_bcast:31 row_mask:0xc bank_mask:0xf'); A('s_nop 1')
    A(f'v_readlane_b32 s{sNT}, v1, 63')
    A('v_sub_u32 v1, v1, v5')
    A(f'v_lshlrev_b32 v{T0+4}, 3, v1')
    if not ENV('BPERM'): A(f'ds_write_b32 v4, v{T0+4} offset:256')
    A(f's_cmp_gt_u32 s{sNT}, {CAPG}'); A('s_cbranch_scc1 K2_SPLIT')
    if ENV('BPERM'):
        for k in range(16): A(f'ds_bpermute_b32 v{AD+k}, v{AD+k}, v{T0+4}')
    else:
        nb=lambda ks: [A(f'ds_read_b32 v{AD+k}, v{AD+k} offset:256') for k in ks]
        nb(list(range(8))+B0); guarded('N', nb)
    A(f'v_mul_u32_u24 v{XV}, 22, v15'); A(f'v_mov_b32 v{XV+1}, s{sWAVE}')
    lab('K2_GL')
    A(f'v_cmp_lt_u32 vcc, v{XV+1}, v5'); A('s_and_saveexec_b64 s[84:85], vcc'); A('s_cbranch_execz K2_GLD')
    A(f'v_add_u32 v{XV+2}, v1, v{XV+1}'); A(f'v_lshlrev_b32 v{XV+2}, 1, v{XV+2}'); A(f'v_add_u32 v{XV+2}, {GRP}, v{XV+2}')
    A(f'ds_write_b16 v{XV+2}, v{XV}'); A(f'v_add_u32 v{XV+1}, 8, v{XV+1}')
    A('s_mov_b64 exec, s[84:85]'); A('s_branch K2_GL')
    lab('K2_GLD'); A('s_mov_b64 exec, -1')
    if (not ENV('XEARLY')):
        A(f's_cmp_eq_u32 s{sFIRST}, 1'); A('s_cbranch_scc0 K2_NF3'); A(f'buffer_load_dword v{T0+5}, v{kP2}, s[{X_}:{X_+3}], 0 offen'); lab('K2_NF3')
    A('s_waitcnt lgkmcnt(0)')
    stamp('prefix')
    def slot(ks):
        for k in ks:
            A(f'v_add_u32 v{RK+k}, v{RK+k}, v{AD+k}')
            A(f'v_lshl_add_u32 v{AD+k}, v{RK+k}, 1, s{sXS}')
            A(f'v_lshl_add_u32 v{RK+k}, v{RK+k}, 2, s{sES}')
        for k in ks:
            A(f's_mov_b64 exec, s[{MK+2*k}:{MK+2*k+1}]')
            A(f'ds_write_b16 v{AD+k}, v{EN+k}'); A(f'ds_write_b32 v{RK+k}, v{EW+k}')
        A('s_mov_b64 exec, -1')
    slot(list(range(8))+B0); guarded('S', slot)
    A(f's_add_u32 s{sNT}, s{sNT}, 3'); A(f's_lshr_b32 s{sNT}, s{sNT}, 2')
    A('s_waitcnt vmcnt(2) lgkmcnt(0)'); A('s_barrier')
    stamp('bar3')
    A(f's_sub_u32 s{XG_}, s{X_}, 4096'); A(f's_subb_u32 s{XG_+1}, s{X_+1}, 0'); A(f's_mov_b32 s{XG_+2}, {N*128+4096}'); A(f's_mov_b32 s{XG_+3}, 0x20000')
    A(f's_mov_b32 s{sTI}, s{sWAVE}')
    A(f's_lshl_b32 s{sT0}, s{sWAVE}, 6'); A(f'v_add_u32 v{aXS}, s{sT0}, v{kXS}')
    A(f's_lshl_b32 s{sT0}, s{sWAVE}, 7'); A(f'v_add_u32 v{aES}, s{sT0}, v{kES}')
    A(f's_lshl_b32 s{sT0}, s{sWAVE}, 3'); A(f'v_add_u32 v{aGRP}, s{sT0}, v{kGRP}')
    A(f'ds_read_b32 v{EI}, v{aES}'); A(f'ds_read2_b32 v[{XI}:{XI+1}], v{aXS} offset0:0 offset1:4'); A(f'ds_read_b32 v{GR[0]}, v{aGRP}')
    for s in range(4): A(f'v_add_u32 v{aAX+s}, s{sX0}, v{kAX+s}')
    A('s_waitcnt lgkmcnt(0)')
    for i in x_dma(sX0)+e_issue(0)+e_flag(0): A(i)
    stamp('dma1')
    A(f's_cmp_eq_u32 s{sFIRST}, 0'); A('s_cbranch_scc1 K2_NG_DONE')
    A(f'v_add_u32 v1, {WSTG}, v{vL16}')
    A(f's_and_b32 s{sT0}, s{sWAVE}, 1'); A(f's_lshl_b32 s{sT0}, s{sT0}, 12'); A(f's_add_u32 s{sT0}, s{sT0}, {OWNX}')
    for s in range(4): A(f'v_add_u32 v{XV+s}, s{sT0}, v{kAX+s}')
    for s in range(4): A(f'ds_read_b128 {q(AX+4*s)}, v{XV+s}')
    for i in range(18): A(f'ds_read_b128 {q(WB+4*i)}, v1 offset:{1024*i}')
    A(f'v_or_b32 v{T0}, v{T0}, v{T0+1}'); A(f'v_or_b32 v{T0+2}, v{T0+2}, v{T0+3}'); A(f'v_or_b32 v{T0}, v{T0}, v{T0+2}')
    A(f'v_cmp_ne_u32 vcc, 0, v{T0}'); A('s_nop 3'); A('s_cmp_lg_u64 vcc, 0'); A(f's_cselect_b32 s{sOVF}, 1, 0')
    A('s_waitcnt lgkmcnt(0)')
    stamp('wread')
    for s in range(4): A(mf(G0, AX+4*s, NGB+4*s, '0' if s==0 else G0))
    A(f's_and_b32 s{sT0}, s{sWAVE}, 1'); A(f's_lshl_b32 s{sT0}, s{sT0}, 5'); A(f'v_lshrrev_b32 v1, 5, v15'); A(f'v_lshl_add_u32 v1, v1, 2, s{sT0}')
    A(f'v_mul_u32_u24 v1, {RECSZ}, v1')
    A(f's_bfe_u32 s{sT1}, s{sWAVE}, 0x10001')
    A(f's_cmp_ge_u32 s{sWAVE}, 4'); A('s_cbranch_scc1 K2_NG_U')
    A(f's_lshl_b32 s{sT1}, s{sT1}, 7'); A(f'v_add_u32 v1, v1, v{cRA}'); A(f'v_add_u32 v1, s{sT1}, v1')
    A(f's_mov_b32 s{sT2}, 0x{NLOG2E:08x}'); A('s_nop 7')
    for r in range(16):
        A(f'v_mul_f32 v{G0+r}, s{sT2}, v{G0+r}')
        A(f'v_cvt_pk_bf16_f32 v{SD}, v{G0+r}, v{G0+r}'); A(f'v_lshlrev_b32 v{SD}, 16, v{SD}'); A(f'v_sub_f32 v{SN}, v{G0+r}, v{SD}'); A(f'v_cvt_pk_bf16_f32 v{G0+r}, v{SD}, v{SN}')
    def wr_a(r): A(f'ds_write_b32 v1, v{G0+r} offset:{(8*(r//4)+(r%4))*RECSZ}')
    for r in range(8): wr_a(r)
    A(f's_and_b32 s{sT0}, s{sWAVE}, 1'); A(f's_cmp_eq_u32 s{sT0}, 0'); A('s_cbranch_scc0 K2_NG_A1')
    for r in range(8,16): wr_a(r)
    A('s_branch K2_NG_BAR')
    lab('K2_NG_A1')
    A('s_mov_b32 exec_lo, -1'); A('s_mov_b32 exec_hi, 0'); wr_a(8); wr_a(9); A('s_mov_b64 exec, -1'); A('s_branch K2_NG_BAR')
    lab('K2_NG_U')
    A(f's_lshl_b32 s{sT1}, s{sT1}, 6'); A(f'v_and_b32 v{SD}, 31, v15'); A(f'v_lshl_add_u32 v1, v{SD}, 1, v1'); A(f'v_add_u32 v1, s{sT1}, v1'); A(f'v_add_u32 v1, {REC+O_U}, v1')
    A('s_nop 7')
    for r in range(16): A(f'v_cvt_pk_bf16_f32 v{G0+r}, v{G0+r}, v{G0+r}')
    def wr_u(r): A(f'ds_write_b16 v1, v{G0+r} offset:{(8*(r//4)+(r%4))*RECSZ}')
    for r in range(8): wr_u(r)
    A(f's_and_b32 s{sT0}, s{sWAVE}, 1'); A(f's_cmp_eq_u32 s{sT0}, 0'); A('s_cbranch_scc0 K2_NG_U1')
    for r in range(8,16): wr_u(r)
    A('s_branch K2_NG_BAR')
    lab('K2_NG_U1')
    A('s_mov_b32 exec_lo, -1'); A('s_mov_b32 exec_hi, 0'); wr_u(8); wr_u(9); A('s_mov_b64 exec, -1')
    lab('K2_NG_BAR')
    stamp('ngm')
    A('s_waitcnt lgkmcnt(0)'); A('s_barrier')
    lab('K2_NG_DONE')
    stamp('ng')
    A(f's_mov_b32 s{sFIRST}, 0')
    A(f's_cmp_lt_u32 s{sTI}, s{sNT}'); A('s_cbranch_scc0 K2_LOOP_END')
    A(f'ds_read2_b32 v[{XI}:{XI+1}], v{aXS} offset0:{16*STR} offset1:{16*STR+4}'); A(f'ds_read_b32 v{EI}, v{aES} offset:{128*STR}')
    for i in ra_mads(GR[0]): A(i)
    A(f'v_mad_u32_u16 v{RB1}, v{GR[0]}, 64, v{cRB} op_sel:[1,0,0,0]')
    for i in xb_reads(): A(i)
    for r in range(8,16): A(f'v_mov_b32 v{G1+r}, 0'); A(f'v_mov_b32 v{H1+r}, 0')
    A('s_waitcnt lgkmcnt(2)')
    if ENV('XNEAR'):
        for i in e_issue(1)+e_flag(1): A(i)
        A(f'v_add_u32 v{aXS}, {64*STR}, v{aXS}')
        A('s_waitcnt vmcnt(1)')
    else:
        for i in x_dma(sX1)+e_issue(1)+e_flag(1): A(i)
        A(f'v_add_u32 v{aXS}, {128*STR}, v{aXS}')
        A(f'ds_read2_b32 v[{XI}:{XI+1}], v{aXS} offset0:0 offset1:4')
        A('s_waitcnt vmcnt(5)')
    stamp('entw')
    for s in range(4): A(f'ds_read_b128 {q(AX+4*s)}, v{aAX+s}')
    A(f'v_add_u32 v{aXS}, {64*STR}, v{aXS}'); A(f'v_add_u32 v{aES}, {256*STR}, v{aES}'); A(f'v_add_u32 v{aGRP}, {8*STR}, v{aGRP}')
    A('s_waitcnt lgkmcnt(0)')
    for g in gchain(G0,0,0):
        for i in g: A(i)
    A('s_nop 7'); A('s_nop 2')
    stamp('entd')
    lab('K2_LOOP')
    for i in body(0): A(i)
    A(f's_add_u32 s{sTI}, s{sTI}, {STR}'); A(f's_cmp_lt_u32 s{sTI}, s{sNT}'); A('s_cbranch_scc0 K2_TAIL')
    for i in body(1): A(i)
    A(f's_add_u32 s{sTI}, s{sTI}, {STR}'); A(f's_cmp_lt_u32 s{sTI}, s{sNT}'); A('s_cbranch_scc1 K2_LOOP')
    lab('K2_TAIL')
    for i in summ(G1,H1,8,RB1,1): A(i)
    lab('K2_LOOP_END')
    stamp('loop')
    A('s_waitcnt vmcnt(0)')
    A('v_lshrrev_b32 v1, 3, v0'); A('v_and_b32 v2, 7, v0')
    A(f'v_lshlrev_b32 v3, 8, v1'); A(f'v_add_u32 v3, s{sB}, v3'); A('v_lshlrev_b32 v3, 7, v3'); A('v_lshl_add_u32 v3, v2, 4, v3')
    A(f'buffer_load_dwordx4 {q(NGB)}, v3, s[{X_}:{X_+3}], 0 offen')
    A('s_waitcnt lgkmcnt(0)'); A('s_barrier')
    stamp('bar5')
    A(f's_cmp_eq_u32 s{sMODE}, 1'); A('s_cbranch_scc1 K2_NEXT_SPLIT')
    A(f's_cmp_eq_u32 s{sMODE}, 2'); A('s_cbranch_scc1 K2_NEXT_OVF')
    lab('K2_CHECK_OVF')
    A(f's_cmp_eq_u32 s{sOVF}, 0'); A('s_cbranch_scc1 K2_EPI')
    A(f's_mov_b32 s{sMODE}, 2'); A(f's_mov_b32 s{sOC}, 0'); A(f's_mov_b32 s{sOP}, 0'); A('s_branch K2_OVF_FIND')
    lab('K2_SPLIT')
    A(f's_mov_b32 s{sMODE}, 1'); A(f's_mov_b32 s{sU}, 0')
    A('s_waitcnt lgkmcnt(0)'); A('s_barrier')
    A('s_branch K2_LOADQ')
    lab('K2_NEXT_SPLIT')
    A(f's_add_u32 s{sU}, s{sU}, 1'); A(f's_cmp_ge_u32 s{sU}, 4'); A('s_cbranch_scc1 K2_CHECK_OVF')
    lab('K2_LOADQ')
    A(f's_and_b32 s{sT0}, s{sU}, 1'); A(f's_lshl_b32 s{sT0}, s{sT0}, 7'); A('v_lshrrev_b32 v4, 2, v0'); A(f'v_add_u32 v4, s{sT0}, v4'); A('v_and_b32 v5, 3, v0')
    cell_off_g(CO, 4)
    A('s_waitcnt vmcnt(0)')
    A(f'buffer_load_dwordx4 {q(EN)}, v{CO}, s[12:15], 0 offen')
    for k in range(4,16): A(f'v_mov_b32 v{EN+k}, 0')
    A(f's_cmp_ge_u32 s{sU}, 2'); A('s_cbranch_scc0 K2_LOADQ_A')
    A('s_waitcnt vmcnt(0)')
    A(f'v_mov_b32_dpp v14, v{EN+3} quad_perm:[3,3,3,3] row_mask:0xf bank_mask:0xf'); A('s_nop 0')
    A('v_cmp_ne_u32 vcc, 0, v14')
    for k in range(4): A(f'v_mov_b32 v{EN+k}, 0')
    A('s_mov_b64 exec, vcc'); A('s_cbranch_execz K2_LOADQ_B')
    A(f'buffer_load_dwordx4 {q(EN)}, v{CO}, s[12:15], s{sPB} offen')
    lab('K2_LOADQ_B'); A('s_mov_b64 exec, -1')
    lab('K2_LOADQ_A')
    A('v_mul_u32_u24 v4, 3200, v4'); A(f'v_add_u32 v{EB}, 0x{EFLAG-1:08x}, v4')
    A('s_branch K2_ROUND')
    lab('K2_NEXT_OVF')
    A(f's_add_u32 s{sOP}, s{sOP}, 2048')
    lab('K2_OVF_FIND')
    A(f's_cmp_ge_u32 s{sOC}, {NCH}'); A('s_cbranch_scc1 K2_EPI')
    A(f's_lshl_b32 s{sT0}, s{sOC}, 2'); A(f's_add_u32 s{sT0}, s{sT0}, {WS_OVFCNT}')
    A(f's_load_dword s{sON}, s[{sWS}:{sWS+1}], s{sT0}'); A('s_waitcnt lgkmcnt(0)')
    A(f's_cmp_gt_u32 s{sON}, s{sOP}'); A('s_cbranch_scc1 K2_OVF_LOAD')
    A(f's_add_u32 s{sOC}, s{sOC}, 1'); A(f's_mov_b32 s{sOP}, 0'); A('s_branch K2_OVF_FIND')
    lab('K2_OVF_LOAD')
    A(f's_mul_i32 s{sT0}, s{sOC}, 25600'); A(f's_add_u32 s{sT0}, s{sT0}, {WS_OVFL}')
    A(f's_add_u32 s24, s{sWS}, s{sT0}'); A(f's_addc_u32 s25, s{sWS+1}, 0'); A(f's_lshl_b32 s26, s{sON}, 3'); A('s_mov_b32 s27, 0x20000')
    A(f'v_add_u32 v1, s{sOP}, v0'); A('v_lshlrev_b32 v1, 3, v1')
    A(f'buffer_load_dwordx2 v[{AX}:{AX+1}], v1, s[24:27], 0 offen')
    for j in range(1,4):
        A(f's_mov_b32 s{sT0}, {4096*j}'); A(f'buffer_load_dwordx2 v[{AX+2*j}:{AX+2*j+1}], v1, s[24:27], s{sT0} offen')
    A('s_waitcnt vmcnt(0)')
    for j in range(4):
        A(f'v_cmp_eq_u32 vcc, s{sB}, v{AX+2*j+1}'); A('s_nop 1'); A(f'v_cndmask_b32 v{EN+j}, 0, v{AX+2*j}, vcc')
    for k in range(4,16): A(f'v_mov_b32 v{EN+k}, 0')
    A(f's_mul_i32 s{sT0}, s{sOC}, 3200'); A(f's_add_u32 s{sT0}, s{sT0}, 0x{EFLAG-1:08x}'); A(f'v_mov_b32 v{EB}, s{sT0}')
    A('s_branch K2_ROUND')
    lab('K2_EPI')
    A(f'v_mul_u32_u24 v4, {RECSZ}, v1'); A(f'v_add_u32 v4, {REC}, v4'); A('v_lshl_add_u32 v5, v2, 6, v4'); A('v_lshl_add_u32 v6, v2, 4, v4')
    for i in range(4): A(f'ds_read_b128 {q(48+4*i)}, v5 offset:{O_DEN+16*i}')
    for i in range(4): A(f'ds_read_b128 {q(64+4*i)}, v5 offset:{O_NUM+16*i}')
    A(f'ds_read_b128 v[36:39], v6 offset:{O_U}')
    A('s_mov_b32 s40, 0x358637bd')
    A('s_waitcnt lgkmcnt(0)')
    for i in range(8): A(f'v_cvt_f32_f64 v{20+i}, v[{48+2*i}:{49+2*i}]'); A(f'v_cvt_f32_f64 v{28+i}, v[{64+2*i}:{65+2*i}]')
    for i in range(8): A(f'v_add_f32 v{20+i}, s40, v{20+i}')
    for i in range(8): A(f'v_rcp_f32 v{20+i}, v{20+i}')
    for i in range(4):
        A(f'v_lshlrev_b32 v{40+2*i}, 16, v{36+i}'); A(f'v_and_b32 v{41+2*i}, 0xffff0000, v{36+i}')
    for i in range(8): A(f'v_fmac_f32 v{40+i}, v{28+i}, v{20+i}')
    for i in range(8):
        A(f'v_mul_f32 v{28+i}, 0, v{40+i}'); A(f'v_cmp_lt_f32 vcc, 0, v{40+i}'); A('s_nop 1'); A(f'v_cndmask_b32 v{28+i}, v{28+i}, v{40+i}, vcc')
    A('s_waitcnt vmcnt(0)')
    for i in range(4):
        A(f'v_lshlrev_b32 v{40+2*i}, 16, v{NGB+i}'); A(f'v_and_b32 v{41+2*i}, 0xffff0000, v{NGB+i}')
    for i in range(8): A(f'v_add_f32 v{28+i}, v{28+i}, v{40+i}')
    for i in range(4): A(f'v_cvt_pk_bf16_f32 v{20+i}, v{28+2*i}, v{29+2*i}')
    A(f"buffer_store_dwordx4 v[20:23], v3, s[{OU_}:{OU_+3}], 0 offen {os.environ.get('OST','sc1')}")
    stamp('end')
    stamp_store()
    lab('K2_END')
    A('s_endpgm')

hdr = f'''; GatedGCN edge-featured MPNN: K1 buckets edges by destination, K2 gathers + MFMA + segment-reduces in LDS.
; @launch kernel=gcn_sort_kernel grid=({K1_GRID},1,1) block=(1024,1,1) lds={K1_LDS}
; @launch kernel=standalone__edge_featured_mpnn_gatedgcn__graph_kernel grid=(256,1,1) block=(512,1,1) lds={LDS_END}
.amdgcn_target "amdgcn-amd-amdhsa--gfx950"
.text
'''
def kd(name, nv, ns):
    return f'''.p2align 6
.amdhsa_kernel {name}
  .amdhsa_next_free_vgpr {nv}
  .amdhsa_next_free_sgpr {ns}
  .amdhsa_accum_offset {(nv+3)//4*4}
  .amdhsa_group_segment_fixed_size 0
  .amdhsa_kernarg_size 96
  .amdhsa_user_sgpr_count 2
  .amdhsa_user_sgpr_kernarg_segment_ptr 1
  .amdhsa_system_sgpr_workgroup_id_x 1
.end_amdhsa_kernel
'''
out=[hdr]
out.append('.globl gcn_sort_kernel\n.p2align 8\n.type gcn_sort_kernel,@function')
k1(); out+=L; L=[]
out.append('.globl standalone__edge_featured_mpnn_gatedgcn__graph_kernel\n.p2align 8\n.type standalone__edge_featured_mpnn_gatedgcn__graph_kernel,@function')
k2(); out+=L
out.append('.section .rodata,"a"')
out.append(kd('gcn_sort_kernel', 40, 72))
out.append(kd('standalone__edge_featured_mpnn_gatedgcn__graph_kernel', NVGPR, 102 if STAMPS else 96))
open(sys.argv[1] if len(sys.argv)>1 else 'out.s','w').write('\n'.join(out)+'\n')
print('LDS_END',LDS_END)
```

```python
import sys, os
N=12500; E=800000; CH=3200; NCH=250; NBK=256
WS_CELLS=0; WS_OVFCNT=0x800000; WS_WPREP=0x801000; WS_OVFL=0x810000; WS_T=0x1000000
NLOG2E=0xBFB8AA3B
L=[]
def A(s): L.append(s if s.endswith(':') else '    '+s)
def lab(s): L.append(s+':')
def C(s): L.append('    ; '+s)
ENV=lambda k: os.environ.get(k)
def q(base,n=4): return f'v[{base}:{base+n-1}]'
def mf(d,a,b,c): return f'v_mfma_f32_32x32x16_bf16 {q(d,16)}, {q(a)}, {q(b)}, {c if c=="0" else q(c,16)}'
K1_GRID=NCH+3
K1_LDS=49152
S1=ENV('S1')
def k1():
    lab('gcn_sort_kernel')
    if ENV('DBG') or int(os.environ.get('STAMPS','0')): A('s_memrealtime s[50:51]')
    A(f's_cmp_ge_u32 s2, {K1_GRID}'); A('s_cbranch_scc1 K1_END3' if ENV('DBG') else 's_cbranch_scc1 K1_END')
    A('s_load_dwordx2 s[8:9], s[0:1], 88')
    A(f's_cmp_ge_u32 s2, {NCH}'); A('s_cbranch_scc1 K1_W')
    A('s_load_dwordx4 s[4:7], s[0:1], 16')
    if ENV('K1_XPF') or ENV('K1_MALL'): A('s_load_dwordx2 s[44:45], s[0:1], 0')
    A('v_lshlrev_b32 v1, 4, v0')
    A('s_mul_i32 s10, s2, 12800')
    A('s_waitcnt lgkmcnt(0)')
    if int(os.environ.get('STAMPS','0')):
        A('s_add_u32 s56, s8, 0x2080000'); A('s_addc_u32 s57, s9, 0'); A('s_mov_b32 s58, 1024'); A('s_mov_b32 s59, 0x20000')
        A('s_lshl_b32 s60, s2, 2'); A('v_mov_b32 v20, s50'); A('v_mov_b32 v21, s60'); A('buffer_store_dword v20, v21, s[56:59], 0 offen')
    A('s_add_u32 s16, s6, s10'); A('s_addc_u32 s17, s7, 0'); A('s_mov_b32 s18, 12800'); A('s_mov_b32 s19, 0x20000')
    A('buffer_load_dwordx4 v[8:11], v1, s[16:19], 0 offen')
    A('s_add_u32 s12, s4, s10'); A('s_addc_u32 s13, s5, 0'); A('s_mov_b32 s14, 12800'); A('s_mov_b32 s15, 0x20000')
    A('buffer_load_dwordx4 v[12:15], v1, s[12:15], 0 offen')
    if ENV('K1_XPF'):
        A(f's_mov_b32 s46, {N*128}'); A('s_mov_b32 s47, 0x20000')
        A('s_lshr_b32 s10, s2, 3'); A('s_mul_i32 s10, s10, 404'); A('v_add_u32 v36, s10, v0'); A('v_lshlrev_b32 v36, 7, v36')
        A('v_cmp_gt_u32 vcc, 404, v0'); A('v_mov_b32 v37, 0x7fffffff'); A('s_nop 0'); A('v_cndmask_b32 v36, v37, v36, vcc')
        A('buffer_load_dword v38, v36, s[44:47], 0 offen')
    if ENV('K1_MALL'):
        A(f's_mov_b32 s46, {N*128}'); A('s_mov_b32 s47, 0x20000')
        A('s_mul_i32 s10, s2, 50'); A('v_subrev_u32 v36, 832, v0'); A('v_cmp_gt_u32 vcc, 50, v36'); A('v_add_u32 v36, s10, v36'); A('v_lshlrev_b32 v36, 7, v36')
        A('v_mov_b32 v37, 0x7fffffff'); A('v_cndmask_b32 v36, v37, v36, vcc')
        A('buffer_load_dword v38, v36, s[44:47], 0 offen')
    for r in range(4,8): A(f'v_mov_b32 v{r}, 0')
    A('ds_write_b128 v1, v[4:7]'); A('ds_write_b128 v1, v[4:7] offset:16384'); A('ds_write_b128 v1, v[4:7] offset:32768')
    A('s_mul_i32 s10, s2, 25600')
    A(f's_add_u32 s24, s8, {WS_OVFL}'); A('s_addc_u32 s25, s9, 0'); A('s_add_u32 s24, s24, s10'); A('s_addc_u32 s25, s25, 0')
    A('s_mov_b32 s26, 25600'); A('s_mov_b32 s27, 0x20000')
    A('s_mov_b32 s32, s8'); A('s_mov_b32 s33, s9'); A('s_mov_b32 s34, 0x800000'); A('s_mov_b32 s35, 0x20000')
    A(f's_add_u32 s40, s8, {WS_OVFCNT}'); A('s_addc_u32 s41, s9, 0'); A('s_mov_b32 s42, 1000'); A('s_mov_b32 s43, 0x20000')
    A('v_mov_b32 v2, 1'); A('v_mov_b32 v3, 37888')
    A('s_waitcnt lgkmcnt(0)'); A('s_barrier')
    A('v_cmp_gt_u32 vcc, 800, v0'); A('s_and_saveexec_b64 s[20:21], vcc'); A('s_cbranch_execz K1_SKIP')
    A('s_mov_b64 s[28:29], exec')
    NP=1 if (ENV('K1_XPF') or ENV('K1_MALL')) else 0
    A(f's_waitcnt vmcnt({1+NP})')
    for j in range(4):
        A(f'v_and_b32 v{16+j}, 255, v{8+j}')
        A(f'v_lshlrev_b32 v{24+j}, 2, v{16+j}')
        A(f'ds_add_rtn_u32 v{28+j}, v{24+j}, v2 offset:36864')
    A(f's_waitcnt vmcnt({NP})')
    for j in range(4):
        A(f'v_lshrrev_b32 v{20+j}, 8, v{8+j}')
        A(f'v_lshl_or_b32 v{20+j}, v{12+j}, 6, v{20+j}')
        A(f'v_lshl_add_u32 v32, v0, 2, {j+1}')
        A(f'v_lshl_or_b32 v{20+j}, v32, 20, v{20+j}')
        A(f'v_mul_u32_u24 v{24+j}, 144, v{16+j}')
    A('s_waitcnt lgkmcnt(0)')
    for j in range(4):
        A(f'v_and_b32 v32, 3, v{28+j}'); A(f'v_bfe_u32 v33, v{28+j}, 2, 2'); A('v_lshl_add_u32 v32, v32, 2, v33'); A('v_or_b32 v32, 16, v32')
        A(f'v_cmp_gt_u32 vcc, 16, v{28+j}'); A('s_nop 1'); A(f'v_cndmask_b32 v32, v32, v{28+j}, vcc')
        A(f'v_lshl_add_u32 v{24+j}, v32, 2, v{24+j}')
        A(f'v_cmp_gt_u32 vcc, 32, v{28+j}')
        A('s_mov_b64 exec, vcc')
        A(f'ds_write_b32 v{24+j}, v{20+j}')
        A('s_andn2_b64 exec, s[28:29], vcc')
        A(f's_cbranch_execz K1_NOV{j}')
        A('ds_add_rtn_u32 v33, v3, v2')
        A(f'v_mov_b32 v34, v{20+j}'); A(f'v_mov_b32 v35, v{16+j}')
        A('s_waitcnt lgkmcnt(0)')
        A('v_lshlrev_b32 v33, 3, v33')
        A('buffer_store_dwordx2 v[34:35], v33, s[24:27], 0 offen')
        A('s_nop 1')
        lab(f'K1_NOV{j}')
        A('s_mov_b64 exec, s[28:29]')
    lab('K1_SKIP')
    A('s_mov_b64 exec, -1')
    if ENV('TLBW'):
        STEP=int(ENV('TLBW'))
        A(f's_waitcnt vmcnt({NP})')
        A('s_cmp_lt_u32 s2, 8'); A('s_cbranch_scc0 K1_NOTLB')
        A('v_readfirstlane_b32 s48, v0'); A('s_nop 3'); A('s_cmp_ge_u32 s48, 832'); A('s_cbranch_scc0 K1_NOTLB')
        A('s_load_dwordx2 s[52:53], s[0:1], 8'); A('s_load_dwordx2 s[44:45], s[0:1], 0')
        A('v_subrev_u32 v36, 832, v0'); A(f'v_lshlrev_b32 v36, {STEP}, v36')
        A('s_waitcnt lgkmcnt(0)')
        A(f's_mov_b32 s54, {E*32}'); A('s_mov_b32 s55, 0x20000'); A(f's_mov_b32 s46, {N*128}'); A('s_mov_b32 s47, 0x20000')
        for i in range(-(-(E*32>>STEP)//192)):
            A(f's_mov_b32 s49, {(192*i)<<STEP}'); A('buffer_load_dword v37, v36, s[52:55], s49 offen')
        A('buffer_load_dword v38, v36, s[44:47], 0 offen')
        lab('K1_NOTLB')
        A('s_branch K1_AFTERW')
    A(f's_waitcnt vmcnt({NP})')
    if ENV('TLBW'): lab('K1_AFTERW')
    A('v_lshrrev_b32 v4, 3, v0'); A('v_and_b32 v5, 7, v0')
    A('v_lshrrev_b32 v21, 2, v0'); A('v_and_b32 v23, 3, v0')
    A('v_mul_u32_u24 v6, 144, v21'); A('v_lshl_add_u32 v6, v23, 4, v6')
    A('v_add_u32 v7, s2, v4'); A('v_and_b32 v7, 255, v7'); A('v_lshlrev_b32 v7, 7, v7'); A('v_lshl_add_u32 v7, v4, 15, v7'); A('v_lshl_add_u32 v7, v5, 4, v7')
    A('v_lshlrev_b32 v18, 2, v21'); A('s_mov_b32 s36, 0x400000')
    A('s_waitcnt lgkmcnt(0)'); A('s_barrier')
    CST=os.environ.get('CST','sc0 sc1')
    A('ds_read_b128 v[8:11], v6'); A('ds_read_b32 v19, v18 offset:36864'); A('ds_read_b128 v[12:15], v6 offset:64'); A('ds_read_b32 v16, v3')
    A('s_waitcnt lgkmcnt(3)')
    A(f'buffer_store_dwordx4 v[8:11], v7, s[32:35], 0 offen {CST}')
    A('s_waitcnt lgkmcnt(1)')
    A('v_cmp_le_u32 vcc, 16, v19'); A('s_mov_b64 exec, vcc')
    A(f'buffer_store_dwordx4 v[12:15], v7, s[32:35], s36 offen {CST}')
    A('s_mov_b64 exec, -1')
    if int(os.environ.get('STAMPS','0')):
        A('s_waitcnt vmcnt(0)'); A('s_memrealtime s[60:61]'); A('v_lshrrev_b32 v24, 6, v0'); A('v_lshlrev_b32 v24, 2, v24'); A('s_lshl_b32 s62, s2, 6'); A('v_add_u32 v24, s62, v24')
        A('s_mov_b32 s58, 0x8000'); A('s_waitcnt lgkmcnt(0)'); A('v_mov_b32 v23, s60'); A('v_add_u32 v24, 0x1000, v24'); A('buffer_store_dword v23, v24, s[56:59], 0 offen')
    A('v_cmp_eq_u32 vcc, 0, v0'); A('s_and_saveexec_b64 s[20:21], vcc'); A('s_cbranch_execz K1_END')
    A('s_lshl_b32 s10, s2, 2'); A('v_mov_b32 v17, s10')
    A('s_waitcnt lgkmcnt(0)')
    A('buffer_store_dword v16, v17, s[40:43], 0 offen')
    A('s_branch K1_END')
    lab('K1_W')
    A('s_load_dwordx8 s[12:19], s[0:1], 32')
    A('s_load_dwordx2 s[20:21], s[0:1], 64')
    A('v_lshrrev_b32 v1, 6, v0'); A('s_nop 0'); A('v_readfirstlane_b32 s10, v1')
    A(f's_sub_u32 s11, s2, {NCH}'); A('s_lshl_b32 s11, s11, 4'); A('s_nop 2'); A('s_add_u32 s10, s10, s11')
    A('s_cmp_ge_u32 s10, 34'); A('s_cbranch_scc1 K1_END')
    A('s_waitcnt lgkmcnt(0)')
    A('s_mov_b32 s24, s14'); A('s_mov_b32 s25, s15'); A('s_mov_b32 s26, 8192'); A('s_mov_b32 s27, 0x20000')
    A(f's_mov_b32 s28, 0x{NLOG2E:08x}'); A('s_mov_b32 s29, s10')
    A('s_cmp_ge_u32 s10, 8'); A('s_cbranch_scc0 K1_WSEL')
    A('s_mov_b32 s24, s20'); A('s_mov_b32 s25, s21'); A('s_mov_b32 s28, 0x3f800000'); A('s_sub_u32 s29, s10, 8')
    A('s_cmp_ge_u32 s10, 16'); A('s_cbranch_scc0 K1_WSEL')
    A('s_mov_b32 s24, s16'); A('s_mov_b32 s25, s17'); A('s_mov_b32 s26, 2048'); A(f's_mov_b32 s28, 0x{NLOG2E:08x}')
    A('s_sub_u32 s29, s10, 16'); A('s_lshl_b32 s29, s29, 2')
    A('s_cmp_ge_u32 s10, 18'); A('s_cbranch_scc0 K1_WSEL')
    A('s_mov_b32 s24, s12'); A('s_mov_b32 s25, s13'); A('s_mov_b32 s26, 8192'); A('s_mov_b32 s28, 0x3f800000'); A('s_sub_u32 s29, s10, 18')
    A('s_cmp_ge_u32 s10, 26'); A('s_cbranch_scc0 K1_WSEL')
    A('s_mov_b32 s24, s18'); A('s_mov_b32 s25, s19'); A('s_sub_u32 s29, s10, 26')
    lab('K1_WSEL')
    A('s_lshr_b32 s30, s29, 2'); A('s_and_b32 s31, s29, 3')
    A('s_lshl_b32 s30, s30, 6'); A('s_lshl_b32 s31, s31, 11'); A('s_add_u32 s30, s30, s31')
    A('v_and_b32 v2, 63, v0'); A('v_and_b32 v3, 31, v0'); A('v_lshrrev_b32 v4, 5, v2')
    A('v_lshlrev_b32 v4, 10, v4'); A('v_lshl_add_u32 v4, v3, 1, v4'); A('v_add_u32 v4, s30, v4')
    for t in range(8): A(f'buffer_load_ushort v{8+t}, v4, s[24:27], 0 offen offset:{128*t}')
    A(f's_add_u32 s32, s8, {WS_WPREP}'); A('s_addc_u32 s33, s9, 0'); A('s_mov_b32 s34, 34816'); A('s_mov_b32 s35, 0x20000')
    A('s_lshl_b32 s36, s10, 10'); A('v_lshlrev_b32 v5, 4, v2')
    A('s_waitcnt vmcnt(0)')
    for t in range(8):
        A(f'v_lshlrev_b32 v{8+t}, 16, v{8+t}'); A(f'v_mul_f32 v{8+t}, s28, v{8+t}')
    for t in range(4): A(f'v_cvt_pk_bf16_f32 v{16+t}, v{8+2*t}, v{9+2*t}')
    A('buffer_store_dwordx4 v[16:19], v5, s[32:35], s36 offen')
    lab('K1_END')
    if ENV('DBG'):
        A('s_cmp_eq_u32 s2, 7'); A('s_cbranch_scc0 K1_END2')
        A('s_load_dwordx2 s[52:53], s[0:1], 80'); A('s_memrealtime s[54:55]'); A('s_waitcnt lgkmcnt(0)')
        A('s_mov_b64 exec, 1'); A('s_mov_b32 s56, s54'); A('s_mov_b32 s54, 256'); A('s_mov_b32 s55, 0x20000')
        A('v_mov_b32 v20, s56'); A('v_mov_b32 v21, s50'); A('v_mov_b32 v22, 0')
        A('buffer_store_dword v21, v22, s[52:55], 0 offen'); A('buffer_store_dword v20, v22, s[52:55], 0 offen offset:4')
        lab('K1_END2')
        lab('K1_END3')
    A('s_endpgm')

XST=0; REC=65536; RECSZ=1408; XS=REC+50*RECSZ; ES=XS+8192; GRP=ES+16384; CNT=GRP+1024; NBT=CNT+256; LDS_END=NBT+256
OWNX=32768; WSTG=40960
O_DEN=256; O_NUM=768; O_U=1280
CAPG=512
DUMMY=49*22
EPAD=0x700FFFFF; EFLAG=0x40000000
cXE=2; cXO=3; aXS=4; aES=5; cKG=6; aGRP=7; cRA=8; cRB=9; aAX=10
WB=16; WV=48; WC=80; XB=88; AZ0=92; AZ1=96; ONEB=100; ONEA=[104,108]; AX=112; AE=[128,132]; G0=136; G1=152; H0=168; H1=184
XI=200; XV=202; EI=206; EV=207; GR=[208,209]; RA0=210; RA1=211; RB0=212; RB1=213; SD=214; SN=215; PD=216; PN=218
kP2=229; kP1=199; kE5=240; kE6=241; kOOB=234; vONE=220; kXS=221; kES=222; kGRP=223; kAX=224; vL16=228; T0=230; NGB=236; cXM=252
NVGPR=256
XG_=64
CO=198; EN=G0; RK=G1; EB=H0; AD=H0+4; EW=AX
sB=3; X_=4; EA_=8; CE_=12; WP_=16; OU_=20; MI_=24; sWS=28; sWAVE=30; sNT=31; sTI=32; sX0=33; sX1=34; sMODE=36; sFIRST=37; sOVF=38; sU=39
MK=40
sCNT=72; sXS=73; sES=74; sT0=75; sT1=76; sT2=77; sOC=78; sOP=79; sON=80; sPB=81; sBH=82; sBL=35; sG1=76; sG2=77; s128=83
STAMPS=int(os.environ.get('STAMPS','0'))
STR=8
XSPLIT=int(os.environ.get('XSPLIT','4'))
B0=[8,12]; B1=[9,13]; B2=[10,11,14,15]
SSET=os.environ.get('SSET','main')
SMAP={'main':{'start':0,'bar1':1,'hist':2,'prefix':3,'bar3':4,'ng':5,'loop':6,'bar5':7,'end':8},
      'pro':{'start':0,'issued':1,'consts':2,'vmw':3,'bar1':4,'hist':5,'bar3':6,'ng':7,'entd':8},
      'pro2':{'bar3':0,'dma1':1,'wread':2,'ngm':3,'ng':4,'entw':5,'entd':6,'loop':7,'end':8}}[SSET]
def stamp(name):
    if STAMPS and name in SMAP:
        i=SMAP[name]
        A('s_memtime s[98:99]' if STAMPS==1 else 's_memrealtime s[98:99]'); A('s_waitcnt lgkmcnt(0)'); A(f's_mov_b32 s{86+i}, s98')
def stamp_store():
    if STAMPS and ENV('DBG'):
        A('s_memrealtime s[98:99]'); A('s_waitcnt lgkmcnt(0)'); A('s_mov_b32 s97, s98')
        A('s_cmp_eq_u32 s2, 7'); A('s_cbranch_scc0 K2_DBGE'); A(f's_cmp_eq_u32 s{sWAVE}, 0'); A('s_cbranch_scc0 K2_DBGE')
        A('s_load_dwordx2 s[24:25], s[0:1], 80'); A('s_waitcnt lgkmcnt(0)'); A('s_mov_b64 exec, 1'); A('v_mov_b32 v14, 0'); A('s_mov_b32 s26, 256'); A('s_mov_b32 s27, 0x20000')
        for i in range(12):
            A(f'v_mov_b32 v1, s{86+i}'); A(f'buffer_store_dword v1, v14, s[24:27], 0 offen offset:{8+4*i}')
        lab('K2_DBGE')
    elif STAMPS:
        A('s_memrealtime s[98:99]'); A('s_waitcnt lgkmcnt(0)'); A('s_mov_b32 s97, s98')
        A(f's_add_u32 s24, s{sWS}, 0x2000000'); A(f's_addc_u32 s25, s{sWS+1}, 0'); A('s_mov_b32 s26, 0x100000'); A('s_mov_b32 s27, 0x20000')
        A(f's_lshl_b32 s75, s2, 3'); A(f's_add_u32 s75, s75, s{sWAVE}'); A('s_lshl_b32 s75, s75, 6')
        for i in range(12):
            A(f'v_mov_b32 v1, s{86+i}'); A(f'v_mov_b32 v14, {4*i}'); A('buffer_store_dword v1, v14, s[24:27], s75 offen')
def x_dma(sbase):
    o=[f's_mov_b32 m0, s{sbase}']
    for m in range(4):
        o.append(f'v_mad_u32_u16 v{XV+m}, v{XI+(m>>1)}, s{s128}, v{cXM+m} op_sel:[{m&1},0,0,0]')
        o.append(f'buffer_load_dwordx4 v{XV+m}, s[{XG_}:{XG_+3}], 0 offen offset:{1024*m} lds')
    return o
ENT=' '+os.environ.get('EFL','nt')
def e_issue(p):
    return [f'v_mad_u32_u24 v{EV}, v{EI}, 32, v{cKG}', f'buffer_load_dwordx4 {q(AE[p])}, v{EV}, s[{EA_}:{EA_+3}], 0 offen{ENT}']
def e_flag(p): return [f'v_and_b32 v{ONEA[p]}, 0xff000000, v{EI}']
def summ(G,H,b,rb,ct):
    if ENV('PK'):
        P=lambda x: f'v[{x}:{x+1}]'
        o=[f'v_pk_mul_f32 {P(PN)}, {P(G+b)}, {P(H+b)}', f'v_pk_add_f32 {P(PD)}, {P(G+b)}, {P(G+b+2)}']
        for r in (2,4,6):
            o.append(f'v_pk_fma_f32 {P(PN)}, {P(G+b+r)}, {P(H+b+r)}, {P(PN)}')
            if r>=4: o.append(f'v_pk_add_f32 {P(PD)}, {P(PD)}, {P(G+b+r)}')
        o.append(f'v_add_f32 v{SD}, v{PD}, v{PD+1}'); o.append(f'v_add_f32 v{SN}, v{PN}, v{PN+1}')
    else:
        o=[f'v_mul_f32 v{SN}, v{G+b}, v{H+b}', f'v_add_f32 v{SD}, v{G+b}, v{G+b+1}']
        for r in range(1,8):
            o.append(f'v_fmac_f32 v{SN}, v{G+b+r}, v{H+b+r}')
            if r>=2: o.append(f'v_add_f32 v{SD}, v{SD}, v{G+b+r}')
    o.append(f'v_cvt_f64_f32 v[{PD}:{PD+1}], v{SD}'); o.append(f'v_cvt_f64_f32 v[{PN}:{PN+1}], v{SN}')
    if not ENV('NO_DSADD'):
        o.append(f'ds_add_f64 v{rb}, v[{PD}:{PD+1}] offset:{ct*256}'); o.append(f'ds_add_f64 v{rb}, v[{PN}:{PN+1}] offset:{512+ct*256}')
    return o
def inter(v, m, every):
    o=[]; m=list(m)
    for i,x in enumerate(v):
        if m and i%every==0: o+=m.pop(0)
        o.append(x)
    for g in m: o+=g
    return o
def gchain(G,ct,p):
    return [[mf(G,AX,WB+16*ct,'0')],[mf(G,AX+4,WB+16*ct+4,G)],[mf(G,AX+8,WB+16*ct+8,G)],[mf(G,AX+12,WB+16*ct+12,G)],
            [mf(G,AE[p],WC+4*ct,G)],[mf(G,AZ1 if ct else AZ0,XB,G)]]
def xb_reads(): return [f'ds_read2_b32 v[{XB}:{XB+1}], v{RA0} offset0:0 offset1:32', f'ds_read2_b32 v[{XB+2}:{XB+3}], v{RA1} offset0:0 offset1:32']
def ra_mads(g): return [f'v_mad_u32_u16 v{RA0}, v{g}, 64, v{cRA} op_sel:[0,0,0,0]', f'v_mad_u32_u16 v{RA1}, v{g}, 64, v{cRA} op_sel:[1,0,0,0]']
def body(p):
    o=[]
    ex=lambda G:[f'v_exp_f32 v{G+r}, v{G+r}' for r in range(16)]
    rc=lambda G:[f'v_rcp_f32 v{G+r}, v{G+r}' for r in range(16)]
    XN=ENV('XNEAR')
    xd=x_dma((sX1 if p==0 else sX0) if XN else (sX0 if p==0 else sX1)) if not ENV('NO_XDMA') else ['s_nop 0']
    EP=ENV('EPOS')
    if EP=='early': o+=[f'ds_read_b32 v{EI}, v{aES} offset:{128*STR*p}']
    grp=[[mf(H0,AX+4*s,WV+4*s,'0' if s==0 else H0)]+(xd[:3] if s==0 else xd[1+2*s:3+2*s]) for s in range(4)]
    o+=inter(ex(G0), grp, 4)
    sb=summ(G1,H1,8,RB1,1)
    o+=sb[:2]+[mf(G0,ONEA[p],ONEB,G0)]+sb[2:]
    o+=[f'v_mad_u32_u16 v{RB0}, v{GR[p]}, 64, v{cRB} op_sel:[0,0,0,0]', f'v_mad_u32_u16 v{RB1}, v{GR[p]}, 64, v{cRB} op_sel:[1,0,0,0]']
    o+=inter(rc(G0), gchain(G1,1,p), 3)
    if EP=='early': o+=['s_waitcnt lgkmcnt(2)']+e_issue(p)
    o+=summ(G0,H0,0,RB0,0)
    o+=['s_waitcnt vmcnt(6)' if EP=='early' else 's_waitcnt vmcnt(5)',
        f'ds_read2_b32 v[{XI}:{XI+1}], v{aXS} offset0:{16*STR*p} offset1:{16*STR*p+4}']
    if EP!='early': o+=[f'ds_read_b32 v{EI}, v{aES} offset:{128*STR*p}']
    o+=[f'ds_read_b32 v{GR[p^1]}, v{aGRP} offset:{8*STR*p}']
    o+=inter(ex(G1), [[mf(H1,AX+4*s,WV+16+4*s,'0' if s==0 else H1), f'ds_read_b128 {q(AX+4*s)}, v{aAX+s} offset:{32768*(p^1)}'] for s in range(4)], 4)
    sb=summ(G0,H0,8,RB1,0)
    o+=sb[:2]+[mf(G1,ONEA[p],ONEB,G1)]
    o+=['s_waitcnt lgkmcnt(4)']+ra_mads(GR[p^1])
    o+=(e_issue(p) if (not ENV('NO_EDMA') and not EP) else [])+xb_reads()+e_flag(p)
    o+=sb[2:]
    o+=['s_waitcnt vmcnt(4) lgkmcnt(4)' if EP=='late' else 's_waitcnt vmcnt(5) lgkmcnt(4)']
    gc=gchain(G0,0,p^1)
    gc[5]=['s_waitcnt lgkmcnt(2)']+gc[5]
    o+=inter(rc(G1), gc, 3)
    if EP=='late': o+=e_issue(p)
    o+=summ(G1,H1,0,RB0,1)
    if p==1:
        o+=[f'v_add_u32 v{aXS}, {128*STR}, v{aXS}', f'v_add_u32 v{aES}, {256*STR}, v{aES}', f'v_add_u32 v{aGRP}, {16*STR}, v{aGRP}']
    if ENV('NO_XMFMA'):
        o=[i for i in o if not (i.startswith('v_mfma') and any(f', {q(AX+4*s)}, ' in i for s in range(4)))]
    if ENV('NO_HMFMA'): o=[i for i in o if not (i.startswith('v_mfma') and (i.startswith(f'v_mfma_f32_32x32x16_bf16 {q(H0,16)}') or i.startswith(f'v_mfma_f32_32x32x16_bf16 {q(H1,16)}')))]
    if ENV('NO_SUMS'): o=[i for i in o if not (i.startswith('v_fmac') or (i.startswith('v_add_f32')) or i.startswith('v_mul_f32'))]
    if ENV('NO_SMALLM'): o=[i for i in o if not (i.startswith('v_mfma') and not any(f', {q(AX+4*s)}, ' in i for s in range(4)))]
    if ENV('NO_MFMA'): o=[i for i in o if not i.startswith('v_mfma')]
    if ENV('NO_TRANS'): o=[i for i in o if not (i.startswith('v_exp') or i.startswith('v_rcp'))]
    return o

def cell_off_g(dst, creg):
    A(f'v_add_u32 v{dst}, s{sBH}, v{creg}'); A(f'v_and_b32 v{dst}, 255, v{dst}'); A(f'v_lshlrev_b32 v{dst}, 7, v{dst}'); A(f'v_lshl_add_u32 v{dst}, v5, 4, v{dst}'); A(f'v_add_u32 v{dst}, s{sBL}, v{dst}')
    A(f'v_cmp_gt_u32 vcc, {NCH}, v{creg}'); A('v_mov_b32 v14, 0x7fffffff'); A('s_nop 0'); A(f'v_cndmask_b32 v{dst}, v14, v{dst}, vcc')
def k2():
    lab('standalone__edge_featured_mpnn_gatedgcn__graph_kernel')
    A('s_cmp_ge_u32 s2, 256'); A('s_cbranch_scc1 K2_END')
    A(f's_load_dwordx2 s[{sWS}:{sWS+1}], s[0:1], 88')
    A('s_load_dwordx4 s[4:7], s[0:1], 0')
    A('s_load_dwordx2 s[20:21], s[0:1], 72')
    A(f's_and_b32 s{sB}, s2, 7'); A(f's_lshl_b32 s{sB}, s{sB}, 5'); A(f's_lshr_b32 s{sT0}, s2, 3'); A(f's_or_b32 s{sB}, s{sB}, s{sT0}')
    A('v_lshrrev_b32 v1, 6, v0'); A('v_and_b32 v15, 63, v0')
    A(f'v_readfirstlane_b32 s{sWAVE}, v1')
    A(f'v_lshlrev_b32 v{vL16}, 4, v15')
    A(f's_lshr_b32 s{sBH}, s{sB}, 1'); A(f's_and_b32 s{sBL}, s{sB}, 1'); A(f's_lshl_b32 s{sBL}, s{sBL}, 6')
    A('v_lshrrev_b32 v4, 2, v0'); A('v_and_b32 v5, 3, v0')
    cell_off_g(CO, 4); A('v_add_u32 v4, 128, v4'); cell_off_g(CO+1, 4)
    A(f's_lshl_b32 s{sT0}, s{sBH}, 15')
    A('s_waitcnt lgkmcnt(0)')
    if STAMPS:
        A('s_memrealtime s[98:99]'); A('s_waitcnt lgkmcnt(0)'); A('s_mov_b32 s96, s98')
    stamp('start')
    A(f's_add_u32 s12, s{sWS}, s{sT0}'); A(f's_addc_u32 s13, s{sWS+1}, 0'); A(f's_mov_b32 s14, {0x400000+32768}'); A('s_mov_b32 s15, 0x20000')
    for u in range(2): A(f"buffer_load_dwordx4 {q(EN+4*u)}, v{CO+u}, s[12:15], 0 offen {os.environ.get('CLD','')}")
    A(f's_mov_b32 s{sPB}, 0x400000')
    def init_a():
        A('v_lshlrev_b32 v1, 4, v0')
        for r in range(4): A(f'v_mov_b32 v{AX+r}, -1')
        A(f'v_add_u32 v14, {XS}, v1'); A(f'ds_write_b128 v14, {q(AX)}')
        for r in range(4): A(f'v_mov_b32 v{AX+4+r}, 0x{EPAD:08x}')
        A(f'ds_write_b128 v14, {q(AX+4)} offset:8192'); A(f'ds_write_b128 v14, {q(AX+4)} offset:16384')
        for r in range(4): A(f'v_mov_b32 v{AX+8+r}, 0x{(DUMMY<<16)|DUMMY:08x}')
        for r in range(4): A(f'v_mov_b32 v{AX+12+r}, 0')
        A('v_cmp_gt_u32 vcc, 64, v0'); A('s_nop 1')
        for r in range(4): A(f'v_cndmask_b32 v{AX+8+r}, v{AX+12+r}, v{AX+8+r}, vcc')
        A('v_cmp_gt_u32 vcc, 96, v0'); A(f's_and_saveexec_b64 s[{MK}:{MK+1}], vcc'); A(f'ds_write_b128 v14, {q(AX+8)} offset:{GRP-XS}'); A(f's_mov_b64 exec, s[{MK}:{MK+1}]')
    init_a()
    A('s_mov_b32 s8, s6'); A('s_mov_b32 s9, s7'); A(f's_mov_b32 s10, {E*32}'); A('s_mov_b32 s11, 0x20000')
    A(f's_mov_b32 s6, {N*128}'); A('s_mov_b32 s7, 0x20000')
    A(f's_mov_b32 s22, {N*128}'); A('s_mov_b32 s23, 0x20000')
    A(f's_add_u32 s16, s{sWS}, {WS_WPREP}'); A(f's_addc_u32 s17, s{sWS+1}, 0'); A('s_mov_b32 s18, 34816'); A('s_mov_b32 s19, 0x20000')
    A(f's_add_u32 s24, s{sWS}, {WS_OVFCNT}'); A(f's_addc_u32 s25, s{sWS+1}, 0'); A('s_mov_b32 s26, 1000'); A('s_mov_b32 s27, 0x20000')
    A(f'v_lshrrev_b32 v14, 3, v15'); A(f's_lshl_b32 s{sT0}, s{sWAVE}, 3'); A(f'v_add_u32 v14, s{sT0}, v14')
    A(f'v_lshlrev_b32 v14, 8, v14'); A(f'v_add_u32 v14, s{sB}, v14'); A('v_lshlrev_b32 v14, 7, v14')
    A('v_lshrrev_b32 v4, 4, v15'); A('v_and_b32 v5, 7, v15'); A('v_xor_b32 v4, v4, v5'); A(f'v_lshlrev_b32 v{cXE}, 4, v4'); A(f'v_xor_b32 v{cXO}, 64, v{cXE}')
    A(f's_and_b32 s{sT0}, s{sWAVE}, 1'); A(f's_cmp_eq_u32 s{sT0}, 0'); A('s_cselect_b64 vcc, -1, 0')
    A(f'v_cndmask_b32 v4, v{cXO}, v{cXE}, vcc'); A('v_add_u32 v4, v14, v4')
    A(f'v_mov_b32 v{CO+2-2+0}, v{CO}') if False else None
    A(f'v_mov_b32 v{XV}, v4')
    stamp('issued')
    A('v_lshrrev_b32 v14, 6, v0'); A(f'v_mul_u32_u24 v14, {RECSZ}, v14'); A(f'v_add_u32 v14, v14, v{vL16}'); A(f'v_add_u32 v14, {REC+O_DEN}, v14')
    for r in range(4): A(f'v_mov_b32 v{AX+r}, 0')
    for i in range(5): A(f'ds_write_b128 v14, {q(AX)} offset:{8*RECSZ*i}')
    A(f'v_add_u32 v14, {8*RECSZ*5}, v14'); A(f'ds_write_b128 v14, {q(AX)}')
    A('v_cmp_gt_u32 vcc, 128, v0'); A(f's_and_saveexec_b64 s[{MK}:{MK+1}], vcc'); A(f'ds_write_b128 v14, {q(AX)} offset:{8*RECSZ}'); A(f's_mov_b64 exec, s[{MK}:{MK+1}]')
    A(f'v_mov_b32 v{vONE}, 1')
    A(f's_mov_b32 s{sCNT}, {CNT}'); A(f's_mov_b32 s{sXS}, {XS}'); A(f's_mov_b32 s{sES}, {ES}'); A(f's_mov_b32 s{s128}, 128')
    A(f's_mov_b32 s{sMODE}, 0'); A(f's_mov_b32 s{sFIRST}, 1'); A(f's_mov_b32 s{sU}, 0')
    A('v_lshrrev_b32 v4, 2, v0'); A('v_mul_u32_u24 v4, 3200, v4')
    for u in range(4): A(f'v_add_u32 v{EB+u}, 0x{(128*(u&1)*3200-1+EFLAG)&0xffffffff:08x}, v4')
    for k in range(8,16): A(f'v_mov_b32 v{EN+k}, 0')
    def lane_consts():
        C('lane constants (v1 = kg)')
        A('v_lshrrev_b32 v1, 5, v15'); A(f'v_lshlrev_b32 v{cKG}, 4, v1')
        A('v_bfe_u32 v5, v15, 3, 2'); A('v_lshlrev_b32 v4, 5, v1'); A('v_lshl_add_u32 v4, v5, 2, v4'); A(f'v_add_u32 v{kXS}, {XS}, v4')
        A('v_bfe_u32 v4, v15, 2, 1'); A('v_lshlrev_b32 v4, 4, v4'); A('v_bfe_u32 v5, v15, 4, 1'); A('v_lshl_add_u32 v4, v5, 3, v4')
        A('v_and_b32 v5, 3, v15'); A('v_lshl_add_u32 v4, v5, 1, v4'); A('v_bfe_u32 v5, v15, 3, 1'); A('v_add_u32 v4, v4, v5')
        A('v_lshlrev_b32 v4, 2, v4'); A(f'v_add_u32 v{kES}, {ES}, v4')
        A('v_lshlrev_b32 v4, 2, v1'); A(f'v_add_u32 v{kGRP}, {GRP}, v4')
        A('v_and_b32 v4, 31, v15'); A('v_lshlrev_b32 v5, 2, v4'); A(f'v_add_u32 v{cRA}, {REC}, v5'); A('v_lshlrev_b32 v5, 3, v4'); A(f'v_add_u32 v{cRB}, {REC+O_DEN}, v5')
        A('v_bfe_u32 v5, v15, 1, 3'); A('v_xor_b32 v5, v5, v1'); A('v_lshlrev_b32 v5, 4, v5'); A('v_lshl_add_u32 v4, v4, 7, v5')
        for s in range(4): A(f'v_xor_b32 v{kAX+s}, {32*s}, v4')
        A(f's_lshl_b32 s{sX0}, s{sWAVE}, 12'); A(f's_add_u32 s{sX1}, s{sX0}, 32768')
        for m in range(4): A(f'v_add_u32 v{cXM+m}, {4096-1024*m}, v{cXO if m&1 else cXE}')
        A('v_bfe_u32 v4, v15, 2, 1'); A('v_cmp_eq_u32 vcc, v4, v1'); A('v_mov_b32 v5, 0x3f803f80'); A('s_nop 0'); A('v_cndmask_b32 v5, 0, v5, vcc')
        A('v_bfe_u32 v4, v15, 4, 1'); A('v_cmp_eq_u32 vcc, 0, v4'); A('s_nop 1'); A(f'v_cndmask_b32 v{AZ0}, 0, v5, vcc')
        A(f'v_sub_u32 v{AZ0+2}, v5, v{AZ0}'); A(f'v_mov_b32 v{AZ0+1}, 0'); A(f'v_mov_b32 v{AZ0+3}, 0')
        A(f'v_mov_b32 v{AZ1}, 0'); A(f'v_mov_b32 v{AZ1+1}, v{AZ0}'); A(f'v_mov_b32 v{AZ1+2}, 0'); A(f'v_mov_b32 v{AZ1+3}, v{AZ0+2}')
        A('v_cmp_eq_u32 vcc, 0, v1'); A('v_mov_b32 v5, 0x3f000000'); A('s_nop 0'); A(f'v_cndmask_b32 v{ONEB}, 0, v5, vcc')
        for r in range(1,4): A(f'v_mov_b32 v{ONEB+r}, 0'); A(f'v_mov_b32 v{ONEA[0]+r}, 0'); A(f'v_mov_b32 v{ONEA[1]+r}, 0')
    lane_consts()
    stamp('consts')
    A('s_waitcnt vmcnt(0)')
    for u in range(2):
        A(f'v_mov_b32_dpp v14, v{EN+4*u+3} quad_perm:[3,3,3,3] row_mask:0xf bank_mask:0xf'); A('s_nop 0')
        A('v_cmp_ne_u32 vcc, 0, v14'); A('s_mov_b64 exec, vcc')
        A(f'buffer_load_dwordx4 {q(EN+8+4*u)}, v{CO+u}, s[12:15], s{sPB} offen'); A('s_mov_b64 exec, -1')
    A(f's_lshl_b32 s{sT0}, s{sWAVE}, 10'); A(f's_add_u32 m0, s{sT0}, {OWNX}'); A('s_nop 0')
    A(f'buffer_load_dwordx4 v{XV}, s[{X_}:{X_+3}], 0 offen lds')
    for i in range(3):
        A(f's_add_u32 s{sT1}, s{sT0}, {8192*i}'); A(f's_add_u32 m0, s{sT1}, {WSTG}'); A('s_nop 0')
        A(f'buffer_load_dwordx4 v{vL16}, s[16:19], s{sT1} offen lds')
    A('s_branch K2_WD')
    lab('K2_ROUND')
    init_a()
    A('s_waitcnt vmcnt(0)')
    lab('K2_WD')
    stamp('vmw')
    if ENV('HALFCELL'):
        A(f's_cmp_eq_u32 s{sMODE}, 2'); A('s_cbranch_scc1 K2_NOMASK')
        A('v_and_b32 v14, 4, v15'); A('v_cmp_eq_u32 s[84:85], 0, v14')
        for u in range(4):
            A(f'v_mov_b32_dpp v1, v{EN+4*u+3} quad_perm:[3,3,3,3] row_mask:0xf bank_mask:0xf'); A('s_nop 1')
            A('v_mov_b32_dpp v14, v1 row_shr:4 row_mask:0xf bank_mask:0xf bound_ctrl:0'); A('s_nop 0')
            A('v_cmp_ne_u32 vcc, 0, v14'); A('s_or_b64 vcc, vcc, s[84:85]')
            for k in range(4): A(f'v_cndmask_b32 v{EN+4*u+k}, 0, v{EN+4*u+k}, vcc')
        lab('K2_NOMASK')
    def pre(ks):
        for k in ks: A(f'v_cmp_ne_u32 s[{MK+2*k}:{MK+2*k+1}], 0, v{EN+k}')
        for k in ks: A(f'v_and_b32 v{AD+k}, 63, v{EN+k}'); A(f'v_lshl_add_u32 v{AD+k}, v{AD+k}, 2, s{sCNT}')
    def atom(ks):
        for k in ks: A(f's_mov_b64 exec, s[{MK+2*k}:{MK+2*k+1}]'); A(f'ds_add_rtn_u32 v{RK+k}, v{AD+k}, v{vONE}')
        A('s_mov_b64 exec, -1')
    pre(range(8))
    A('s_waitcnt lgkmcnt(0)'); A('s_barrier')
    stamp('bar1')
    def ew(ks):
        for k in ks: A(f'v_lshrrev_b32 v{EW+k}, 20, v{EN+k}'); A(f'v_bfe_u32 v{EN+k}, v{EN+k}, 6, 14'); A(f'v_add_u32 v{EW+k}, v{EW+k}, v{EB+k//4}')
    atom(range(8))
    A(f's_cmp_eq_u32 s{sFIRST}, 1'); A('s_cbranch_scc0 K2_NF1')
    A(f'buffer_load_dwordx4 {q(T0)}, v{vL16}, s[24:27], 0 offen')
    A(f's_lshr_b32 s{sT0}, s{sWAVE}, 1'); A(f's_lshl_b32 s{sT0}, s{sT0}, 12'); A(f's_add_u32 s{sT0}, s{sT0}, {18*1024}')
    for s_ in range(4): A(f'buffer_load_dwordx4 {q(NGB+4*s_)}, v{vL16}, s[16:19], s{sT0} offen offset:{1024*s_}')
    A(f's_lshr_b32 s{sT0}, s2, 3'); A(f's_mul_i32 s{sT0}, s{sT0}, 391'); A(f'v_add_u32 v14, s{sT0}, v0'); A('v_lshlrev_b32 v14, 7, v14')
    A('v_cmp_gt_u32 vcc, 391, v0'); A(f'v_mov_b32 v{T0+5}, 0x7fffffff'); A('s_nop 0'); A(f'v_cndmask_b32 v14, v{T0+5}, v14, vcc')
    if ENV('NOXPF'): A(f'v_mov_b32 v14, v{T0+5}')
    A(f'v_mov_b32 v{kP2}, v14'); A(f's_cmp_ge_u32 s{sWAVE}, {XSPLIT}'); A('s_cselect_b64 vcc, -1, 0')
    A(f'v_cndmask_b32 v14, v14, v{T0+5}, vcc'); A(f'v_cndmask_b32 v{kP2}, v{T0+5}, v{kP2}, vcc')
    if (not ENV('XEARLY')): A(f'v_mov_b32 v{kP1}, v14')
    else: A(f'buffer_load_dword v{T0+5}, v14, s[{X_}:{X_+3}], 0 offen')
    lab('K2_NF1')
    ew(range(8))
    A('s_waitcnt vmcnt(9)' if (not ENV('XEARLY')) else 's_waitcnt vmcnt(10)')
    for k in range(8,16): A(f'v_cmp_ne_u32 s[{MK+2*k}:{MK+2*k+1}], 0, v{EN+k}')
    def addr(ks):
        for k in ks: A(f'v_and_b32 v{AD+k}, 63, v{EN+k}'); A(f'v_lshl_add_u32 v{AD+k}, v{AD+k}, 2, s{sCNT}')
    addr(B0); atom(B0); ew(B0)
    A(f's_or_b64 s[84:85], s[{MK+18}:{MK+19}], s[{MK+26}:{MK+27}]'); A(f's_cselect_b32 s{sG1}, 1, 0')
    A(f's_or_b64 s[84:85], s[{MK+20}:{MK+21}], s[{MK+22}:{MK+23}]'); A(f's_or_b64 s[84:85], s[84:85], s[{MK+28}:{MK+29}]'); A(f's_or_b64 s[84:85], s[84:85], s[{MK+30}:{MK+31}]'); A(f's_cselect_b32 s{sG2}, 1, 0')
    def guarded(tag, fn):
        for g,(sg,ks) in enumerate(((sG1,B1),(sG2,B2))):
            A(f's_cmp_eq_u32 s{sg}, 0'); A(f's_cbranch_scc1 K2_SK{tag}{g}'); fn(ks); lab(f'K2_SK{tag}{g}')
    guarded('H', lambda ks: (addr(ks), atom(ks), ew(ks)))
    if ENV('EPF'):
        lim=CNT+4*int(ENV('EPF'))
        A(f'v_mov_b32 v{kOOB}, 0x7fffffff')
        for k in list(range(8))+B0:
            A(f'v_cmp_gt_u32 vcc, {lim}, v{AD+k}'); A(f'v_mad_u32_u24 v14, v{EW+k}, 32, 0'); A(f's_and_b64 vcc, vcc, s[{MK+2*k}:{MK+2*k+1}]')
            A(f'v_cndmask_b32 v14, v{kOOB}, v14, vcc')
            A(f'buffer_load_dword v{T0+5}, v14, s[{EA_}:{EA_+3}], 0 offen nt')
    A('s_waitcnt lgkmcnt(0)'); A('s_barrier')
    stamp('hist')
    A(f's_cmp_eq_u32 s{sFIRST}, 1'); A('s_cbranch_scc0 K2_NF2')
    A(f"buffer_load_dword v{T0+5}, v{kP1 if (not ENV('XEARLY')) else kP2}, s[{X_}:{X_+3}], 0 offen")
    lab('K2_NF2')
    A(f'v_lshl_add_u32 v4, v15, 2, s{sCNT}'); A('ds_read_b32 v5, v4'); A('s_waitcnt lgkmcnt(0)')
    A('v_add_u32 v5, 7, v5'); A('v_lshrrev_b32 v5, 3, v5'); A('v_mov_b32 v1, v5'); A('s_nop 1')
    for sh in (1,2,4,8):
        A(f'v_add_u32_dpp v1, v1, v1 row_shr:{sh} row_mask:0xf bank_mask:0xf bound_ctrl:0'); A('s_nop 1')
    A('v_add_u32_dpp v1, v1, v1 row_bcast:15 row_mask:0xa bank_mask:0xf'); A('s_nop 1')
    A('v_add_u32_dpp v1, v1, v1 row_bcast:31 row_mask:0xc bank_mask:0xf'); A('s_nop 1')
    A(f'v_readlane_b32 s{sNT}, v1, 63')
    A('v_sub_u32 v1, v1, v5')
    A(f'v_lshlrev_b32 v{T0+4}, 3, v1')
    if not ENV('BPERM'): A(f'ds_write_b32 v4, v{T0+4} offset:256')
    A(f's_cmp_gt_u32 s{sNT}, {CAPG}'); A('s_cbranch_scc1 K2_SPLIT')
    if ENV('BPERM'):
        for k in range(16): A(f'ds_bpermute_b32 v{AD+k}, v{AD+k}, v{T0+4}')
    else:
        nb=lambda ks: [A(f'ds_read_b32 v{AD+k}, v{AD+k} offset:256') for k in ks]
        nb(list(range(8))+B0); guarded('N', nb)
    A(f'v_mul_u32_u24 v{XV}, 22, v15'); A(f'v_mov_b32 v{XV+1}, s{sWAVE}')
    lab('K2_GL')
    A(f'v_cmp_lt_u32 vcc, v{XV+1}, v5'); A('s_and_saveexec_b64 s[84:85], vcc'); A('s_cbranch_execz K2_GLD')
    A(f'v_add_u32 v{XV+2}, v1, v{XV+1}'); A(f'v_lshlrev_b32 v{XV+2}, 1, v{XV+2}'); A(f'v_add_u32 v{XV+2}, {GRP}, v{XV+2}')
    A(f'ds_write_b16 v{XV+2}, v{XV}'); A(f'v_add_u32 v{XV+1}, 8, v{XV+1}')
    A('s_mov_b64 exec, s[84:85]'); A('s_branch K2_GL')
    lab('K2_GLD'); A('s_mov_b64 exec, -1')
    if (not ENV('XEARLY')):
        A(f's_cmp_eq_u32 s{sFIRST}, 1'); A('s_cbranch_scc0 K2_NF3'); A(f'buffer_load_dword v{T0+5}, v{kP2}, s[{X_}:{X_+3}], 0 offen'); lab('K2_NF3')
    A('s_waitcnt lgkmcnt(0)')
    stamp('prefix')
    def slot(ks):
        for k in ks:
            A(f'v_add_u32 v{RK+k}, v{RK+k}, v{AD+k}')
            A(f'v_lshl_add_u32 v{AD+k}, v{RK+k}, 1, s{sXS}')
            A(f'v_lshl_add_u32 v{RK+k}, v{RK+k}, 2, s{sES}')
        for k in ks:
            A(f's_mov_b64 exec, s[{MK+2*k}:{MK+2*k+1}]')
            A(f'ds_write_b16 v{AD+k}, v{EN+k}'); A(f'ds_write_b32 v{RK+k}, v{EW+k}')
        A('s_mov_b64 exec, -1')
    slot(list(range(8))+B0); guarded('S', slot)
    A(f's_add_u32 s{sNT}, s{sNT}, 3'); A(f's_lshr_b32 s{sNT}, s{sNT}, 2')
    A('s_waitcnt vmcnt(12) lgkmcnt(0)' if ENV('EPF') else 's_waitcnt vmcnt(2) lgkmcnt(0)'); A('s_barrier')
    stamp('bar3')
    A(f's_sub_u32 s{XG_}, s{X_}, 4096'); A(f's_subb_u32 s{XG_+1}, s{X_+1}, 0'); A(f's_mov_b32 s{XG_+2}, {N*128+4096}'); A(f's_mov_b32 s{XG_+3}, 0x20000')
    A(f's_mov_b32 s{sTI}, s{sWAVE}')
    A(f's_lshl_b32 s{sT0}, s{sWAVE}, 6'); A(f'v_add_u32 v{aXS}, s{sT0}, v{kXS}')
    A(f's_lshl_b32 s{sT0}, s{sWAVE}, 7'); A(f'v_add_u32 v{aES}, s{sT0}, v{kES}')
    A(f's_lshl_b32 s{sT0}, s{sWAVE}, 3'); A(f'v_add_u32 v{aGRP}, s{sT0}, v{kGRP}')
    A(f'ds_read_b32 v{EI}, v{aES}'); A(f'ds_read2_b32 v[{XI}:{XI+1}], v{aXS} offset0:0 offset1:4'); A(f'ds_read_b32 v{GR[0]}, v{aGRP}')
    for s in range(4): A(f'v_add_u32 v{aAX+s}, s{sX0}, v{kAX+s}')
    A('s_waitcnt lgkmcnt(0)')
    for i in x_dma(sX0)+e_issue(0)+e_flag(0): A(i)
    stamp('dma1')
    A(f's_cmp_eq_u32 s{sFIRST}, 0'); A('s_cbranch_scc1 K2_NG_DONE')
    A(f'v_add_u32 v1, {WSTG}, v{vL16}')
    A(f's_and_b32 s{sT0}, s{sWAVE}, 1'); A(f's_lshl_b32 s{sT0}, s{sT0}, 12'); A(f's_add_u32 s{sT0}, s{sT0}, {OWNX}')
    for s in range(4): A(f'v_add_u32 v{XV+s}, s{sT0}, v{kAX+s}')
    for s in range(4): A(f'ds_read_b128 {q(AX+4*s)}, v{XV+s}')
    for i in range(18): A(f'ds_read_b128 {q(WB+4*i)}, v1 offset:{1024*i}')
    A(f'v_or_b32 v{T0}, v{T0}, v{T0+1}'); A(f'v_or_b32 v{T0+2}, v{T0+2}, v{T0+3}'); A(f'v_or_b32 v{T0}, v{T0}, v{T0+2}')
    A(f'v_cmp_ne_u32 vcc, 0, v{T0}'); A('s_nop 3'); A('s_cmp_lg_u64 vcc, 0'); A(f's_cselect_b32 s{sOVF}, 1, 0')
    A('s_waitcnt lgkmcnt(0)')
    stamp('wread')
    for s in range(4): A(mf(G0, AX+4*s, NGB+4*s, '0' if s==0 else G0))
    A(f's_and_b32 s{sT0}, s{sWAVE}, 1'); A(f's_lshl_b32 s{sT0}, s{sT0}, 5'); A(f'v_lshrrev_b32 v1, 5, v15'); A(f'v_lshl_add_u32 v1, v1, 2, s{sT0}')
    A(f'v_mul_u32_u24 v1, {RECSZ}, v1')
    A(f's_bfe_u32 s{sT1}, s{sWAVE}, 0x10001')
    A(f's_cmp_ge_u32 s{sWAVE}, 4'); A('s_cbranch_scc1 K2_NG_U')
    A(f's_lshl_b32 s{sT1}, s{sT1}, 7'); A(f'v_add_u32 v1, v1, v{cRA}'); A(f'v_add_u32 v1, s{sT1}, v1')
    A(f's_mov_b32 s{sT2}, 0x{NLOG2E:08x}'); A('s_nop 7')
    for r in range(16):
        A(f'v_mul_f32 v{G0+r}, s{sT2}, v{G0+r}')
        A(f'v_cvt_pk_bf16_f32 v{SD}, v{G0+r}, v{G0+r}'); A(f'v_lshlrev_b32 v{SD}, 16, v{SD}'); A(f'v_sub_f32 v{SN}, v{G0+r}, v{SD}'); A(f'v_cvt_pk_bf16_f32 v{G0+r}, v{SD}, v{SN}')
    def wr_a(r): A(f'ds_write_b32 v1, v{G0+r} offset:{(8*(r//4)+(r%4))*RECSZ}')
    for r in range(8): wr_a(r)
    A(f's_and_b32 s{sT0}, s{sWAVE}, 1'); A(f's_cmp_eq_u32 s{sT0}, 0'); A('s_cbranch_scc0 K2_NG_A1')
    for r in range(8,16): wr_a(r)
    A('s_branch K2_NG_BAR')
    lab('K2_NG_A1')
    A('s_mov_b32 exec_lo, -1'); A('s_mov_b32 exec_hi, 0'); wr_a(8); wr_a(9); A('s_mov_b64 exec, -1'); A('s_branch K2_NG_BAR')
    lab('K2_NG_U')
    A(f's_lshl_b32 s{sT1}, s{sT1}, 6'); A(f'v_and_b32 v{SD}, 31, v15'); A(f'v_lshl_add_u32 v1, v{SD}, 1, v1'); A(f'v_add_u32 v1, s{sT1}, v1'); A(f'v_add_u32 v1, {REC+O_U}, v1')
    A('s_nop 7')
    for r in range(16): A(f'v_cvt_pk_bf16_f32 v{G0+r}, v{G0+r}, v{G0+r}')
    def wr_u(r): A(f'ds_write_b16 v1, v{G0+r} offset:{(8*(r//4)+(r%4))*RECSZ}')
    for r in range(8): wr_u(r)
    A(f's_and_b32 s{sT0}, s{sWAVE}, 1'); A(f's_cmp_eq_u32 s{sT0}, 0'); A('s_cbranch_scc0 K2_NG_U1')
    for r in range(8,16): wr_u(r)
    A('s_branch K2_NG_BAR')
    lab('K2_NG_U1')
    A('s_mov_b32 exec_lo, -1'); A('s_mov_b32 exec_hi, 0'); wr_u(8); wr_u(9); A('s_mov_b64 exec, -1')
    lab('K2_NG_BAR')
    stamp('ngm')
    A('s_waitcnt lgkmcnt(0)'); A('s_barrier')
    lab('K2_NG_DONE')
    stamp('ng')
    A(f's_mov_b32 s{sFIRST}, 0')
    if ENV('BAR'): A(f's_mov_b32 s{sTI}, 0')
    A(f's_cmp_lt_u32 s{sTI}, s{sNT}'); A('s_cbranch_scc0 K2_LOOP_END')
    A(f'ds_read2_b32 v[{XI}:{XI+1}], v{aXS} offset0:{16*STR} offset1:{16*STR+4}'); A(f'ds_read_b32 v{EI}, v{aES} offset:{128*STR}')
    for i in ra_mads(GR[0]): A(i)
    A(f'v_mad_u32_u16 v{RB1}, v{GR[0]}, 64, v{cRB} op_sel:[1,0,0,0]')
    for i in xb_reads(): A(i)
    for r in range(8,16): A(f'v_mov_b32 v{G1+r}, 0'); A(f'v_mov_b32 v{H1+r}, 0')
    A('s_waitcnt lgkmcnt(2)')
    if ENV('XNEAR'):
        for i in e_issue(1)+e_flag(1): A(i)
        A(f'v_add_u32 v{aXS}, {64*STR}, v{aXS}')
        A('s_waitcnt vmcnt(1)')
    else:
        for i in x_dma(sX1)+e_issue(1)+e_flag(1): A(i)
        A(f'v_add_u32 v{aXS}, {128*STR}, v{aXS}')
        A(f'ds_read2_b32 v[{XI}:{XI+1}], v{aXS} offset0:0 offset1:4')
        A('s_waitcnt vmcnt(5)')
    stamp('entw')
    for s in range(4): A(f'ds_read_b128 {q(AX+4*s)}, v{aAX+s}')
    A(f'v_add_u32 v{aXS}, {64*STR}, v{aXS}'); A(f'v_add_u32 v{aES}, {256*STR}, v{aES}'); A(f'v_add_u32 v{aGRP}, {8*STR}, v{aGRP}')
    A('s_waitcnt lgkmcnt(0)')
    for g in gchain(G0,0,0):
        for i in g: A(i)
    A('s_nop 7'); A('s_nop 2')
    stamp('entd')
    if ENV('ALN'):
        L.append('    .balignl 64, 0xBF800000')
        for _ in range(int(ENV('ALN'))): A('s_nop 0')
    lab('K2_LOOP')
    for i in body(0): A(i)
    A(f's_add_u32 s{sTI}, s{sTI}, {STR}'); A(f's_cmp_lt_u32 s{sTI}, s{sNT}'); A('s_cbranch_scc0 K2_TAIL')
    for i in body(1): A(i)
    A(f's_add_u32 s{sTI}, s{sTI}, {STR}'); A(f's_cmp_lt_u32 s{sTI}, s{sNT}'); A('s_cbranch_scc1 K2_LOOP')
    lab('K2_TAIL')
    for i in summ(G1,H1,8,RB1,1): A(i)
    lab('K2_LOOP_END')
    stamp('loop')
    A('s_waitcnt vmcnt(0)')
    A('v_lshrrev_b32 v1, 3, v0'); A('v_and_b32 v2, 7, v0')
    A(f'v_lshlrev_b32 v3, 8, v1'); A(f'v_add_u32 v3, s{sB}, v3'); A('v_lshlrev_b32 v3, 7, v3'); A('v_lshl_add_u32 v3, v2, 4, v3')
    A(f'buffer_load_dwordx4 {q(NGB)}, v3, s[{X_}:{X_+3}], 0 offen')
    A(f'v_mul_u32_u24 v14, {RECSZ}, v1'); A(f'v_add_u32 v14, {REC}, v14'); A(f'v_lshl_add_u32 v{kE5}, v2, 6, v14'); A(f'v_lshl_add_u32 v{kE6}, v2, 4, v14')
    A('s_waitcnt lgkmcnt(0)'); A('s_barrier')
    stamp('bar5')
    A(f's_cmp_eq_u32 s{sMODE}, 1'); A('s_cbranch_scc1 K2_NEXT_SPLIT')
    A(f's_cmp_eq_u32 s{sMODE}, 2'); A('s_cbranch_scc1 K2_NEXT_OVF')
    lab('K2_CHECK_OVF')
    A(f's_cmp_eq_u32 s{sOVF}, 0'); A('s_cbranch_scc1 K2_EPI')
    A(f's_mov_b32 s{sMODE}, 2'); A(f's_mov_b32 s{sOC}, 0'); A(f's_mov_b32 s{sOP}, 0'); A('s_branch K2_OVF_FIND')
    lab('K2_SPLIT')
    A(f's_mov_b32 s{sMODE}, 1'); A(f's_mov_b32 s{sU}, 0')
    A('s_waitcnt lgkmcnt(0)'); A('s_barrier')
    A('s_branch K2_LOADQ')
    lab('K2_NEXT_SPLIT')
    A(f's_add_u32 s{sU}, s{sU}, 1'); A(f's_cmp_ge_u32 s{sU}, 4'); A('s_cbranch_scc1 K2_CHECK_OVF')
    lab('K2_LOADQ')
    A(f's_and_b32 s{sT0}, s{sU}, 1'); A(f's_lshl_b32 s{sT0}, s{sT0}, 7'); A('v_lshrrev_b32 v4, 2, v0'); A(f'v_add_u32 v4, s{sT0}, v4'); A('v_and_b32 v5, 3, v0')
    cell_off_g(CO, 4)
    A('s_waitcnt vmcnt(0)')
    A(f'buffer_load_dwordx4 {q(EN)}, v{CO}, s[12:15], 0 offen')
    for k in range(4,16): A(f'v_mov_b32 v{EN+k}, 0')
    A(f's_cmp_ge_u32 s{sU}, 2'); A('s_cbranch_scc0 K2_LOADQ_A')
    A('s_waitcnt vmcnt(0)')
    A(f'v_mov_b32_dpp v14, v{EN+3} quad_perm:[3,3,3,3] row_mask:0xf bank_mask:0xf'); A('s_nop 0')
    A('v_cmp_ne_u32 vcc, 0, v14')
    for k in range(4): A(f'v_mov_b32 v{EN+k}, 0')
    A('s_mov_b64 exec, vcc'); A('s_cbranch_execz K2_LOADQ_B')
    A(f'buffer_load_dwordx4 {q(EN)}, v{CO}, s[12:15], s{sPB} offen')
    lab('K2_LOADQ_B'); A('s_mov_b64 exec, -1')
    lab('K2_LOADQ_A')
    A('v_mul_u32_u24 v4, 3200, v4'); A(f'v_add_u32 v{EB}, 0x{EFLAG-1:08x}, v4')
    A('s_branch K2_ROUND')
    lab('K2_NEXT_OVF')
    A(f's_add_u32 s{sOP}, s{sOP}, 2048')
    lab('K2_OVF_FIND')
    A(f's_cmp_ge_u32 s{sOC}, {NCH}'); A('s_cbranch_scc1 K2_EPI')
    A(f's_lshl_b32 s{sT0}, s{sOC}, 2'); A(f's_add_u32 s{sT0}, s{sT0}, {WS_OVFCNT}')
    A(f's_load_dword s{sON}, s[{sWS}:{sWS+1}], s{sT0}'); A('s_waitcnt lgkmcnt(0)')
    A(f's_cmp_gt_u32 s{sON}, s{sOP}'); A('s_cbranch_scc1 K2_OVF_LOAD')
    A(f's_add_u32 s{sOC}, s{sOC}, 1'); A(f's_mov_b32 s{sOP}, 0'); A('s_branch K2_OVF_FIND')
    lab('K2_OVF_LOAD')
    A(f's_mul_i32 s{sT0}, s{sOC}, 25600'); A(f's_add_u32 s{sT0}, s{sT0}, {WS_OVFL}')
    A(f's_add_u32 s24, s{sWS}, s{sT0}'); A(f's_addc_u32 s25, s{sWS+1}, 0'); A(f's_lshl_b32 s26, s{sON}, 3'); A('s_mov_b32 s27, 0x20000')
    A(f'v_add_u32 v1, s{sOP}, v0'); A('v_lshlrev_b32 v1, 3, v1')
    A(f'buffer_load_dwordx2 v[{AX}:{AX+1}], v1, s[24:27], 0 offen')
    for j in range(1,4):
        A(f's_mov_b32 s{sT0}, {4096*j}'); A(f'buffer_load_dwordx2 v[{AX+2*j}:{AX+2*j+1}], v1, s[24:27], s{sT0} offen')
    A('s_waitcnt vmcnt(0)')
    for j in range(4):
        A(f'v_cmp_eq_u32 vcc, s{sB}, v{AX+2*j+1}'); A('s_nop 1'); A(f'v_cndmask_b32 v{EN+j}, 0, v{AX+2*j}, vcc')
    for k in range(4,16): A(f'v_mov_b32 v{EN+k}, 0')
    A(f's_mul_i32 s{sT0}, s{sOC}, 3200'); A(f's_add_u32 s{sT0}, s{sT0}, 0x{EFLAG-1:08x}'); A(f'v_mov_b32 v{EB}, s{sT0}')
    A('s_branch K2_ROUND')
    lab('K2_EPI')
    for i in range(4): A(f'ds_read_b128 {q(48+4*i)}, v{kE5} offset:{O_DEN+16*i}')
    A(f'ds_read_b128 v[36:39], v{kE6} offset:{O_U}')
    for i in range(4): A(f'ds_read_b128 {q(64+4*i)}, v{kE5} offset:{O_NUM+16*i}')
    A('s_mov_b32 s40, 0x358637bd')
    A('s_waitcnt lgkmcnt(5)')
    for i in range(8): A(f'v_cvt_f32_f64 v{20+i}, v[{48+2*i}:{49+2*i}]')
    for i in range(8): A(f'v_add_f32 v{20+i}, s40, v{20+i}')
    for i in range(8): A(f'v_rcp_f32 v{20+i}, v{20+i}')
    A('s_waitcnt lgkmcnt(4)')
    for i in range(4):
        A(f'v_lshlrev_b32 v{40+2*i}, 16, v{36+i}'); A(f'v_and_b32 v{41+2*i}, 0xffff0000, v{36+i}')
    A('s_waitcnt lgkmcnt(0)')
    for i in range(8): A(f'v_cvt_f32_f64 v{28+i}, v[{64+2*i}:{65+2*i}]')
    for i in range(8): A(f'v_fmac_f32 v{40+i}, v{28+i}, v{20+i}')
    for i in range(8): A(f'v_cmp_lt_f32 s[{42+2*i}:{43+2*i}], 0, v{40+i}')
    for i in range(8): A(f'v_mul_f32 v{28+i}, 0, v{40+i}')
    for i in range(8): A(f'v_cndmask_b32 v{28+i}, v{28+i}, v{40+i}, s[{42+2*i}:{43+2*i}]')
    A('s_waitcnt vmcnt(0)')
    for i in range(4):
        A(f'v_lshlrev_b32 v{40+2*i}, 16, v{NGB+i}'); A(f'v_and_b32 v{41+2*i}, 0xffff0000, v{NGB+i}')
    for i in range(8): A(f'v_add_f32 v{28+i}, v{28+i}, v{40+i}')
    for i in range(4): A(f'v_cvt_pk_bf16_f32 v{20+i}, v{28+2*i}, v{29+2*i}')
    A(f"buffer_store_dwordx4 v[20:23], v3, s[{OU_}:{OU_+3}], 0 offen {os.environ.get('OST','sc1')}")
    stamp('end')
    stamp_store()
    lab('K2_END')
    A('s_endpgm')

hdr = f'''; GatedGCN edge-featured message passing (N=12500 nodes, E=800000 edges, D=64, De=16), two launches.
;
;
; @launch kernel=gcn_sort_kernel grid=({K1_GRID},1,1) block=(1024,1,1) lds={K1_LDS}
; @launch kernel=standalone__edge_featured_mpnn_gatedgcn__graph_kernel grid=(256,1,1) block=(512,1,1) lds={LDS_END}
.amdgcn_target "amdgcn-amd-amdhsa--gfx950"
.text
'''
def kd(name, nv, ns):
    return f'''.p2align 6
.amdhsa_kernel {name}
  .amdhsa_next_free_vgpr {nv}
  .amdhsa_next_free_sgpr {ns}
  .amdhsa_accum_offset {(nv+3)//4*4}
  .amdhsa_group_segment_fixed_size 0
  .amdhsa_kernarg_size 96
  .amdhsa_user_sgpr_count 2
  .amdhsa_user_sgpr_kernarg_segment_ptr 1
  .amdhsa_system_sgpr_workgroup_id_x 1
.end_amdhsa_kernel
'''
out=[hdr]
out.append('.globl gcn_sort_kernel\n.p2align 8\n.type gcn_sort_kernel,@function')
k1(); out+=L; L=[]
out.append('.globl standalone__edge_featured_mpnn_gatedgcn__graph_kernel\n.p2align 8\n.type standalone__edge_featured_mpnn_gatedgcn__graph_kernel,@function')
k2(); out+=L
out.append('.section .rodata,"a"')
out.append(kd('gcn_sort_kernel', 40, 72))
out.append(kd('standalone__edge_featured_mpnn_gatedgcn__graph_kernel', NVGPR, 102 if STAMPS else 96))
open(sys.argv[1] if len(sys.argv)>1 else 'out.s','w').write('\n'.join(out)+'\n')
print('LDS_END',LDS_END)
```

```python
import sys, os
N=12500; E=800000; CH=3200; NCH=250; NBK=256
WS_CELLS=0; WS_OVFCNT=0x800000; WS_WPREP=0x801000; WS_OVFL=0x810000; WS_T=0x1000000
NLOG2E=0xBFB8AA3B
L=[]
def A(s): L.append(s if s.endswith(':') else '    '+s)
def lab(s): L.append(s+':')
def C(s): L.append('    ; '+s)
ENV=lambda k: os.environ.get(k)
def q(base,n=4): return f'v[{base}:{base+n-1}]'
def mf(d,a,b,c): return f'v_mfma_f32_32x32x16_bf16 {q(d,16)}, {q(a)}, {q(b)}, {c if c=="0" else q(c,16)}'
WT=os.environ.get('WT',' sc0 sc1'); LNT=os.environ.get('LNT','')
K1_GRID=NCH+3
K1_LDS=49152
S1=ENV('S1')
def k1():
    lab('gcn_sort_kernel')
    if ENV('DBG') or int(os.environ.get('STAMPS','0')): A('s_memrealtime s[50:51]')
    A(f's_cmp_ge_u32 s2, {K1_GRID}'); A('s_cbranch_scc1 K1_END3' if ENV('DBG') else 's_cbranch_scc1 K1_END')
    A('s_load_dwordx2 s[8:9], s[0:1], 88')
    A(f's_cmp_ge_u32 s2, {NCH}'); A('s_cbranch_scc1 K1_W')
    A('s_load_dwordx4 s[4:7], s[0:1], 16')
    if ENV('K1_XPF') or ENV('K1_MALL'): A('s_load_dwordx2 s[44:45], s[0:1], 0')
    A('v_lshlrev_b32 v1, 4, v0')
    A('s_mul_i32 s10, s2, 12800')
    A('s_waitcnt lgkmcnt(0)')
    if int(os.environ.get('STAMPS','0')):
        A('s_add_u32 s56, s8, 0x2080000'); A('s_addc_u32 s57, s9, 0'); A('s_mov_b32 s58, 1024'); A('s_mov_b32 s59, 0x20000')
        A('s_lshl_b32 s60, s2, 2'); A('v_mov_b32 v20, s50'); A('v_mov_b32 v21, s60'); A('buffer_store_dword v20, v21, s[56:59], 0 offen')
    A('s_add_u32 s16, s6, s10'); A('s_addc_u32 s17, s7, 0'); A('s_mov_b32 s18, 12800'); A('s_mov_b32 s19, 0x20000')
    A('buffer_load_dwordx4 v[8:11], v1, s[16:19], 0 offen'+LNT)
    A('s_add_u32 s12, s4, s10'); A('s_addc_u32 s13, s5, 0'); A('s_mov_b32 s14, 12800'); A('s_mov_b32 s15, 0x20000')
    A('buffer_load_dwordx4 v[12:15], v1, s[12:15], 0 offen'+LNT)
    if ENV('K1_XPF'):
        A(f's_mov_b32 s46, {N*128}'); A('s_mov_b32 s47, 0x20000')
        A('s_lshr_b32 s10, s2, 3'); A('s_mul_i32 s10, s10, 404'); A('v_add_u32 v36, s10, v0'); A('v_lshlrev_b32 v36, 7, v36')
        A('v_cmp_gt_u32 vcc, 404, v0'); A('v_mov_b32 v37, 0x7fffffff'); A('s_nop 0'); A('v_cndmask_b32 v36, v37, v36, vcc')
        A('buffer_load_dword v38, v36, s[44:47], 0 offen')
    if ENV('K1_MALL'):
        A(f's_mov_b32 s46, {N*128}'); A('s_mov_b32 s47, 0x20000')
        A('s_mul_i32 s10, s2, 50'); A('v_subrev_u32 v36, 832, v0'); A('v_cmp_gt_u32 vcc, 50, v36'); A('v_add_u32 v36, s10, v36'); A('v_lshlrev_b32 v36, 7, v36')
        A('v_mov_b32 v37, 0x7fffffff'); A('v_cndmask_b32 v36, v37, v36, vcc')
        A('buffer_load_dword v38, v36, s[44:47], 0 offen')
    for r in range(4,8): A(f'v_mov_b32 v{r}, 0')
    A('ds_write_b128 v1, v[4:7]'); A('ds_write_b128 v1, v[4:7] offset:16384'); A('ds_write_b128 v1, v[4:7] offset:32768')
    A('s_mul_i32 s10, s2, 25600')
    A(f's_add_u32 s24, s8, {WS_OVFL}'); A('s_addc_u32 s25, s9, 0'); A('s_add_u32 s24, s24, s10'); A('s_addc_u32 s25, s25, 0')
    A('s_mov_b32 s26, 25600'); A('s_mov_b32 s27, 0x20000')
    A('s_mov_b32 s32, s8'); A('s_mov_b32 s33, s9'); A('s_mov_b32 s34, 0x800000'); A('s_mov_b32 s35, 0x20000')
    A(f's_add_u32 s40, s8, {WS_OVFCNT}'); A('s_addc_u32 s41, s9, 0'); A('s_mov_b32 s42, 1000'); A('s_mov_b32 s43, 0x20000')
    A('v_mov_b32 v2, 1'); A('v_mov_b32 v3, 37888')
    A('s_waitcnt lgkmcnt(0)'); A('s_barrier')
    A('v_cmp_gt_u32 vcc, 800, v0'); A('s_and_saveexec_b64 s[20:21], vcc'); A('s_cbranch_execz K1_SKIP')
    A('s_mov_b64 s[28:29], exec')
    NP=1 if (ENV('K1_XPF') or ENV('K1_MALL')) else 0
    A(f's_waitcnt vmcnt({1+NP})')
    for j in range(4):
        A(f'v_and_b32 v{16+j}, 255, v{8+j}')
        A(f'v_lshlrev_b32 v{24+j}, 2, v{16+j}')
        A(f'ds_add_rtn_u32 v{28+j}, v{24+j}, v2 offset:36864')
    A(f's_waitcnt vmcnt({NP})')
    for j in range(4):
        A(f'v_lshrrev_b32 v{20+j}, 8, v{8+j}')
        A(f'v_lshl_or_b32 v{20+j}, v{12+j}, 6, v{20+j}')
        A(f'v_lshl_add_u32 v32, v0, 2, {j+1}')
        A(f'v_lshl_or_b32 v{20+j}, v32, 20, v{20+j}')
        A(f'v_mul_u32_u24 v{24+j}, 144, v{16+j}')
    A('s_waitcnt lgkmcnt(0)')
    for j in range(4):
        A(f'v_and_b32 v32, 3, v{28+j}'); A(f'v_bfe_u32 v33, v{28+j}, 2, 2'); A('v_lshl_add_u32 v32, v32, 2, v33'); A('v_or_b32 v32, 16, v32')
        A(f'v_cmp_gt_u32 vcc, 16, v{28+j}'); A('s_nop 1'); A(f'v_cndmask_b32 v32, v32, v{28+j}, vcc')
        A(f'v_lshl_add_u32 v{24+j}, v32, 2, v{24+j}')
        A(f'v_cmp_gt_u32 vcc, 32, v{28+j}')
        A('s_mov_b64 exec, vcc')
        A(f'ds_write_b32 v{24+j}, v{20+j}')
        A('s_andn2_b64 exec, s[28:29], vcc')
        A(f's_cbranch_execz K1_NOV{j}')
        A('ds_add_rtn_u32 v33, v3, v2')
        A(f'v_mov_b32 v34, v{20+j}'); A(f'v_mov_b32 v35, v{16+j}')
        A('s_waitcnt lgkmcnt(0)')
        A('v_lshlrev_b32 v33, 3, v33')
        A('buffer_store_dwordx2 v[34:35], v33, s[24:27], 0 offen'+WT)
        A('s_nop 1')
        lab(f'K1_NOV{j}')
        A('s_mov_b64 exec, s[28:29]')
    lab('K1_SKIP')
    A('s_mov_b64 exec, -1')
    if ENV('TLBW'):
        STEP=int(ENV('TLBW'))
        A(f's_waitcnt vmcnt({NP})')
        A('s_cmp_lt_u32 s2, 8'); A('s_cbranch_scc0 K1_NOTLB')
        A('v_readfirstlane_b32 s48, v0'); A('s_nop 3'); A('s_cmp_ge_u32 s48, 832'); A('s_cbranch_scc0 K1_NOTLB')
        A('s_load_dwordx2 s[52:53], s[0:1], 8'); A('s_load_dwordx2 s[44:45], s[0:1], 0')
        A('v_subrev_u32 v36, 832, v0'); A(f'v_lshlrev_b32 v36, {STEP}, v36')
        A('s_waitcnt lgkmcnt(0)')
        A(f's_mov_b32 s54, {E*32}'); A('s_mov_b32 s55, 0x20000'); A(f's_mov_b32 s46, {N*128}'); A('s_mov_b32 s47, 0x20000')
        for i in range(-(-(E*32>>STEP)//192)):
            A(f's_mov_b32 s49, {(192*i)<<STEP}'); A('buffer_load_dword v37, v36, s[52:55], s49 offen')
        A('buffer_load_dword v38, v36, s[44:47], 0 offen')
        lab('K1_NOTLB')
        A('s_branch K1_AFTERW')
    A(f's_waitcnt vmcnt({NP})')
    if ENV('TLBW'): lab('K1_AFTERW')
    A('v_lshrrev_b32 v4, 3, v0'); A('v_and_b32 v5, 7, v0')
    A('v_lshrrev_b32 v21, 2, v0'); A('v_and_b32 v23, 3, v0')
    A('v_mul_u32_u24 v6, 144, v21'); A('v_lshl_add_u32 v6, v23, 4, v6')
    A('v_add_u32 v7, s2, v4'); A('v_and_b32 v7, 255, v7'); A('v_lshlrev_b32 v7, 7, v7'); A('v_lshl_add_u32 v7, v4, 15, v7'); A('v_lshl_add_u32 v7, v5, 4, v7')
    A('v_lshlrev_b32 v18, 2, v21'); A('s_mov_b32 s36, 0x400000')
    A('s_waitcnt lgkmcnt(0)'); A('s_barrier')
    CST=os.environ.get('CST','sc0 sc1')
    A('ds_read_b128 v[8:11], v6'); A('ds_read_b32 v19, v18 offset:36864'); A('ds_read_b128 v[12:15], v6 offset:64'); A('ds_read_b32 v16, v3')
    A('s_waitcnt lgkmcnt(3)')
    A(f'buffer_store_dwordx4 v[8:11], v7, s[32:35], 0 offen {CST}')
    A('s_waitcnt lgkmcnt(1)')
    A('v_cmp_le_u32 vcc, 16, v19'); A('s_mov_b64 exec, vcc')
    A(f'buffer_store_dwordx4 v[12:15], v7, s[32:35], s36 offen {CST}')
    A('s_mov_b64 exec, -1')
    if int(os.environ.get('STAMPS','0')):
        A('s_waitcnt vmcnt(0)'); A('s_memrealtime s[60:61]'); A('v_lshrrev_b32 v24, 6, v0'); A('v_lshlrev_b32 v24, 2, v24'); A('s_lshl_b32 s62, s2, 6'); A('v_add_u32 v24, s62, v24')
        A('s_mov_b32 s58, 0x8000'); A('s_waitcnt lgkmcnt(0)'); A('v_mov_b32 v23, s60'); A('v_add_u32 v24, 0x1000, v24'); A('buffer_store_dword v23, v24, s[56:59], 0 offen')
    A('v_cmp_eq_u32 vcc, 0, v0'); A('s_and_saveexec_b64 s[20:21], vcc'); A('s_cbranch_execz K1_END')
    A('s_lshl_b32 s10, s2, 2'); A('v_mov_b32 v17, s10')
    A('s_waitcnt lgkmcnt(0)')
    A('buffer_store_dword v16, v17, s[40:43], 0 offen'+WT)
    A('s_branch K1_END')
    lab('K1_W')
    A('s_load_dwordx8 s[12:19], s[0:1], 32')
    A('s_load_dwordx2 s[20:21], s[0:1], 64')
    A('v_lshrrev_b32 v1, 6, v0'); A('s_nop 0'); A('v_readfirstlane_b32 s10, v1')
    A(f's_sub_u32 s11, s2, {NCH}'); A('s_lshl_b32 s11, s11, 4'); A('s_nop 2'); A('s_add_u32 s10, s10, s11')
    A('s_cmp_ge_u32 s10, 34'); A('s_cbranch_scc1 K1_END')
    A('s_waitcnt lgkmcnt(0)')
    A('s_mov_b32 s24, s14'); A('s_mov_b32 s25, s15'); A('s_mov_b32 s26, 8192'); A('s_mov_b32 s27, 0x20000')
    A(f's_mov_b32 s28, 0x{NLOG2E:08x}'); A('s_mov_b32 s29, s10')
    A('s_cmp_ge_u32 s10, 8'); A('s_cbranch_scc0 K1_WSEL')
    A('s_mov_b32 s24, s20'); A('s_mov_b32 s25, s21'); A('s_mov_b32 s28, 0x3f800000'); A('s_sub_u32 s29, s10, 8')
    A('s_cmp_ge_u32 s10, 16'); A('s_cbranch_scc0 K1_WSEL')
    A('s_mov_b32 s24, s16'); A('s_mov_b32 s25, s17'); A('s_mov_b32 s26, 2048'); A(f's_mov_b32 s28, 0x{NLOG2E:08x}')
    A('s_sub_u32 s29, s10, 16'); A('s_lshl_b32 s29, s29, 2')
    A('s_cmp_ge_u32 s10, 18'); A('s_cbranch_scc0 K1_WSEL')
    A('s_mov_b32 s24, s12'); A('s_mov_b32 s25, s13'); A('s_mov_b32 s26, 8192'); A('s_mov_b32 s28, 0x3f800000'); A('s_sub_u32 s29, s10, 18')
    A('s_cmp_ge_u32 s10, 26'); A('s_cbranch_scc0 K1_WSEL')
    A('s_mov_b32 s24, s18'); A('s_mov_b32 s25, s19'); A('s_sub_u32 s29, s10, 26')
    lab('K1_WSEL')
    A('s_lshr_b32 s30, s29, 2'); A('s_and_b32 s31, s29, 3')
    A('s_lshl_b32 s30, s30, 6'); A('s_lshl_b32 s31, s31, 11'); A('s_add_u32 s30, s30, s31')
    A('v_and_b32 v2, 63, v0'); A('v_and_b32 v3, 31, v0'); A('v_lshrrev_b32 v4, 5, v2')
    A('v_lshlrev_b32 v4, 10, v4'); A('v_lshl_add_u32 v4, v3, 1, v4'); A('v_add_u32 v4, s30, v4')
    for t in range(8): A(f'buffer_load_ushort v{8+t}, v4, s[24:27], 0 offen offset:{128*t}')
    A(f's_add_u32 s32, s8, {WS_WPREP}'); A('s_addc_u32 s33, s9, 0'); A('s_mov_b32 s34, 34816'); A('s_mov_b32 s35, 0x20000')
    A('s_lshl_b32 s36, s10, 10'); A('v_lshlrev_b32 v5, 4, v2')
    A('s_waitcnt vmcnt(0)')
    for t in range(8):
        A(f'v_lshlrev_b32 v{8+t}, 16, v{8+t}'); A(f'v_mul_f32 v{8+t}, s28, v{8+t}')
    for t in range(4): A(f'v_cvt_pk_bf16_f32 v{16+t}, v{8+2*t}, v{9+2*t}')
    A('buffer_store_dwordx4 v[16:19], v5, s[32:35], s36 offen'+WT)
    lab('K1_END')
    if ENV('DBG'):
        A('s_cmp_eq_u32 s2, 7'); A('s_cbranch_scc0 K1_END2')
        A('s_load_dwordx2 s[52:53], s[0:1], 80'); A('s_memrealtime s[54:55]'); A('s_waitcnt lgkmcnt(0)')
        A('s_mov_b64 exec, 1'); A('s_mov_b32 s56, s54'); A('s_mov_b32 s54, 256'); A('s_mov_b32 s55, 0x20000')
        A('v_mov_b32 v20, s56'); A('v_mov_b32 v21, s50'); A('v_mov_b32 v22, 0')
        A('buffer_store_dword v21, v22, s[52:55], 0 offen'); A('buffer_store_dword v20, v22, s[52:55], 0 offen offset:4')
        lab('K1_END2')
        lab('K1_END3')
    A('s_endpgm')

XST=0; REC=65536; RECSZ=1408; XS=REC+50*RECSZ; ES=XS+8192; GRP=ES+16384; CNT=GRP+1024; NBT=CNT+256; LDS_END=NBT+256
OWNX=32768; WSTG=40960
O_DEN=256; O_NUM=768; O_U=1280
CAPG=512
DUMMY=49*22
EPAD=0x700FFFFF; EFLAG=0x40000000
cXE=2; cXO=3; aXS=4; aES=5; cKG=6; aGRP=7; cRA=8; cRB=9; aAX=10
WB=16; WV=48; WC=80; XB=88; AZ0=92; AZ1=96; ONEB=100; ONEA=[104,108]; AX=112; AE=[128,132]; G0=136; G1=152; H0=168; H1=184
XI=200; XV=202; EI=206; EV=207; GR=[208,209]; RA0=210; RA1=211; RB0=212; RB1=213; SD=214; SN=215; PD=216; PN=218
kP2=229; kP1=199; kE5=240; kE6=241; kOOB=234; vONE=220; kXS=221; kES=222; kGRP=223; kAX=224; vL16=228; T0=230; NGB=236; cXM=252
NVGPR=256
XG_=64
CO=198; EN=G0; RK=G1; EB=H0; AD=H0+4; EW=AX
sB=3; X_=4; EA_=8; CE_=12; WP_=16; OU_=20; MI_=24; sWS=28; sWAVE=30; sNT=31; sTI=32; sX0=33; sX1=34; sMODE=36; sFIRST=37; sOVF=38; sU=39
MK=40
sCNT=72; sXS=73; sES=74; sT0=75; sT1=76; sT2=77; sOC=78; sOP=79; sON=80; sPB=81; sBH=82; sBL=35; sG1=76; sG2=77; sHALF=84+11; s128=83
STAMPS=int(os.environ.get('STAMPS','0'))
STR=8
XSPLIT=int(os.environ.get('XSPLIT','4'))
B0=[8,12]; B1=[9,13]; B2=[10,11,14,15]
SSET=os.environ.get('SSET','main')
SMAP={'main':{'start':0,'bar1':1,'hist':2,'prefix':3,'bar3':4,'ng':5,'loop':6,'bar5':7,'end':8},
      'pro':{'start':0,'issued':1,'consts':2,'vmw':3,'bar1':4,'hist':5,'bar3':6,'ng':7,'entd':8},
      'pro2':{'bar3':0,'dma1':1,'wread':2,'ngm':3,'ng':4,'entw':5,'entd':6,'loop':7,'end':8}}[SSET]
def stamp(name):
    if STAMPS and name in SMAP:
        i=SMAP[name]
        A('s_memtime s[98:99]' if STAMPS==1 else 's_memrealtime s[98:99]'); A('s_waitcnt lgkmcnt(0)'); A(f's_mov_b32 s{86+i}, s98')
def stamp_store():
    if STAMPS and ENV('DBG'):
        A('s_memrealtime s[98:99]'); A('s_waitcnt lgkmcnt(0)'); A('s_mov_b32 s97, s98')
        A('s_cmp_eq_u32 s2, 7'); A('s_cbranch_scc0 K2_DBGE'); A(f's_cmp_eq_u32 s{sWAVE}, 0'); A('s_cbranch_scc0 K2_DBGE')
        A('s_load_dwordx2 s[24:25], s[0:1], 80'); A('s_waitcnt lgkmcnt(0)'); A('s_mov_b64 exec, 1'); A('v_mov_b32 v14, 0'); A('s_mov_b32 s26, 256'); A('s_mov_b32 s27, 0x20000')
        for i in range(12):
            A(f'v_mov_b32 v1, s{86+i}'); A(f'buffer_store_dword v1, v14, s[24:27], 0 offen offset:{8+4*i}')
        lab('K2_DBGE')
    elif STAMPS:
        A('s_memrealtime s[98:99]'); A('s_waitcnt lgkmcnt(0)'); A('s_mov_b32 s97, s98')
        A(f's_add_u32 s24, s{sWS}, 0x2000000'); A(f's_addc_u32 s25, s{sWS+1}, 0'); A('s_mov_b32 s26, 0x100000'); A('s_mov_b32 s27, 0x20000')
        A(f's_lshl_b32 s75, s2, 3'); A(f's_add_u32 s75, s75, s{sWAVE}'); A('s_lshl_b32 s75, s75, 6')
        for i in range(12):
            A(f'v_mov_b32 v1, s{86+i}'); A(f'v_mov_b32 v14, {4*i}'); A('buffer_store_dword v1, v14, s[24:27], s75 offen')
def x_dma(sbase):
    o=[f's_mov_b32 m0, s{sbase}']
    for m in range(4):
        o.append(f'v_mad_u32_u16 v{XV+m}, v{XI+(m>>1)}, s{s128}, v{cXM+m} op_sel:[{m&1},0,0,0]')
        o.append(f'buffer_load_dwordx4 v{XV+m}, s[{XG_}:{XG_+3}], 0 offen offset:{1024*m} lds')
    return o
ENT=' '+os.environ.get('EFL','nt')
def e_issue(p):
    return [f'v_mad_u32_u24 v{EV}, v{EI}, 32, v{cKG}', f'buffer_load_dwordx4 {q(AE[p])}, v{EV}, s[{EA_}:{EA_+3}], 0 offen{ENT}']
def e_flag(p): return [f'v_and_b32 v{ONEA[p]}, 0xff000000, v{EI}']
def summ(G,H,b,rb,ct):
    if ENV('PK'):
        P=lambda x: f'v[{x}:{x+1}]'
        o=[f'v_pk_mul_f32 {P(PN)}, {P(G+b)}, {P(H+b)}', f'v_pk_add_f32 {P(PD)}, {P(G+b)}, {P(G+b+2)}']
        for r in (2,4,6):
            o.append(f'v_pk_fma_f32 {P(PN)}, {P(G+b+r)}, {P(H+b+r)}, {P(PN)}')
            if r>=4: o.append(f'v_pk_add_f32 {P(PD)}, {P(PD)}, {P(G+b+r)}')
        o.append(f'v_add_f32 v{SD}, v{PD}, v{PD+1}'); o.append(f'v_add_f32 v{SN}, v{PN}, v{PN+1}')
    else:
        o=[f'v_mul_f32 v{SN}, v{G+b}, v{H+b}', f'v_add_f32 v{SD}, v{G+b}, v{G+b+1}']
        for r in range(1,8):
            o.append(f'v_fmac_f32 v{SN}, v{G+b+r}, v{H+b+r}')
            if r>=2: o.append(f'v_add_f32 v{SD}, v{SD}, v{G+b+r}')
    o.append(f'v_cvt_f64_f32 v[{PD}:{PD+1}], v{SD}'); o.append(f'v_cvt_f64_f32 v[{PN}:{PN+1}], v{SN}')
    if not ENV('NO_DSADD'):
        o.append(f'ds_add_f64 v{rb}, v[{PD}:{PD+1}] offset:{ct*256}'); o.append(f'ds_add_f64 v{rb}, v[{PN}:{PN+1}] offset:{512+ct*256}')
    return o
def inter(v, m, every):
    o=[]; m=list(m)
    for i,x in enumerate(v):
        if m and i%every==0: o+=m.pop(0)
        o.append(x)
    for g in m: o+=g
    return o
def gchain(G,ct,p):
    return [[mf(G,AX,WB+16*ct,'0')],[mf(G,AX+4,WB+16*ct+4,G)],[mf(G,AX+8,WB+16*ct+8,G)],[mf(G,AX+12,WB+16*ct+12,G)],
            [mf(G,AE[p],WC+4*ct,G)],[mf(G,AZ1 if ct else AZ0,XB,G)]]
def xb_reads(): return [f'ds_read2_b32 v[{XB}:{XB+1}], v{RA0} offset0:0 offset1:32', f'ds_read2_b32 v[{XB+2}:{XB+3}], v{RA1} offset0:0 offset1:32']
def ra_mads(g): return [f'v_mad_u32_u16 v{RA0}, v{g}, 64, v{cRA} op_sel:[0,0,0,0]', f'v_mad_u32_u16 v{RA1}, v{g}, 64, v{cRA} op_sel:[1,0,0,0]']
def body(p):
    o=[]
    ex=lambda G:[f'v_exp_f32 v{G+r}, v{G+r}' for r in range(16)]
    rc=lambda G:[f'v_rcp_f32 v{G+r}, v{G+r}' for r in range(16)]
    XN=ENV('XNEAR')
    xd=x_dma((sX1 if p==0 else sX0) if XN else (sX0 if p==0 else sX1)) if not ENV('NO_XDMA') else ['s_nop 0']
    EP=ENV('EPOS')
    if ENV('PRIO')=='alt':
        o+=[f's_cmp_eq_u32 s{sHALF}, {p}', f's_cbranch_scc1 PR{p}A', 's_setprio 0', f's_branch PR{p}B', f'PR{p}A:', 's_setprio 1', f'PR{p}B:']
    if EP=='early': o+=[f'ds_read_b32 v{EI}, v{aES} offset:{128*STR*p}']
    grp=[[mf(H0,AX+4*s,WV+4*s,'0' if s==0 else H0)]+(xd[:3] if s==0 else xd[1+2*s:3+2*s]) for s in range(4)]
    o+=inter(ex(G0), grp, 4)
    sb=summ(G1,H1,8,RB1,1)
    o+=sb[:2]+[mf(G0,ONEA[p],ONEB,G0)]+sb[2:]
    o+=[f'v_mad_u32_u16 v{RB0}, v{GR[p]}, 64, v{cRB} op_sel:[0,0,0,0]', f'v_mad_u32_u16 v{RB1}, v{GR[p]}, 64, v{cRB} op_sel:[1,0,0,0]']
    o+=inter(rc(G0), gchain(G1,1,p), 3)
    if EP=='early': o+=['s_waitcnt lgkmcnt(2)']+e_issue(p)
    o+=summ(G0,H0,0,RB0,0)
    o+=['s_waitcnt vmcnt(6)' if EP=='early' else 's_waitcnt vmcnt(5)',
        f'ds_read2_b32 v[{XI}:{XI+1}], v{aXS} offset0:{16*STR*p} offset1:{16*STR*p+4}']
    if EP!='early': o+=[f'ds_read_b32 v{EI}, v{aES} offset:{128*STR*p}']
    o+=[f'ds_read_b32 v{GR[p^1]}, v{aGRP} offset:{8*STR*p}']
    o+=inter(ex(G1), [[mf(H1,AX+4*s,WV+16+4*s,'0' if s==0 else H1), f'ds_read_b128 {q(AX+4*s)}, v{aAX+s} offset:{32768*(p^1)}'] for s in range(4)], 4)
    sb=summ(G0,H0,8,RB1,0)
    o+=sb[:2]+[mf(G1,ONEA[p],ONEB,G1)]
    o+=['s_waitcnt lgkmcnt(4)']+ra_mads(GR[p^1])
    o+=(e_issue(p) if (not ENV('NO_EDMA') and not EP) else [])+xb_reads()+e_flag(p)
    o+=sb[2:]
    o+=['s_waitcnt vmcnt(4) lgkmcnt(4)' if EP=='late' else 's_waitcnt vmcnt(5) lgkmcnt(4)']
    gc=gchain(G0,0,p^1)
    gc[5]=['s_waitcnt lgkmcnt(2)']+gc[5]
    o+=inter(rc(G1), gc, 3)
    if EP=='late': o+=e_issue(p)
    o+=summ(G1,H1,0,RB0,1)
    if p==1:
        o+=[f'v_add_u32 v{aXS}, {128*STR}, v{aXS}', f'v_add_u32 v{aES}, {256*STR}, v{aES}', f'v_add_u32 v{aGRP}, {16*STR}, v{aGRP}']
    if ENV('NO_XMFMA'):
        o=[i for i in o if not (i.startswith('v_mfma') and any(f', {q(AX+4*s)}, ' in i for s in range(4)))]
    if ENV('NO_HMFMA'): o=[i for i in o if not (i.startswith('v_mfma') and (i.startswith(f'v_mfma_f32_32x32x16_bf16 {q(H0,16)}') or i.startswith(f'v_mfma_f32_32x32x16_bf16 {q(H1,16)}')))]
    if ENV('NO_SUMS'): o=[i for i in o if not (i.startswith('v_fmac') or (i.startswith('v_add_f32')) or i.startswith('v_mul_f32'))]
    if ENV('NO_SMALLM'): o=[i for i in o if not (i.startswith('v_mfma') and not any(f', {q(AX+4*s)}, ' in i for s in range(4)))]
    if ENV('NO_MFMA'): o=[i for i in o if not i.startswith('v_mfma')]
    if ENV('NO_TRANS'): o=[i for i in o if not (i.startswith('v_exp') or i.startswith('v_rcp'))]
    return o

def cell_off_g(dst, creg):
    A(f'v_add_u32 v{dst}, s{sBH}, v{creg}'); A(f'v_and_b32 v{dst}, 255, v{dst}'); A(f'v_lshlrev_b32 v{dst}, 7, v{dst}'); A(f'v_lshl_add_u32 v{dst}, v5, 4, v{dst}'); A(f'v_add_u32 v{dst}, s{sBL}, v{dst}')
    A(f'v_cmp_gt_u32 vcc, {NCH}, v{creg}'); A('v_mov_b32 v14, 0x7fffffff'); A('s_nop 0'); A(f'v_cndmask_b32 v{dst}, v14, v{dst}, vcc')
def k2():
    lab('standalone__edge_featured_mpnn_gatedgcn__graph_kernel')
    A('s_cmp_ge_u32 s2, 256'); A('s_cbranch_scc1 K2_END')
    A(f's_load_dwordx2 s[{sWS}:{sWS+1}], s[0:1], 88')
    A('s_load_dwordx4 s[4:7], s[0:1], 0')
    A('s_load_dwordx2 s[20:21], s[0:1], 72')
    A(f's_and_b32 s{sB}, s2, 7'); A(f's_lshl_b32 s{sB}, s{sB}, 5'); A(f's_lshr_b32 s{sT0}, s2, 3'); A(f's_or_b32 s{sB}, s{sB}, s{sT0}')
    A('v_lshrrev_b32 v1, 6, v0'); A('v_and_b32 v15, 63, v0')
    A(f'v_readfirstlane_b32 s{sWAVE}, v1')
    A(f'v_lshlrev_b32 v{vL16}, 4, v15')
    A(f's_lshr_b32 s{sBH}, s{sB}, 1'); A(f's_and_b32 s{sBL}, s{sB}, 1'); A(f's_lshl_b32 s{sBL}, s{sBL}, 6')
    A('v_lshrrev_b32 v4, 2, v0'); A('v_and_b32 v5, 3, v0')
    cell_off_g(CO, 4); A('v_add_u32 v4, 128, v4'); cell_off_g(CO+1, 4)
    A(f's_lshl_b32 s{sT0}, s{sBH}, 15')
    A('s_waitcnt lgkmcnt(0)')
    if STAMPS:
        A('s_memrealtime s[98:99]'); A('s_waitcnt lgkmcnt(0)'); A('s_mov_b32 s96, s98')
    stamp('start')
    A(f's_add_u32 s12, s{sWS}, s{sT0}'); A(f's_addc_u32 s13, s{sWS+1}, 0'); A(f's_mov_b32 s14, {0x400000+32768}'); A('s_mov_b32 s15, 0x20000')
    for u in range(2): A(f"buffer_load_dwordx4 {q(EN+4*u)}, v{CO+u}, s[12:15], 0 offen {os.environ.get('CLD','')}")
    A(f's_mov_b32 s{sPB}, 0x400000')
    def init_a():
        A('v_lshlrev_b32 v1, 4, v0')
        for r in range(4): A(f'v_mov_b32 v{AX+r}, -1')
        A(f'v_add_u32 v14, {XS}, v1'); A(f'ds_write_b128 v14, {q(AX)}')
        for r in range(4): A(f'v_mov_b32 v{AX+4+r}, 0x{EPAD:08x}')
        A(f'ds_write_b128 v14, {q(AX+4)} offset:8192'); A(f'ds_write_b128 v14, {q(AX+4)} offset:16384')
        for r in range(4): A(f'v_mov_b32 v{AX+8+r}, 0x{(DUMMY<<16)|DUMMY:08x}')
        for r in range(4): A(f'v_mov_b32 v{AX+12+r}, 0')
        A('v_cmp_gt_u32 vcc, 64, v0'); A('s_nop 1')
        for r in range(4): A(f'v_cndmask_b32 v{AX+8+r}, v{AX+12+r}, v{AX+8+r}, vcc')
        A('v_cmp_gt_u32 vcc, 96, v0'); A(f's_and_saveexec_b64 s[{MK}:{MK+1}], vcc'); A(f'ds_write_b128 v14, {q(AX+8)} offset:{GRP-XS}'); A(f's_mov_b64 exec, s[{MK}:{MK+1}]')
    init_a()
    A('s_mov_b32 s8, s6'); A('s_mov_b32 s9, s7'); A(f's_mov_b32 s10, {E*32}'); A('s_mov_b32 s11, 0x20000')
    A(f's_mov_b32 s6, {N*128}'); A('s_mov_b32 s7, 0x20000')
    A(f's_mov_b32 s22, {N*128}'); A('s_mov_b32 s23, 0x20000')
    A(f's_add_u32 s16, s{sWS}, {WS_WPREP}'); A(f's_addc_u32 s17, s{sWS+1}, 0'); A('s_mov_b32 s18, 34816'); A('s_mov_b32 s19, 0x20000')
    A(f's_add_u32 s24, s{sWS}, {WS_OVFCNT}'); A(f's_addc_u32 s25, s{sWS+1}, 0'); A('s_mov_b32 s26, 1000'); A('s_mov_b32 s27, 0x20000')
    A(f'v_lshrrev_b32 v14, 3, v15'); A(f's_lshl_b32 s{sT0}, s{sWAVE}, 3'); A(f'v_add_u32 v14, s{sT0}, v14')
    A(f'v_lshlrev_b32 v14, 8, v14'); A(f'v_add_u32 v14, s{sB}, v14'); A('v_lshlrev_b32 v14, 7, v14')
    A('v_lshrrev_b32 v4, 4, v15'); A('v_and_b32 v5, 7, v15'); A('v_xor_b32 v4, v4, v5'); A(f'v_lshlrev_b32 v{cXE}, 4, v4'); A(f'v_xor_b32 v{cXO}, 64, v{cXE}')
    A(f's_and_b32 s{sT0}, s{sWAVE}, 1'); A(f's_cmp_eq_u32 s{sT0}, 0'); A('s_cselect_b64 vcc, -1, 0')
    A(f'v_cndmask_b32 v4, v{cXO}, v{cXE}, vcc'); A('v_add_u32 v4, v14, v4')
    A(f'v_mov_b32 v{CO+2-2+0}, v{CO}') if False else None
    A(f'v_mov_b32 v{XV}, v4')
    stamp('issued')
    A('v_lshrrev_b32 v14, 6, v0'); A(f'v_mul_u32_u24 v14, {RECSZ}, v14'); A(f'v_add_u32 v14, v14, v{vL16}'); A(f'v_add_u32 v14, {REC+O_DEN}, v14')
    for r in range(4): A(f'v_mov_b32 v{AX+r}, 0')
    for i in range(5): A(f'ds_write_b128 v14, {q(AX)} offset:{8*RECSZ*i}')
    A(f'v_add_u32 v14, {8*RECSZ*5}, v14'); A(f'ds_write_b128 v14, {q(AX)}')
    A('v_cmp_gt_u32 vcc, 128, v0'); A(f's_and_saveexec_b64 s[{MK}:{MK+1}], vcc'); A(f'ds_write_b128 v14, {q(AX)} offset:{8*RECSZ}'); A(f's_mov_b64 exec, s[{MK}:{MK+1}]')
    A(f'v_mov_b32 v{vONE}, 1')
    A(f's_mov_b32 s{sCNT}, {CNT}'); A(f's_mov_b32 s{sXS}, {XS}'); A(f's_mov_b32 s{sES}, {ES}'); A(f's_mov_b32 s{s128}, 128')
    A(f's_mov_b32 s{sMODE}, 0'); A(f's_mov_b32 s{sFIRST}, 1'); A(f's_mov_b32 s{sU}, 0')
    A(f's_lshr_b32 s{sHALF}, s{sWAVE}, 2')
    if ENV('PRIO')=='young': A(f's_cmp_eq_u32 s{sHALF}, 1'); A('s_cbranch_scc0 PRY'); A('s_setprio 1'); lab('PRY')
    A('v_lshrrev_b32 v4, 2, v0'); A('v_mul_u32_u24 v4, 3200, v4')
    for u in range(4): A(f'v_add_u32 v{EB+u}, 0x{(128*(u&1)*3200-1+EFLAG)&0xffffffff:08x}, v4')
    for k in range(8,16): A(f'v_mov_b32 v{EN+k}, 0')
    def lane_consts():
        C('lane constants (v1 = kg)')
        A('v_lshrrev_b32 v1, 5, v15'); A(f'v_lshlrev_b32 v{cKG}, 4, v1')
        A('v_bfe_u32 v5, v15, 3, 2'); A('v_lshlrev_b32 v4, 5, v1'); A('v_lshl_add_u32 v4, v5, 2, v4'); A(f'v_add_u32 v{kXS}, {XS}, v4')
        A('v_bfe_u32 v4, v15, 2, 1'); A('v_lshlrev_b32 v4, 4, v4'); A('v_bfe_u32 v5, v15, 4, 1'); A('v_lshl_add_u32 v4, v5, 3, v4')
        A('v_and_b32 v5, 3, v15'); A('v_lshl_add_u32 v4, v5, 1, v4'); A('v_bfe_u32 v5, v15, 3, 1'); A('v_add_u32 v4, v4, v5')
        A('v_lshlrev_b32 v4, 2, v4'); A(f'v_add_u32 v{kES}, {ES}, v4')
        A('v_lshlrev_b32 v4, 2, v1'); A(f'v_add_u32 v{kGRP}, {GRP}, v4')
        A('v_and_b32 v4, 31, v15'); A('v_lshlrev_b32 v5, 2, v4'); A(f'v_add_u32 v{cRA}, {REC}, v5'); A('v_lshlrev_b32 v5, 3, v4'); A(f'v_add_u32 v{cRB}, {REC+O_DEN}, v5')
        A('v_bfe_u32 v5, v15, 1, 3'); A('v_xor_b32 v5, v5, v1'); A('v_lshlrev_b32 v5, 4, v5'); A('v_lshl_add_u32 v4, v4, 7, v5')
        for s in range(4): A(f'v_xor_b32 v{kAX+s}, {32*s}, v4')
        A(f's_lshl_b32 s{sX0}, s{sWAVE}, 12'); A(f's_add_u32 s{sX1}, s{sX0}, 32768')
        for m in range(4): A(f'v_add_u32 v{cXM+m}, {4096-1024*m}, v{cXO if m&1 else cXE}')
        A('v_bfe_u32 v4, v15, 2, 1'); A('v_cmp_eq_u32 vcc, v4, v1'); A('v_mov_b32 v5, 0x3f803f80'); A('s_nop 0'); A('v_cndmask_b32 v5, 0, v5, vcc')
        A('v_bfe_u32 v4, v15, 4, 1'); A('v_cmp_eq_u32 vcc, 0, v4'); A('s_nop 1'); A(f'v_cndmask_b32 v{AZ0}, 0, v5, vcc')
        A(f'v_sub_u32 v{AZ0+2}, v5, v{AZ0}'); A(f'v_mov_b32 v{AZ0+1}, 0'); A(f'v_mov_b32 v{AZ0+3}, 0')
        A(f'v_mov_b32 v{AZ1}, 0'); A(f'v_mov_b32 v{AZ1+1}, v{AZ0}'); A(f'v_mov_b32 v{AZ1+2}, 0'); A(f'v_mov_b32 v{AZ1+3}, v{AZ0+2}')
        A('v_cmp_eq_u32 vcc, 0, v1'); A('v_mov_b32 v5, 0x3f000000'); A('s_nop 0'); A(f'v_cndmask_b32 v{ONEB}, 0, v5, vcc')
        for r in range(1,4): A(f'v_mov_b32 v{ONEB+r}, 0'); A(f'v_mov_b32 v{ONEA[0]+r}, 0'); A(f'v_mov_b32 v{ONEA[1]+r}, 0')
    lane_consts()
    stamp('consts')
    A('s_waitcnt vmcnt(0)')
    for u in range(2):
        A(f'v_mov_b32_dpp v14, v{EN+4*u+3} quad_perm:[3,3,3,3] row_mask:0xf bank_mask:0xf'); A('s_nop 0')
        A('v_cmp_ne_u32 vcc, 0, v14'); A('s_mov_b64 exec, vcc')
        A(f'buffer_load_dwordx4 {q(EN+8+4*u)}, v{CO+u}, s[12:15], s{sPB} offen'); A('s_mov_b64 exec, -1')
    A(f's_lshl_b32 s{sT0}, s{sWAVE}, 10'); A(f's_add_u32 m0, s{sT0}, {OWNX}'); A('s_nop 0')
    A(f'buffer_load_dwordx4 v{XV}, s[{X_}:{X_+3}], 0 offen lds')
    for i in range(3):
        A(f's_add_u32 s{sT1}, s{sT0}, {8192*i}'); A(f's_add_u32 m0, s{sT1}, {WSTG}'); A('s_nop 0')
        A(f'buffer_load_dwordx4 v{vL16}, s[16:19], s{sT1} offen lds')
    A('s_branch K2_WD')
    lab('K2_ROUND')
    init_a()
    A('s_waitcnt vmcnt(0)')
    lab('K2_WD')
    stamp('vmw')
    if ENV('HALFCELL'):
        A(f's_cmp_eq_u32 s{sMODE}, 2'); A('s_cbranch_scc1 K2_NOMASK')
        A('v_and_b32 v14, 4, v15'); A('v_cmp_eq_u32 s[84:85], 0, v14')
        for u in range(4):
            A(f'v_mov_b32_dpp v1, v{EN+4*u+3} quad_perm:[3,3,3,3] row_mask:0xf bank_mask:0xf'); A('s_nop 1')
            A('v_mov_b32_dpp v14, v1 row_shr:4 row_mask:0xf bank_mask:0xf bound_ctrl:0'); A('s_nop 0')
            A('v_cmp_ne_u32 vcc, 0, v14'); A('s_or_b64 vcc, vcc, s[84:85]')
            for k in range(4): A(f'v_cndmask_b32 v{EN+4*u+k}, 0, v{EN+4*u+k}, vcc')
        lab('K2_NOMASK')
    def pre(ks):
        for k in ks: A(f'v_cmp_ne_u32 s[{MK+2*k}:{MK+2*k+1}], 0, v{EN+k}')
        for k in ks: A(f'v_and_b32 v{AD+k}, 63, v{EN+k}'); A(f'v_lshl_add_u32 v{AD+k}, v{AD+k}, 2, s{sCNT}')
    def atom(ks):
        for k in ks: A(f's_mov_b64 exec, s[{MK+2*k}:{MK+2*k+1}]'); A(f'ds_add_rtn_u32 v{RK+k}, v{AD+k}, v{vONE}')
        A('s_mov_b64 exec, -1')
    pre(range(8))
    A('s_waitcnt lgkmcnt(0)'); A('s_barrier')
    stamp('bar1')
    def ew(ks):
        for k in ks: A(f'v_lshrrev_b32 v{EW+k}, 20, v{EN+k}'); A(f'v_bfe_u32 v{EN+k}, v{EN+k}, 6, 14'); A(f'v_add_u32 v{EW+k}, v{EW+k}, v{EB+k//4}')
    atom(range(8))
    A(f's_cmp_eq_u32 s{sFIRST}, 1'); A('s_cbranch_scc0 K2_NF1')
    A(f'buffer_load_dwordx4 {q(T0)}, v{vL16}, s[24:27], 0 offen')
    A(f's_lshr_b32 s{sT0}, s{sWAVE}, 1'); A(f's_lshl_b32 s{sT0}, s{sT0}, 12'); A(f's_add_u32 s{sT0}, s{sT0}, {18*1024}')
    for s_ in range(4): A(f'buffer_load_dwordx4 {q(NGB+4*s_)}, v{vL16}, s[16:19], s{sT0} offen offset:{1024*s_}')
    A(f's_lshr_b32 s{sT0}, s2, 3'); A(f's_mul_i32 s{sT0}, s{sT0}, 391'); A(f'v_add_u32 v14, s{sT0}, v0'); A('v_lshlrev_b32 v14, 7, v14')
    A('v_cmp_gt_u32 vcc, 391, v0'); A(f'v_mov_b32 v{T0+5}, 0x7fffffff'); A('s_nop 0'); A(f'v_cndmask_b32 v14, v{T0+5}, v14, vcc')
    if ENV('NOXPF'): A(f'v_mov_b32 v14, v{T0+5}')
    A(f'v_mov_b32 v{kP2}, v14'); A(f's_cmp_ge_u32 s{sWAVE}, {XSPLIT}'); A('s_cselect_b64 vcc, -1, 0')
    A(f'v_cndmask_b32 v14, v14, v{T0+5}, vcc'); A(f'v_cndmask_b32 v{kP2}, v{T0+5}, v{kP2}, vcc')
    if (not ENV('XEARLY')): A(f'v_mov_b32 v{kP1}, v14')
    else: A(f'buffer_load_dword v{T0+5}, v14, s[{X_}:{X_+3}], 0 offen')
    lab('K2_NF1')
    ew(range(8))
    A('s_waitcnt vmcnt(9)' if (not ENV('XEARLY')) else 's_waitcnt vmcnt(10)')
    for k in range(8,16): A(f'v_cmp_ne_u32 s[{MK+2*k}:{MK+2*k+1}], 0, v{EN+k}')
    def addr(ks):
        for k in ks: A(f'v_and_b32 v{AD+k}, 63, v{EN+k}'); A(f'v_lshl_add_u32 v{AD+k}, v{AD+k}, 2, s{sCNT}')
    addr(B0); atom(B0); ew(B0)
    A(f's_or_b64 s[84:85], s[{MK+18}:{MK+19}], s[{MK+26}:{MK+27}]'); A(f's_cselect_b32 s{sG1}, 1, 0')
    A(f's_or_b64 s[84:85], s[{MK+20}:{MK+21}], s[{MK+22}:{MK+23}]'); A(f's_or_b64 s[84:85], s[84:85], s[{MK+28}:{MK+29}]'); A(f's_or_b64 s[84:85], s[84:85], s[{MK+30}:{MK+31}]'); A(f's_cselect_b32 s{sG2}, 1, 0')
    def guarded(tag, fn):
        for g,(sg,ks) in enumerate(((sG1,B1),(sG2,B2))):
            A(f's_cmp_eq_u32 s{sg}, 0'); A(f's_cbranch_scc1 K2_SK{tag}{g}'); fn(ks); lab(f'K2_SK{tag}{g}')
    guarded('H', lambda ks: (addr(ks), atom(ks), ew(ks)))
    if ENV('EPF'):
        lim=CNT+4*int(ENV('EPF'))
        A(f'v_mov_b32 v{kOOB}, 0x7fffffff')
        for k in list(range(8))+B0:
            A(f'v_cmp_gt_u32 vcc, {lim}, v{AD+k}'); A(f'v_mad_u32_u24 v14, v{EW+k}, 32, 0'); A(f's_and_b64 vcc, vcc, s[{MK+2*k}:{MK+2*k+1}]')
            A(f'v_cndmask_b32 v14, v{kOOB}, v14, vcc')
            A(f'buffer_load_dword v{T0+5}, v14, s[{EA_}:{EA_+3}], 0 offen nt')
    A('s_waitcnt lgkmcnt(0)'); A('s_barrier')
    stamp('hist')
    A(f's_cmp_eq_u32 s{sFIRST}, 1'); A('s_cbranch_scc0 K2_NF2')
    A(f"buffer_load_dword v{T0+5}, v{kP1 if (not ENV('XEARLY')) else kP2}, s[{X_}:{X_+3}], 0 offen")
    lab('K2_NF2')
    A(f'v_lshl_add_u32 v4, v15, 2, s{sCNT}'); A('ds_read_b32 v5, v4'); A('s_waitcnt lgkmcnt(0)')
    A('v_add_u32 v5, 7, v5'); A('v_lshrrev_b32 v5, 3, v5'); A('v_mov_b32 v1, v5'); A('s_nop 1')
    for sh in (1,2,4,8):
        A(f'v_add_u32_dpp v1, v1, v1 row_shr:{sh} row_mask:0xf bank_mask:0xf bound_ctrl:0'); A('s_nop 1')
    A('v_add_u32_dpp v1, v1, v1 row_bcast:15 row_mask:0xa bank_mask:0xf'); A('s_nop 1')
    A('v_add_u32_dpp v1, v1, v1 row_bcast:31 row_mask:0xc bank_mask:0xf'); A('s_nop 1')
    A(f'v_readlane_b32 s{sNT}, v1, 63')
    A('v_sub_u32 v1, v1, v5')
    A(f'v_lshlrev_b32 v{T0+4}, 3, v1')
    if not ENV('BPERM'): A(f'ds_write_b32 v4, v{T0+4} offset:256')
    A(f's_cmp_gt_u32 s{sNT}, {CAPG}'); A('s_cbranch_scc1 K2_SPLIT')
    if ENV('BPERM'):
        for k in range(16): A(f'ds_bpermute_b32 v{AD+k}, v{AD+k}, v{T0+4}')
    else:
        nb=lambda ks: [A(f'ds_read_b32 v{AD+k}, v{AD+k} offset:256') for k in ks]
        nb(list(range(8))+B0); guarded('N', nb)
    A(f'v_mul_u32_u24 v{XV}, 22, v15'); A(f'v_mov_b32 v{XV+1}, s{sWAVE}')
    lab('K2_GL')
    A(f'v_cmp_lt_u32 vcc, v{XV+1}, v5'); A('s_and_saveexec_b64 s[84:85], vcc'); A('s_cbranch_execz K2_GLD')
    A(f'v_add_u32 v{XV+2}, v1, v{XV+1}'); A(f'v_lshlrev_b32 v{XV+2}, 1, v{XV+2}'); A(f'v_add_u32 v{XV+2}, {GRP}, v{XV+2}')
    A(f'ds_write_b16 v{XV+2}, v{XV}'); A(f'v_add_u32 v{XV+1}, 8, v{XV+1}')
    A('s_mov_b64 exec, s[84:85]'); A('s_branch K2_GL')
    lab('K2_GLD'); A('s_mov_b64 exec, -1')
    if (not ENV('XEARLY')):
        A(f's_cmp_eq_u32 s{sFIRST}, 1'); A('s_cbranch_scc0 K2_NF3'); A(f'buffer_load_dword v{T0+5}, v{kP2}, s[{X_}:{X_+3}], 0 offen'); lab('K2_NF3')
    A('s_waitcnt lgkmcnt(0)')
    stamp('prefix')
    def slot(ks):
        for k in ks:
            A(f'v_add_u32 v{RK+k}, v{RK+k}, v{AD+k}')
            A(f'v_lshl_add_u32 v{AD+k}, v{RK+k}, 1, s{sXS}')
            A(f'v_lshl_add_u32 v{RK+k}, v{RK+k}, 2, s{sES}')
        for k in ks:
            A(f's_mov_b64 exec, s[{MK+2*k}:{MK+2*k+1}]')
            A(f'ds_write_b16 v{AD+k}, v{EN+k}'); A(f'ds_write_b32 v{RK+k}, v{EW+k}')
        A('s_mov_b64 exec, -1')
    slot(list(range(8))+B0); guarded('S', slot)
    A(f's_add_u32 s{sNT}, s{sNT}, 3'); A(f's_lshr_b32 s{sNT}, s{sNT}, 2')
    A('s_waitcnt vmcnt(12) lgkmcnt(0)' if ENV('EPF') else 's_waitcnt vmcnt(2) lgkmcnt(0)'); A('s_barrier')
    stamp('bar3')
    A(f's_sub_u32 s{XG_}, s{X_}, 4096'); A(f's_subb_u32 s{XG_+1}, s{X_+1}, 0'); A(f's_mov_b32 s{XG_+2}, {N*128+4096}'); A(f's_mov_b32 s{XG_+3}, 0x20000')
    A(f's_mov_b32 s{sTI}, s{sWAVE}')
    A(f's_lshl_b32 s{sT0}, s{sWAVE}, 6'); A(f'v_add_u32 v{aXS}, s{sT0}, v{kXS}')
    A(f's_lshl_b32 s{sT0}, s{sWAVE}, 7'); A(f'v_add_u32 v{aES}, s{sT0}, v{kES}')
    A(f's_lshl_b32 s{sT0}, s{sWAVE}, 3'); A(f'v_add_u32 v{aGRP}, s{sT0}, v{kGRP}')
    A(f'ds_read_b32 v{EI}, v{aES}'); A(f'ds_read2_b32 v[{XI}:{XI+1}], v{aXS} offset0:0 offset1:4'); A(f'ds_read_b32 v{GR[0]}, v{aGRP}')
    for s in range(4): A(f'v_add_u32 v{aAX+s}, s{sX0}, v{kAX+s}')
    A('s_waitcnt lgkmcnt(0)')
    for i in x_dma(sX0)+e_issue(0)+e_flag(0): A(i)
    stamp('dma1')
    A(f's_cmp_eq_u32 s{sFIRST}, 0'); A('s_cbranch_scc1 K2_NG_DONE')
    A(f'v_add_u32 v1, {WSTG}, v{vL16}')
    A(f's_and_b32 s{sT0}, s{sWAVE}, 1'); A(f's_lshl_b32 s{sT0}, s{sT0}, 12'); A(f's_add_u32 s{sT0}, s{sT0}, {OWNX}')
    for s in range(4): A(f'v_add_u32 v{XV+s}, s{sT0}, v{kAX+s}')
    for s in range(4): A(f'ds_read_b128 {q(AX+4*s)}, v{XV+s}')
    for i in range(18): A(f'ds_read_b128 {q(WB+4*i)}, v1 offset:{1024*i}')
    A(f'v_or_b32 v{T0}, v{T0}, v{T0+1}'); A(f'v_or_b32 v{T0+2}, v{T0+2}, v{T0+3}'); A(f'v_or_b32 v{T0}, v{T0}, v{T0+2}')
    A(f'v_cmp_ne_u32 vcc, 0, v{T0}'); A('s_nop 3'); A('s_cmp_lg_u64 vcc, 0'); A(f's_cselect_b32 s{sOVF}, 1, 0')
    A('s_waitcnt lgkmcnt(0)')
    stamp('wread')
    for s in range(4): A(mf(G0, AX+4*s, NGB+4*s, '0' if s==0 else G0))
    A(f's_and_b32 s{sT0}, s{sWAVE}, 1'); A(f's_lshl_b32 s{sT0}, s{sT0}, 5'); A(f'v_lshrrev_b32 v1, 5, v15'); A(f'v_lshl_add_u32 v1, v1, 2, s{sT0}')
    A(f'v_mul_u32_u24 v1, {RECSZ}, v1')
    A(f's_bfe_u32 s{sT1}, s{sWAVE}, 0x10001')
    A(f's_cmp_ge_u32 s{sWAVE}, 4'); A('s_cbranch_scc1 K2_NG_U')
    A(f's_lshl_b32 s{sT1}, s{sT1}, 7'); A(f'v_add_u32 v1, v1, v{cRA}'); A(f'v_add_u32 v1, s{sT1}, v1')
    A(f's_mov_b32 s{sT2}, 0x{NLOG2E:08x}'); A('s_nop 7')
    for r in range(16):
        A(f'v_mul_f32 v{G0+r}, s{sT2}, v{G0+r}')
        A(f'v_cvt_pk_bf16_f32 v{SD}, v{G0+r}, v{G0+r}'); A(f'v_lshlrev_b32 v{SD}, 16, v{SD}'); A(f'v_sub_f32 v{SN}, v{G0+r}, v{SD}'); A(f'v_cvt_pk_bf16_f32 v{G0+r}, v{SD}, v{SN}')
    def wr_a(r): A(f'ds_write_b32 v1, v{G0+r} offset:{(8*(r//4)+(r%4))*RECSZ}')
    for r in range(8): wr_a(r)
    A(f's_and_b32 s{sT0}, s{sWAVE}, 1'); A(f's_cmp_eq_u32 s{sT0}, 0'); A('s_cbranch_scc0 K2_NG_A1')
    for r in range(8,16): wr_a(r)
    A('s_branch K2_NG_BAR')
    lab('K2_NG_A1')
    A('s_mov_b32 exec_lo, -1'); A('s_mov_b32 exec_hi, 0'); wr_a(8); wr_a(9); A('s_mov_b64 exec, -1'); A('s_branch K2_NG_BAR')
    lab('K2_NG_U')
    A(f's_lshl_b32 s{sT1}, s{sT1}, 6'); A(f'v_and_b32 v{SD}, 31, v15'); A(f'v_lshl_add_u32 v1, v{SD}, 1, v1'); A(f'v_add_u32 v1, s{sT1}, v1'); A(f'v_add_u32 v1, {REC+O_U}, v1')
    A('s_nop 7')
    for r in range(16): A(f'v_cvt_pk_bf16_f32 v{G0+r}, v{G0+r}, v{G0+r}')
    def wr_u(r): A(f'ds_write_b16 v1, v{G0+r} offset:{(8*(r//4)+(r%4))*RECSZ}')
    for r in range(8): wr_u(r)
    A(f's_and_b32 s{sT0}, s{sWAVE}, 1'); A(f's_cmp_eq_u32 s{sT0}, 0'); A('s_cbranch_scc0 K2_NG_U1')
    for r in range(8,16): wr_u(r)
    A('s_branch K2_NG_BAR')
    lab('K2_NG_U1')
    A('s_mov_b32 exec_lo, -1'); A('s_mov_b32 exec_hi, 0'); wr_u(8); wr_u(9); A('s_mov_b64 exec, -1')
    lab('K2_NG_BAR')
    stamp('ngm')
    A('s_waitcnt lgkmcnt(0)'); A('s_barrier')
    lab('K2_NG_DONE')
    stamp('ng')
    A(f's_mov_b32 s{sFIRST}, 0')
    if ENV('BAR'): A(f's_mov_b32 s{sTI}, 0')
    A(f's_cmp_lt_u32 s{sTI}, s{sNT}'); A('s_cbranch_scc0 K2_LOOP_END')
    A(f'ds_read2_b32 v[{XI}:{XI+1}], v{aXS} offset0:{16*STR} offset1:{16*STR+4}'); A(f'ds_read_b32 v{EI}, v{aES} offset:{128*STR}')
    for i in ra_mads(GR[0]): A(i)
    A(f'v_mad_u32_u16 v{RB1}, v{GR[0]}, 64, v{cRB} op_sel:[1,0,0,0]')
    for i in xb_reads(): A(i)
    for r in range(8,16): A(f'v_mov_b32 v{G1+r}, 0'); A(f'v_mov_b32 v{H1+r}, 0')
    A('s_waitcnt lgkmcnt(2)')
    if ENV('XNEAR'):
        for i in e_issue(1)+e_flag(1): A(i)
        A(f'v_add_u32 v{aXS}, {64*STR}, v{aXS}')
        A('s_waitcnt vmcnt(1)')
    else:
        for i in x_dma(sX1)+e_issue(1)+e_flag(1): A(i)
        A(f'v_add_u32 v{aXS}, {128*STR}, v{aXS}')
        A(f'ds_read2_b32 v[{XI}:{XI+1}], v{aXS} offset0:0 offset1:4')
        A('s_waitcnt vmcnt(5)')
    stamp('entw')
    for s in range(4): A(f'ds_read_b128 {q(AX+4*s)}, v{aAX+s}')
    A(f'v_add_u32 v{aXS}, {64*STR}, v{aXS}'); A(f'v_add_u32 v{aES}, {256*STR}, v{aES}'); A(f'v_add_u32 v{aGRP}, {8*STR}, v{aGRP}')
    A('s_waitcnt lgkmcnt(0)')
    for g in gchain(G0,0,0):
        for i in g: A(i)
    A('s_nop 7'); A('s_nop 2')
    stamp('entd')
    if ENV('ALN'):
        L.append('    .balignl 64, 0xBF800000')
        for _ in range(int(ENV('ALN'))): A('s_nop 0')
    lab('K2_LOOP')
    for i in body(0): A(i)
    A(f's_add_u32 s{sTI}, s{sTI}, {STR}'); A(f's_cmp_lt_u32 s{sTI}, s{sNT}'); A('s_cbranch_scc0 K2_TAIL')
    for i in body(1): A(i)
    A(f's_add_u32 s{sTI}, s{sTI}, {STR}'); A(f's_cmp_lt_u32 s{sTI}, s{sNT}'); A('s_cbranch_scc1 K2_LOOP')
    lab('K2_TAIL')
    for i in summ(G1,H1,8,RB1,1): A(i)
    lab('K2_LOOP_END')
    stamp('loop')
    A('s_waitcnt vmcnt(0)')
    A('v_lshrrev_b32 v1, 3, v0'); A('v_and_b32 v2, 7, v0')
    A(f'v_lshlrev_b32 v3, 8, v1'); A(f'v_add_u32 v3, s{sB}, v3'); A('v_lshlrev_b32 v3, 7, v3'); A('v_lshl_add_u32 v3, v2, 4, v3')
    A(f'buffer_load_dwordx4 {q(NGB)}, v3, s[{X_}:{X_+3}], 0 offen')
    A(f'v_mul_u32_u24 v14, {RECSZ}, v1'); A(f'v_add_u32 v14, {REC}, v14'); A(f'v_lshl_add_u32 v{kE5}, v2, 6, v14'); A(f'v_lshl_add_u32 v{kE6}, v2, 4, v14')
    A('s_waitcnt lgkmcnt(0)'); A('s_barrier')
    stamp('bar5')
    A(f's_cmp_eq_u32 s{sMODE}, 1'); A('s_cbranch_scc1 K2_NEXT_SPLIT')
    A(f's_cmp_eq_u32 s{sMODE}, 2'); A('s_cbranch_scc1 K2_NEXT_OVF')
    lab('K2_CHECK_OVF')
    A(f's_cmp_eq_u32 s{sOVF}, 0'); A('s_cbranch_scc1 K2_EPI')
    A(f's_mov_b32 s{sMODE}, 2'); A(f's_mov_b32 s{sOC}, 0'); A(f's_mov_b32 s{sOP}, 0'); A('s_branch K2_OVF_FIND')
    lab('K2_SPLIT')
    A(f's_mov_b32 s{sMODE}, 1'); A(f's_mov_b32 s{sU}, 0')
    A('s_waitcnt lgkmcnt(0)'); A('s_barrier')
    A('s_branch K2_LOADQ')
    lab('K2_NEXT_SPLIT')
    A(f's_add_u32 s{sU}, s{sU}, 1'); A(f's_cmp_ge_u32 s{sU}, 4'); A('s_cbranch_scc1 K2_CHECK_OVF')
    lab('K2_LOADQ')
    A(f's_and_b32 s{sT0}, s{sU}, 1'); A(f's_lshl_b32 s{sT0}, s{sT0}, 7'); A('v_lshrrev_b32 v4, 2, v0'); A(f'v_add_u32 v4, s{sT0}, v4'); A('v_and_b32 v5, 3, v0')
    cell_off_g(CO, 4)
    A('s_waitcnt vmcnt(0)')
    A(f'buffer_load_dwordx4 {q(EN)}, v{CO}, s[12:15], 0 offen')
    for k in range(4,16): A(f'v_mov_b32 v{EN+k}, 0')
    A(f's_cmp_ge_u32 s{sU}, 2'); A('s_cbranch_scc0 K2_LOADQ_A')
    A('s_waitcnt vmcnt(0)')
    A(f'v_mov_b32_dpp v14, v{EN+3} quad_perm:[3,3,3,3] row_mask:0xf bank_mask:0xf'); A('s_nop 0')
    A('v_cmp_ne_u32 vcc, 0, v14')
    for k in range(4): A(f'v_mov_b32 v{EN+k}, 0')
    A('s_mov_b64 exec, vcc'); A('s_cbranch_execz K2_LOADQ_B')
    A(f'buffer_load_dwordx4 {q(EN)}, v{CO}, s[12:15], s{sPB} offen')
    lab('K2_LOADQ_B'); A('s_mov_b64 exec, -1')
    lab('K2_LOADQ_A')
    A('v_mul_u32_u24 v4, 3200, v4'); A(f'v_add_u32 v{EB}, 0x{EFLAG-1:08x}, v4')
    A('s_branch K2_ROUND')
    lab('K2_NEXT_OVF')
    A(f's_add_u32 s{sOP}, s{sOP}, 2048')
    lab('K2_OVF_FIND')
    A(f's_cmp_ge_u32 s{sOC}, {NCH}'); A('s_cbranch_scc1 K2_EPI')
    A(f's_lshl_b32 s{sT0}, s{sOC}, 2'); A(f's_add_u32 s{sT0}, s{sT0}, {WS_OVFCNT}')
    A(f's_load_dword s{sON}, s[{sWS}:{sWS+1}], s{sT0}'); A('s_waitcnt lgkmcnt(0)')
    A(f's_cmp_gt_u32 s{sON}, s{sOP}'); A('s_cbranch_scc1 K2_OVF_LOAD')
    A(f's_add_u32 s{sOC}, s{sOC}, 1'); A(f's_mov_b32 s{sOP}, 0'); A('s_branch K2_OVF_FIND')
    lab('K2_OVF_LOAD')
    A(f's_mul_i32 s{sT0}, s{sOC}, 25600'); A(f's_add_u32 s{sT0}, s{sT0}, {WS_OVFL}')
    A(f's_add_u32 s24, s{sWS}, s{sT0}'); A(f's_addc_u32 s25, s{sWS+1}, 0'); A(f's_lshl_b32 s26, s{sON}, 3'); A('s_mov_b32 s27, 0x20000')
    A(f'v_add_u32 v1, s{sOP}, v0'); A('v_lshlrev_b32 v1, 3, v1')
    A(f'buffer_load_dwordx2 v[{AX}:{AX+1}], v1, s[24:27], 0 offen')
    for j in range(1,4):
        A(f's_mov_b32 s{sT0}, {4096*j}'); A(f'buffer_load_dwordx2 v[{AX+2*j}:{AX+2*j+1}], v1, s[24:27], s{sT0} offen')
    A('s_waitcnt vmcnt(0)')
    for j in range(4):
        A(f'v_cmp_eq_u32 vcc, s{sB}, v{AX+2*j+1}'); A('s_nop 1'); A(f'v_cndmask_b32 v{EN+j}, 0, v{AX+2*j}, vcc')
    for k in range(4,16): A(f'v_mov_b32 v{EN+k}, 0')
    A(f's_mul_i32 s{sT0}, s{sOC}, 3200'); A(f's_add_u32 s{sT0}, s{sT0}, 0x{EFLAG-1:08x}'); A(f'v_mov_b32 v{EB}, s{sT0}')
    A('s_branch K2_ROUND')
    lab('K2_EPI')
    for i in range(4): A(f'ds_read_b128 {q(48+4*i)}, v{kE5} offset:{O_DEN+16*i}')
    A(f'ds_read_b128 v[36:39], v{kE6} offset:{O_U}')
    for i in range(4): A(f'ds_read_b128 {q(64+4*i)}, v{kE5} offset:{O_NUM+16*i}')
    A('s_mov_b32 s40, 0x358637bd')
    A('s_waitcnt lgkmcnt(5)')
    for i in range(8): A(f'v_cvt_f32_f64 v{20+i}, v[{48+2*i}:{49+2*i}]')
    for i in range(8): A(f'v_add_f32 v{20+i}, s40, v{20+i}')
    for i in range(8): A(f'v_rcp_f32 v{20+i}, v{20+i}')
    A('s_waitcnt lgkmcnt(4)')
    for i in range(4):
        A(f'v_lshlrev_b32 v{40+2*i}, 16, v{36+i}'); A(f'v_and_b32 v{41+2*i}, 0xffff0000, v{36+i}')
    A('s_waitcnt lgkmcnt(0)')
    for i in range(8): A(f'v_cvt_f32_f64 v{28+i}, v[{64+2*i}:{65+2*i}]')
    for i in range(8): A(f'v_fmac_f32 v{40+i}, v{28+i}, v{20+i}')
    for i in range(8): A(f'v_cmp_lt_f32 s[{42+2*i}:{43+2*i}], 0, v{40+i}')
    for i in range(8): A(f'v_mul_f32 v{28+i}, 0, v{40+i}')
    for i in range(8): A(f'v_cndmask_b32 v{28+i}, v{28+i}, v{40+i}, s[{42+2*i}:{43+2*i}]')
    A('s_waitcnt vmcnt(0)')
    for i in range(4):
        A(f'v_lshlrev_b32 v{40+2*i}, 16, v{NGB+i}'); A(f'v_and_b32 v{41+2*i}, 0xffff0000, v{NGB+i}')
    for i in range(8): A(f'v_add_f32 v{28+i}, v{28+i}, v{40+i}')
    for i in range(4): A(f'v_cvt_pk_bf16_f32 v{20+i}, v{28+2*i}, v{29+2*i}')
    A(f"buffer_store_dwordx4 v[20:23], v3, s[{OU_}:{OU_+3}], 0 offen {os.environ.get('OST','sc1')}")
    stamp('end')
    stamp_store()
    lab('K2_END')
    A('s_endpgm')

hdr = f'''; GatedGCN edge-featured MPNN: K1 buckets edges by destination, K2 gathers + MFMA + segment-reduces in LDS.
; @launch kernel=gcn_sort_kernel grid=({K1_GRID},1,1) block=(1024,1,1) lds={K1_LDS}
; @launch kernel=standalone__edge_featured_mpnn_gatedgcn__graph_kernel grid=(256,1,1) block=(512,1,1) lds={LDS_END}
.amdgcn_target "amdgcn-amd-amdhsa--gfx950"
.text
'''
def kd(name, nv, ns):
    return f'''.p2align 6
.amdhsa_kernel {name}
  .amdhsa_next_free_vgpr {nv}
  .amdhsa_next_free_sgpr {ns}
  .amdhsa_accum_offset {(nv+3)//4*4}
  .amdhsa_group_segment_fixed_size 0
  .amdhsa_kernarg_size 96
  .amdhsa_user_sgpr_count 2
  .amdhsa_user_sgpr_kernarg_segment_ptr 1
  .amdhsa_system_sgpr_workgroup_id_x 1
.end_amdhsa_kernel
'''
out=[hdr]
out.append('.globl gcn_sort_kernel\n.p2align 8\n.type gcn_sort_kernel,@function')
k1(); out+=L; L=[]
out.append('.globl standalone__edge_featured_mpnn_gatedgcn__graph_kernel\n.p2align 8\n.type standalone__edge_featured_mpnn_gatedgcn__graph_kernel,@function')
k2(); out+=L
out.append('.section .rodata,"a"')
out.append(kd('gcn_sort_kernel', 40, 72))
out.append(kd('standalone__edge_featured_mpnn_gatedgcn__graph_kernel', NVGPR, 102 if STAMPS else 96))
open(sys.argv[1] if len(sys.argv)>1 else 'out.s','w').write('\n'.join(out)+'\n')
print('LDS_END',LDS_END)
```

```python
import sys, os
N=12500; E=800000; CH=3200; NCH=250; NBK=256
WS_CELLS=0; WS_OVFCNT=0x800000; WS_WPREP=0x801000; WS_OVFL=0x810000; WS_T=0x1000000
NLOG2E=0xBFB8AA3B
L=[]
def A(s): L.append(s if s.endswith(':') else '    '+s)
def lab(s): L.append(s+':')
def C(s): L.append('    ; '+s)
ENV=lambda k: os.environ.get(k)
def q(base,n=4): return f'v[{base}:{base+n-1}]'
def mf(d,a,b,c): return f'v_mfma_f32_32x32x16_bf16 {q(d,16)}, {q(a)}, {q(b)}, {c if c=="0" else q(c,16)}'
WT=os.environ.get('WT',' sc0 sc1'); LNT=os.environ.get('LNT',' nt'); WNT=os.environ.get('WNT','')
K1_GRID=NCH+3
K1_LDS=49152
S1=ENV('S1')
def k1():
    lab('gcn_sort_kernel')
    if ENV('DBG') or int(os.environ.get('STAMPS','0')): A('s_memrealtime s[50:51]')
    A(f's_cmp_ge_u32 s2, {K1_GRID}'); A('s_cbranch_scc1 K1_END3' if ENV('DBG') else 's_cbranch_scc1 K1_END')
    A('s_load_dwordx2 s[8:9], s[0:1], 88')
    A(f's_cmp_ge_u32 s2, {NCH}'); A('s_cbranch_scc1 K1_W')
    A('s_load_dwordx4 s[4:7], s[0:1], 16')
    if ENV('K1_XPF') or ENV('K1_MALL'): A('s_load_dwordx2 s[44:45], s[0:1], 0')
    A('v_lshlrev_b32 v1, 4, v0')
    A('s_mul_i32 s10, s2, 12800')
    A('s_waitcnt lgkmcnt(0)')
    if int(os.environ.get('STAMPS','0')):
        A('s_add_u32 s56, s8, 0x2080000'); A('s_addc_u32 s57, s9, 0'); A('s_mov_b32 s58, 1024'); A('s_mov_b32 s59, 0x20000')
        A('s_lshl_b32 s60, s2, 2'); A('v_mov_b32 v20, s50'); A('v_mov_b32 v21, s60'); A('buffer_store_dword v20, v21, s[56:59], 0 offen')
    A('s_add_u32 s16, s6, s10'); A('s_addc_u32 s17, s7, 0'); A('s_mov_b32 s18, 12800'); A('s_mov_b32 s19, 0x20000')
    A('buffer_load_dwordx4 v[8:11], v1, s[16:19], 0 offen'+LNT)
    A('s_add_u32 s12, s4, s10'); A('s_addc_u32 s13, s5, 0'); A('s_mov_b32 s14, 12800'); A('s_mov_b32 s15, 0x20000')
    A('buffer_load_dwordx4 v[12:15], v1, s[12:15], 0 offen'+LNT)
    if ENV('K1_XPF'):
        A(f's_mov_b32 s46, {N*128}'); A('s_mov_b32 s47, 0x20000')
        A('s_lshr_b32 s10, s2, 3'); A('s_mul_i32 s10, s10, 404'); A('v_add_u32 v36, s10, v0'); A('v_lshlrev_b32 v36, 7, v36')
        A('v_cmp_gt_u32 vcc, 404, v0'); A('v_mov_b32 v37, 0x7fffffff'); A('s_nop 0'); A('v_cndmask_b32 v36, v37, v36, vcc')
        A('buffer_load_dword v38, v36, s[44:47], 0 offen')
    if ENV('K1_MALL'):
        A(f's_mov_b32 s46, {N*128}'); A('s_mov_b32 s47, 0x20000')
        A('s_mul_i32 s10, s2, 50'); A('v_subrev_u32 v36, 832, v0'); A('v_cmp_gt_u32 vcc, 50, v36'); A('v_add_u32 v36, s10, v36'); A('v_lshlrev_b32 v36, 7, v36')
        A('v_mov_b32 v37, 0x7fffffff'); A('v_cndmask_b32 v36, v37, v36, vcc')
        A('buffer_load_dword v38, v36, s[44:47], 0 offen')
    for r in range(4,8): A(f'v_mov_b32 v{r}, 0')
    A('ds_write_b128 v1, v[4:7]'); A('ds_write_b128 v1, v[4:7] offset:16384'); A('ds_write_b128 v1, v[4:7] offset:32768')
    A('s_mul_i32 s10, s2, 25600')
    A(f's_add_u32 s24, s8, {WS_OVFL}'); A('s_addc_u32 s25, s9, 0'); A('s_add_u32 s24, s24, s10'); A('s_addc_u32 s25, s25, 0')
    A('s_mov_b32 s26, 25600'); A('s_mov_b32 s27, 0x20000')
    A('s_mov_b32 s32, s8'); A('s_mov_b32 s33, s9'); A('s_mov_b32 s34, 0x800000'); A('s_mov_b32 s35, 0x20000')
    A(f's_add_u32 s40, s8, {WS_OVFCNT}'); A('s_addc_u32 s41, s9, 0'); A('s_mov_b32 s42, 1000'); A('s_mov_b32 s43, 0x20000')
    A('v_mov_b32 v2, 1'); A('v_mov_b32 v3, 37888')
    A('s_waitcnt lgkmcnt(0)'); A('s_barrier')
    A('v_cmp_gt_u32 vcc, 800, v0'); A('s_and_saveexec_b64 s[20:21], vcc'); A('s_cbranch_execz K1_SKIP')
    A('s_mov_b64 s[28:29], exec')
    NP=1 if (ENV('K1_XPF') or ENV('K1_MALL')) else 0
    A(f's_waitcnt vmcnt({1+NP})')
    for j in range(4):
        A(f'v_and_b32 v{16+j}, 255, v{8+j}')
        A(f'v_lshlrev_b32 v{24+j}, 2, v{16+j}')
        A(f'ds_add_rtn_u32 v{28+j}, v{24+j}, v2 offset:36864')
    A(f's_waitcnt vmcnt({NP})')
    for j in range(4):
        A(f'v_lshrrev_b32 v{20+j}, 8, v{8+j}')
        A(f'v_lshl_or_b32 v{20+j}, v{12+j}, 6, v{20+j}')
        A(f'v_lshl_add_u32 v32, v0, 2, {j+1}')
        A(f'v_lshl_or_b32 v{20+j}, v32, 20, v{20+j}')
        A(f'v_mul_u32_u24 v{24+j}, 144, v{16+j}')
    A('s_waitcnt lgkmcnt(0)')
    for j in range(4):
        A(f'v_and_b32 v32, 3, v{28+j}'); A(f'v_bfe_u32 v33, v{28+j}, 2, 2'); A('v_lshl_add_u32 v32, v32, 2, v33'); A('v_or_b32 v32, 16, v32')
        A(f'v_cmp_gt_u32 vcc, 16, v{28+j}'); A('s_nop 1'); A(f'v_cndmask_b32 v32, v32, v{28+j}, vcc')
        A(f'v_lshl_add_u32 v{24+j}, v32, 2, v{24+j}')
        A(f'v_cmp_gt_u32 vcc, 32, v{28+j}')
        A('s_mov_b64 exec, vcc')
        A(f'ds_write_b32 v{24+j}, v{20+j}')
        A('s_andn2_b64 exec, s[28:29], vcc')
        A(f's_cbranch_execz K1_NOV{j}')
        A('ds_add_rtn_u32 v33, v3, v2')
        A(f'v_mov_b32 v34, v{20+j}'); A(f'v_mov_b32 v35, v{16+j}')
        A('s_waitcnt lgkmcnt(0)')
        A('v_lshlrev_b32 v33, 3, v33')
        A('buffer_store_dwordx2 v[34:35], v33, s[24:27], 0 offen'+WT)
        A('s_nop 1')
        lab(f'K1_NOV{j}')
        A('s_mov_b64 exec, s[28:29]')
    lab('K1_SKIP')
    A('s_mov_b64 exec, -1')
    if ENV('TLBW'):
        STEP=int(ENV('TLBW'))
        A(f's_waitcnt vmcnt({NP})')
        A('s_cmp_lt_u32 s2, 8'); A('s_cbranch_scc0 K1_NOTLB')
        A('v_readfirstlane_b32 s48, v0'); A('s_nop 3'); A('s_cmp_ge_u32 s48, 832'); A('s_cbranch_scc0 K1_NOTLB')
        A('s_load_dwordx2 s[52:53], s[0:1], 8'); A('s_load_dwordx2 s[44:45], s[0:1], 0')
        A('v_subrev_u32 v36, 832, v0'); A(f'v_lshlrev_b32 v36, {STEP}, v36')
        A('s_waitcnt lgkmcnt(0)')
        A(f's_mov_b32 s54, {E*32}'); A('s_mov_b32 s55, 0x20000'); A(f's_mov_b32 s46, {N*128}'); A('s_mov_b32 s47, 0x20000')
        for i in range(-(-(E*32>>STEP)//192)):
            A(f's_mov_b32 s49, {(192*i)<<STEP}'); A('buffer_load_dword v37, v36, s[52:55], s49 offen')
        A('buffer_load_dword v38, v36, s[44:47], 0 offen')
        lab('K1_NOTLB')
        A('s_branch K1_AFTERW')
    A(f's_waitcnt vmcnt({NP})')
    if ENV('TLBW'): lab('K1_AFTERW')
    A('v_lshrrev_b32 v4, 3, v0'); A('v_and_b32 v5, 7, v0')
    A('v_lshrrev_b32 v21, 2, v0'); A('v_and_b32 v23, 3, v0')
    A('v_mul_u32_u24 v6, 144, v21'); A('v_lshl_add_u32 v6, v23, 4, v6')
    A('v_add_u32 v7, s2, v4'); A('v_and_b32 v7, 255, v7'); A('v_lshlrev_b32 v7, 7, v7'); A('v_lshl_add_u32 v7, v4, 15, v7'); A('v_lshl_add_u32 v7, v5, 4, v7')
    A('v_lshlrev_b32 v18, 2, v21'); A('s_mov_b32 s36, 0x400000')
    A('s_waitcnt lgkmcnt(0)'); A('s_barrier')
    CST=os.environ.get('CST','sc0 sc1')
    A('ds_read_b128 v[8:11], v6'); A('ds_read_b32 v19, v18 offset:36864'); A('ds_read_b128 v[12:15], v6 offset:64'); A('ds_read_b32 v16, v3')
    A('s_waitcnt lgkmcnt(3)')
    A(f'buffer_store_dwordx4 v[8:11], v7, s[32:35], 0 offen {CST}')
    A('s_waitcnt lgkmcnt(1)')
    A('v_cmp_le_u32 vcc, 16, v19'); A('s_mov_b64 exec, vcc')
    A(f'buffer_store_dwordx4 v[12:15], v7, s[32:35], s36 offen {CST}')
    A('s_mov_b64 exec, -1')
    if int(os.environ.get('STAMPS','0')):
        A('s_waitcnt vmcnt(0)'); A('s_memrealtime s[60:61]'); A('v_lshrrev_b32 v24, 6, v0'); A('v_lshlrev_b32 v24, 2, v24'); A('s_lshl_b32 s62, s2, 6'); A('v_add_u32 v24, s62, v24')
        A('s_mov_b32 s58, 0x8000'); A('s_waitcnt lgkmcnt(0)'); A('v_mov_b32 v23, s60'); A('v_add_u32 v24, 0x1000, v24'); A('buffer_store_dword v23, v24, s[56:59], 0 offen')
    A('v_cmp_eq_u32 vcc, 0, v0'); A('s_and_saveexec_b64 s[20:21], vcc'); A('s_cbranch_execz K1_END')
    A('s_lshl_b32 s10, s2, 2'); A('v_mov_b32 v17, s10')
    A('s_waitcnt lgkmcnt(0)')
    A('buffer_store_dword v16, v17, s[40:43], 0 offen'+WT)
    A('s_branch K1_END')
    lab('K1_W')
    A('s_load_dwordx8 s[12:19], s[0:1], 32')
    A('s_load_dwordx2 s[20:21], s[0:1], 64')
    A('v_lshrrev_b32 v1, 6, v0'); A('s_nop 0'); A('v_readfirstlane_b32 s10, v1')
    A(f's_sub_u32 s11, s2, {NCH}'); A('s_lshl_b32 s11, s11, 4'); A('s_nop 2'); A('s_add_u32 s10, s10, s11')
    A('s_cmp_ge_u32 s10, 34'); A('s_cbranch_scc1 K1_END')
    A('s_waitcnt lgkmcnt(0)')
    A('s_mov_b32 s24, s14'); A('s_mov_b32 s25, s15'); A('s_mov_b32 s26, 8192'); A('s_mov_b32 s27, 0x20000')
    A(f's_mov_b32 s28, 0x{NLOG2E:08x}'); A('s_mov_b32 s29, s10')
    A('s_cmp_ge_u32 s10, 8'); A('s_cbranch_scc0 K1_WSEL')
    A('s_mov_b32 s24, s20'); A('s_mov_b32 s25, s21'); A('s_mov_b32 s28, 0x3f800000'); A('s_sub_u32 s29, s10, 8')
    A('s_cmp_ge_u32 s10, 16'); A('s_cbranch_scc0 K1_WSEL')
    A('s_mov_b32 s24, s16'); A('s_mov_b32 s25, s17'); A('s_mov_b32 s26, 2048'); A(f's_mov_b32 s28, 0x{NLOG2E:08x}')
    A('s_sub_u32 s29, s10, 16'); A('s_lshl_b32 s29, s29, 2')
    A('s_cmp_ge_u32 s10, 18'); A('s_cbranch_scc0 K1_WSEL')
    A('s_mov_b32 s24, s12'); A('s_mov_b32 s25, s13'); A('s_mov_b32 s26, 8192'); A('s_mov_b32 s28, 0x3f800000'); A('s_sub_u32 s29, s10, 18')
    A('s_cmp_ge_u32 s10, 26'); A('s_cbranch_scc0 K1_WSEL')
    A('s_mov_b32 s24, s18'); A('s_mov_b32 s25, s19'); A('s_sub_u32 s29, s10, 26')
    lab('K1_WSEL')
    A('s_lshr_b32 s30, s29, 2'); A('s_and_b32 s31, s29, 3')
    A('s_lshl_b32 s30, s30, 6'); A('s_lshl_b32 s31, s31, 11'); A('s_add_u32 s30, s30, s31')
    A('v_and_b32 v2, 63, v0'); A('v_and_b32 v3, 31, v0'); A('v_lshrrev_b32 v4, 5, v2')
    A('v_lshlrev_b32 v4, 10, v4'); A('v_lshl_add_u32 v4, v3, 1, v4'); A('v_add_u32 v4, s30, v4')
    for t in range(8): A(f'buffer_load_ushort v{8+t}, v4, s[24:27], 0 offen offset:{128*t}')
    A(f's_add_u32 s32, s8, {WS_WPREP}'); A('s_addc_u32 s33, s9, 0'); A('s_mov_b32 s34, 34816'); A('s_mov_b32 s35, 0x20000')
    A('s_lshl_b32 s36, s10, 10'); A('v_lshlrev_b32 v5, 4, v2')
    A('s_waitcnt vmcnt(0)')
    for t in range(8):
        A(f'v_lshlrev_b32 v{8+t}, 16, v{8+t}'); A(f'v_mul_f32 v{8+t}, s28, v{8+t}')
    for t in range(4): A(f'v_cvt_pk_bf16_f32 v{16+t}, v{8+2*t}, v{9+2*t}')
    A('buffer_store_dwordx4 v[16:19], v5, s[32:35], s36 offen'+WT)
    lab('K1_END')
    if ENV('DBG'):
        A('s_cmp_eq_u32 s2, 7'); A('s_cbranch_scc0 K1_END2')
        A('s_load_dwordx2 s[52:53], s[0:1], 80'); A('s_memrealtime s[54:55]'); A('s_waitcnt lgkmcnt(0)')
        A('s_mov_b64 exec, 1'); A('s_mov_b32 s56, s54'); A('s_mov_b32 s54, 256'); A('s_mov_b32 s55, 0x20000')
        A('v_mov_b32 v20, s56'); A('v_mov_b32 v21, s50'); A('v_mov_b32 v22, 0')
        A('buffer_store_dword v21, v22, s[52:55], 0 offen'); A('buffer_store_dword v20, v22, s[52:55], 0 offen offset:4')
        lab('K1_END2')
        lab('K1_END3')
    A('s_endpgm')

XST=0; REC=65536; RECSZ=1408; XS=REC+50*RECSZ; ES=XS+8192; GRP=ES+16384; CNT=GRP+1024; NBT=CNT+256; LDS_END=NBT+256
OWNX=32768; WSTG=40960
O_DEN=256; O_NUM=768; O_U=1280
CAPG=512
DUMMY=49*22
EPAD=0x700FFFFF; EFLAG=0x40000000
cXE=2; cXO=3; aXS=4; aES=5; cKG=6; aGRP=7; cRA=8; cRB=9; aAX=10
WB=16; WV=48; WC=80; XB=88; AZ0=92; AZ1=96; ONEB=100; ONEA=[104,108]; AX=112; AE=[128,132]; G0=136; G1=152; H0=168; H1=184
XI=200; XV=202; EI=206; EV=207; GR=[208,209]; RA0=210; RA1=211; RB0=212; RB1=213; SD=214; SN=215; PD=216; PN=218
kP2=229; kP1=199; kE5=240; kE6=241; kOOB=234; vONE=220; kXS=221; kES=222; kGRP=223; kAX=224; vL16=228; T0=230; NGB=236; cXM=252
NVGPR=256
XG_=64
CO=198; EN=G0; RK=G1; EB=H0; AD=H0+4; EW=AX
sB=3; X_=4; EA_=8; CE_=12; WP_=16; OU_=20; MI_=24; sWS=28; sWAVE=30; sNT=31; sTI=32; sX0=33; sX1=34; sMODE=36; sFIRST=37; sOVF=38; sU=39
MK=40
sCNT=72; sXS=73; sES=74; sT0=75; sT1=76; sT2=77; sOC=78; sOP=79; sON=80; sPB=81; sBH=82; sBL=35; sG1=76; sG2=77; sHALF=84+11; s128=83
STAMPS=int(os.environ.get('STAMPS','0'))
STR=8
XSPLIT=int(os.environ.get('XSPLIT','4'))
B0=[8,12]; B1=[9,13]; B2=[10,11,14,15]
SSET=os.environ.get('SSET','main')
SMAP={'main':{'start':0,'bar1':1,'hist':2,'prefix':3,'bar3':4,'ng':5,'loop':6,'bar5':7,'end':8},
      'pro':{'start':0,'issued':1,'consts':2,'vmw':3,'bar1':4,'hist':5,'bar3':6,'ng':7,'entd':8},
      'pro2':{'bar3':0,'dma1':1,'wread':2,'ngm':3,'ng':4,'entw':5,'entd':6,'loop':7,'end':8}}[SSET]
def stamp(name):
    if STAMPS and name in SMAP:
        i=SMAP[name]
        A('s_memtime s[98:99]' if STAMPS==1 else 's_memrealtime s[98:99]'); A('s_waitcnt lgkmcnt(0)'); A(f's_mov_b32 s{86+i}, s98')
def stamp_store():
    if STAMPS and ENV('DBG'):
        A('s_memrealtime s[98:99]'); A('s_waitcnt lgkmcnt(0)'); A('s_mov_b32 s97, s98')
        A('s_cmp_eq_u32 s2, 7'); A('s_cbranch_scc0 K2_DBGE'); A(f's_cmp_eq_u32 s{sWAVE}, 0'); A('s_cbranch_scc0 K2_DBGE')
        A('s_load_dwordx2 s[24:25], s[0:1], 80'); A('s_waitcnt lgkmcnt(0)'); A('s_mov_b64 exec, 1'); A('v_mov_b32 v14, 0'); A('s_mov_b32 s26, 256'); A('s_mov_b32 s27, 0x20000')
        for i in range(12):
            A(f'v_mov_b32 v1, s{86+i}'); A(f'buffer_store_dword v1, v14, s[24:27], 0 offen offset:{8+4*i}')
        lab('K2_DBGE')
    elif STAMPS:
        A('s_memrealtime s[98:99]'); A('s_waitcnt lgkmcnt(0)'); A('s_mov_b32 s97, s98')
        A(f's_add_u32 s24, s{sWS}, 0x2000000'); A(f's_addc_u32 s25, s{sWS+1}, 0'); A('s_mov_b32 s26, 0x100000'); A('s_mov_b32 s27, 0x20000')
        A(f's_lshl_b32 s75, s2, 3'); A(f's_add_u32 s75, s75, s{sWAVE}'); A('s_lshl_b32 s75, s75, 6')
        for i in range(12):
            A(f'v_mov_b32 v1, s{86+i}'); A(f'v_mov_b32 v14, {4*i}'); A('buffer_store_dword v1, v14, s[24:27], s75 offen')
def x_dma(sbase):
    o=[f's_mov_b32 m0, s{sbase}']
    for m in range(4):
        o.append(f'v_mad_u32_u16 v{XV+m}, v{XI+(m>>1)}, s{s128}, v{cXM+m} op_sel:[{m&1},0,0,0]')
        o.append(f'buffer_load_dwordx4 v{XV+m}, s[{XG_}:{XG_+3}], 0 offen offset:{1024*m} lds')
    return o
ENT=' '+os.environ.get('EFL','nt')
def e_issue(p):
    return [f'v_mad_u32_u24 v{EV}, v{EI}, 32, v{cKG}', f'buffer_load_dwordx4 {q(AE[p])}, v{EV}, s[{EA_}:{EA_+3}], 0 offen{ENT}']
def e_flag(p): return [f'v_and_b32 v{ONEA[p]}, 0xff000000, v{EI}']
def summ(G,H,b,rb,ct):
    if ENV('PK'):
        P=lambda x: f'v[{x}:{x+1}]'
        o=[f'v_pk_mul_f32 {P(PN)}, {P(G+b)}, {P(H+b)}', f'v_pk_add_f32 {P(PD)}, {P(G+b)}, {P(G+b+2)}']
        for r in (2,4,6):
            o.append(f'v_pk_fma_f32 {P(PN)}, {P(G+b+r)}, {P(H+b+r)}, {P(PN)}')
            if r>=4: o.append(f'v_pk_add_f32 {P(PD)}, {P(PD)}, {P(G+b+r)}')
        o.append(f'v_add_f32 v{SD}, v{PD}, v{PD+1}'); o.append(f'v_add_f32 v{SN}, v{PN}, v{PN+1}')
    else:
        o=[f'v_mul_f32 v{SN}, v{G+b}, v{H+b}', f'v_add_f32 v{SD}, v{G+b}, v{G+b+1}']
        for r in range(1,8):
            o.append(f'v_fmac_f32 v{SN}, v{G+b+r}, v{H+b+r}')
            if r>=2: o.append(f'v_add_f32 v{SD}, v{SD}, v{G+b+r}')
    o.append(f'v_cvt_f64_f32 v[{PD}:{PD+1}], v{SD}'); o.append(f'v_cvt_f64_f32 v[{PN}:{PN+1}], v{SN}')
    if not ENV('NO_DSADD'):
        o.append(f'ds_add_f64 v{rb}, v[{PD}:{PD+1}] offset:{ct*256}'); o.append(f'ds_add_f64 v{rb}, v[{PN}:{PN+1}] offset:{512+ct*256}')
    return o
def inter(v, m, every):
    o=[]; m=list(m)
    for i,x in enumerate(v):
        if m and i%every==0: o+=m.pop(0)
        o.append(x)
    for g in m: o+=g
    return o
def gchain(G,ct,p):
    return [[mf(G,AX,WB+16*ct,'0')],[mf(G,AX+4,WB+16*ct+4,G)],[mf(G,AX+8,WB+16*ct+8,G)],[mf(G,AX+12,WB+16*ct+12,G)],
            [mf(G,AE[p],WC+4*ct,G)],[mf(G,AZ1 if ct else AZ0,XB,G)]]
def xb_reads(): return [f'ds_read2_b32 v[{XB}:{XB+1}], v{RA0} offset0:0 offset1:32', f'ds_read2_b32 v[{XB+2}:{XB+3}], v{RA1} offset0:0 offset1:32']
def ra_mads(g): return [f'v_mad_u32_u16 v{RA0}, v{g}, 64, v{cRA} op_sel:[0,0,0,0]', f'v_mad_u32_u16 v{RA1}, v{g}, 64, v{cRA} op_sel:[1,0,0,0]']
def body(p):
    o=[]
    ex=lambda G:[f'v_exp_f32 v{G+r}, v{G+r}' for r in range(16)]
    rc=lambda G:[f'v_rcp_f32 v{G+r}, v{G+r}' for r in range(16)]
    XN=ENV('XNEAR')
    xd=x_dma((sX1 if p==0 else sX0) if XN else (sX0 if p==0 else sX1)) if not ENV('NO_XDMA') else ['s_nop 0']
    EP=ENV('EPOS')
    if ENV('PRIO')=='alt':
        o+=[f's_cmp_eq_u32 s{sHALF}, {p}', f's_cbranch_scc1 PR{p}A', 's_setprio 0', f's_branch PR{p}B', f'PR{p}A:', 's_setprio 1', f'PR{p}B:']
    if EP=='early': o+=[f'ds_read_b32 v{EI}, v{aES} offset:{128*STR*p}']
    grp=[[mf(H0,AX+4*s,WV+4*s,'0' if s==0 else H0)]+(xd[:3] if s==0 else xd[1+2*s:3+2*s]) for s in range(4)]
    o+=inter(ex(G0), grp, 4)
    sb=summ(G1,H1,8,RB1,1)
    o+=sb[:2]+[mf(G0,ONEA[p],ONEB,G0)]+sb[2:]
    o+=[f'v_mad_u32_u16 v{RB0}, v{GR[p]}, 64, v{cRB} op_sel:[0,0,0,0]', f'v_mad_u32_u16 v{RB1}, v{GR[p]}, 64, v{cRB} op_sel:[1,0,0,0]']
    o+=inter(rc(G0), gchain(G1,1,p), 3)
    if EP=='early': o+=['s_waitcnt lgkmcnt(2)']+e_issue(p)
    o+=summ(G0,H0,0,RB0,0)
    o+=['s_waitcnt vmcnt(6)' if EP=='early' else 's_waitcnt vmcnt(5)',
        f'ds_read2_b32 v[{XI}:{XI+1}], v{aXS} offset0:{16*STR*p} offset1:{16*STR*p+4}']
    if EP!='early': o+=[f'ds_read_b32 v{EI}, v{aES} offset:{128*STR*p}']
    o+=[f'ds_read_b32 v{GR[p^1]}, v{aGRP} offset:{8*STR*p}']
    o+=inter(ex(G1), [[mf(H1,AX+4*s,WV+16+4*s,'0' if s==0 else H1), f'ds_read_b128 {q(AX+4*s)}, v{aAX+s} offset:{32768*(p^1)}'] for s in range(4)], 4)
    sb=summ(G0,H0,8,RB1,0)
    o+=sb[:2]+[mf(G1,ONEA[p],ONEB,G1)]
    o+=['s_waitcnt lgkmcnt(4)']+ra_mads(GR[p^1])
    o+=(e_issue(p) if (not ENV('NO_EDMA') and not EP) else [])+xb_reads()+e_flag(p)
    o+=sb[2:]
    o+=['s_waitcnt vmcnt(4) lgkmcnt(4)' if EP=='late' else 's_waitcnt vmcnt(5) lgkmcnt(4)']
    gc=gchain(G0,0,p^1)
    gc[5]=['s_waitcnt lgkmcnt(2)']+gc[5]
    o+=inter(rc(G1), gc, 3)
    if EP=='late': o+=e_issue(p)
    o+=summ(G1,H1,0,RB0,1)
    if p==1:
        o+=[f'v_add_u32 v{aXS}, {128*STR}, v{aXS}', f'v_add_u32 v{aES}, {256*STR}, v{aES}', f'v_add_u32 v{aGRP}, {16*STR}, v{aGRP}']
    if ENV('NO_XMFMA'):
        o=[i for i in o if not (i.startswith('v_mfma') and any(f', {q(AX+4*s)}, ' in i for s in range(4)))]
    if ENV('NO_HMFMA'): o=[i for i in o if not (i.startswith('v_mfma') and (i.startswith(f'v_mfma_f32_32x32x16_bf16 {q(H0,16)}') or i.startswith(f'v_mfma_f32_32x32x16_bf16 {q(H1,16)}')))]
    if ENV('NO_SUMS'): o=[i for i in o if not (i.startswith('v_fmac') or (i.startswith('v_add_f32')) or i.startswith('v_mul_f32'))]
    if ENV('NO_SMALLM'): o=[i for i in o if not (i.startswith('v_mfma') and not any(f', {q(AX+4*s)}, ' in i for s in range(4)))]
    if ENV('NO_MFMA'): o=[i for i in o if not i.startswith('v_mfma')]
    if ENV('NO_TRANS'): o=[i for i in o if not (i.startswith('v_exp') or i.startswith('v_rcp'))]
    return o

def cell_off_g(dst, creg):
    A(f'v_add_u32 v{dst}, s{sBH}, v{creg}'); A(f'v_and_b32 v{dst}, 255, v{dst}'); A(f'v_lshlrev_b32 v{dst}, 7, v{dst}'); A(f'v_lshl_add_u32 v{dst}, v5, 4, v{dst}'); A(f'v_add_u32 v{dst}, s{sBL}, v{dst}')
    A(f'v_cmp_gt_u32 vcc, {NCH}, v{creg}'); A('v_mov_b32 v14, 0x7fffffff'); A('s_nop 0'); A(f'v_cndmask_b32 v{dst}, v14, v{dst}, vcc')
def k2():
    lab('standalone__edge_featured_mpnn_gatedgcn__graph_kernel')
    A('s_cmp_ge_u32 s2, 256'); A('s_cbranch_scc1 K2_END')
    A(f's_load_dwordx2 s[{sWS}:{sWS+1}], s[0:1], 88')
    A('s_load_dwordx4 s[4:7], s[0:1], 0')
    A('s_load_dwordx2 s[20:21], s[0:1], 72')
    A(f's_and_b32 s{sB}, s2, 7'); A(f's_lshl_b32 s{sB}, s{sB}, 5'); A(f's_lshr_b32 s{sT0}, s2, 3'); A(f's_or_b32 s{sB}, s{sB}, s{sT0}')
    A('v_lshrrev_b32 v1, 6, v0'); A('v_and_b32 v15, 63, v0')
    A(f'v_readfirstlane_b32 s{sWAVE}, v1')
    A(f'v_lshlrev_b32 v{vL16}, 4, v15')
    A(f's_lshr_b32 s{sBH}, s{sB}, 1'); A(f's_and_b32 s{sBL}, s{sB}, 1'); A(f's_lshl_b32 s{sBL}, s{sBL}, 6')
    A('v_lshrrev_b32 v4, 2, v0'); A('v_and_b32 v5, 3, v0')
    cell_off_g(CO, 4); A('v_add_u32 v4, 128, v4'); cell_off_g(CO+1, 4)
    A(f's_lshl_b32 s{sT0}, s{sBH}, 15')
    A('s_waitcnt lgkmcnt(0)')
    if STAMPS:
        A('s_memrealtime s[98:99]'); A('s_waitcnt lgkmcnt(0)'); A('s_mov_b32 s96, s98')
    stamp('start')
    A(f's_add_u32 s12, s{sWS}, s{sT0}'); A(f's_addc_u32 s13, s{sWS+1}, 0'); A(f's_mov_b32 s14, {0x400000+32768}'); A('s_mov_b32 s15, 0x20000')
    for u in range(2): A(f"buffer_load_dwordx4 {q(EN+4*u)}, v{CO+u}, s[12:15], 0 offen {os.environ.get('CLD','')}")
    A(f's_mov_b32 s{sPB}, 0x400000')
    def init_a():
        A('v_lshlrev_b32 v1, 4, v0')
        for r in range(4): A(f'v_mov_b32 v{AX+r}, -1')
        A(f'v_add_u32 v14, {XS}, v1'); A(f'ds_write_b128 v14, {q(AX)}')
        for r in range(4): A(f'v_mov_b32 v{AX+4+r}, 0x{EPAD:08x}')
        A(f'ds_write_b128 v14, {q(AX+4)} offset:8192'); A(f'ds_write_b128 v14, {q(AX+4)} offset:16384')
        for r in range(4): A(f'v_mov_b32 v{AX+8+r}, 0x{(DUMMY<<16)|DUMMY:08x}')
        for r in range(4): A(f'v_mov_b32 v{AX+12+r}, 0')
        A('v_cmp_gt_u32 vcc, 64, v0'); A('s_nop 1')
        for r in range(4): A(f'v_cndmask_b32 v{AX+8+r}, v{AX+12+r}, v{AX+8+r}, vcc')
        A('v_cmp_gt_u32 vcc, 96, v0'); A(f's_and_saveexec_b64 s[{MK}:{MK+1}], vcc'); A(f'ds_write_b128 v14, {q(AX+8)} offset:{GRP-XS}'); A(f's_mov_b64 exec, s[{MK}:{MK+1}]')
    init_a()
    A('s_mov_b32 s8, s6'); A('s_mov_b32 s9, s7'); A(f's_mov_b32 s10, {E*32}'); A('s_mov_b32 s11, 0x20000')
    A(f's_mov_b32 s6, {N*128}'); A('s_mov_b32 s7, 0x20000')
    A(f's_mov_b32 s22, {N*128}'); A('s_mov_b32 s23, 0x20000')
    A(f's_add_u32 s16, s{sWS}, {WS_WPREP}'); A(f's_addc_u32 s17, s{sWS+1}, 0'); A('s_mov_b32 s18, 34816'); A('s_mov_b32 s19, 0x20000')
    A(f's_add_u32 s24, s{sWS}, {WS_OVFCNT}'); A(f's_addc_u32 s25, s{sWS+1}, 0'); A('s_mov_b32 s26, 1000'); A('s_mov_b32 s27, 0x20000')
    A(f'v_lshrrev_b32 v14, 3, v15'); A(f's_lshl_b32 s{sT0}, s{sWAVE}, 3'); A(f'v_add_u32 v14, s{sT0}, v14')
    A(f'v_lshlrev_b32 v14, 8, v14'); A(f'v_add_u32 v14, s{sB}, v14'); A('v_lshlrev_b32 v14, 7, v14')
    A('v_lshrrev_b32 v4, 4, v15'); A('v_and_b32 v5, 7, v15'); A('v_xor_b32 v4, v4, v5'); A(f'v_lshlrev_b32 v{cXE}, 4, v4'); A(f'v_xor_b32 v{cXO}, 64, v{cXE}')
    A(f's_and_b32 s{sT0}, s{sWAVE}, 1'); A(f's_cmp_eq_u32 s{sT0}, 0'); A('s_cselect_b64 vcc, -1, 0')
    A(f'v_cndmask_b32 v4, v{cXO}, v{cXE}, vcc'); A('v_add_u32 v4, v14, v4')
    A(f'v_mov_b32 v{CO+2-2+0}, v{CO}') if False else None
    A(f'v_mov_b32 v{XV}, v4')
    stamp('issued')
    A('v_lshrrev_b32 v14, 6, v0'); A(f'v_mul_u32_u24 v14, {RECSZ}, v14'); A(f'v_add_u32 v14, v14, v{vL16}'); A(f'v_add_u32 v14, {REC+O_DEN}, v14')
    for r in range(4): A(f'v_mov_b32 v{AX+r}, 0')
    for i in range(5): A(f'ds_write_b128 v14, {q(AX)} offset:{8*RECSZ*i}')
    A(f'v_add_u32 v14, {8*RECSZ*5}, v14'); A(f'ds_write_b128 v14, {q(AX)}')
    A('v_cmp_gt_u32 vcc, 128, v0'); A(f's_and_saveexec_b64 s[{MK}:{MK+1}], vcc'); A(f'ds_write_b128 v14, {q(AX)} offset:{8*RECSZ}'); A(f's_mov_b64 exec, s[{MK}:{MK+1}]')
    A(f'v_mov_b32 v{vONE}, 1')
    A(f's_mov_b32 s{sCNT}, {CNT}'); A(f's_mov_b32 s{sXS}, {XS}'); A(f's_mov_b32 s{sES}, {ES}'); A(f's_mov_b32 s{s128}, 128')
    A(f's_mov_b32 s{sMODE}, 0'); A(f's_mov_b32 s{sFIRST}, 1'); A(f's_mov_b32 s{sU}, 0')
    A(f's_lshr_b32 s{sHALF}, s{sWAVE}, 2')
    if ENV('PRIO')=='young': A(f's_cmp_eq_u32 s{sHALF}, 1'); A('s_cbranch_scc0 PRY'); A('s_setprio 1'); lab('PRY')
    A('v_lshrrev_b32 v4, 2, v0'); A('v_mul_u32_u24 v4, 3200, v4')
    for u in range(4): A(f'v_add_u32 v{EB+u}, 0x{(128*(u&1)*3200-1+EFLAG)&0xffffffff:08x}, v4')
    for k in range(8,16): A(f'v_mov_b32 v{EN+k}, 0')
    def lane_consts():
        C('lane constants (v1 = kg)')
        A('v_lshrrev_b32 v1, 5, v15'); A(f'v_lshlrev_b32 v{cKG}, 4, v1')
        A('v_bfe_u32 v5, v15, 3, 2'); A('v_lshlrev_b32 v4, 5, v1'); A('v_lshl_add_u32 v4, v5, 2, v4'); A(f'v_add_u32 v{kXS}, {XS}, v4')
        A('v_bfe_u32 v4, v15, 2, 1'); A('v_lshlrev_b32 v4, 4, v4'); A('v_bfe_u32 v5, v15, 4, 1'); A('v_lshl_add_u32 v4, v5, 3, v4')
        A('v_and_b32 v5, 3, v15'); A('v_lshl_add_u32 v4, v5, 1, v4'); A('v_bfe_u32 v5, v15, 3, 1'); A('v_add_u32 v4, v4, v5')
        A('v_lshlrev_b32 v4, 2, v4'); A(f'v_add_u32 v{kES}, {ES}, v4')
        A('v_lshlrev_b32 v4, 2, v1'); A(f'v_add_u32 v{kGRP}, {GRP}, v4')
        A('v_and_b32 v4, 31, v15'); A('v_lshlrev_b32 v5, 2, v4'); A(f'v_add_u32 v{cRA}, {REC}, v5'); A('v_lshlrev_b32 v5, 3, v4'); A(f'v_add_u32 v{cRB}, {REC+O_DEN}, v5')
        A('v_bfe_u32 v5, v15, 1, 3'); A('v_xor_b32 v5, v5, v1'); A('v_lshlrev_b32 v5, 4, v5'); A('v_lshl_add_u32 v4, v4, 7, v5')
        for s in range(4): A(f'v_xor_b32 v{kAX+s}, {32*s}, v4')
        A(f's_lshl_b32 s{sX0}, s{sWAVE}, 12'); A(f's_add_u32 s{sX1}, s{sX0}, 32768')
        for m in range(4): A(f'v_add_u32 v{cXM+m}, {4096-1024*m}, v{cXO if m&1 else cXE}')
        A('v_bfe_u32 v4, v15, 2, 1'); A('v_cmp_eq_u32 vcc, v4, v1'); A('v_mov_b32 v5, 0x3f803f80'); A('s_nop 0'); A('v_cndmask_b32 v5, 0, v5, vcc')
        A('v_bfe_u32 v4, v15, 4, 1'); A('v_cmp_eq_u32 vcc, 0, v4'); A('s_nop 1'); A(f'v_cndmask_b32 v{AZ0}, 0, v5, vcc')
        A(f'v_sub_u32 v{AZ0+2}, v5, v{AZ0}'); A(f'v_mov_b32 v{AZ0+1}, 0'); A(f'v_mov_b32 v{AZ0+3}, 0')
        A(f'v_mov_b32 v{AZ1}, 0'); A(f'v_mov_b32 v{AZ1+1}, v{AZ0}'); A(f'v_mov_b32 v{AZ1+2}, 0'); A(f'v_mov_b32 v{AZ1+3}, v{AZ0+2}')
        A('v_cmp_eq_u32 vcc, 0, v1'); A('v_mov_b32 v5, 0x3f000000'); A('s_nop 0'); A(f'v_cndmask_b32 v{ONEB}, 0, v5, vcc')
        for r in range(1,4): A(f'v_mov_b32 v{ONEB+r}, 0'); A(f'v_mov_b32 v{ONEA[0]+r}, 0'); A(f'v_mov_b32 v{ONEA[1]+r}, 0')
    lane_consts()
    stamp('consts')
    A('s_waitcnt vmcnt(0)')
    for u in range(2):
        A(f'v_mov_b32_dpp v14, v{EN+4*u+3} quad_perm:[3,3,3,3] row_mask:0xf bank_mask:0xf'); A('s_nop 0')
        A('v_cmp_ne_u32 vcc, 0, v14'); A('s_mov_b64 exec, vcc')
        A(f"buffer_load_dwordx4 {q(EN+8+4*u)}, v{CO+u}, s[12:15], s{sPB} offen {os.environ.get('CLD','')}"); A('s_mov_b64 exec, -1')
    A(f's_lshl_b32 s{sT0}, s{sWAVE}, 10'); A(f's_add_u32 m0, s{sT0}, {OWNX}'); A('s_nop 0')
    A(f'buffer_load_dwordx4 v{XV}, s[{X_}:{X_+3}], 0 offen lds')
    for i in range(3):
        A(f's_add_u32 s{sT1}, s{sT0}, {8192*i}'); A(f's_add_u32 m0, s{sT1}, {WSTG}'); A('s_nop 0')
        A(f'buffer_load_dwordx4 v{vL16}, s[16:19], s{sT1} offen{WNT} lds')
    A('s_branch K2_WD')
    lab('K2_ROUND')
    init_a()
    A('s_waitcnt vmcnt(0)')
    lab('K2_WD')
    stamp('vmw')
    if ENV('HALFCELL'):
        A(f's_cmp_eq_u32 s{sMODE}, 2'); A('s_cbranch_scc1 K2_NOMASK')
        A('v_and_b32 v14, 4, v15'); A('v_cmp_eq_u32 s[84:85], 0, v14')
        for u in range(4):
            A(f'v_mov_b32_dpp v1, v{EN+4*u+3} quad_perm:[3,3,3,3] row_mask:0xf bank_mask:0xf'); A('s_nop 1')
            A('v_mov_b32_dpp v14, v1 row_shr:4 row_mask:0xf bank_mask:0xf bound_ctrl:0'); A('s_nop 0')
            A('v_cmp_ne_u32 vcc, 0, v14'); A('s_or_b64 vcc, vcc, s[84:85]')
            for k in range(4): A(f'v_cndmask_b32 v{EN+4*u+k}, 0, v{EN+4*u+k}, vcc')
        lab('K2_NOMASK')
    def pre(ks):
        for k in ks: A(f'v_cmp_ne_u32 s[{MK+2*k}:{MK+2*k+1}], 0, v{EN+k}')
        for k in ks: A(f'v_and_b32 v{AD+k}, 63, v{EN+k}'); A(f'v_lshl_add_u32 v{AD+k}, v{AD+k}, 2, s{sCNT}')
    def atom(ks):
        for k in ks: A(f's_mov_b64 exec, s[{MK+2*k}:{MK+2*k+1}]'); A(f'ds_add_rtn_u32 v{RK+k}, v{AD+k}, v{vONE}')
        A('s_mov_b64 exec, -1')
    pre(range(8))
    A('s_waitcnt lgkmcnt(0)'); A('s_barrier')
    stamp('bar1')
    def ew(ks):
        for k in ks: A(f'v_lshrrev_b32 v{EW+k}, 20, v{EN+k}'); A(f'v_bfe_u32 v{EN+k}, v{EN+k}, 6, 14'); A(f'v_add_u32 v{EW+k}, v{EW+k}, v{EB+k//4}')
    atom(range(8))
    A(f's_cmp_eq_u32 s{sFIRST}, 1'); A('s_cbranch_scc0 K2_NF1')
    A(f'buffer_load_dwordx4 {q(T0)}, v{vL16}, s[24:27], 0 offen')
    A(f's_lshr_b32 s{sT0}, s{sWAVE}, 1'); A(f's_lshl_b32 s{sT0}, s{sT0}, 12'); A(f's_add_u32 s{sT0}, s{sT0}, {18*1024}')
    for s_ in range(4): A(f'buffer_load_dwordx4 {q(NGB+4*s_)}, v{vL16}, s[16:19], s{sT0} offen offset:{1024*s_}{WNT}')
    A(f's_lshr_b32 s{sT0}, s2, 3'); A(f's_mul_i32 s{sT0}, s{sT0}, 391'); A(f'v_add_u32 v14, s{sT0}, v0'); A('v_lshlrev_b32 v14, 7, v14')
    A('v_cmp_gt_u32 vcc, 391, v0'); A(f'v_mov_b32 v{T0+5}, 0x7fffffff'); A('s_nop 0'); A(f'v_cndmask_b32 v14, v{T0+5}, v14, vcc')
    if ENV('NOXPF'): A(f'v_mov_b32 v14, v{T0+5}')
    A(f'v_mov_b32 v{kP2}, v14'); A(f's_cmp_ge_u32 s{sWAVE}, {XSPLIT}'); A('s_cselect_b64 vcc, -1, 0')
    A(f'v_cndmask_b32 v14, v14, v{T0+5}, vcc'); A(f'v_cndmask_b32 v{kP2}, v{T0+5}, v{kP2}, vcc')
    if (not ENV('XEARLY')): A(f'v_mov_b32 v{kP1}, v14')
    else: A(f'buffer_load_dword v{T0+5}, v14, s[{X_}:{X_+3}], 0 offen')
    lab('K2_NF1')
    ew(range(8))
    A('s_waitcnt vmcnt(9)' if (not ENV('XEARLY')) else 's_waitcnt vmcnt(10)')
    for k in range(8,16): A(f'v_cmp_ne_u32 s[{MK+2*k}:{MK+2*k+1}], 0, v{EN+k}')
    def addr(ks):
        for k in ks: A(f'v_and_b32 v{AD+k}, 63, v{EN+k}'); A(f'v_lshl_add_u32 v{AD+k}, v{AD+k}, 2, s{sCNT}')
    addr(B0); atom(B0); ew(B0)
    A(f's_or_b64 s[84:85], s[{MK+18}:{MK+19}], s[{MK+26}:{MK+27}]'); A(f's_cselect_b32 s{sG1}, 1, 0')
    A(f's_or_b64 s[84:85], s[{MK+20}:{MK+21}], s[{MK+22}:{MK+23}]'); A(f's_or_b64 s[84:85], s[84:85], s[{MK+28}:{MK+29}]'); A(f's_or_b64 s[84:85], s[84:85], s[{MK+30}:{MK+31}]'); A(f's_cselect_b32 s{sG2}, 1, 0')
    def guarded(tag, fn):
        for g,(sg,ks) in enumerate(((sG1,B1),(sG2,B2))):
            A(f's_cmp_eq_u32 s{sg}, 0'); A(f's_cbranch_scc1 K2_SK{tag}{g}'); fn(ks); lab(f'K2_SK{tag}{g}')
    guarded('H', lambda ks: (addr(ks), atom(ks), ew(ks)))
    if ENV('EPF'):
        lim=CNT+4*int(ENV('EPF'))
        A(f'v_mov_b32 v{kOOB}, 0x7fffffff')
        for k in list(range(8))+B0:
            A(f'v_cmp_gt_u32 vcc, {lim}, v{AD+k}'); A(f'v_mad_u32_u24 v14, v{EW+k}, 32, 0'); A(f's_and_b64 vcc, vcc, s[{MK+2*k}:{MK+2*k+1}]')
            A(f'v_cndmask_b32 v14, v{kOOB}, v14, vcc')
            A(f'buffer_load_dword v{T0+5}, v14, s[{EA_}:{EA_+3}], 0 offen nt')
    A('s_waitcnt lgkmcnt(0)'); A('s_barrier')
    stamp('hist')
    A(f's_cmp_eq_u32 s{sFIRST}, 1'); A('s_cbranch_scc0 K2_NF2')
    A(f"buffer_load_dword v{T0+5}, v{kP1 if (not ENV('XEARLY')) else kP2}, s[{X_}:{X_+3}], 0 offen")
    lab('K2_NF2')
    A(f'v_lshl_add_u32 v4, v15, 2, s{sCNT}'); A('ds_read_b32 v5, v4'); A('s_waitcnt lgkmcnt(0)')
    A('v_add_u32 v5, 7, v5'); A('v_lshrrev_b32 v5, 3, v5'); A('v_mov_b32 v1, v5'); A('s_nop 1')
    for sh in (1,2,4,8):
        A(f'v_add_u32_dpp v1, v1, v1 row_shr:{sh} row_mask:0xf bank_mask:0xf bound_ctrl:0'); A('s_nop 1')
    A('v_add_u32_dpp v1, v1, v1 row_bcast:15 row_mask:0xa bank_mask:0xf'); A('s_nop 1')
    A('v_add_u32_dpp v1, v1, v1 row_bcast:31 row_mask:0xc bank_mask:0xf'); A('s_nop 1')
    A(f'v_readlane_b32 s{sNT}, v1, 63')
    A('v_sub_u32 v1, v1, v5')
    A(f'v_lshlrev_b32 v{T0+4}, 3, v1')
    if not ENV('BPERM'): A(f'ds_write_b32 v4, v{T0+4} offset:256')
    A(f's_cmp_gt_u32 s{sNT}, {CAPG}'); A('s_cbranch_scc1 K2_SPLIT')
    if ENV('BPERM'):
        for k in range(16): A(f'ds_bpermute_b32 v{AD+k}, v{AD+k}, v{T0+4}')
    else:
        nb=lambda ks: [A(f'ds_read_b32 v{AD+k}, v{AD+k} offset:256') for k in ks]
        nb(list(range(8))+B0); guarded('N', nb)
    A(f'v_mul_u32_u24 v{XV}, 22, v15'); A(f'v_mov_b32 v{XV+1}, s{sWAVE}')
    lab('K2_GL')
    A(f'v_cmp_lt_u32 vcc, v{XV+1}, v5'); A('s_and_saveexec_b64 s[84:85], vcc'); A('s_cbranch_execz K2_GLD')
    A(f'v_add_u32 v{XV+2}, v1, v{XV+1}'); A(f'v_lshlrev_b32 v{XV+2}, 1, v{XV+2}'); A(f'v_add_u32 v{XV+2}, {GRP}, v{XV+2}')
    A(f'ds_write_b16 v{XV+2}, v{XV}'); A(f'v_add_u32 v{XV+1}, 8, v{XV+1}')
    A('s_mov_b64 exec, s[84:85]'); A('s_branch K2_GL')
    lab('K2_GLD'); A('s_mov_b64 exec, -1')
    if (not ENV('XEARLY')):
        A(f's_cmp_eq_u32 s{sFIRST}, 1'); A('s_cbranch_scc0 K2_NF3'); A(f'buffer_load_dword v{T0+5}, v{kP2}, s[{X_}:{X_+3}], 0 offen'); lab('K2_NF3')
    A('s_waitcnt lgkmcnt(0)')
    stamp('prefix')
    def slot(ks):
        for k in ks:
            A(f'v_add_u32 v{RK+k}, v{RK+k}, v{AD+k}')
            A(f'v_lshl_add_u32 v{AD+k}, v{RK+k}, 1, s{sXS}')
            A(f'v_lshl_add_u32 v{RK+k}, v{RK+k}, 2, s{sES}')
        for k in ks:
            A(f's_mov_b64 exec, s[{MK+2*k}:{MK+2*k+1}]')
            A(f'ds_write_b16 v{AD+k}, v{EN+k}'); A(f'ds_write_b32 v{RK+k}, v{EW+k}')
        A('s_mov_b64 exec, -1')
    slot(list(range(8))+B0); guarded('S', slot)
    A(f's_add_u32 s{sNT}, s{sNT}, 3'); A(f's_lshr_b32 s{sNT}, s{sNT}, 2')
    A('s_waitcnt vmcnt(12) lgkmcnt(0)' if ENV('EPF') else 's_waitcnt vmcnt(2) lgkmcnt(0)'); A('s_barrier')
    stamp('bar3')
    A(f's_sub_u32 s{XG_}, s{X_}, 4096'); A(f's_subb_u32 s{XG_+1}, s{X_+1}, 0'); A(f's_mov_b32 s{XG_+2}, {N*128+4096}'); A(f's_mov_b32 s{XG_+3}, 0x20000')
    A(f's_mov_b32 s{sTI}, s{sWAVE}')
    A(f's_lshl_b32 s{sT0}, s{sWAVE}, 6'); A(f'v_add_u32 v{aXS}, s{sT0}, v{kXS}')
    A(f's_lshl_b32 s{sT0}, s{sWAVE}, 7'); A(f'v_add_u32 v{aES}, s{sT0}, v{kES}')
    A(f's_lshl_b32 s{sT0}, s{sWAVE}, 3'); A(f'v_add_u32 v{aGRP}, s{sT0}, v{kGRP}')
    A(f'ds_read_b32 v{EI}, v{aES}'); A(f'ds_read2_b32 v[{XI}:{XI+1}], v{aXS} offset0:0 offset1:4'); A(f'ds_read_b32 v{GR[0]}, v{aGRP}')
    for s in range(4): A(f'v_add_u32 v{aAX+s}, s{sX0}, v{kAX+s}')
    A('s_waitcnt lgkmcnt(0)')
    for i in x_dma(sX0)+e_issue(0)+e_flag(0): A(i)
    stamp('dma1')
    A(f's_cmp_eq_u32 s{sFIRST}, 0'); A('s_cbranch_scc1 K2_NG_DONE')
    A(f'v_add_u32 v1, {WSTG}, v{vL16}')
    A(f's_and_b32 s{sT0}, s{sWAVE}, 1'); A(f's_lshl_b32 s{sT0}, s{sT0}, 12'); A(f's_add_u32 s{sT0}, s{sT0}, {OWNX}')
    for s in range(4): A(f'v_add_u32 v{XV+s}, s{sT0}, v{kAX+s}')
    for s in range(4): A(f'ds_read_b128 {q(AX+4*s)}, v{XV+s}')
    for i in range(18): A(f'ds_read_b128 {q(WB+4*i)}, v1 offset:{1024*i}')
    A(f'v_or_b32 v{T0}, v{T0}, v{T0+1}'); A(f'v_or_b32 v{T0+2}, v{T0+2}, v{T0+3}'); A(f'v_or_b32 v{T0}, v{T0}, v{T0+2}')
    A(f'v_cmp_ne_u32 vcc, 0, v{T0}'); A('s_nop 3'); A('s_cmp_lg_u64 vcc, 0'); A(f's_cselect_b32 s{sOVF}, 1, 0')
    A('s_waitcnt lgkmcnt(0)')
    stamp('wread')
    for s in range(4): A(mf(G0, AX+4*s, NGB+4*s, '0' if s==0 else G0))
    A(f's_and_b32 s{sT0}, s{sWAVE}, 1'); A(f's_lshl_b32 s{sT0}, s{sT0}, 5'); A(f'v_lshrrev_b32 v1, 5, v15'); A(f'v_lshl_add_u32 v1, v1, 2, s{sT0}')
    A(f'v_mul_u32_u24 v1, {RECSZ}, v1')
    A(f's_bfe_u32 s{sT1}, s{sWAVE}, 0x10001')
    A(f's_cmp_ge_u32 s{sWAVE}, 4'); A('s_cbranch_scc1 K2_NG_U')
    A(f's_lshl_b32 s{sT1}, s{sT1}, 7'); A(f'v_add_u32 v1, v1, v{cRA}'); A(f'v_add_u32 v1, s{sT1}, v1')
    A(f's_mov_b32 s{sT2}, 0x{NLOG2E:08x}'); A('s_nop 7')
    for r in range(16):
        A(f'v_mul_f32 v{G0+r}, s{sT2}, v{G0+r}')
        A(f'v_cvt_pk_bf16_f32 v{SD}, v{G0+r}, v{G0+r}'); A(f'v_lshlrev_b32 v{SD}, 16, v{SD}'); A(f'v_sub_f32 v{SN}, v{G0+r}, v{SD}'); A(f'v_cvt_pk_bf16_f32 v{G0+r}, v{SD}, v{SN}')
    def wr_a(r): A(f'ds_write_b32 v1, v{G0+r} offset:{(8*(r//4)+(r%4))*RECSZ}')
    for r in range(8): wr_a(r)
    A(f's_and_b32 s{sT0}, s{sWAVE}, 1'); A(f's_cmp_eq_u32 s{sT0}, 0'); A('s_cbranch_scc0 K2_NG_A1')
    for r in range(8,16): wr_a(r)
    A('s_branch K2_NG_BAR')
    lab('K2_NG_A1')
    A('s_mov_b32 exec_lo, -1'); A('s_mov_b32 exec_hi, 0'); wr_a(8); wr_a(9); A('s_mov_b64 exec, -1'); A('s_branch K2_NG_BAR')
    lab('K2_NG_U')
    A(f's_lshl_b32 s{sT1}, s{sT1}, 6'); A(f'v_and_b32 v{SD}, 31, v15'); A(f'v_lshl_add_u32 v1, v{SD}, 1, v1'); A(f'v_add_u32 v1, s{sT1}, v1'); A(f'v_add_u32 v1, {REC+O_U}, v1')
    A('s_nop 7')
    for r in range(16): A(f'v_cvt_pk_bf16_f32 v{G0+r}, v{G0+r}, v{G0+r}')
    def wr_u(r): A(f'ds_write_b16 v1, v{G0+r} offset:{(8*(r//4)+(r%4))*RECSZ}')
    for r in range(8): wr_u(r)
    A(f's_and_b32 s{sT0}, s{sWAVE}, 1'); A(f's_cmp_eq_u32 s{sT0}, 0'); A('s_cbranch_scc0 K2_NG_U1')
    for r in range(8,16): wr_u(r)
    A('s_branch K2_NG_BAR')
    lab('K2_NG_U1')
    A('s_mov_b32 exec_lo, -1'); A('s_mov_b32 exec_hi, 0'); wr_u(8); wr_u(9); A('s_mov_b64 exec, -1')
    lab('K2_NG_BAR')
    stamp('ngm')
    A('s_waitcnt lgkmcnt(0)'); A('s_barrier')
    lab('K2_NG_DONE')
    stamp('ng')
    A(f's_mov_b32 s{sFIRST}, 0')
    if ENV('BAR'): A(f's_mov_b32 s{sTI}, 0')
    A(f's_cmp_lt_u32 s{sTI}, s{sNT}'); A('s_cbranch_scc0 K2_LOOP_END')
    A(f'ds_read2_b32 v[{XI}:{XI+1}], v{aXS} offset0:{16*STR} offset1:{16*STR+4}'); A(f'ds_read_b32 v{EI}, v{aES} offset:{128*STR}')
    for i in ra_mads(GR[0]): A(i)
    A(f'v_mad_u32_u16 v{RB1}, v{GR[0]}, 64, v{cRB} op_sel:[1,0,0,0]')
    for i in xb_reads(): A(i)
    for r in range(8,16): A(f'v_mov_b32 v{G1+r}, 0'); A(f'v_mov_b32 v{H1+r}, 0')
    A('s_waitcnt lgkmcnt(2)')
    if ENV('XNEAR'):
        for i in e_issue(1)+e_flag(1): A(i)
        A(f'v_add_u32 v{aXS}, {64*STR}, v{aXS}')
        A('s_waitcnt vmcnt(1)')
    else:
        for i in x_dma(sX1)+e_issue(1)+e_flag(1): A(i)
        A(f'v_add_u32 v{aXS}, {128*STR}, v{aXS}')
        A(f'ds_read2_b32 v[{XI}:{XI+1}], v{aXS} offset0:0 offset1:4')
        A('s_waitcnt vmcnt(5)')
    stamp('entw')
    for s in range(4): A(f'ds_read_b128 {q(AX+4*s)}, v{aAX+s}')
    A(f'v_add_u32 v{aXS}, {64*STR}, v{aXS}'); A(f'v_add_u32 v{aES}, {256*STR}, v{aES}'); A(f'v_add_u32 v{aGRP}, {8*STR}, v{aGRP}')
    A('s_waitcnt lgkmcnt(0)')
    for g in gchain(G0,0,0):
        for i in g: A(i)
    A('s_nop 7'); A('s_nop 2')
    stamp('entd')
    if ENV('ALN'):
        L.append('    .balignl 64, 0xBF800000')
        for _ in range(int(ENV('ALN'))): A('s_nop 0')
    lab('K2_LOOP')
    for i in body(0): A(i)
    A(f's_add_u32 s{sTI}, s{sTI}, {STR}'); A(f's_cmp_lt_u32 s{sTI}, s{sNT}'); A('s_cbranch_scc0 K2_TAIL')
    for i in body(1): A(i)
    A(f's_add_u32 s{sTI}, s{sTI}, {STR}'); A(f's_cmp_lt_u32 s{sTI}, s{sNT}'); A('s_cbranch_scc1 K2_LOOP')
    lab('K2_TAIL')
    for i in summ(G1,H1,8,RB1,1): A(i)
    lab('K2_LOOP_END')
    stamp('loop')
    A('s_waitcnt vmcnt(0)')
    A('v_lshrrev_b32 v1, 3, v0'); A('v_and_b32 v2, 7, v0')
    A(f'v_lshlrev_b32 v3, 8, v1'); A(f'v_add_u32 v3, s{sB}, v3'); A('v_lshlrev_b32 v3, 7, v3'); A('v_lshl_add_u32 v3, v2, 4, v3')
    A(f'buffer_load_dwordx4 {q(NGB)}, v3, s[{X_}:{X_+3}], 0 offen')
    A(f'v_mul_u32_u24 v14, {RECSZ}, v1'); A(f'v_add_u32 v14, {REC}, v14'); A(f'v_lshl_add_u32 v{kE5}, v2, 6, v14'); A(f'v_lshl_add_u32 v{kE6}, v2, 4, v14')
    A('s_waitcnt lgkmcnt(0)'); A('s_barrier')
    stamp('bar5')
    A(f's_cmp_eq_u32 s{sMODE}, 1'); A('s_cbranch_scc1 K2_NEXT_SPLIT')
    A(f's_cmp_eq_u32 s{sMODE}, 2'); A('s_cbranch_scc1 K2_NEXT_OVF')
    lab('K2_CHECK_OVF')
    A(f's_cmp_eq_u32 s{sOVF}, 0'); A('s_cbranch_scc1 K2_EPI')
    A(f's_mov_b32 s{sMODE}, 2'); A(f's_mov_b32 s{sOC}, 0'); A(f's_mov_b32 s{sOP}, 0'); A('s_branch K2_OVF_FIND')
    lab('K2_SPLIT')
    A(f's_mov_b32 s{sMODE}, 1'); A(f's_mov_b32 s{sU}, 0')
    A('s_waitcnt lgkmcnt(0)'); A('s_barrier')
    A('s_branch K2_LOADQ')
    lab('K2_NEXT_SPLIT')
    A(f's_add_u32 s{sU}, s{sU}, 1'); A(f's_cmp_ge_u32 s{sU}, 4'); A('s_cbranch_scc1 K2_CHECK_OVF')
    lab('K2_LOADQ')
    A(f's_and_b32 s{sT0}, s{sU}, 1'); A(f's_lshl_b32 s{sT0}, s{sT0}, 7'); A('v_lshrrev_b32 v4, 2, v0'); A(f'v_add_u32 v4, s{sT0}, v4'); A('v_and_b32 v5, 3, v0')
    cell_off_g(CO, 4)
    A('s_waitcnt vmcnt(0)')
    A(f'buffer_load_dwordx4 {q(EN)}, v{CO}, s[12:15], 0 offen')
    for k in range(4,16): A(f'v_mov_b32 v{EN+k}, 0')
    A(f's_cmp_ge_u32 s{sU}, 2'); A('s_cbranch_scc0 K2_LOADQ_A')
    A('s_waitcnt vmcnt(0)')
    A(f'v_mov_b32_dpp v14, v{EN+3} quad_perm:[3,3,3,3] row_mask:0xf bank_mask:0xf'); A('s_nop 0')
    A('v_cmp_ne_u32 vcc, 0, v14')
    for k in range(4): A(f'v_mov_b32 v{EN+k}, 0')
    A('s_mov_b64 exec, vcc'); A('s_cbranch_execz K2_LOADQ_B')
    A(f'buffer_load_dwordx4 {q(EN)}, v{CO}, s[12:15], s{sPB} offen')
    lab('K2_LOADQ_B'); A('s_mov_b64 exec, -1')
    lab('K2_LOADQ_A')
    A('v_mul_u32_u24 v4, 3200, v4'); A(f'v_add_u32 v{EB}, 0x{EFLAG-1:08x}, v4')
    A('s_branch K2_ROUND')
    lab('K2_NEXT_OVF')
    A(f's_add_u32 s{sOP}, s{sOP}, 2048')
    lab('K2_OVF_FIND')
    A(f's_cmp_ge_u32 s{sOC}, {NCH}'); A('s_cbranch_scc1 K2_EPI')
    A(f's_lshl_b32 s{sT0}, s{sOC}, 2'); A(f's_add_u32 s{sT0}, s{sT0}, {WS_OVFCNT}')
    A(f's_load_dword s{sON}, s[{sWS}:{sWS+1}], s{sT0}'); A('s_waitcnt lgkmcnt(0)')
    A(f's_cmp_gt_u32 s{sON}, s{sOP}'); A('s_cbranch_scc1 K2_OVF_LOAD')
    A(f's_add_u32 s{sOC}, s{sOC}, 1'); A(f's_mov_b32 s{sOP}, 0'); A('s_branch K2_OVF_FIND')
    lab('K2_OVF_LOAD')
    A(f's_mul_i32 s{sT0}, s{sOC}, 25600'); A(f's_add_u32 s{sT0}, s{sT0}, {WS_OVFL}')
    A(f's_add_u32 s24, s{sWS}, s{sT0}'); A(f's_addc_u32 s25, s{sWS+1}, 0'); A(f's_lshl_b32 s26, s{sON}, 3'); A('s_mov_b32 s27, 0x20000')
    A(f'v_add_u32 v1, s{sOP}, v0'); A('v_lshlrev_b32 v1, 3, v1')
    A(f'buffer_load_dwordx2 v[{AX}:{AX+1}], v1, s[24:27], 0 offen')
    for j in range(1,4):
        A(f's_mov_b32 s{sT0}, {4096*j}'); A(f'buffer_load_dwordx2 v[{AX+2*j}:{AX+2*j+1}], v1, s[24:27], s{sT0} offen')
    A('s_waitcnt vmcnt(0)')
    for j in range(4):
        A(f'v_cmp_eq_u32 vcc, s{sB}, v{AX+2*j+1}'); A('s_nop 1'); A(f'v_cndmask_b32 v{EN+j}, 0, v{AX+2*j}, vcc')
    for k in range(4,16): A(f'v_mov_b32 v{EN+k}, 0')
    A(f's_mul_i32 s{sT0}, s{sOC}, 3200'); A(f's_add_u32 s{sT0}, s{sT0}, 0x{EFLAG-1:08x}'); A(f'v_mov_b32 v{EB}, s{sT0}')
    A('s_branch K2_ROUND')
    lab('K2_EPI')
    for i in range(4): A(f'ds_read_b128 {q(48+4*i)}, v{kE5} offset:{O_DEN+16*i}')
    A(f'ds_read_b128 v[36:39], v{kE6} offset:{O_U}')
    for i in range(4): A(f'ds_read_b128 {q(64+4*i)}, v{kE5} offset:{O_NUM+16*i}')
    A('s_mov_b32 s40, 0x358637bd')
    A('s_waitcnt lgkmcnt(5)')
    for i in range(8): A(f'v_cvt_f32_f64 v{20+i}, v[{48+2*i}:{49+2*i}]')
    for i in range(8): A(f'v_add_f32 v{20+i}, s40, v{20+i}')
    for i in range(8): A(f'v_rcp_f32 v{20+i}, v{20+i}')
    A('s_waitcnt lgkmcnt(4)')
    for i in range(4):
        A(f'v_lshlrev_b32 v{40+2*i}, 16, v{36+i}'); A(f'v_and_b32 v{41+2*i}, 0xffff0000, v{36+i}')
    A('s_waitcnt lgkmcnt(0)')
    for i in range(8): A(f'v_cvt_f32_f64 v{28+i}, v[{64+2*i}:{65+2*i}]')
    for i in range(8): A(f'v_fmac_f32 v{40+i}, v{28+i}, v{20+i}')
    for i in range(8): A(f'v_cmp_lt_f32 s[{42+2*i}:{43+2*i}], 0, v{40+i}')
    for i in range(8): A(f'v_mul_f32 v{28+i}, 0, v{40+i}')
    for i in range(8): A(f'v_cndmask_b32 v{28+i}, v{28+i}, v{40+i}, s[{42+2*i}:{43+2*i}]')
    A('s_waitcnt vmcnt(0)')
    for i in range(4):
        A(f'v_lshlrev_b32 v{40+2*i}, 16, v{NGB+i}'); A(f'v_and_b32 v{41+2*i}, 0xffff0000, v{NGB+i}')
    for i in range(8): A(f'v_add_f32 v{28+i}, v{28+i}, v{40+i}')
    for i in range(4): A(f'v_cvt_pk_bf16_f32 v{20+i}, v{28+2*i}, v{29+2*i}')
    A(f"buffer_store_dwordx4 v[20:23], v3, s[{OU_}:{OU_+3}], 0 offen {os.environ.get('OST','sc1')}")
    stamp('end')
    stamp_store()
    lab('K2_END')
    A('s_endpgm')

hdr = f'''; GatedGCN edge-featured MPNN: K1 buckets edges by destination, K2 gathers + MFMA + segment-reduces in LDS.
; @launch kernel=gcn_sort_kernel grid=({K1_GRID},1,1) block=(1024,1,1) lds={K1_LDS}
; @launch kernel=standalone__edge_featured_mpnn_gatedgcn__graph_kernel grid=(256,1,1) block=(512,1,1) lds={LDS_END}
.amdgcn_target "amdgcn-amd-amdhsa--gfx950"
.text
'''
def kd(name, nv, ns):
    return f'''.p2align 6
.amdhsa_kernel {name}
  .amdhsa_next_free_vgpr {nv}
  .amdhsa_next_free_sgpr {ns}
  .amdhsa_accum_offset {(nv+3)//4*4}
  .amdhsa_group_segment_fixed_size 0
  .amdhsa_kernarg_size 96
  .amdhsa_user_sgpr_count 2
  .amdhsa_user_sgpr_kernarg_segment_ptr 1
  .amdhsa_system_sgpr_workgroup_id_x 1
.end_amdhsa_kernel
'''
out=[hdr]
out.append('.globl gcn_sort_kernel\n.p2align 8\n.type gcn_sort_kernel,@function')
k1(); out+=L; L=[]
out.append('.globl standalone__edge_featured_mpnn_gatedgcn__graph_kernel\n.p2align 8\n.type standalone__edge_featured_mpnn_gatedgcn__graph_kernel,@function')
k2(); out+=L
out.append('.section .rodata,"a"')
out.append(kd('gcn_sort_kernel', 40, 72))
out.append(kd('standalone__edge_featured_mpnn_gatedgcn__graph_kernel', NVGPR, 102 if STAMPS else 96))
open(sys.argv[1] if len(sys.argv)>1 else 'out.s','w').write('\n'.join(out)+'\n')
print('LDS_END',LDS_END)
```

```python
import sys, os
N=12500; E=800000; CH=3200; NCH=250; NBK=256
WS_CELLS=0; WS_OVFCNT=0x800000; WS_WPREP=0x801000; WS_OVFL=0x810000; WS_T=0x1000000
NLOG2E=0xBFB8AA3B
L=[]
def A(s): L.append(s if s.endswith(':') else '    '+s)
def lab(s): L.append(s+':')
def C(s): L.append('    ; '+s)
ENV=lambda k: os.environ.get(k)
def q(base,n=4): return f'v[{base}:{base+n-1}]'
def mf(d,a,b,c): return f'v_mfma_f32_32x32x16_bf16 {q(d,16)}, {q(a)}, {q(b)}, {c if c=="0" else q(c,16)}'
WT=os.environ.get('WT',' sc0 sc1'); LNT=os.environ.get('LNT',' nt'); WNT=os.environ.get('WNT','')
K1_GRID=NCH+3
K1_LDS=49152
S1=ENV('S1')
def k1():
    lab('gcn_sort_kernel')
    if ENV('DBG') or int(os.environ.get('STAMPS','0')): A('s_memrealtime s[50:51]')
    A(f's_cmp_ge_u32 s2, {K1_GRID}'); A('s_cbranch_scc1 K1_END3' if ENV('DBG') else 's_cbranch_scc1 K1_END')
    A('s_load_dwordx2 s[8:9], s[0:1], 88')
    A(f's_cmp_ge_u32 s2, {NCH}'); A('s_cbranch_scc1 K1_W')
    A('s_load_dwordx4 s[4:7], s[0:1], 16')
    if ENV('K1_XPF') or ENV('K1_MALL'): A('s_load_dwordx2 s[44:45], s[0:1], 0')
    A('v_lshlrev_b32 v1, 4, v0')
    A('s_mul_i32 s10, s2, 12800')
    A('s_waitcnt lgkmcnt(0)')
    if int(os.environ.get('STAMPS','0')):
        A('s_add_u32 s56, s8, 0x2080000'); A('s_addc_u32 s57, s9, 0'); A('s_mov_b32 s58, 1024'); A('s_mov_b32 s59, 0x20000')
        A('s_lshl_b32 s60, s2, 2'); A('v_mov_b32 v20, s50'); A('v_mov_b32 v21, s60'); A('buffer_store_dword v20, v21, s[56:59], 0 offen')
    A('s_add_u32 s16, s6, s10'); A('s_addc_u32 s17, s7, 0'); A('s_mov_b32 s18, 12800'); A('s_mov_b32 s19, 0x20000')
    A('buffer_load_dwordx4 v[8:11], v1, s[16:19], 0 offen'+LNT)
    A('s_add_u32 s12, s4, s10'); A('s_addc_u32 s13, s5, 0'); A('s_mov_b32 s14, 12800'); A('s_mov_b32 s15, 0x20000')
    A('buffer_load_dwordx4 v[12:15], v1, s[12:15], 0 offen'+LNT)
    if ENV('K1_XPF'):
        A(f's_mov_b32 s46, {N*128}'); A('s_mov_b32 s47, 0x20000')
        A('s_lshr_b32 s10, s2, 3'); A('s_mul_i32 s10, s10, 404'); A('v_add_u32 v36, s10, v0'); A('v_lshlrev_b32 v36, 7, v36')
        A('v_cmp_gt_u32 vcc, 404, v0'); A('v_mov_b32 v37, 0x7fffffff'); A('s_nop 0'); A('v_cndmask_b32 v36, v37, v36, vcc')
        A('buffer_load_dword v38, v36, s[44:47], 0 offen')
    if ENV('K1_MALL'):
        A(f's_mov_b32 s46, {N*128}'); A('s_mov_b32 s47, 0x20000')
        A('s_mul_i32 s10, s2, 50'); A('v_subrev_u32 v36, 832, v0'); A('v_cmp_gt_u32 vcc, 50, v36'); A('v_add_u32 v36, s10, v36'); A('v_lshlrev_b32 v36, 7, v36')
        A('v_mov_b32 v37, 0x7fffffff'); A('v_cndmask_b32 v36, v37, v36, vcc')
        A('buffer_load_dword v38, v36, s[44:47], 0 offen')
    for r in range(4,8): A(f'v_mov_b32 v{r}, 0')
    A('ds_write_b128 v1, v[4:7]'); A('ds_write_b128 v1, v[4:7] offset:16384'); A('ds_write_b128 v1, v[4:7] offset:32768')
    A('s_mul_i32 s10, s2, 25600')
    A(f's_add_u32 s24, s8, {WS_OVFL}'); A('s_addc_u32 s25, s9, 0'); A('s_add_u32 s24, s24, s10'); A('s_addc_u32 s25, s25, 0')
    A('s_mov_b32 s26, 25600'); A('s_mov_b32 s27, 0x20000')
    A('s_mov_b32 s32, s8'); A('s_mov_b32 s33, s9'); A('s_mov_b32 s34, 0x800000'); A('s_mov_b32 s35, 0x20000')
    A(f's_add_u32 s40, s8, {WS_OVFCNT}'); A('s_addc_u32 s41, s9, 0'); A('s_mov_b32 s42, 1000'); A('s_mov_b32 s43, 0x20000')
    A('v_mov_b32 v2, 1'); A('v_mov_b32 v3, 37888')
    A('s_waitcnt lgkmcnt(0)'); A('s_barrier')
    A('v_cmp_gt_u32 vcc, 800, v0'); A('s_and_saveexec_b64 s[20:21], vcc'); A('s_cbranch_execz K1_SKIP')
    A('s_mov_b64 s[28:29], exec')
    NP=1 if (ENV('K1_XPF') or ENV('K1_MALL')) else 0
    A(f's_waitcnt vmcnt({1+NP})')
    for j in range(4):
        A(f'v_and_b32 v{16+j}, 255, v{8+j}')
        A(f'v_lshlrev_b32 v{24+j}, 2, v{16+j}')
        A(f'ds_add_rtn_u32 v{28+j}, v{24+j}, v2 offset:36864')
    A(f's_waitcnt vmcnt({NP})')
    for j in range(4):
        A(f'v_lshrrev_b32 v{20+j}, 8, v{8+j}')
        A(f'v_lshl_or_b32 v{20+j}, v{12+j}, 6, v{20+j}')
        A(f'v_lshl_add_u32 v32, v0, 2, {j+1}')
        A(f'v_lshl_or_b32 v{20+j}, v32, 20, v{20+j}')
        A(f'v_mul_u32_u24 v{24+j}, 144, v{16+j}')
    A('s_waitcnt lgkmcnt(0)')
    for j in range(4):
        A(f'v_and_b32 v32, 3, v{28+j}'); A(f'v_bfe_u32 v33, v{28+j}, 2, 2'); A('v_lshl_add_u32 v32, v32, 2, v33'); A('v_or_b32 v32, 16, v32')
        A(f'v_cmp_gt_u32 vcc, 16, v{28+j}'); A('s_nop 1'); A(f'v_cndmask_b32 v32, v32, v{28+j}, vcc')
        A(f'v_lshl_add_u32 v{24+j}, v32, 2, v{24+j}')
        A(f'v_cmp_gt_u32 vcc, 32, v{28+j}')
        A('s_mov_b64 exec, vcc')
        A(f'ds_write_b32 v{24+j}, v{20+j}')
        A('s_andn2_b64 exec, s[28:29], vcc')
        A(f's_cbranch_execz K1_NOV{j}')
        A('ds_add_rtn_u32 v33, v3, v2')
        A(f'v_mov_b32 v34, v{20+j}'); A(f'v_mov_b32 v35, v{16+j}')
        A('s_waitcnt lgkmcnt(0)')
        A('v_lshlrev_b32 v33, 3, v33')
        A('buffer_store_dwordx2 v[34:35], v33, s[24:27], 0 offen'+WT)
        A('s_nop 1')
        lab(f'K1_NOV{j}')
        A('s_mov_b64 exec, s[28:29]')
    lab('K1_SKIP')
    A('s_mov_b64 exec, -1')
    if ENV('TLBW'):
        STEP=int(ENV('TLBW'))
        A(f's_waitcnt vmcnt({NP})')
        A('s_cmp_lt_u32 s2, 8'); A('s_cbranch_scc0 K1_NOTLB')
        A('v_readfirstlane_b32 s48, v0'); A('s_nop 3'); A('s_cmp_ge_u32 s48, 832'); A('s_cbranch_scc0 K1_NOTLB')
        A('s_load_dwordx2 s[52:53], s[0:1], 8'); A('s_load_dwordx2 s[44:45], s[0:1], 0')
        A('v_subrev_u32 v36, 832, v0'); A(f'v_lshlrev_b32 v36, {STEP}, v36')
        A('s_waitcnt lgkmcnt(0)')
        A(f's_mov_b32 s54, {E*32}'); A('s_mov_b32 s55, 0x20000'); A(f's_mov_b32 s46, {N*128}'); A('s_mov_b32 s47, 0x20000')
        for i in range(-(-(E*32>>STEP)//192)):
            A(f's_mov_b32 s49, {(192*i)<<STEP}'); A('buffer_load_dword v37, v36, s[52:55], s49 offen')
        A('buffer_load_dword v38, v36, s[44:47], 0 offen')
        lab('K1_NOTLB')
        A('s_branch K1_AFTERW')
    A(f's_waitcnt vmcnt({NP})')
    if ENV('TLBW'): lab('K1_AFTERW')
    A('v_lshrrev_b32 v4, 3, v0'); A('v_and_b32 v5, 7, v0')
    A('v_lshrrev_b32 v21, 2, v0'); A('v_and_b32 v23, 3, v0')
    A('v_mul_u32_u24 v6, 144, v21'); A('v_lshl_add_u32 v6, v23, 4, v6')
    A('v_add_u32 v7, s2, v4'); A('v_and_b32 v7, 255, v7'); A('v_lshlrev_b32 v7, 7, v7'); A('v_lshl_add_u32 v7, v4, 15, v7'); A('v_lshl_add_u32 v7, v5, 4, v7')
    A('v_lshlrev_b32 v18, 2, v21'); A('s_mov_b32 s36, 0x400000')
    A('s_waitcnt lgkmcnt(0)'); A('s_barrier')
    CST=os.environ.get('CST','sc0 sc1')
    A('ds_read_b128 v[8:11], v6'); A('ds_read_b32 v19, v18 offset:36864'); A('ds_read_b128 v[12:15], v6 offset:64'); A('ds_read_b32 v16, v3')
    A('s_waitcnt lgkmcnt(3)')
    A(f'buffer_store_dwordx4 v[8:11], v7, s[32:35], 0 offen {CST}')
    A('s_waitcnt lgkmcnt(1)')
    A('v_cmp_le_u32 vcc, 16, v19'); A('s_mov_b64 exec, vcc')
    A(f'buffer_store_dwordx4 v[12:15], v7, s[32:35], s36 offen {CST}')
    A('s_mov_b64 exec, -1')
    if int(os.environ.get('STAMPS','0')):
        A('s_waitcnt vmcnt(0)'); A('s_memrealtime s[60:61]'); A('v_lshrrev_b32 v24, 6, v0'); A('v_lshlrev_b32 v24, 2, v24'); A('s_lshl_b32 s62, s2, 6'); A('v_add_u32 v24, s62, v24')
        A('s_mov_b32 s58, 0x8000'); A('s_waitcnt lgkmcnt(0)'); A('v_mov_b32 v23, s60'); A('v_add_u32 v24, 0x1000, v24'); A('buffer_store_dword v23, v24, s[56:59], 0 offen')
    A('v_cmp_le_u32 vcc, 32, v19'); A('s_cbranch_vccz K1_END')
    A('s_lshl_b32 s10, s2, 2'); A('s_waitcnt lgkmcnt(0)'); A('s_mov_b64 exec, 1'); A('v_mov_b32 v17, s10')
    A('buffer_store_dword v16, v17, s[40:43], 0 offen'+WT)
    A('s_branch K1_END')
    lab('K1_W')
    A('s_load_dwordx8 s[12:19], s[0:1], 32')
    A('s_load_dwordx2 s[20:21], s[0:1], 64')
    A('v_lshrrev_b32 v1, 6, v0'); A('s_nop 0'); A('v_readfirstlane_b32 s10, v1')
    A(f's_sub_u32 s11, s2, {NCH}'); A('s_lshl_b32 s11, s11, 4'); A('s_nop 2'); A('s_add_u32 s10, s10, s11')
    A('s_cmp_ge_u32 s10, 34'); A('s_cbranch_scc1 K1_END')
    A('s_waitcnt lgkmcnt(0)')
    A('s_mov_b32 s24, s14'); A('s_mov_b32 s25, s15'); A('s_mov_b32 s26, 8192'); A('s_mov_b32 s27, 0x20000')
    A(f's_mov_b32 s28, 0x{NLOG2E:08x}'); A('s_mov_b32 s29, s10')
    A('s_cmp_ge_u32 s10, 8'); A('s_cbranch_scc0 K1_WSEL')
    A('s_mov_b32 s24, s20'); A('s_mov_b32 s25, s21'); A('s_mov_b32 s28, 0x3f800000'); A('s_sub_u32 s29, s10, 8')
    A('s_cmp_ge_u32 s10, 16'); A('s_cbranch_scc0 K1_WSEL')
    A('s_mov_b32 s24, s16'); A('s_mov_b32 s25, s17'); A('s_mov_b32 s26, 2048'); A(f's_mov_b32 s28, 0x{NLOG2E:08x}')
    A('s_sub_u32 s29, s10, 16'); A('s_lshl_b32 s29, s29, 2')
    A('s_cmp_ge_u32 s10, 18'); A('s_cbranch_scc0 K1_WSEL')
    A('s_mov_b32 s24, s12'); A('s_mov_b32 s25, s13'); A('s_mov_b32 s26, 8192'); A('s_mov_b32 s28, 0x3f800000'); A('s_sub_u32 s29, s10, 18')
    A('s_cmp_ge_u32 s10, 26'); A('s_cbranch_scc0 K1_WSEL')
    A('s_mov_b32 s24, s18'); A('s_mov_b32 s25, s19'); A('s_sub_u32 s29, s10, 26')
    lab('K1_WSEL')
    A('s_lshr_b32 s30, s29, 2'); A('s_and_b32 s31, s29, 3')
    A('s_lshl_b32 s30, s30, 6'); A('s_lshl_b32 s31, s31, 11'); A('s_add_u32 s30, s30, s31')
    A('v_and_b32 v2, 63, v0'); A('v_and_b32 v3, 31, v0'); A('v_lshrrev_b32 v4, 5, v2')
    A('v_lshlrev_b32 v4, 10, v4'); A('v_lshl_add_u32 v4, v3, 1, v4'); A('v_add_u32 v4, s30, v4')
    for t in range(8): A(f'buffer_load_ushort v{8+t}, v4, s[24:27], 0 offen offset:{128*t}')
    A(f's_add_u32 s32, s8, {WS_WPREP}'); A('s_addc_u32 s33, s9, 0'); A('s_mov_b32 s34, 34816'); A('s_mov_b32 s35, 0x20000')
    A('s_lshl_b32 s36, s10, 10'); A('v_lshlrev_b32 v5, 4, v2')
    A('s_waitcnt vmcnt(0)')
    for t in range(8):
        A(f'v_lshlrev_b32 v{8+t}, 16, v{8+t}'); A(f'v_mul_f32 v{8+t}, s28, v{8+t}')
    for t in range(4): A(f'v_cvt_pk_bf16_f32 v{16+t}, v{8+2*t}, v{9+2*t}')
    A('buffer_store_dwordx4 v[16:19], v5, s[32:35], s36 offen'+WT)
    lab('K1_END')
    if ENV('DBG'):
        A('s_cmp_eq_u32 s2, 7'); A('s_cbranch_scc0 K1_END2')
        A('s_load_dwordx2 s[52:53], s[0:1], 80'); A('s_memrealtime s[54:55]'); A('s_waitcnt lgkmcnt(0)')
        A('s_mov_b64 exec, 1'); A('s_mov_b32 s56, s54'); A('s_mov_b32 s54, 256'); A('s_mov_b32 s55, 0x20000')
        A('v_mov_b32 v20, s56'); A('v_mov_b32 v21, s50'); A('v_mov_b32 v22, 0')
        A('buffer_store_dword v21, v22, s[52:55], 0 offen'); A('buffer_store_dword v20, v22, s[52:55], 0 offen offset:4')
        lab('K1_END2')
        lab('K1_END3')
    A('s_endpgm')

XST=0; REC=65536; RECSZ=1408; XS=REC+50*RECSZ; ES=XS+8192; GRP=ES+16384; CNT=GRP+1024; NBT=CNT+256; OVC=NBT+256; OVL=OVC+4; LDS_END=OVC+528
OWNX=32768; WSTG=40960
O_DEN=256; O_NUM=768; O_U=1280
CAPG=512
DUMMY=49*22
EPAD=0x700FFFFF; EFLAG=0x40000000
cXE=2; cXO=3; aXS=4; aES=5; cKG=6; aGRP=7; cRA=8; cRB=9; aAX=10
WB=16; WV=48; WC=80; XB=88; AZ0=92; AZ1=96; ONEB=100; ONEA=[104,108]; AX=112; AE=[128,132]; G0=136; G1=152; H0=168; H1=184
XI=200; XV=202; EI=206; EV=207; GR=[208,209]; RA0=210; RA1=211; RB0=212; RB1=213; SD=214; SN=215; PD=216; PN=218
kP2=229; kP1=199; kE5=240; kE6=241; kOOB=234; kOV=230; vONE=220; kXS=221; kES=222; kGRP=223; kAX=224; vL16=228; T0=230; NGB=236; cXM=252
NVGPR=256
XG_=64
CO=198; EN=G0; RK=G1; EB=H0; AD=H0+4; EW=AX
sB=3; X_=4; EA_=8; CE_=12; WP_=16; OU_=20; MI_=24; sWS=28; sWAVE=30; sNT=31; sTI=32; sX0=33; sX1=34; sMODE=36; sFIRST=37; sOVF=38; sU=39
MK=40
sCNT=72; sXS=73; sES=74; sT0=75; sT1=76; sT2=77; sOC=78; sOP=79; sON=80; sPB=81; sBH=82; sBL=35; sG1=76; sG2=77; sHALF=84+11; sOI=94; s128=83
STAMPS=int(os.environ.get('STAMPS','0'))
STR=8
XSPLIT=int(os.environ.get('XSPLIT','4'))
B0=[8,12]; B1=[9,13]; B2=[10,11,14,15]
SSET=os.environ.get('SSET','main')
SMAP={'main':{'start':0,'bar1':1,'hist':2,'prefix':3,'bar3':4,'ng':5,'loop':6,'bar5':7,'end':8},
      'pro':{'start':0,'issued':1,'consts':2,'vmw':3,'bar1':4,'hist':5,'bar3':6,'ng':7,'entd':8},
      'pro2':{'bar3':0,'dma1':1,'wread':2,'ngm':3,'ng':4,'entw':5,'entd':6,'loop':7,'end':8}}[SSET]
def stamp(name):
    if STAMPS and name in SMAP:
        i=SMAP[name]
        A('s_memtime s[98:99]' if STAMPS==1 else 's_memrealtime s[98:99]'); A('s_waitcnt lgkmcnt(0)'); A(f's_mov_b32 s{86+i}, s98')
def stamp_store():
    if STAMPS and ENV('DBG'):
        A('s_memrealtime s[98:99]'); A('s_waitcnt lgkmcnt(0)'); A('s_mov_b32 s97, s98')
        A('s_cmp_eq_u32 s2, 7'); A('s_cbranch_scc0 K2_DBGE'); A(f's_cmp_eq_u32 s{sWAVE}, 0'); A('s_cbranch_scc0 K2_DBGE')
        A('s_load_dwordx2 s[24:25], s[0:1], 80'); A('s_waitcnt lgkmcnt(0)'); A('s_mov_b64 exec, 1'); A('v_mov_b32 v14, 0'); A('s_mov_b32 s26, 256'); A('s_mov_b32 s27, 0x20000')
        for i in range(12):
            A(f'v_mov_b32 v1, s{86+i}'); A(f'buffer_store_dword v1, v14, s[24:27], 0 offen offset:{8+4*i}')
        lab('K2_DBGE')
    elif STAMPS:
        A('s_memrealtime s[98:99]'); A('s_waitcnt lgkmcnt(0)'); A('s_mov_b32 s97, s98')
        A(f's_add_u32 s24, s{sWS}, 0x2000000'); A(f's_addc_u32 s25, s{sWS+1}, 0'); A('s_mov_b32 s26, 0x100000'); A('s_mov_b32 s27, 0x20000')
        A(f's_lshl_b32 s75, s2, 3'); A(f's_add_u32 s75, s75, s{sWAVE}'); A('s_lshl_b32 s75, s75, 6')
        for i in range(12):
            A(f'v_mov_b32 v1, s{86+i}'); A(f'v_mov_b32 v14, {4*i}'); A('buffer_store_dword v1, v14, s[24:27], s75 offen')
def x_dma(sbase):
    o=[f's_mov_b32 m0, s{sbase}']
    for m in range(4):
        o.append(f'v_mad_u32_u16 v{XV+m}, v{XI+(m>>1)}, s{s128}, v{cXM+m} op_sel:[{m&1},0,0,0]')
        o.append(f'buffer_load_dwordx4 v{XV+m}, s[{XG_}:{XG_+3}], 0 offen offset:{1024*m} lds')
    return o
ENT=' '+os.environ.get('EFL','nt')
def e_issue(p):
    return [f'v_mad_u32_u24 v{EV}, v{EI}, 32, v{cKG}', f'buffer_load_dwordx4 {q(AE[p])}, v{EV}, s[{EA_}:{EA_+3}], 0 offen{ENT}']
def e_flag(p): return [f'v_and_b32 v{ONEA[p]}, 0xff000000, v{EI}']
def summ(G,H,b,rb,ct):
    if ENV('PK'):
        P=lambda x: f'v[{x}:{x+1}]'
        o=[f'v_pk_mul_f32 {P(PN)}, {P(G+b)}, {P(H+b)}', f'v_pk_add_f32 {P(PD)}, {P(G+b)}, {P(G+b+2)}']
        for r in (2,4,6):
            o.append(f'v_pk_fma_f32 {P(PN)}, {P(G+b+r)}, {P(H+b+r)}, {P(PN)}')
            if r>=4: o.append(f'v_pk_add_f32 {P(PD)}, {P(PD)}, {P(G+b+r)}')
        o.append(f'v_add_f32 v{SD}, v{PD}, v{PD+1}'); o.append(f'v_add_f32 v{SN}, v{PN}, v{PN+1}')
    else:
        o=[f'v_mul_f32 v{SN}, v{G+b}, v{H+b}', f'v_add_f32 v{SD}, v{G+b}, v{G+b+1}']
        for r in range(1,8):
            o.append(f'v_fmac_f32 v{SN}, v{G+b+r}, v{H+b+r}')
            if r>=2: o.append(f'v_add_f32 v{SD}, v{SD}, v{G+b+r}')
    o.append(f'v_cvt_f64_f32 v[{PD}:{PD+1}], v{SD}'); o.append(f'v_cvt_f64_f32 v[{PN}:{PN+1}], v{SN}')
    if not ENV('NO_DSADD'):
        o.append(f'ds_add_f64 v{rb}, v[{PD}:{PD+1}] offset:{ct*256}'); o.append(f'ds_add_f64 v{rb}, v[{PN}:{PN+1}] offset:{512+ct*256}')
    return o
def inter(v, m, every):
    o=[]; m=list(m)
    for i,x in enumerate(v):
        if m and i%every==0: o+=m.pop(0)
        o.append(x)
    for g in m: o+=g
    return o
def gchain(G,ct,p):
    return [[mf(G,AX,WB+16*ct,'0')],[mf(G,AX+4,WB+16*ct+4,G)],[mf(G,AX+8,WB+16*ct+8,G)],[mf(G,AX+12,WB+16*ct+12,G)],
            [mf(G,AE[p],WC+4*ct,G)],[mf(G,AZ1 if ct else AZ0,XB,G)]]
def xb_reads(): return [f'ds_read2_b32 v[{XB}:{XB+1}], v{RA0} offset0:0 offset1:32', f'ds_read2_b32 v[{XB+2}:{XB+3}], v{RA1} offset0:0 offset1:32']
def ra_mads(g): return [f'v_mad_u32_u16 v{RA0}, v{g}, 64, v{cRA} op_sel:[0,0,0,0]', f'v_mad_u32_u16 v{RA1}, v{g}, 64, v{cRA} op_sel:[1,0,0,0]']
def body(p):
    o=[]
    ex=lambda G:[f'v_exp_f32 v{G+r}, v{G+r}' for r in range(16)]
    rc=lambda G:[f'v_rcp_f32 v{G+r}, v{G+r}' for r in range(16)]
    XN=ENV('XNEAR')
    xd=x_dma((sX1 if p==0 else sX0) if XN else (sX0 if p==0 else sX1)) if not ENV('NO_XDMA') else ['s_nop 0']
    EP=ENV('EPOS')
    if ENV('PRIO')=='alt':
        o+=[f's_cmp_eq_u32 s{sHALF}, {p}', f's_cbranch_scc1 PR{p}A', 's_setprio 0', f's_branch PR{p}B', f'PR{p}A:', 's_setprio 1', f'PR{p}B:']
    if EP=='early': o+=[f'ds_read_b32 v{EI}, v{aES} offset:{128*STR*p}']
    grp=[[mf(H0,AX+4*s,WV+4*s,'0' if s==0 else H0)]+(xd[:3] if s==0 else xd[1+2*s:3+2*s]) for s in range(4)]
    o+=inter(ex(G0), grp, 4)
    sb=summ(G1,H1,8,RB1,1)
    o+=sb[:2]+[mf(G0,ONEA[p],ONEB,G0)]+sb[2:]
    o+=[f'v_mad_u32_u16 v{RB0}, v{GR[p]}, 64, v{cRB} op_sel:[0,0,0,0]', f'v_mad_u32_u16 v{RB1}, v{GR[p]}, 64, v{cRB} op_sel:[1,0,0,0]']
    o+=inter(rc(G0), gchain(G1,1,p), 3)
    if EP=='early': o+=['s_waitcnt lgkmcnt(2)']+e_issue(p)
    o+=summ(G0,H0,0,RB0,0)
    o+=['s_waitcnt vmcnt(6)' if EP=='early' else 's_waitcnt vmcnt(5)',
        f'ds_read2_b32 v[{XI}:{XI+1}], v{aXS} offset0:{16*STR*p} offset1:{16*STR*p+4}']
    if EP!='early': o+=[f'ds_read_b32 v{EI}, v{aES} offset:{128*STR*p}']
    o+=[f'ds_read_b32 v{GR[p^1]}, v{aGRP} offset:{8*STR*p}']
    o+=inter(ex(G1), [[mf(H1,AX+4*s,WV+16+4*s,'0' if s==0 else H1), f'ds_read_b128 {q(AX+4*s)}, v{aAX+s} offset:{32768*(p^1)}'] for s in range(4)], 4)
    sb=summ(G0,H0,8,RB1,0)
    o+=sb[:2]+[mf(G1,ONEA[p],ONEB,G1)]
    o+=['s_waitcnt lgkmcnt(4)']+ra_mads(GR[p^1])
    o+=(e_issue(p) if (not ENV('NO_EDMA') and not EP) else [])+xb_reads()+e_flag(p)
    o+=sb[2:]
    o+=['s_waitcnt vmcnt(4) lgkmcnt(4)' if EP=='late' else 's_waitcnt vmcnt(5) lgkmcnt(4)']
    gc=gchain(G0,0,p^1)
    gc[5]=['s_waitcnt lgkmcnt(2)']+gc[5]
    o+=inter(rc(G1), gc, 3)
    if EP=='late': o+=e_issue(p)
    o+=summ(G1,H1,0,RB0,1)
    if p==1:
        o+=[f'v_add_u32 v{aXS}, {128*STR}, v{aXS}', f'v_add_u32 v{aES}, {256*STR}, v{aES}', f'v_add_u32 v{aGRP}, {16*STR}, v{aGRP}']
    if ENV('NO_XMFMA'):
        o=[i for i in o if not (i.startswith('v_mfma') and any(f', {q(AX+4*s)}, ' in i for s in range(4)))]
    if ENV('NO_HMFMA'): o=[i for i in o if not (i.startswith('v_mfma') and (i.startswith(f'v_mfma_f32_32x32x16_bf16 {q(H0,16)}') or i.startswith(f'v_mfma_f32_32x32x16_bf16 {q(H1,16)}')))]
    if ENV('NO_SUMS'): o=[i for i in o if not (i.startswith('v_fmac') or (i.startswith('v_add_f32')) or i.startswith('v_mul_f32'))]
    if ENV('NO_SMALLM'): o=[i for i in o if not (i.startswith('v_mfma') and not any(f', {q(AX+4*s)}, ' in i for s in range(4)))]
    if ENV('NO_MFMA'): o=[i for i in o if not i.startswith('v_mfma')]
    if ENV('NO_TRANS'): o=[i for i in o if not (i.startswith('v_exp') or i.startswith('v_rcp'))]
    return o

def cell_off_g(dst, creg):
    A(f'v_add_u32 v{dst}, s{sBH}, v{creg}'); A(f'v_and_b32 v{dst}, 255, v{dst}'); A(f'v_lshlrev_b32 v{dst}, 7, v{dst}'); A(f'v_lshl_add_u32 v{dst}, v5, 4, v{dst}'); A(f'v_add_u32 v{dst}, s{sBL}, v{dst}')
    A(f'v_cmp_gt_u32 vcc, {NCH}, v{creg}'); A('v_mov_b32 v14, 0x7fffffff'); A('s_nop 0'); A(f'v_cndmask_b32 v{dst}, v14, v{dst}, vcc')
def k2():
    lab('standalone__edge_featured_mpnn_gatedgcn__graph_kernel')
    A('s_cmp_ge_u32 s2, 256'); A('s_cbranch_scc1 K2_END')
    A(f's_load_dwordx2 s[{sWS}:{sWS+1}], s[0:1], 88')
    A('s_load_dwordx4 s[4:7], s[0:1], 0')
    A('s_load_dwordx2 s[20:21], s[0:1], 72')
    A(f's_and_b32 s{sB}, s2, 7'); A(f's_lshl_b32 s{sB}, s{sB}, 5'); A(f's_lshr_b32 s{sT0}, s2, 3'); A(f's_or_b32 s{sB}, s{sB}, s{sT0}')
    A('v_lshrrev_b32 v1, 6, v0'); A('v_and_b32 v15, 63, v0')
    A(f'v_readfirstlane_b32 s{sWAVE}, v1')
    A(f'v_lshlrev_b32 v{vL16}, 4, v15')
    A(f's_lshr_b32 s{sBH}, s{sB}, 1'); A(f's_and_b32 s{sBL}, s{sB}, 1'); A(f's_lshl_b32 s{sBL}, s{sBL}, 6')
    A('v_lshrrev_b32 v4, 2, v0'); A('v_and_b32 v5, 3, v0')
    cell_off_g(CO, 4); A('v_add_u32 v4, 128, v4'); cell_off_g(CO+1, 4)
    A(f's_lshl_b32 s{sT0}, s{sBH}, 15')
    A('s_waitcnt lgkmcnt(0)')
    if STAMPS:
        A('s_memrealtime s[98:99]'); A('s_waitcnt lgkmcnt(0)'); A('s_mov_b32 s96, s98')
    stamp('start')
    A(f's_add_u32 s12, s{sWS}, s{sT0}'); A(f's_addc_u32 s13, s{sWS+1}, 0'); A(f's_mov_b32 s14, {0x400000+32768}'); A('s_mov_b32 s15, 0x20000')
    for u in range(2): A(f"buffer_load_dwordx4 {q(EN+4*u)}, v{CO+u}, s[12:15], 0 offen {os.environ.get('CLD','')}")
    A(f's_mov_b32 s{sPB}, 0x400000')
    def init_a():
        A('v_lshlrev_b32 v1, 4, v0')
        for r in range(4): A(f'v_mov_b32 v{AX+r}, -1')
        A(f'v_add_u32 v14, {XS}, v1'); A(f'ds_write_b128 v14, {q(AX)}')
        for r in range(4): A(f'v_mov_b32 v{AX+4+r}, 0x{EPAD:08x}')
        A(f'ds_write_b128 v14, {q(AX+4)} offset:8192'); A(f'ds_write_b128 v14, {q(AX+4)} offset:16384')
        for r in range(4): A(f'v_mov_b32 v{AX+8+r}, 0x{(DUMMY<<16)|DUMMY:08x}')
        for r in range(4): A(f'v_mov_b32 v{AX+12+r}, 0')
        A('v_cmp_gt_u32 vcc, 64, v0'); A('s_nop 1')
        for r in range(4): A(f'v_cndmask_b32 v{AX+8+r}, v{AX+12+r}, v{AX+8+r}, vcc')
        A('v_cmp_gt_u32 vcc, 96, v0'); A(f's_and_saveexec_b64 s[{MK}:{MK+1}], vcc'); A(f'ds_write_b128 v14, {q(AX+8)} offset:{GRP-XS}'); A(f's_mov_b64 exec, s[{MK}:{MK+1}]')
    init_a()
    A('s_mov_b32 s8, s6'); A('s_mov_b32 s9, s7'); A(f's_mov_b32 s10, {E*32}'); A('s_mov_b32 s11, 0x20000')
    A(f's_mov_b32 s6, {N*128}'); A('s_mov_b32 s7, 0x20000')
    A(f's_mov_b32 s22, {N*128}'); A('s_mov_b32 s23, 0x20000')
    A(f's_add_u32 s16, s{sWS}, {WS_WPREP}'); A(f's_addc_u32 s17, s{sWS+1}, 0'); A('s_mov_b32 s18, 34816'); A('s_mov_b32 s19, 0x20000')
    A(f'v_lshrrev_b32 v14, 3, v15'); A(f's_lshl_b32 s{sT0}, s{sWAVE}, 3'); A(f'v_add_u32 v14, s{sT0}, v14')
    A(f'v_lshlrev_b32 v14, 8, v14'); A(f'v_add_u32 v14, s{sB}, v14'); A('v_lshlrev_b32 v14, 7, v14')
    A('v_lshrrev_b32 v4, 4, v15'); A('v_and_b32 v5, 7, v15'); A('v_xor_b32 v4, v4, v5'); A(f'v_lshlrev_b32 v{cXE}, 4, v4'); A(f'v_xor_b32 v{cXO}, 64, v{cXE}')
    A(f's_and_b32 s{sT0}, s{sWAVE}, 1'); A(f's_cmp_eq_u32 s{sT0}, 0'); A('s_cselect_b64 vcc, -1, 0')
    A(f'v_cndmask_b32 v4, v{cXO}, v{cXE}, vcc'); A('v_add_u32 v4, v14, v4')
    A(f'v_mov_b32 v{CO+2-2+0}, v{CO}') if False else None
    A(f'v_mov_b32 v{XV}, v4')
    stamp('issued')
    A('v_lshrrev_b32 v14, 6, v0'); A(f'v_mul_u32_u24 v14, {RECSZ}, v14'); A(f'v_add_u32 v14, v14, v{vL16}'); A(f'v_add_u32 v14, {REC+O_DEN}, v14')
    for r in range(4): A(f'v_mov_b32 v{AX+r}, 0')
    for i in range(5): A(f'ds_write_b128 v14, {q(AX)} offset:{8*RECSZ*i}')
    A(f'v_add_u32 v14, {8*RECSZ*5}, v14'); A(f'ds_write_b128 v14, {q(AX)}')
    A('v_cmp_gt_u32 vcc, 128, v0'); A(f's_and_saveexec_b64 s[{MK}:{MK+1}], vcc'); A(f'ds_write_b128 v14, {q(AX)} offset:{8*RECSZ}'); A(f's_mov_b64 exec, s[{MK}:{MK+1}]')
    A(f'v_mov_b32 v{vONE}, 1'); A(f'v_mov_b32 v{kOV}, {OVC}'); A(f'ds_write_b32 v{kOV}, v{AX}')
    A(f's_mov_b32 s{sCNT}, {CNT}'); A(f's_mov_b32 s{sXS}, {XS}'); A(f's_mov_b32 s{sES}, {ES}'); A(f's_mov_b32 s{s128}, 128')
    A(f's_mov_b32 s{sMODE}, 0'); A(f's_mov_b32 s{sFIRST}, 1'); A(f's_mov_b32 s{sU}, 0')
    A(f's_lshr_b32 s{sHALF}, s{sWAVE}, 2')
    if ENV('PRIO')=='young': A(f's_cmp_eq_u32 s{sHALF}, 1'); A('s_cbranch_scc0 PRY'); A('s_setprio 1'); lab('PRY')
    A('v_lshrrev_b32 v4, 2, v0'); A('v_mul_u32_u24 v4, 3200, v4')
    for u in range(4): A(f'v_add_u32 v{EB+u}, 0x{(128*(u&1)*3200-1+EFLAG)&0xffffffff:08x}, v4')
    for k in range(8,16): A(f'v_mov_b32 v{EN+k}, 0')
    def lane_consts():
        C('lane constants (v1 = kg)')
        A('v_lshrrev_b32 v1, 5, v15'); A(f'v_lshlrev_b32 v{cKG}, 4, v1')
        A('v_bfe_u32 v5, v15, 3, 2'); A('v_lshlrev_b32 v4, 5, v1'); A('v_lshl_add_u32 v4, v5, 2, v4'); A(f'v_add_u32 v{kXS}, {XS}, v4')
        A('v_bfe_u32 v4, v15, 2, 1'); A('v_lshlrev_b32 v4, 4, v4'); A('v_bfe_u32 v5, v15, 4, 1'); A('v_lshl_add_u32 v4, v5, 3, v4')
        A('v_and_b32 v5, 3, v15'); A('v_lshl_add_u32 v4, v5, 1, v4'); A('v_bfe_u32 v5, v15, 3, 1'); A('v_add_u32 v4, v4, v5')
        A('v_lshlrev_b32 v4, 2, v4'); A(f'v_add_u32 v{kES}, {ES}, v4')
        A('v_lshlrev_b32 v4, 2, v1'); A(f'v_add_u32 v{kGRP}, {GRP}, v4')
        A('v_and_b32 v4, 31, v15'); A('v_lshlrev_b32 v5, 2, v4'); A(f'v_add_u32 v{cRA}, {REC}, v5'); A('v_lshlrev_b32 v5, 3, v4'); A(f'v_add_u32 v{cRB}, {REC+O_DEN}, v5')
        A('v_bfe_u32 v5, v15, 1, 3'); A('v_xor_b32 v5, v5, v1'); A('v_lshlrev_b32 v5, 4, v5'); A('v_lshl_add_u32 v4, v4, 7, v5')
        for s in range(4): A(f'v_xor_b32 v{kAX+s}, {32*s}, v4')
        A(f's_lshl_b32 s{sX0}, s{sWAVE}, 12'); A(f's_add_u32 s{sX1}, s{sX0}, 32768')
        for m in range(4): A(f'v_add_u32 v{cXM+m}, {4096-1024*m}, v{cXO if m&1 else cXE}')
        A('v_bfe_u32 v4, v15, 2, 1'); A('v_cmp_eq_u32 vcc, v4, v1'); A('v_mov_b32 v5, 0x3f803f80'); A('s_nop 0'); A('v_cndmask_b32 v5, 0, v5, vcc')
        A('v_bfe_u32 v4, v15, 4, 1'); A('v_cmp_eq_u32 vcc, 0, v4'); A('s_nop 1'); A(f'v_cndmask_b32 v{AZ0}, 0, v5, vcc')
        A(f'v_sub_u32 v{AZ0+2}, v5, v{AZ0}'); A(f'v_mov_b32 v{AZ0+1}, 0'); A(f'v_mov_b32 v{AZ0+3}, 0')
        A(f'v_mov_b32 v{AZ1}, 0'); A(f'v_mov_b32 v{AZ1+1}, v{AZ0}'); A(f'v_mov_b32 v{AZ1+2}, 0'); A(f'v_mov_b32 v{AZ1+3}, v{AZ0+2}')
        A('v_cmp_eq_u32 vcc, 0, v1'); A('v_mov_b32 v5, 0x3f000000'); A('s_nop 0'); A(f'v_cndmask_b32 v{ONEB}, 0, v5, vcc')
        for r in range(1,4): A(f'v_mov_b32 v{ONEB+r}, 0'); A(f'v_mov_b32 v{ONEA[0]+r}, 0'); A(f'v_mov_b32 v{ONEA[1]+r}, 0')
    lane_consts()
    stamp('consts')
    A('s_waitcnt vmcnt(0)')
    for u in range(2):
        A(f'v_mov_b32_dpp v14, v{EN+4*u+3} quad_perm:[3,3,3,3] row_mask:0xf bank_mask:0xf'); A('s_nop 0')
        A('v_cmp_ne_u32 vcc, 0, v14'); A('s_mov_b64 exec, vcc')
        A(f"buffer_load_dwordx4 {q(EN+8+4*u)}, v{CO+u}, s[12:15], s{sPB} offen {os.environ.get('CLD','')}"); A('s_mov_b64 exec, -1')
    A(f's_lshl_b32 s{sT0}, s{sWAVE}, 10'); A(f's_add_u32 m0, s{sT0}, {OWNX}'); A('s_nop 0')
    A(f'buffer_load_dwordx4 v{XV}, s[{X_}:{X_+3}], 0 offen lds')
    for i in range(3):
        A(f's_add_u32 s{sT1}, s{sT0}, {8192*i}'); A(f's_add_u32 m0, s{sT1}, {WSTG}'); A('s_nop 0')
        A(f'buffer_load_dwordx4 v{vL16}, s[16:19], s{sT1} offen{WNT} lds')
    A('s_branch K2_WD')
    lab('K2_ROUND')
    init_a()
    A('s_waitcnt vmcnt(0)')
    lab('K2_WD')
    stamp('vmw')
    if ENV('HALFCELL'):
        A(f's_cmp_eq_u32 s{sMODE}, 2'); A('s_cbranch_scc1 K2_NOMASK')
        A('v_and_b32 v14, 4, v15'); A('v_cmp_eq_u32 s[84:85], 0, v14')
        for u in range(4):
            A(f'v_mov_b32_dpp v1, v{EN+4*u+3} quad_perm:[3,3,3,3] row_mask:0xf bank_mask:0xf'); A('s_nop 1')
            A('v_mov_b32_dpp v14, v1 row_shr:4 row_mask:0xf bank_mask:0xf bound_ctrl:0'); A('s_nop 0')
            A('v_cmp_ne_u32 vcc, 0, v14'); A('s_or_b64 vcc, vcc, s[84:85]')
            for k in range(4): A(f'v_cndmask_b32 v{EN+4*u+k}, 0, v{EN+4*u+k}, vcc')
        lab('K2_NOMASK')
    def pre(ks):
        for k in ks: A(f'v_cmp_ne_u32 s[{MK+2*k}:{MK+2*k+1}], 0, v{EN+k}')
        for k in ks: A(f'v_and_b32 v{AD+k}, 63, v{EN+k}'); A(f'v_lshl_add_u32 v{AD+k}, v{AD+k}, 2, s{sCNT}')
    def atom(ks):
        for k in ks: A(f's_mov_b64 exec, s[{MK+2*k}:{MK+2*k+1}]'); A(f'ds_add_rtn_u32 v{RK+k}, v{AD+k}, v{vONE}')
        A('s_mov_b64 exec, -1')
    pre(range(8))
    A('s_waitcnt lgkmcnt(0)'); A('s_barrier')
    stamp('bar1')
    def ew(ks):
        for k in ks: A(f'v_lshrrev_b32 v{EW+k}, 20, v{EN+k}'); A(f'v_bfe_u32 v{EN+k}, v{EN+k}, 6, 14'); A(f'v_add_u32 v{EW+k}, v{EW+k}, v{EB+k//4}')
    atom(range(8))
    A(f's_cmp_eq_u32 s{sFIRST}, 1'); A('s_cbranch_scc0 K2_NF1')
    A(f's_lshr_b32 s{sT0}, s{sWAVE}, 1'); A(f's_lshl_b32 s{sT0}, s{sT0}, 12'); A(f's_add_u32 s{sT0}, s{sT0}, {18*1024}')
    for s_ in range(4): A(f'buffer_load_dwordx4 {q(NGB+4*s_)}, v{vL16}, s[16:19], s{sT0} offen offset:{1024*s_}{WNT}')
    A(f's_lshr_b32 s{sT0}, s2, 3'); A(f's_mul_i32 s{sT0}, s{sT0}, 391'); A(f'v_add_u32 v14, s{sT0}, v0'); A('v_lshlrev_b32 v14, 7, v14')
    A('v_cmp_gt_u32 vcc, 391, v0'); A(f'v_mov_b32 v{T0+5}, 0x7fffffff'); A('s_nop 0'); A(f'v_cndmask_b32 v14, v{T0+5}, v14, vcc')
    if ENV('NOXPF'): A(f'v_mov_b32 v14, v{T0+5}')
    A(f'v_mov_b32 v{kP2}, v14'); A(f's_cmp_ge_u32 s{sWAVE}, {XSPLIT}'); A('s_cselect_b64 vcc, -1, 0')
    A(f'v_cndmask_b32 v14, v14, v{T0+5}, vcc'); A(f'v_cndmask_b32 v{kP2}, v{T0+5}, v{kP2}, vcc')
    if (not ENV('XEARLY')): A(f'v_mov_b32 v{kP1}, v14')
    else: A(f'buffer_load_dword v{T0+5}, v14, s[{X_}:{X_+3}], 0 offen')
    lab('K2_NF1')
    ew(range(8))
    A('s_waitcnt vmcnt(8)')
    for k in range(8,16): A(f'v_cmp_ne_u32 s[{MK+2*k}:{MK+2*k+1}], 0, v{EN+k}')
    def addr(ks):
        for k in ks: A(f'v_and_b32 v{AD+k}, 63, v{EN+k}'); A(f'v_lshl_add_u32 v{AD+k}, v{AD+k}, 2, s{sCNT}')
    addr(B0); atom(B0); ew(B0)
    A(f's_or_b64 s[84:85], s[{MK+18}:{MK+19}], s[{MK+26}:{MK+27}]'); A(f's_cselect_b32 s{sG1}, 1, 0')
    A(f's_or_b64 s[84:85], s[{MK+20}:{MK+21}], s[{MK+22}:{MK+23}]'); A(f's_or_b64 s[84:85], s[84:85], s[{MK+28}:{MK+29}]'); A(f's_or_b64 s[84:85], s[84:85], s[{MK+30}:{MK+31}]'); A(f's_cselect_b32 s{sG2}, 1, 0')
    def guarded(tag, fn):
        for g,(sg,ks) in enumerate(((sG1,B1),(sG2,B2))):
            A(f's_cmp_eq_u32 s{sg}, 0'); A(f's_cbranch_scc1 K2_SK{tag}{g}'); fn(ks); lab(f'K2_SK{tag}{g}')
    def hist_blk(ks):
        addr(ks); atom(ks); ew(ks)
        if ks is B2:
            A('s_mov_b32 s84, 0x88888888'); A('s_mov_b32 s85, 0x88888888')
            for u,k in enumerate((11,15)):
                A(f's_and_b64 exec, s[{MK+2*k}:{MK+2*k+1}], s[84:85]'); A(f's_cbranch_execz K2_NFULL{u}')
                A(f'ds_add_rtn_u32 v14, v{kOV}, v{vONE}'); A('v_lshrrev_b32 v1, 2, v0'); A(f'v_add_u32 v1, {128*u}, v1')
                A('s_waitcnt lgkmcnt(0)'); A('v_lshlrev_b32 v14, 1, v14'); A(f'v_add_u32 v14, {OVL}, v14'); A('ds_write_b16 v14, v1')
                lab(f'K2_NFULL{u}'); A('s_mov_b64 exec, -1')
    guarded('H', hist_blk)
    if ENV('EPF'):
        lim=CNT+4*int(ENV('EPF'))
        A(f'v_mov_b32 v{kOOB}, 0x7fffffff')
        for k in list(range(8))+B0:
            A(f'v_cmp_gt_u32 vcc, {lim}, v{AD+k}'); A(f'v_mad_u32_u24 v14, v{EW+k}, 32, 0'); A(f's_and_b64 vcc, vcc, s[{MK+2*k}:{MK+2*k+1}]')
            A(f'v_cndmask_b32 v14, v{kOOB}, v14, vcc')
            A(f'buffer_load_dword v{T0+5}, v14, s[{EA_}:{EA_+3}], 0 offen nt')
    A('s_waitcnt lgkmcnt(0)'); A('s_barrier')
    stamp('hist')
    A(f's_cmp_eq_u32 s{sFIRST}, 1'); A('s_cbranch_scc0 K2_NF2')
    A(f"buffer_load_dword v{T0+5}, v{kP1 if (not ENV('XEARLY')) else kP2}, s[{X_}:{X_+3}], 0 offen")
    lab('K2_NF2')
    A(f'v_lshl_add_u32 v4, v15, 2, s{sCNT}'); A('ds_read_b32 v5, v4'); A(f'ds_read_b32 v14, v{kOV}'); A('s_waitcnt lgkmcnt(0)')
    A(f'v_readfirstlane_b32 s{sOVF}, v14')
    A('v_add_u32 v5, 7, v5'); A('v_lshrrev_b32 v5, 3, v5'); A('v_mov_b32 v1, v5'); A('s_nop 1')
    for sh in (1,2,4,8):
        A(f'v_add_u32_dpp v1, v1, v1 row_shr:{sh} row_mask:0xf bank_mask:0xf bound_ctrl:0'); A('s_nop 1')
    A('v_add_u32_dpp v1, v1, v1 row_bcast:15 row_mask:0xa bank_mask:0xf'); A('s_nop 1')
    A('v_add_u32_dpp v1, v1, v1 row_bcast:31 row_mask:0xc bank_mask:0xf'); A('s_nop 1')
    A(f'v_readlane_b32 s{sNT}, v1, 63')
    A('v_sub_u32 v1, v1, v5')
    A(f'v_lshlrev_b32 v{T0+4}, 3, v1')
    if not ENV('BPERM'): A(f'ds_write_b32 v4, v{T0+4} offset:256')
    A(f's_cmp_gt_u32 s{sNT}, {CAPG}'); A('s_cbranch_scc1 K2_SPLIT')
    if ENV('BPERM'):
        for k in range(16): A(f'ds_bpermute_b32 v{AD+k}, v{AD+k}, v{T0+4}')
    else:
        nb=lambda ks: [A(f'ds_read_b32 v{AD+k}, v{AD+k} offset:256') for k in ks]
        nb(list(range(8))+B0); guarded('N', nb)
    A(f'v_mul_u32_u24 v{XV}, 22, v15'); A(f'v_mov_b32 v{XV+1}, s{sWAVE}')
    lab('K2_GL')
    A(f'v_cmp_lt_u32 vcc, v{XV+1}, v5'); A('s_and_saveexec_b64 s[84:85], vcc'); A('s_cbranch_execz K2_GLD')
    A(f'v_add_u32 v{XV+2}, v1, v{XV+1}'); A(f'v_lshlrev_b32 v{XV+2}, 1, v{XV+2}'); A(f'v_add_u32 v{XV+2}, {GRP}, v{XV+2}')
    A(f'ds_write_b16 v{XV+2}, v{XV}'); A(f'v_add_u32 v{XV+1}, 8, v{XV+1}')
    A('s_mov_b64 exec, s[84:85]'); A('s_branch K2_GL')
    lab('K2_GLD'); A('s_mov_b64 exec, -1')
    if (not ENV('XEARLY')):
        A(f's_cmp_eq_u32 s{sFIRST}, 1'); A('s_cbranch_scc0 K2_NF3'); A(f'buffer_load_dword v{T0+5}, v{kP2}, s[{X_}:{X_+3}], 0 offen'); lab('K2_NF3')
    A('s_waitcnt lgkmcnt(0)')
    stamp('prefix')
    def slot(ks):
        for k in ks:
            A(f'v_add_u32 v{RK+k}, v{RK+k}, v{AD+k}')
            A(f'v_lshl_add_u32 v{AD+k}, v{RK+k}, 1, s{sXS}')
            A(f'v_lshl_add_u32 v{RK+k}, v{RK+k}, 2, s{sES}')
        for k in ks:
            A(f's_mov_b64 exec, s[{MK+2*k}:{MK+2*k+1}]')
            A(f'ds_write_b16 v{AD+k}, v{EN+k}'); A(f'ds_write_b32 v{RK+k}, v{EW+k}')
        A('s_mov_b64 exec, -1')
    slot(list(range(8))+B0); guarded('S', slot)
    A(f's_add_u32 s{sNT}, s{sNT}, 3'); A(f's_lshr_b32 s{sNT}, s{sNT}, 2')
    A('s_waitcnt vmcnt(12) lgkmcnt(0)' if ENV('EPF') else 's_waitcnt vmcnt(2) lgkmcnt(0)'); A('s_barrier')
    stamp('bar3')
    A(f's_sub_u32 s{XG_}, s{X_}, 4096'); A(f's_subb_u32 s{XG_+1}, s{X_+1}, 0'); A(f's_mov_b32 s{XG_+2}, {N*128+4096}'); A(f's_mov_b32 s{XG_+3}, 0x20000')
    A(f's_mov_b32 s{sTI}, s{sWAVE}')
    A(f's_lshl_b32 s{sT0}, s{sWAVE}, 6'); A(f'v_add_u32 v{aXS}, s{sT0}, v{kXS}')
    A(f's_lshl_b32 s{sT0}, s{sWAVE}, 7'); A(f'v_add_u32 v{aES}, s{sT0}, v{kES}')
    A(f's_lshl_b32 s{sT0}, s{sWAVE}, 3'); A(f'v_add_u32 v{aGRP}, s{sT0}, v{kGRP}')
    A(f'ds_read_b32 v{EI}, v{aES}'); A(f'ds_read2_b32 v[{XI}:{XI+1}], v{aXS} offset0:0 offset1:4'); A(f'ds_read_b32 v{GR[0]}, v{aGRP}')
    for s in range(4): A(f'v_add_u32 v{aAX+s}, s{sX0}, v{kAX+s}')
    A('s_waitcnt lgkmcnt(0)')
    for i in x_dma(sX0)+e_issue(0)+e_flag(0): A(i)
    stamp('dma1')
    A(f's_cmp_eq_u32 s{sFIRST}, 0'); A('s_cbranch_scc1 K2_NG_DONE')
    A(f'v_add_u32 v1, {WSTG}, v{vL16}')
    A(f's_and_b32 s{sT0}, s{sWAVE}, 1'); A(f's_lshl_b32 s{sT0}, s{sT0}, 12'); A(f's_add_u32 s{sT0}, s{sT0}, {OWNX}')
    for s in range(4): A(f'v_add_u32 v{XV+s}, s{sT0}, v{kAX+s}')
    for s in range(4): A(f'ds_read_b128 {q(AX+4*s)}, v{XV+s}')
    for i in range(18): A(f'ds_read_b128 {q(WB+4*i)}, v1 offset:{1024*i}')
    A('s_waitcnt lgkmcnt(0)')
    stamp('wread')
    for s in range(4): A(mf(G0, AX+4*s, NGB+4*s, '0' if s==0 else G0))
    A(f's_and_b32 s{sT0}, s{sWAVE}, 1'); A(f's_lshl_b32 s{sT0}, s{sT0}, 5'); A(f'v_lshrrev_b32 v1, 5, v15'); A(f'v_lshl_add_u32 v1, v1, 2, s{sT0}')
    A(f'v_mul_u32_u24 v1, {RECSZ}, v1')
    A(f's_bfe_u32 s{sT1}, s{sWAVE}, 0x10001')
    A(f's_cmp_ge_u32 s{sWAVE}, 4'); A('s_cbranch_scc1 K2_NG_U')
    A(f's_lshl_b32 s{sT1}, s{sT1}, 7'); A(f'v_add_u32 v1, v1, v{cRA}'); A(f'v_add_u32 v1, s{sT1}, v1')
    A(f's_mov_b32 s{sT2}, 0x{NLOG2E:08x}'); A('s_nop 7')
    for r in range(16):
        A(f'v_mul_f32 v{G0+r}, s{sT2}, v{G0+r}')
        A(f'v_cvt_pk_bf16_f32 v{SD}, v{G0+r}, v{G0+r}'); A(f'v_lshlrev_b32 v{SD}, 16, v{SD}'); A(f'v_sub_f32 v{SN}, v{G0+r}, v{SD}'); A(f'v_cvt_pk_bf16_f32 v{G0+r}, v{SD}, v{SN}')
    def wr_a(r): A(f'ds_write_b32 v1, v{G0+r} offset:{(8*(r//4)+(r%4))*RECSZ}')
    for r in range(8): wr_a(r)
    A(f's_and_b32 s{sT0}, s{sWAVE}, 1'); A(f's_cmp_eq_u32 s{sT0}, 0'); A('s_cbranch_scc0 K2_NG_A1')
    for r in range(8,16): wr_a(r)
    A('s_branch K2_NG_BAR')
    lab('K2_NG_A1')
    A('s_mov_b32 exec_lo, -1'); A('s_mov_b32 exec_hi, 0'); wr_a(8); wr_a(9); A('s_mov_b64 exec, -1'); A('s_branch K2_NG_BAR')
    lab('K2_NG_U')
    A(f's_lshl_b32 s{sT1}, s{sT1}, 6'); A(f'v_and_b32 v{SD}, 31, v15'); A(f'v_lshl_add_u32 v1, v{SD}, 1, v1'); A(f'v_add_u32 v1, s{sT1}, v1'); A(f'v_add_u32 v1, {REC+O_U}, v1')
    A('s_nop 7')
    for r in range(16): A(f'v_cvt_pk_bf16_f32 v{G0+r}, v{G0+r}, v{G0+r}')
    def wr_u(r): A(f'ds_write_b16 v1, v{G0+r} offset:{(8*(r//4)+(r%4))*RECSZ}')
    for r in range(8): wr_u(r)
    A(f's_and_b32 s{sT0}, s{sWAVE}, 1'); A(f's_cmp_eq_u32 s{sT0}, 0'); A('s_cbranch_scc0 K2_NG_U1')
    for r in range(8,16): wr_u(r)
    A('s_branch K2_NG_BAR')
    lab('K2_NG_U1')
    A('s_mov_b32 exec_lo, -1'); A('s_mov_b32 exec_hi, 0'); wr_u(8); wr_u(9); A('s_mov_b64 exec, -1')
    lab('K2_NG_BAR')
    stamp('ngm')
    A('s_waitcnt lgkmcnt(0)'); A('s_barrier')
    lab('K2_NG_DONE')
    stamp('ng')
    A(f's_mov_b32 s{sFIRST}, 0')
    if ENV('BAR'): A(f's_mov_b32 s{sTI}, 0')
    A(f's_cmp_lt_u32 s{sTI}, s{sNT}'); A('s_cbranch_scc0 K2_LOOP_END')
    A(f'ds_read2_b32 v[{XI}:{XI+1}], v{aXS} offset0:{16*STR} offset1:{16*STR+4}'); A(f'ds_read_b32 v{EI}, v{aES} offset:{128*STR}')
    for i in ra_mads(GR[0]): A(i)
    A(f'v_mad_u32_u16 v{RB1}, v{GR[0]}, 64, v{cRB} op_sel:[1,0,0,0]')
    for i in xb_reads(): A(i)
    for r in range(8,16): A(f'v_mov_b32 v{G1+r}, 0'); A(f'v_mov_b32 v{H1+r}, 0')
    A('s_waitcnt lgkmcnt(2)')
    if ENV('XNEAR'):
        for i in e_issue(1)+e_flag(1): A(i)
        A(f'v_add_u32 v{aXS}, {64*STR}, v{aXS}')
        A('s_waitcnt vmcnt(1)')
    else:
        for i in x_dma(sX1)+e_issue(1)+e_flag(1): A(i)
        A(f'v_add_u32 v{aXS}, {128*STR}, v{aXS}')
        A(f'ds_read2_b32 v[{XI}:{XI+1}], v{aXS} offset0:0 offset1:4')
        A('s_waitcnt vmcnt(5)')
    stamp('entw')
    for s in range(4): A(f'ds_read_b128 {q(AX+4*s)}, v{aAX+s}')
    A(f'v_add_u32 v{aXS}, {64*STR}, v{aXS}'); A(f'v_add_u32 v{aES}, {256*STR}, v{aES}'); A(f'v_add_u32 v{aGRP}, {8*STR}, v{aGRP}')
    A('s_waitcnt lgkmcnt(0)')
    for g in gchain(G0,0,0):
        for i in g: A(i)
    A('s_nop 7'); A('s_nop 2')
    stamp('entd')
    if ENV('ALN'):
        L.append('    .balignl 64, 0xBF800000')
        for _ in range(int(ENV('ALN'))): A('s_nop 0')
    lab('K2_LOOP')
    for i in body(0): A(i)
    A(f's_add_u32 s{sTI}, s{sTI}, {STR}'); A(f's_cmp_lt_u32 s{sTI}, s{sNT}'); A('s_cbranch_scc0 K2_TAIL')
    for i in body(1): A(i)
    A(f's_add_u32 s{sTI}, s{sTI}, {STR}'); A(f's_cmp_lt_u32 s{sTI}, s{sNT}'); A('s_cbranch_scc1 K2_LOOP')
    lab('K2_TAIL')
    for i in summ(G1,H1,8,RB1,1): A(i)
    lab('K2_LOOP_END')
    stamp('loop')
    A('s_waitcnt vmcnt(0)')
    A('v_lshrrev_b32 v1, 3, v0'); A('v_and_b32 v2, 7, v0')
    A(f'v_lshlrev_b32 v3, 8, v1'); A(f'v_add_u32 v3, s{sB}, v3'); A('v_lshlrev_b32 v3, 7, v3'); A('v_lshl_add_u32 v3, v2, 4, v3')
    A(f'buffer_load_dwordx4 {q(NGB)}, v3, s[{X_}:{X_+3}], 0 offen')
    A(f'v_mul_u32_u24 v14, {RECSZ}, v1'); A(f'v_add_u32 v14, {REC}, v14'); A(f'v_lshl_add_u32 v{kE5}, v2, 6, v14'); A(f'v_lshl_add_u32 v{kE6}, v2, 4, v14')
    A('s_waitcnt lgkmcnt(0)'); A('s_barrier')
    stamp('bar5')
    A(f's_cmp_eq_u32 s{sMODE}, 1'); A('s_cbranch_scc1 K2_NEXT_SPLIT')
    A(f's_cmp_eq_u32 s{sMODE}, 2'); A('s_cbranch_scc1 K2_NEXT_OVF')
    lab('K2_CHECK_OVF')
    A(f's_cmp_eq_u32 s{sOVF}, 0'); A('s_cbranch_scc1 K2_EPI')
    A(f's_mov_b32 s{sMODE}, 2'); A(f's_mov_b32 s{sOI}, 0'); A(f's_mov_b32 s{sOP}, 0'); A('s_branch K2_OVF_FIND')
    lab('K2_SPLIT')
    A(f's_mov_b32 s{sMODE}, 1'); A(f's_mov_b32 s{sU}, 0')
    A('s_waitcnt lgkmcnt(0)'); A('s_barrier')
    A('s_branch K2_LOADQ')
    lab('K2_NEXT_SPLIT')
    A(f's_add_u32 s{sU}, s{sU}, 1'); A(f's_cmp_ge_u32 s{sU}, 4'); A('s_cbranch_scc1 K2_CHECK_OVF')
    lab('K2_LOADQ')
    A(f's_and_b32 s{sT0}, s{sU}, 1'); A(f's_lshl_b32 s{sT0}, s{sT0}, 7'); A('v_lshrrev_b32 v4, 2, v0'); A(f'v_add_u32 v4, s{sT0}, v4'); A('v_and_b32 v5, 3, v0')
    cell_off_g(CO, 4)
    A('s_waitcnt vmcnt(0)')
    A(f'buffer_load_dwordx4 {q(EN)}, v{CO}, s[12:15], 0 offen')
    for k in range(4,16): A(f'v_mov_b32 v{EN+k}, 0')
    A(f's_cmp_ge_u32 s{sU}, 2'); A('s_cbranch_scc0 K2_LOADQ_A')
    A('s_waitcnt vmcnt(0)')
    A(f'v_mov_b32_dpp v14, v{EN+3} quad_perm:[3,3,3,3] row_mask:0xf bank_mask:0xf'); A('s_nop 0')
    A('v_cmp_ne_u32 vcc, 0, v14')
    for k in range(4): A(f'v_mov_b32 v{EN+k}, 0')
    A('s_mov_b64 exec, vcc'); A('s_cbranch_execz K2_LOADQ_B')
    A(f'buffer_load_dwordx4 {q(EN)}, v{CO}, s[12:15], s{sPB} offen')
    lab('K2_LOADQ_B'); A('s_mov_b64 exec, -1')
    lab('K2_LOADQ_A')
    A('v_mul_u32_u24 v4, 3200, v4'); A(f'v_add_u32 v{EB}, 0x{EFLAG-1:08x}, v4')
    A('s_branch K2_ROUND')
    lab('K2_NEXT_OVF')
    A(f's_add_u32 s{sOP}, s{sOP}, 2048')
    lab('K2_OVF_FIND')
    A(f's_cmp_ge_u32 s{sOI}, s{sOVF}'); A('s_cbranch_scc1 K2_EPI')
    A(f's_lshl_b32 s{sT0}, s{sOI}, 1'); A(f's_add_u32 s{sT0}, s{sT0}, {OVL}'); A(f'v_mov_b32 v14, s{sT0}'); A('ds_read_u16 v14, v14'); A('s_waitcnt lgkmcnt(0)')
    A(f'v_readfirstlane_b32 s{sOC}, v14'); A('s_nop 3')
    A(f's_lshl_b32 s{sT0}, s{sOC}, 2'); A(f's_add_u32 s{sT0}, s{sT0}, {WS_OVFCNT}')
    A(f's_load_dword s{sON}, s[{sWS}:{sWS+1}], s{sT0}'); A('s_waitcnt lgkmcnt(0)')
    A(f's_cmp_gt_u32 s{sON}, s{sOP}'); A('s_cbranch_scc1 K2_OVF_LOAD')
    A(f's_add_u32 s{sOI}, s{sOI}, 1'); A(f's_mov_b32 s{sOP}, 0'); A('s_branch K2_OVF_FIND')
    lab('K2_OVF_LOAD')
    A(f's_mul_i32 s{sT0}, s{sOC}, 25600'); A(f's_add_u32 s{sT0}, s{sT0}, {WS_OVFL}')
    A(f's_add_u32 s24, s{sWS}, s{sT0}'); A(f's_addc_u32 s25, s{sWS+1}, 0'); A(f's_lshl_b32 s26, s{sON}, 3'); A('s_mov_b32 s27, 0x20000')
    A(f'v_add_u32 v1, s{sOP}, v0'); A('v_lshlrev_b32 v1, 3, v1')
    A(f'buffer_load_dwordx2 v[{AX}:{AX+1}], v1, s[24:27], 0 offen')
    for j in range(1,4):
        A(f's_mov_b32 s{sT0}, {4096*j}'); A(f'buffer_load_dwordx2 v[{AX+2*j}:{AX+2*j+1}], v1, s[24:27], s{sT0} offen')
    A('s_waitcnt vmcnt(0)')
    for j in range(4):
        A(f'v_cmp_eq_u32 vcc, s{sB}, v{AX+2*j+1}'); A('s_nop 1'); A(f'v_cndmask_b32 v{EN+j}, 0, v{AX+2*j}, vcc')
    for k in range(4,16): A(f'v_mov_b32 v{EN+k}, 0')
    A(f's_mul_i32 s{sT0}, s{sOC}, 3200'); A(f's_add_u32 s{sT0}, s{sT0}, 0x{EFLAG-1:08x}'); A(f'v_mov_b32 v{EB}, s{sT0}')
    A('s_branch K2_ROUND')
    lab('K2_EPI')
    for i in range(4): A(f'ds_read_b128 {q(48+4*i)}, v{kE5} offset:{O_DEN+16*i}')
    A(f'ds_read_b128 v[36:39], v{kE6} offset:{O_U}')
    for i in range(4): A(f'ds_read_b128 {q(64+4*i)}, v{kE5} offset:{O_NUM+16*i}')
    A('s_mov_b32 s40, 0x358637bd')
    A('s_waitcnt lgkmcnt(5)')
    for i in range(8): A(f'v_cvt_f32_f64 v{20+i}, v[{48+2*i}:{49+2*i}]')
    for i in range(8): A(f'v_add_f32 v{20+i}, s40, v{20+i}')
    for i in range(8): A(f'v_rcp_f32 v{20+i}, v{20+i}')
    A('s_waitcnt lgkmcnt(4)')
    for i in range(4):
        A(f'v_lshlrev_b32 v{40+2*i}, 16, v{36+i}'); A(f'v_and_b32 v{41+2*i}, 0xffff0000, v{36+i}')
    A('s_waitcnt lgkmcnt(0)')
    for i in range(8): A(f'v_cvt_f32_f64 v{28+i}, v[{64+2*i}:{65+2*i}]')
    for i in range(8): A(f'v_fmac_f32 v{40+i}, v{28+i}, v{20+i}')
    for i in range(8): A(f'v_cmp_lt_f32 s[{42+2*i}:{43+2*i}], 0, v{40+i}')
    for i in range(8): A(f'v_mul_f32 v{28+i}, 0, v{40+i}')
    for i in range(8): A(f'v_cndmask_b32 v{28+i}, v{28+i}, v{40+i}, s[{42+2*i}:{43+2*i}]')
    A('s_waitcnt vmcnt(0)')
    for i in range(4):
        A(f'v_lshlrev_b32 v{40+2*i}, 16, v{NGB+i}'); A(f'v_and_b32 v{41+2*i}, 0xffff0000, v{NGB+i}')
    for i in range(8): A(f'v_add_f32 v{28+i}, v{28+i}, v{40+i}')
    for i in range(4): A(f'v_cvt_pk_bf16_f32 v{20+i}, v{28+2*i}, v{29+2*i}')
    A(f"buffer_store_dwordx4 v[20:23], v3, s[{OU_}:{OU_+3}], 0 offen {os.environ.get('OST','sc1')}")
    stamp('end')
    stamp_store()
    lab('K2_END')
    A('s_endpgm')

hdr = f'''; GatedGCN edge-featured MPNN: K1 buckets edges by destination, K2 gathers + MFMA + segment-reduces in LDS.
; @launch kernel=gcn_sort_kernel grid=({K1_GRID},1,1) block=(1024,1,1) lds={K1_LDS}
; @launch kernel=standalone__edge_featured_mpnn_gatedgcn__graph_kernel grid=(256,1,1) block=(512,1,1) lds={LDS_END}
.amdgcn_target "amdgcn-amd-amdhsa--gfx950"
.text
'''
def kd(name, nv, ns):
    return f'''.p2align 6
.amdhsa_kernel {name}
  .amdhsa_next_free_vgpr {nv}
  .amdhsa_next_free_sgpr {ns}
  .amdhsa_accum_offset {(nv+3)//4*4}
  .amdhsa_group_segment_fixed_size 0
  .amdhsa_kernarg_size 96
  .amdhsa_user_sgpr_count 2
  .amdhsa_user_sgpr_kernarg_segment_ptr 1
  .amdhsa_system_sgpr_workgroup_id_x 1
.end_amdhsa_kernel
'''
out=[hdr]
out.append('.globl gcn_sort_kernel\n.p2align 8\n.type gcn_sort_kernel,@function')
k1(); out+=L; L=[]
out.append('.globl standalone__edge_featured_mpnn_gatedgcn__graph_kernel\n.p2align 8\n.type standalone__edge_featured_mpnn_gatedgcn__graph_kernel,@function')
k2(); out+=L
out.append('.section .rodata,"a"')
out.append(kd('gcn_sort_kernel', 40, 72))
out.append(kd('standalone__edge_featured_mpnn_gatedgcn__graph_kernel', NVGPR, 102 if STAMPS else 96))
open(sys.argv[1] if len(sys.argv)>1 else 'out.s','w').write('\n'.join(out)+'\n')
print('LDS_END',LDS_END)
```

```python
import sys, os
N=12500; E=800000; CH=3200; NCH=250; NBK=256
WS_CELLS=0; WS_OVFCNT=0x800000; WS_WPREP=0x801000; WS_OVFL=0x810000; WS_T=0x1000000
NLOG2E=0xBFB8AA3B
L=[]
def A(s): L.append(s if s.endswith(':') else '    '+s)
def lab(s): L.append(s+':')
def C(s): L.append('    ; '+s)
ENV=lambda k: os.environ.get(k)
def q(base,n=4): return f'v[{base}:{base+n-1}]'
def mf(d,a,b,c): return f'v_mfma_f32_32x32x16_bf16 {q(d,16)}, {q(a)}, {q(b)}, {c if c=="0" else q(c,16)}'
WT=os.environ.get('WT',' sc0 sc1'); LNT=os.environ.get('LNT',' nt'); WNT=os.environ.get('WNT','')
K1_GRID=NCH+3
K1_LDS=49152
S1=ENV('S1')
def k1():
    lab('gcn_sort_kernel')
    if ENV('DBG') or int(os.environ.get('STAMPS','0')): A('s_memrealtime s[50:51]')
    A(f's_cmp_ge_u32 s2, {K1_GRID}'); A('s_cbranch_scc1 K1_END3' if ENV('DBG') else 's_cbranch_scc1 K1_END')
    A('s_load_dwordx2 s[8:9], s[0:1], 88')
    A('s_cmp_lt_u32 s2, 3'); A('s_cbranch_scc1 K1_W')
    A('s_sub_u32 s2, s2, 3')
    A('s_load_dwordx4 s[4:7], s[0:1], 16')
    if ENV('K1_XPF') or ENV('K1_MALL'): A('s_load_dwordx2 s[44:45], s[0:1], 0')
    A('v_lshlrev_b32 v1, 4, v0')
    A('s_mul_i32 s10, s2, 12800')
    A('s_waitcnt lgkmcnt(0)')
    if int(os.environ.get('STAMPS','0')):
        A('s_add_u32 s56, s8, 0x2080000'); A('s_addc_u32 s57, s9, 0'); A('s_mov_b32 s58, 1024'); A('s_mov_b32 s59, 0x20000')
        A('s_lshl_b32 s60, s2, 2'); A('v_mov_b32 v20, s50'); A('v_mov_b32 v21, s60'); A('buffer_store_dword v20, v21, s[56:59], 0 offen')
    A('s_add_u32 s16, s6, s10'); A('s_addc_u32 s17, s7, 0'); A('s_mov_b32 s18, 12800'); A('s_mov_b32 s19, 0x20000')
    A('buffer_load_dwordx4 v[8:11], v1, s[16:19], 0 offen'+LNT)
    A('s_add_u32 s12, s4, s10'); A('s_addc_u32 s13, s5, 0'); A('s_mov_b32 s14, 12800'); A('s_mov_b32 s15, 0x20000')
    A('buffer_load_dwordx4 v[12:15], v1, s[12:15], 0 offen'+LNT)
    if ENV('K1_XPF'):
        A(f's_mov_b32 s46, {N*128}'); A('s_mov_b32 s47, 0x20000')
        A('s_lshr_b32 s10, s2, 3'); A('s_mul_i32 s10, s10, 404'); A('v_add_u32 v36, s10, v0'); A('v_lshlrev_b32 v36, 7, v36')
        A('v_cmp_gt_u32 vcc, 404, v0'); A('v_mov_b32 v37, 0x7fffffff'); A('s_nop 0'); A('v_cndmask_b32 v36, v37, v36, vcc')
        A('buffer_load_dword v38, v36, s[44:47], 0 offen')
    if ENV('K1_MALL'):
        A(f's_mov_b32 s46, {N*128}'); A('s_mov_b32 s47, 0x20000')
        A('s_mul_i32 s10, s2, 50'); A('v_subrev_u32 v36, 832, v0'); A('v_cmp_gt_u32 vcc, 50, v36'); A('v_add_u32 v36, s10, v36'); A('v_lshlrev_b32 v36, 7, v36')
        A('v_mov_b32 v37, 0x7fffffff'); A('v_cndmask_b32 v36, v37, v36, vcc')
        A('buffer_load_dword v38, v36, s[44:47], 0 offen')
    for r in range(4,8): A(f'v_mov_b32 v{r}, 0')
    A('ds_write_b128 v1, v[4:7]'); A('ds_write_b128 v1, v[4:7] offset:16384'); A('ds_write_b128 v1, v[4:7] offset:32768')
    A('s_mul_i32 s10, s2, 25600')
    A(f's_add_u32 s24, s8, {WS_OVFL}'); A('s_addc_u32 s25, s9, 0'); A('s_add_u32 s24, s24, s10'); A('s_addc_u32 s25, s25, 0')
    A('s_mov_b32 s26, 25600'); A('s_mov_b32 s27, 0x20000')
    A('s_mov_b32 s32, s8'); A('s_mov_b32 s33, s9'); A('s_mov_b32 s34, 0x800000'); A('s_mov_b32 s35, 0x20000')
    A(f's_add_u32 s40, s8, {WS_OVFCNT}'); A('s_addc_u32 s41, s9, 0'); A('s_mov_b32 s42, 1000'); A('s_mov_b32 s43, 0x20000')
    A('v_mov_b32 v2, 1'); A('v_mov_b32 v3, 37888')
    A('s_waitcnt lgkmcnt(0)'); A('s_barrier')
    A('v_cmp_gt_u32 vcc, 800, v0'); A('s_and_saveexec_b64 s[20:21], vcc'); A('s_cbranch_execz K1_SKIP')
    A('s_mov_b64 s[28:29], exec')
    NP=1 if (ENV('K1_XPF') or ENV('K1_MALL')) else 0
    A(f's_waitcnt vmcnt({1+NP})')
    for j in range(4):
        A(f'v_and_b32 v{16+j}, 255, v{8+j}')
        A(f'v_lshlrev_b32 v{24+j}, 2, v{16+j}')
        A(f'ds_add_rtn_u32 v{28+j}, v{24+j}, v2 offset:36864')
    A(f's_waitcnt vmcnt({NP})')
    for j in range(4):
        A(f'v_lshrrev_b32 v{20+j}, 8, v{8+j}')
        A(f'v_lshl_or_b32 v{20+j}, v{12+j}, 6, v{20+j}')
        A(f'v_lshl_add_u32 v32, v0, 2, {j+1}')
        A(f'v_lshl_or_b32 v{20+j}, v32, 20, v{20+j}')
        A(f'v_mul_u32_u24 v{24+j}, 144, v{16+j}')
    A('s_waitcnt lgkmcnt(0)')
    for j in range(4):
        A(f'v_and_b32 v32, 3, v{28+j}'); A(f'v_bfe_u32 v33, v{28+j}, 2, 2'); A('v_lshl_add_u32 v32, v32, 2, v33'); A('v_or_b32 v32, 16, v32')
        A(f'v_cmp_gt_u32 vcc, 16, v{28+j}'); A('s_nop 1'); A(f'v_cndmask_b32 v32, v32, v{28+j}, vcc')
        A(f'v_lshl_add_u32 v{24+j}, v32, 2, v{24+j}')
        A(f'v_cmp_gt_u32 vcc, 32, v{28+j}')
        A('s_mov_b64 exec, vcc')
        A(f'ds_write_b32 v{24+j}, v{20+j}')
        A('s_andn2_b64 exec, s[28:29], vcc')
        A(f's_cbranch_execz K1_NOV{j}')
        A('ds_add_rtn_u32 v33, v3, v2')
        A(f'v_mov_b32 v34, v{20+j}'); A(f'v_mov_b32 v35, v{16+j}')
        A('s_waitcnt lgkmcnt(0)')
        A('v_lshlrev_b32 v33, 3, v33')
        A('buffer_store_dwordx2 v[34:35], v33, s[24:27], 0 offen'+WT)
        A('s_nop 1')
        lab(f'K1_NOV{j}')
        A('s_mov_b64 exec, s[28:29]')
    lab('K1_SKIP')
    A('s_mov_b64 exec, -1')
    if ENV('TLBW'):
        STEP=int(ENV('TLBW'))
        A(f's_waitcnt vmcnt({NP})')
        A('s_cmp_lt_u32 s2, 8'); A('s_cbranch_scc0 K1_NOTLB')
        A('v_readfirstlane_b32 s48, v0'); A('s_nop 3'); A('s_cmp_ge_u32 s48, 832'); A('s_cbranch_scc0 K1_NOTLB')
        A('s_load_dwordx2 s[52:53], s[0:1], 8'); A('s_load_dwordx2 s[44:45], s[0:1], 0')
        A('v_subrev_u32 v36, 832, v0'); A(f'v_lshlrev_b32 v36, {STEP}, v36')
        A('s_waitcnt lgkmcnt(0)')
        A(f's_mov_b32 s54, {E*32}'); A('s_mov_b32 s55, 0x20000'); A(f's_mov_b32 s46, {N*128}'); A('s_mov_b32 s47, 0x20000')
        for i in range(-(-(E*32>>STEP)//192)):
            A(f's_mov_b32 s49, {(192*i)<<STEP}'); A('buffer_load_dword v37, v36, s[52:55], s49 offen')
        A('buffer_load_dword v38, v36, s[44:47], 0 offen')
        lab('K1_NOTLB')
        A('s_branch K1_AFTERW')
    A(f's_waitcnt vmcnt({NP})')
    if ENV('TLBW'): lab('K1_AFTERW')
    A('v_lshrrev_b32 v4, 3, v0'); A('v_and_b32 v5, 7, v0')
    A('v_lshrrev_b32 v21, 2, v0'); A('v_and_b32 v23, 3, v0')
    A('v_mul_u32_u24 v6, 144, v21'); A('v_lshl_add_u32 v6, v23, 4, v6')
    A('v_add_u32 v7, s2, v4'); A('v_and_b32 v7, 255, v7'); A('v_lshlrev_b32 v7, 7, v7'); A('v_lshl_add_u32 v7, v4, 15, v7'); A('v_lshl_add_u32 v7, v5, 4, v7')
    A('v_lshlrev_b32 v18, 2, v21'); A('s_mov_b32 s36, 0x400000')
    A('s_waitcnt lgkmcnt(0)'); A('s_barrier')
    CST=os.environ.get('CST','sc0 sc1')
    A('ds_read_b128 v[8:11], v6'); A('ds_read_b32 v19, v18 offset:36864'); A('ds_read_b128 v[12:15], v6 offset:64'); A('ds_read_b32 v16, v3')
    A('s_waitcnt lgkmcnt(3)')
    A(f'buffer_store_dwordx4 v[8:11], v7, s[32:35], 0 offen {CST}')
    A('s_waitcnt lgkmcnt(1)')
    A('v_cmp_le_u32 vcc, 16, v19'); A('s_mov_b64 exec, vcc')
    A(f'buffer_store_dwordx4 v[12:15], v7, s[32:35], s36 offen {CST}')
    A('s_mov_b64 exec, -1')
    if int(os.environ.get('STAMPS','0')):
        A('s_waitcnt vmcnt(0)'); A('s_memrealtime s[60:61]'); A('v_lshrrev_b32 v24, 6, v0'); A('v_lshlrev_b32 v24, 2, v24'); A('s_lshl_b32 s62, s2, 6'); A('v_add_u32 v24, s62, v24')
        A('s_mov_b32 s58, 0x8000'); A('s_waitcnt lgkmcnt(0)'); A('v_mov_b32 v23, s60'); A('v_add_u32 v24, 0x1000, v24'); A('buffer_store_dword v23, v24, s[56:59], 0 offen')
    A('v_cmp_le_u32 vcc, 32, v19'); A('s_cbranch_vccz K1_END')
    A('s_lshl_b32 s10, s2, 2'); A('s_waitcnt lgkmcnt(0)'); A('s_mov_b64 exec, 1'); A('v_mov_b32 v17, s10')
    A('buffer_store_dword v16, v17, s[40:43], 0 offen'+WT)
    A('s_branch K1_END')
    lab('K1_W')
    A('s_load_dwordx8 s[12:19], s[0:1], 32')
    A('s_load_dwordx2 s[20:21], s[0:1], 64')
    A('v_lshrrev_b32 v1, 6, v0'); A('s_nop 0'); A('v_readfirstlane_b32 s10, v1')
    A('s_lshl_b32 s11, s2, 4'); A('s_nop 2'); A('s_add_u32 s10, s10, s11')
    A('s_cmp_ge_u32 s10, 34'); A('s_cbranch_scc1 K1_END')
    A('s_waitcnt lgkmcnt(0)')
    A('s_mov_b32 s24, s14'); A('s_mov_b32 s25, s15'); A('s_mov_b32 s26, 8192'); A('s_mov_b32 s27, 0x20000')
    A(f's_mov_b32 s28, 0x{NLOG2E:08x}'); A('s_mov_b32 s29, s10')
    A('s_cmp_ge_u32 s10, 8'); A('s_cbranch_scc0 K1_WSEL')
    A('s_mov_b32 s24, s20'); A('s_mov_b32 s25, s21'); A('s_mov_b32 s28, 0x3f800000'); A('s_sub_u32 s29, s10, 8')
    A('s_cmp_ge_u32 s10, 16'); A('s_cbranch_scc0 K1_WSEL')
    A('s_mov_b32 s24, s16'); A('s_mov_b32 s25, s17'); A('s_mov_b32 s26, 2048'); A(f's_mov_b32 s28, 0x{NLOG2E:08x}')
    A('s_sub_u32 s29, s10, 16'); A('s_lshl_b32 s29, s29, 2')
    A('s_cmp_ge_u32 s10, 18'); A('s_cbranch_scc0 K1_WSEL')
    A('s_mov_b32 s24, s12'); A('s_mov_b32 s25, s13'); A('s_mov_b32 s26, 8192'); A('s_mov_b32 s28, 0x3f800000'); A('s_sub_u32 s29, s10, 18')
    A('s_cmp_ge_u32 s10, 26'); A('s_cbranch_scc0 K1_WSEL')
    A('s_mov_b32 s24, s18'); A('s_mov_b32 s25, s19'); A('s_sub_u32 s29, s10, 26')
    lab('K1_WSEL')
    A('s_lshr_b32 s30, s29, 2'); A('s_and_b32 s31, s29, 3')
    A('s_lshl_b32 s30, s30, 6'); A('s_lshl_b32 s31, s31, 11'); A('s_add_u32 s30, s30, s31')
    A('v_and_b32 v2, 63, v0'); A('v_and_b32 v3, 31, v0'); A('v_lshrrev_b32 v4, 5, v2')
    A('v_lshlrev_b32 v4, 10, v4'); A('v_lshl_add_u32 v4, v3, 1, v4'); A('v_add_u32 v4, s30, v4')
    for t in range(8): A(f'buffer_load_ushort v{8+t}, v4, s[24:27], 0 offen offset:{128*t}'+os.environ.get('WLD',' nt'))
    A(f's_add_u32 s32, s8, {WS_WPREP}'); A('s_addc_u32 s33, s9, 0'); A('s_mov_b32 s34, 34816'); A('s_mov_b32 s35, 0x20000')
    A('s_lshl_b32 s36, s10, 10'); A('v_lshlrev_b32 v5, 4, v2')
    A('s_waitcnt vmcnt(0)')
    for t in range(8):
        A(f'v_lshlrev_b32 v{8+t}, 16, v{8+t}'); A(f'v_mul_f32 v{8+t}, s28, v{8+t}')
    for t in range(4): A(f'v_cvt_pk_bf16_f32 v{16+t}, v{8+2*t}, v{9+2*t}')
    A('buffer_store_dwordx4 v[16:19], v5, s[32:35], s36 offen'+WT)
    lab('K1_END')
    if ENV('DBG'):
        A('s_cmp_eq_u32 s2, 7'); A('s_cbranch_scc0 K1_END2')
        A('s_load_dwordx2 s[52:53], s[0:1], 80'); A('s_memrealtime s[54:55]'); A('s_waitcnt lgkmcnt(0)')
        A('s_mov_b64 exec, 1'); A('s_mov_b32 s56, s54'); A('s_mov_b32 s54, 256'); A('s_mov_b32 s55, 0x20000')
        A('v_mov_b32 v20, s56'); A('v_mov_b32 v21, s50'); A('v_mov_b32 v22, 0')
        A('buffer_store_dword v21, v22, s[52:55], 0 offen'); A('buffer_store_dword v20, v22, s[52:55], 0 offen offset:4')
        lab('K1_END2')
        lab('K1_END3')
    A('s_endpgm')

XST=0; REC=65536; RECSZ=1408; XS=REC+50*RECSZ; ES=XS+8192; GRP=ES+16384; CNT=GRP+1024; NBT=CNT+256; OVC=NBT+256; OVL=OVC+4; LDS_END=OVC+528
OWNX=32768; WSTG=40960
O_DEN=256; O_NUM=768; O_U=1280
CAPG=512
DUMMY=49*22
EPAD=0x700FFFFF; EFLAG=0x40000000
cXE=2; cXO=3; aXS=4; aES=5; cKG=6; aGRP=7; cRA=8; cRB=9; aAX=10
WB=16; WV=48; WC=80; XB=88; AZ0=92; AZ1=96; ONEB=100; ONEA=[104,108]; AX=112; AE=[128,132]; G0=136; G1=152; H0=168; H1=184
XI=200; XV=202; EI=206; EV=207; GR=[208,209]; RA0=210; RA1=211; RB0=212; RB1=213; SD=214; SN=215; PD=216; PN=218
kP2=229; kP1=199; kE5=240; kE6=241; kOOB=234; kOV=230; vONE=220; kXS=221; kES=222; kGRP=223; kAX=224; vL16=228; T0=230; NGB=236; cXM=252
NVGPR=256
XG_=64
CO=198; EN=G0; RK=G1; EB=H0; AD=H0+4; EW=AX
sB=3; X_=4; EA_=8; CE_=12; WP_=16; OU_=20; MI_=24; sWS=28; sWAVE=30; sNT=31; sTI=32; sX0=33; sX1=34; sMODE=36; sFIRST=37; sOVF=38; sU=39
MK=40
sCNT=72; sXS=73; sES=74; sT0=75; sT1=76; sT2=77; sOC=78; sOP=79; sON=80; sPB=81; sBH=82; sBL=35; sG1=76; sG2=77; sHALF=84+11; sOI=94; s128=83
STAMPS=int(os.environ.get('STAMPS','0'))
STR=8
XSPLIT=int(os.environ.get('XSPLIT','4'))
B0=[8,12]; B1=[9,13]; B2=[10,11,14,15]
SSET=os.environ.get('SSET','main')
SMAP={'main':{'start':0,'bar1':1,'hist':2,'prefix':3,'bar3':4,'ng':5,'loop':6,'bar5':7,'end':8},
      'pro':{'start':0,'issued':1,'consts':2,'vmw':3,'bar1':4,'hist':5,'bar3':6,'ng':7,'entd':8},
      'pro2':{'bar3':0,'dma1':1,'wread':2,'ngm':3,'ng':4,'entw':5,'entd':6,'loop':7,'end':8}}[SSET]
def stamp(name):
    if STAMPS and name in SMAP:
        i=SMAP[name]
        A('s_memtime s[98:99]' if STAMPS==1 else 's_memrealtime s[98:99]'); A('s_waitcnt lgkmcnt(0)'); A(f's_mov_b32 s{86+i}, s98')
def stamp_store():
    if STAMPS and ENV('DBG'):
        A('s_memrealtime s[98:99]'); A('s_waitcnt lgkmcnt(0)'); A('s_mov_b32 s97, s98')
        A('s_cmp_eq_u32 s2, 7'); A('s_cbranch_scc0 K2_DBGE'); A(f's_cmp_eq_u32 s{sWAVE}, 0'); A('s_cbranch_scc0 K2_DBGE')
        A('s_load_dwordx2 s[24:25], s[0:1], 80'); A('s_waitcnt lgkmcnt(0)'); A('s_mov_b64 exec, 1'); A('v_mov_b32 v14, 0'); A('s_mov_b32 s26, 256'); A('s_mov_b32 s27, 0x20000')
        for i in range(12):
            A(f'v_mov_b32 v1, s{86+i}'); A(f'buffer_store_dword v1, v14, s[24:27], 0 offen offset:{8+4*i}')
        lab('K2_DBGE')
    elif STAMPS:
        A('s_memrealtime s[98:99]'); A('s_waitcnt lgkmcnt(0)'); A('s_mov_b32 s97, s98')
        A(f's_add_u32 s24, s{sWS}, 0x2000000'); A(f's_addc_u32 s25, s{sWS+1}, 0'); A('s_mov_b32 s26, 0x100000'); A('s_mov_b32 s27, 0x20000')
        A(f's_lshl_b32 s75, s2, 3'); A(f's_add_u32 s75, s75, s{sWAVE}'); A('s_lshl_b32 s75, s75, 6')
        for i in range(12):
            A(f'v_mov_b32 v1, s{86+i}'); A(f'v_mov_b32 v14, {4*i}'); A('buffer_store_dword v1, v14, s[24:27], s75 offen')
def x_dma(sbase):
    o=[f's_mov_b32 m0, s{sbase}']
    for m in range(4):
        o.append(f'v_mad_u32_u16 v{XV+m}, v{XI+(m>>1)}, s{s128}, v{cXM+m} op_sel:[{m&1},0,0,0]')
        o.append(f'buffer_load_dwordx4 v{XV+m}, s[{XG_}:{XG_+3}], 0 offen offset:{1024*m} lds')
    return o
ENT=' '+os.environ.get('EFL','nt')
def e_issue(p):
    return [f'v_mad_u32_u24 v{EV}, v{EI}, 32, v{cKG}', f'buffer_load_dwordx4 {q(AE[p])}, v{EV}, s[{EA_}:{EA_+3}], 0 offen{ENT}']
def e_flag(p): return [f'v_and_b32 v{ONEA[p]}, 0xff000000, v{EI}']
def summ(G,H,b,rb,ct):
    if ENV('PK'):
        P=lambda x: f'v[{x}:{x+1}]'
        o=[f'v_pk_mul_f32 {P(PN)}, {P(G+b)}, {P(H+b)}', f'v_pk_add_f32 {P(PD)}, {P(G+b)}, {P(G+b+2)}']
        for r in (2,4,6):
            o.append(f'v_pk_fma_f32 {P(PN)}, {P(G+b+r)}, {P(H+b+r)}, {P(PN)}')
            if r>=4: o.append(f'v_pk_add_f32 {P(PD)}, {P(PD)}, {P(G+b+r)}')
        o.append(f'v_add_f32 v{SD}, v{PD}, v{PD+1}'); o.append(f'v_add_f32 v{SN}, v{PN}, v{PN+1}')
    else:
        o=[f'v_mul_f32 v{SN}, v{G+b}, v{H+b}', f'v_add_f32 v{SD}, v{G+b}, v{G+b+1}']
        for r in range(1,8):
            o.append(f'v_fmac_f32 v{SN}, v{G+b+r}, v{H+b+r}')
            if r>=2: o.append(f'v_add_f32 v{SD}, v{SD}, v{G+b+r}')
    o.append(f'v_cvt_f64_f32 v[{PD}:{PD+1}], v{SD}'); o.append(f'v_cvt_f64_f32 v[{PN}:{PN+1}], v{SN}')
    if not ENV('NO_DSADD'):
        o.append(f'ds_add_f64 v{rb}, v[{PD}:{PD+1}] offset:{ct*256}'); o.append(f'ds_add_f64 v{rb}, v[{PN}:{PN+1}] offset:{512+ct*256}')
    return o
def inter(v, m, every):
    o=[]; m=list(m)
    for i,x in enumerate(v):
        if m and i%every==0: o+=m.pop(0)
        o.append(x)
    for g in m: o+=g
    return o
def gchain(G,ct,p):
    return [[mf(G,AX,WB+16*ct,'0')],[mf(G,AX+4,WB+16*ct+4,G)],[mf(G,AX+8,WB+16*ct+8,G)],[mf(G,AX+12,WB+16*ct+12,G)],
            [mf(G,AE[p],WC+4*ct,G)],[mf(G,AZ1 if ct else AZ0,XB,G)]]
def xb_reads(): return [f'ds_read2_b32 v[{XB}:{XB+1}], v{RA0} offset0:0 offset1:32', f'ds_read2_b32 v[{XB+2}:{XB+3}], v{RA1} offset0:0 offset1:32']
def ra_mads(g): return [f'v_mad_u32_u16 v{RA0}, v{g}, 64, v{cRA} op_sel:[0,0,0,0]', f'v_mad_u32_u16 v{RA1}, v{g}, 64, v{cRA} op_sel:[1,0,0,0]']
def body(p):
    o=[]
    ex=lambda G:[f'v_exp_f32 v{G+r}, v{G+r}' for r in range(16)]
    rc=lambda G:[f'v_rcp_f32 v{G+r}, v{G+r}' for r in range(16)]
    XN=ENV('XNEAR')
    xd=x_dma((sX1 if p==0 else sX0) if XN else (sX0 if p==0 else sX1)) if not ENV('NO_XDMA') else ['s_nop 0']
    EP=ENV('EPOS')
    if ENV('PRIO')=='alt':
        o+=[f's_cmp_eq_u32 s{sHALF}, {p}', f's_cbranch_scc1 PR{p}A', 's_setprio 0', f's_branch PR{p}B', f'PR{p}A:', 's_setprio 1', f'PR{p}B:']
    if EP=='early': o+=[f'ds_read_b32 v{EI}, v{aES} offset:{128*STR*p}']
    grp=[[mf(H0,AX+4*s,WV+4*s,'0' if s==0 else H0)]+(xd[:3] if s==0 else xd[1+2*s:3+2*s]) for s in range(4)]
    o+=inter(ex(G0), grp, 4)
    sb=summ(G1,H1,8,RB1,1)
    o+=sb[:2]+[mf(G0,ONEA[p],ONEB,G0)]+sb[2:]
    o+=[f'v_mad_u32_u16 v{RB0}, v{GR[p]}, 64, v{cRB} op_sel:[0,0,0,0]', f'v_mad_u32_u16 v{RB1}, v{GR[p]}, 64, v{cRB} op_sel:[1,0,0,0]']
    o+=inter(rc(G0), gchain(G1,1,p), 3)
    if EP=='early': o+=['s_waitcnt lgkmcnt(2)']+e_issue(p)
    o+=summ(G0,H0,0,RB0,0)
    o+=['s_waitcnt vmcnt(6)' if EP=='early' else 's_waitcnt vmcnt(5)',
        f'ds_read2_b32 v[{XI}:{XI+1}], v{aXS} offset0:{16*STR*p} offset1:{16*STR*p+4}']
    if EP!='early': o+=[f'ds_read_b32 v{EI}, v{aES} offset:{128*STR*p}']
    o+=[f'ds_read_b32 v{GR[p^1]}, v{aGRP} offset:{8*STR*p}']
    o+=inter(ex(G1), [[mf(H1,AX+4*s,WV+16+4*s,'0' if s==0 else H1), f'ds_read_b128 {q(AX+4*s)}, v{aAX+s} offset:{32768*(p^1)}'] for s in range(4)], 4)
    sb=summ(G0,H0,8,RB1,0)
    o+=sb[:2]+[mf(G1,ONEA[p],ONEB,G1)]
    o+=['s_waitcnt lgkmcnt(4)']+ra_mads(GR[p^1])
    o+=(e_issue(p) if (not ENV('NO_EDMA') and not EP) else [])+xb_reads()+e_flag(p)
    o+=sb[2:]
    o+=['s_waitcnt vmcnt(4) lgkmcnt(4)' if EP=='late' else 's_waitcnt vmcnt(5) lgkmcnt(4)']
    gc=gchain(G0,0,p^1)
    gc[5]=['s_waitcnt lgkmcnt(2)']+gc[5]
    o+=inter(rc(G1), gc, 3)
    if EP=='late': o+=e_issue(p)
    o+=summ(G1,H1,0,RB0,1)
    if p==1:
        o+=[f'v_add_u32 v{aXS}, {128*STR}, v{aXS}', f'v_add_u32 v{aES}, {256*STR}, v{aES}', f'v_add_u32 v{aGRP}, {16*STR}, v{aGRP}']
    if ENV('NO_XMFMA'):
        o=[i for i in o if not (i.startswith('v_mfma') and any(f', {q(AX+4*s)}, ' in i for s in range(4)))]
    if ENV('NO_HMFMA'): o=[i for i in o if not (i.startswith('v_mfma') and (i.startswith(f'v_mfma_f32_32x32x16_bf16 {q(H0,16)}') or i.startswith(f'v_mfma_f32_32x32x16_bf16 {q(H1,16)}')))]
    if ENV('NO_SUMS'): o=[i for i in o if not (i.startswith('v_fmac') or (i.startswith('v_add_f32')) or i.startswith('v_mul_f32'))]
    if ENV('NO_SMALLM'): o=[i for i in o if not (i.startswith('v_mfma') and not any(f', {q(AX+4*s)}, ' in i for s in range(4)))]
    if ENV('NO_MFMA'): o=[i for i in o if not i.startswith('v_mfma')]
    if ENV('NO_TRANS'): o=[i for i in o if not (i.startswith('v_exp') or i.startswith('v_rcp'))]
    return o

def cell_off_g(dst, creg):
    A(f'v_add_u32 v{dst}, s{sBH}, v{creg}'); A(f'v_and_b32 v{dst}, 255, v{dst}'); A(f'v_lshlrev_b32 v{dst}, 7, v{dst}'); A(f'v_lshl_add_u32 v{dst}, v5, 4, v{dst}'); A(f'v_add_u32 v{dst}, s{sBL}, v{dst}')
    A(f'v_cmp_gt_u32 vcc, {NCH}, v{creg}'); A('v_mov_b32 v14, 0x7fffffff'); A('s_nop 0'); A(f'v_cndmask_b32 v{dst}, v14, v{dst}, vcc')
def k2():
    lab('standalone__edge_featured_mpnn_gatedgcn__graph_kernel')
    A('s_cmp_ge_u32 s2, 256'); A('s_cbranch_scc1 K2_END')
    A(f's_load_dwordx2 s[{sWS}:{sWS+1}], s[0:1], 88')
    A('s_load_dwordx4 s[4:7], s[0:1], 0')
    A('s_load_dwordx2 s[20:21], s[0:1], 72')
    A(f's_and_b32 s{sB}, s2, 7'); A(f's_lshl_b32 s{sB}, s{sB}, 5'); A(f's_lshr_b32 s{sT0}, s2, 3'); A(f's_or_b32 s{sB}, s{sB}, s{sT0}')
    A('v_lshrrev_b32 v1, 6, v0'); A('v_and_b32 v15, 63, v0')
    A(f'v_readfirstlane_b32 s{sWAVE}, v1')
    A(f'v_lshlrev_b32 v{vL16}, 4, v15')
    A(f's_lshr_b32 s{sBH}, s{sB}, 1'); A(f's_and_b32 s{sBL}, s{sB}, 1'); A(f's_lshl_b32 s{sBL}, s{sBL}, 6')
    A('v_lshrrev_b32 v4, 2, v0'); A('v_and_b32 v5, 3, v0')
    cell_off_g(CO, 4); A('v_add_u32 v4, 128, v4'); cell_off_g(CO+1, 4)
    A(f's_lshl_b32 s{sT0}, s{sBH}, 15')
    A('s_waitcnt lgkmcnt(0)')
    if STAMPS:
        A('s_memrealtime s[98:99]'); A('s_waitcnt lgkmcnt(0)'); A('s_mov_b32 s96, s98')
    stamp('start')
    A(f's_add_u32 s12, s{sWS}, s{sT0}'); A(f's_addc_u32 s13, s{sWS+1}, 0'); A(f's_mov_b32 s14, {0x400000+32768}'); A('s_mov_b32 s15, 0x20000')
    for u in range(2): A(f"buffer_load_dwordx4 {q(EN+4*u)}, v{CO+u}, s[12:15], 0 offen {os.environ.get('CLD','')}")
    A(f's_mov_b32 s{sPB}, 0x400000')
    def init_a():
        A('v_lshlrev_b32 v1, 4, v0')
        for r in range(4): A(f'v_mov_b32 v{AX+r}, -1')
        A(f'v_add_u32 v14, {XS}, v1'); A(f'ds_write_b128 v14, {q(AX)}')
        for r in range(4): A(f'v_mov_b32 v{AX+4+r}, 0x{EPAD:08x}')
        A(f'ds_write_b128 v14, {q(AX+4)} offset:8192'); A(f'ds_write_b128 v14, {q(AX+4)} offset:16384')
        for r in range(4): A(f'v_mov_b32 v{AX+8+r}, 0x{(DUMMY<<16)|DUMMY:08x}')
        for r in range(4): A(f'v_mov_b32 v{AX+12+r}, 0')
        A('v_cmp_gt_u32 vcc, 64, v0'); A('s_nop 1')
        for r in range(4): A(f'v_cndmask_b32 v{AX+8+r}, v{AX+12+r}, v{AX+8+r}, vcc')
        A('v_cmp_gt_u32 vcc, 96, v0'); A(f's_and_saveexec_b64 s[{MK}:{MK+1}], vcc'); A(f'ds_write_b128 v14, {q(AX+8)} offset:{GRP-XS}'); A(f's_mov_b64 exec, s[{MK}:{MK+1}]')
    init_a()
    A('s_mov_b32 s8, s6'); A('s_mov_b32 s9, s7'); A(f's_mov_b32 s10, {E*32}'); A('s_mov_b32 s11, 0x20000')
    A(f's_mov_b32 s6, {N*128}'); A('s_mov_b32 s7, 0x20000')
    A(f's_mov_b32 s22, {N*128}'); A('s_mov_b32 s23, 0x20000')
    A(f's_add_u32 s16, s{sWS}, {WS_WPREP}'); A(f's_addc_u32 s17, s{sWS+1}, 0'); A('s_mov_b32 s18, 34816'); A('s_mov_b32 s19, 0x20000')
    A(f'v_lshrrev_b32 v14, 3, v15'); A(f's_lshl_b32 s{sT0}, s{sWAVE}, 3'); A(f'v_add_u32 v14, s{sT0}, v14')
    A(f'v_lshlrev_b32 v14, 8, v14'); A(f'v_add_u32 v14, s{sB}, v14'); A('v_lshlrev_b32 v14, 7, v14')
    A('v_lshrrev_b32 v4, 4, v15'); A('v_and_b32 v5, 7, v15'); A('v_xor_b32 v4, v4, v5'); A(f'v_lshlrev_b32 v{cXE}, 4, v4'); A(f'v_xor_b32 v{cXO}, 64, v{cXE}')
    A(f's_and_b32 s{sT0}, s{sWAVE}, 1'); A(f's_cmp_eq_u32 s{sT0}, 0'); A('s_cselect_b64 vcc, -1, 0')
    A(f'v_cndmask_b32 v4, v{cXO}, v{cXE}, vcc'); A('v_add_u32 v4, v14, v4')
    A(f'v_mov_b32 v{CO+2-2+0}, v{CO}') if False else None
    A(f'v_mov_b32 v{XV}, v4')
    stamp('issued')
    A('v_lshrrev_b32 v14, 6, v0'); A(f'v_mul_u32_u24 v14, {RECSZ}, v14'); A(f'v_add_u32 v14, v14, v{vL16}'); A(f'v_add_u32 v14, {REC+O_DEN}, v14')
    for r in range(4): A(f'v_mov_b32 v{AX+r}, 0')
    for i in range(5): A(f'ds_write_b128 v14, {q(AX)} offset:{8*RECSZ*i}')
    A(f'v_add_u32 v14, {8*RECSZ*5}, v14'); A(f'ds_write_b128 v14, {q(AX)}')
    A('v_cmp_gt_u32 vcc, 128, v0'); A(f's_and_saveexec_b64 s[{MK}:{MK+1}], vcc'); A(f'ds_write_b128 v14, {q(AX)} offset:{8*RECSZ}'); A(f's_mov_b64 exec, s[{MK}:{MK+1}]')
    A(f'v_mov_b32 v{vONE}, 1'); A(f'v_mov_b32 v{kOV}, {OVC}'); A(f'ds_write_b32 v{kOV}, v{AX}')
    A(f's_mov_b32 s{sCNT}, {CNT}'); A(f's_mov_b32 s{sXS}, {XS}'); A(f's_mov_b32 s{sES}, {ES}'); A(f's_mov_b32 s{s128}, 128')
    A(f's_mov_b32 s{sMODE}, 0'); A(f's_mov_b32 s{sFIRST}, 1'); A(f's_mov_b32 s{sU}, 0')
    A(f's_lshr_b32 s{sHALF}, s{sWAVE}, 2')
    if ENV('PRIO')=='young': A(f's_cmp_eq_u32 s{sHALF}, 1'); A('s_cbranch_scc0 PRY'); A('s_setprio 1'); lab('PRY')
    A('v_lshrrev_b32 v4, 2, v0'); A('v_mul_u32_u24 v4, 3200, v4')
    for u in range(4): A(f'v_add_u32 v{EB+u}, 0x{(128*(u&1)*3200-1+EFLAG)&0xffffffff:08x}, v4')
    for k in range(8,16): A(f'v_mov_b32 v{EN+k}, 0')
    def lane_consts():
        C('lane constants (v1 = kg)')
        A('v_lshrrev_b32 v1, 5, v15'); A(f'v_lshlrev_b32 v{cKG}, 4, v1')
        A('v_bfe_u32 v5, v15, 3, 2'); A('v_lshlrev_b32 v4, 5, v1'); A('v_lshl_add_u32 v4, v5, 2, v4'); A(f'v_add_u32 v{kXS}, {XS}, v4')
        A('v_bfe_u32 v4, v15, 2, 1'); A('v_lshlrev_b32 v4, 4, v4'); A('v_bfe_u32 v5, v15, 4, 1'); A('v_lshl_add_u32 v4, v5, 3, v4')
        A('v_and_b32 v5, 3, v15'); A('v_lshl_add_u32 v4, v5, 1, v4'); A('v_bfe_u32 v5, v15, 3, 1'); A('v_add_u32 v4, v4, v5')
        A('v_lshlrev_b32 v4, 2, v4'); A(f'v_add_u32 v{kES}, {ES}, v4')
        A('v_lshlrev_b32 v4, 2, v1'); A(f'v_add_u32 v{kGRP}, {GRP}, v4')
        A('v_and_b32 v4, 31, v15'); A('v_lshlrev_b32 v5, 2, v4'); A(f'v_add_u32 v{cRA}, {REC}, v5'); A('v_lshlrev_b32 v5, 3, v4'); A(f'v_add_u32 v{cRB}, {REC+O_DEN}, v5')
        A('v_bfe_u32 v5, v15, 1, 3'); A('v_xor_b32 v5, v5, v1'); A('v_lshlrev_b32 v5, 4, v5'); A('v_lshl_add_u32 v4, v4, 7, v5')
        for s in range(4): A(f'v_xor_b32 v{kAX+s}, {32*s}, v4')
        A(f's_lshl_b32 s{sX0}, s{sWAVE}, 12'); A(f's_add_u32 s{sX1}, s{sX0}, 32768')
        for m in range(4): A(f'v_add_u32 v{cXM+m}, {4096-1024*m}, v{cXO if m&1 else cXE}')
        A('v_bfe_u32 v4, v15, 2, 1'); A('v_cmp_eq_u32 vcc, v4, v1'); A('v_mov_b32 v5, 0x3f803f80'); A('s_nop 0'); A('v_cndmask_b32 v5, 0, v5, vcc')
        A('v_bfe_u32 v4, v15, 4, 1'); A('v_cmp_eq_u32 vcc, 0, v4'); A('s_nop 1'); A(f'v_cndmask_b32 v{AZ0}, 0, v5, vcc')
        A(f'v_sub_u32 v{AZ0+2}, v5, v{AZ0}'); A(f'v_mov_b32 v{AZ0+1}, 0'); A(f'v_mov_b32 v{AZ0+3}, 0')
        A(f'v_mov_b32 v{AZ1}, 0'); A(f'v_mov_b32 v{AZ1+1}, v{AZ0}'); A(f'v_mov_b32 v{AZ1+2}, 0'); A(f'v_mov_b32 v{AZ1+3}, v{AZ0+2}')
        A('v_cmp_eq_u32 vcc, 0, v1'); A('v_mov_b32 v5, 0x3f000000'); A('s_nop 0'); A(f'v_cndmask_b32 v{ONEB}, 0, v5, vcc')
        for r in range(1,4): A(f'v_mov_b32 v{ONEB+r}, 0'); A(f'v_mov_b32 v{ONEA[0]+r}, 0'); A(f'v_mov_b32 v{ONEA[1]+r}, 0')
    lane_consts()
    stamp('consts')
    A('s_waitcnt vmcnt(0)')
    for u in range(2):
        A(f'v_mov_b32_dpp v14, v{EN+4*u+3} quad_perm:[3,3,3,3] row_mask:0xf bank_mask:0xf'); A('s_nop 0')
        A('v_cmp_ne_u32 vcc, 0, v14'); A('s_mov_b64 exec, vcc')
        A(f"buffer_load_dwordx4 {q(EN+8+4*u)}, v{CO+u}, s[12:15], s{sPB} offen {os.environ.get('CLD','')}"); A('s_mov_b64 exec, -1')
    A(f's_lshl_b32 s{sT0}, s{sWAVE}, 10'); A(f's_add_u32 m0, s{sT0}, {OWNX}'); A('s_nop 0')
    A(f'buffer_load_dwordx4 v{XV}, s[{X_}:{X_+3}], 0 offen lds')
    for i in range(3):
        A(f's_add_u32 s{sT1}, s{sT0}, {8192*i}'); A(f's_add_u32 m0, s{sT1}, {WSTG}'); A('s_nop 0')
        A(f'buffer_load_dwordx4 v{vL16}, s[16:19], s{sT1} offen{WNT} lds')
    A('s_branch K2_WD')
    lab('K2_ROUND')
    init_a()
    A('s_waitcnt vmcnt(0)')
    lab('K2_WD')
    stamp('vmw')
    if ENV('HALFCELL'):
        A(f's_cmp_eq_u32 s{sMODE}, 2'); A('s_cbranch_scc1 K2_NOMASK')
        A('v_and_b32 v14, 4, v15'); A('v_cmp_eq_u32 s[84:85], 0, v14')
        for u in range(4):
            A(f'v_mov_b32_dpp v1, v{EN+4*u+3} quad_perm:[3,3,3,3] row_mask:0xf bank_mask:0xf'); A('s_nop 1')
            A('v_mov_b32_dpp v14, v1 row_shr:4 row_mask:0xf bank_mask:0xf bound_ctrl:0'); A('s_nop 0')
            A('v_cmp_ne_u32 vcc, 0, v14'); A('s_or_b64 vcc, vcc, s[84:85]')
            for k in range(4): A(f'v_cndmask_b32 v{EN+4*u+k}, 0, v{EN+4*u+k}, vcc')
        lab('K2_NOMASK')
    def pre(ks):
        for k in ks: A(f'v_cmp_ne_u32 s[{MK+2*k}:{MK+2*k+1}], 0, v{EN+k}')
        for k in ks: A(f'v_and_b32 v{AD+k}, 63, v{EN+k}'); A(f'v_lshl_add_u32 v{AD+k}, v{AD+k}, 2, s{sCNT}')
    def atom(ks):
        for k in ks: A(f's_mov_b64 exec, s[{MK+2*k}:{MK+2*k+1}]'); A(f'ds_add_rtn_u32 v{RK+k}, v{AD+k}, v{vONE}')
        A('s_mov_b64 exec, -1')
    pre(range(8))
    A('s_waitcnt lgkmcnt(0)'); A('s_barrier')
    stamp('bar1')
    def ew(ks):
        for k in ks: A(f'v_lshrrev_b32 v{EW+k}, 20, v{EN+k}'); A(f'v_bfe_u32 v{EN+k}, v{EN+k}, 6, 14'); A(f'v_add_u32 v{EW+k}, v{EW+k}, v{EB+k//4}')
    atom(range(8))
    A(f's_cmp_eq_u32 s{sFIRST}, 1'); A('s_cbranch_scc0 K2_NF1')
    A(f's_lshr_b32 s{sT0}, s{sWAVE}, 1'); A(f's_lshl_b32 s{sT0}, s{sT0}, 12'); A(f's_add_u32 s{sT0}, s{sT0}, {18*1024}')
    for s_ in range(4): A(f'buffer_load_dwordx4 {q(NGB+4*s_)}, v{vL16}, s[16:19], s{sT0} offen offset:{1024*s_}{WNT}')
    A(f's_lshr_b32 s{sT0}, s2, 3'); A(f's_mul_i32 s{sT0}, s{sT0}, 391'); A(f'v_add_u32 v14, s{sT0}, v0'); A('v_lshlrev_b32 v14, 7, v14')
    A('v_cmp_gt_u32 vcc, 391, v0'); A(f'v_mov_b32 v{T0+5}, 0x7fffffff'); A('s_nop 0'); A(f'v_cndmask_b32 v14, v{T0+5}, v14, vcc')
    if ENV('NOXPF'): A(f'v_mov_b32 v14, v{T0+5}')
    A(f'v_mov_b32 v{kP2}, v14'); A(f's_cmp_ge_u32 s{sWAVE}, {XSPLIT}'); A('s_cselect_b64 vcc, -1, 0')
    A(f'v_cndmask_b32 v14, v14, v{T0+5}, vcc'); A(f'v_cndmask_b32 v{kP2}, v{T0+5}, v{kP2}, vcc')
    if (not ENV('XEARLY')): A(f'v_mov_b32 v{kP1}, v14')
    else: A(f'buffer_load_dword v{T0+5}, v14, s[{X_}:{X_+3}], 0 offen')
    lab('K2_NF1')
    ew(range(8))
    A('s_waitcnt vmcnt(8)')
    for k in range(8,16): A(f'v_cmp_ne_u32 s[{MK+2*k}:{MK+2*k+1}], 0, v{EN+k}')
    def addr(ks):
        for k in ks: A(f'v_and_b32 v{AD+k}, 63, v{EN+k}'); A(f'v_lshl_add_u32 v{AD+k}, v{AD+k}, 2, s{sCNT}')
    addr(B0); atom(B0); ew(B0)
    A(f's_or_b64 s[84:85], s[{MK+18}:{MK+19}], s[{MK+26}:{MK+27}]'); A(f's_cselect_b32 s{sG1}, 1, 0')
    A(f's_or_b64 s[84:85], s[{MK+20}:{MK+21}], s[{MK+22}:{MK+23}]'); A(f's_or_b64 s[84:85], s[84:85], s[{MK+28}:{MK+29}]'); A(f's_or_b64 s[84:85], s[84:85], s[{MK+30}:{MK+31}]'); A(f's_cselect_b32 s{sG2}, 1, 0')
    def guarded(tag, fn):
        for g,(sg,ks) in enumerate(((sG1,B1),(sG2,B2))):
            A(f's_cmp_eq_u32 s{sg}, 0'); A(f's_cbranch_scc1 K2_SK{tag}{g}'); fn(ks); lab(f'K2_SK{tag}{g}')
    def hist_blk(ks):
        addr(ks); atom(ks); ew(ks)
        if ks is B2:
            A('s_mov_b32 s84, 0x88888888'); A('s_mov_b32 s85, 0x88888888')
            for u,k in enumerate((11,15)):
                A(f's_and_b64 exec, s[{MK+2*k}:{MK+2*k+1}], s[84:85]'); A(f's_cbranch_execz K2_NFULL{u}')
                A(f'ds_add_rtn_u32 v14, v{kOV}, v{vONE}'); A('v_lshrrev_b32 v1, 2, v0'); A(f'v_add_u32 v1, {128*u}, v1')
                A('s_waitcnt lgkmcnt(0)'); A('v_lshlrev_b32 v14, 1, v14'); A(f'v_add_u32 v14, {OVL}, v14'); A('ds_write_b16 v14, v1')
                lab(f'K2_NFULL{u}'); A('s_mov_b64 exec, -1')
    guarded('H', hist_blk)
    if ENV('EPF'):
        lim=CNT+4*int(ENV('EPF'))
        A(f'v_mov_b32 v{kOOB}, 0x7fffffff')
        for k in list(range(8))+B0:
            A(f'v_cmp_gt_u32 vcc, {lim}, v{AD+k}'); A(f'v_mad_u32_u24 v14, v{EW+k}, 32, 0'); A(f's_and_b64 vcc, vcc, s[{MK+2*k}:{MK+2*k+1}]')
            A(f'v_cndmask_b32 v14, v{kOOB}, v14, vcc')
            A(f'buffer_load_dword v{T0+5}, v14, s[{EA_}:{EA_+3}], 0 offen nt')
    A('s_waitcnt lgkmcnt(0)'); A('s_barrier')
    stamp('hist')
    A(f's_cmp_eq_u32 s{sFIRST}, 1'); A('s_cbranch_scc0 K2_NF2')
    A(f"buffer_load_dword v{T0+5}, v{kP1 if (not ENV('XEARLY')) else kP2}, s[{X_}:{X_+3}], 0 offen")
    lab('K2_NF2')
    A(f'v_lshl_add_u32 v4, v15, 2, s{sCNT}'); A('ds_read_b32 v5, v4'); A(f'ds_read_b32 v14, v{kOV}'); A('s_waitcnt lgkmcnt(0)')
    A(f'v_readfirstlane_b32 s{sOVF}, v14')
    A('v_add_u32 v5, 7, v5'); A('v_lshrrev_b32 v5, 3, v5'); A('v_mov_b32 v1, v5'); A('s_nop 1')
    for sh in (1,2,4,8):
        A(f'v_add_u32_dpp v1, v1, v1 row_shr:{sh} row_mask:0xf bank_mask:0xf bound_ctrl:0'); A('s_nop 1')
    A('v_add_u32_dpp v1, v1, v1 row_bcast:15 row_mask:0xa bank_mask:0xf'); A('s_nop 1')
    A('v_add_u32_dpp v1, v1, v1 row_bcast:31 row_mask:0xc bank_mask:0xf'); A('s_nop 1')
    A(f'v_readlane_b32 s{sNT}, v1, 63')
    A('v_sub_u32 v1, v1, v5')
    A(f'v_lshlrev_b32 v{T0+4}, 3, v1')
    if not ENV('BPERM'): A(f'ds_write_b32 v4, v{T0+4} offset:256')
    A(f's_cmp_gt_u32 s{sNT}, {CAPG}'); A('s_cbranch_scc1 K2_SPLIT')
    if ENV('BPERM'):
        for k in range(16): A(f'ds_bpermute_b32 v{AD+k}, v{AD+k}, v{T0+4}')
    else:
        nb=lambda ks: [A(f'ds_read_b32 v{AD+k}, v{AD+k} offset:256') for k in ks]
        nb(list(range(8))+B0); guarded('N', nb)
    A(f'v_mul_u32_u24 v{XV}, 22, v15'); A(f'v_mov_b32 v{XV+1}, s{sWAVE}')
    lab('K2_GL')
    A(f'v_cmp_lt_u32 vcc, v{XV+1}, v5'); A('s_and_saveexec_b64 s[84:85], vcc'); A('s_cbranch_execz K2_GLD')
    A(f'v_add_u32 v{XV+2}, v1, v{XV+1}'); A(f'v_lshlrev_b32 v{XV+2}, 1, v{XV+2}'); A(f'v_add_u32 v{XV+2}, {GRP}, v{XV+2}')
    A(f'ds_write_b16 v{XV+2}, v{XV}'); A(f'v_add_u32 v{XV+1}, 8, v{XV+1}')
    A('s_mov_b64 exec, s[84:85]'); A('s_branch K2_GL')
    lab('K2_GLD'); A('s_mov_b64 exec, -1')
    if (not ENV('XEARLY')):
        A(f's_cmp_eq_u32 s{sFIRST}, 1'); A('s_cbranch_scc0 K2_NF3'); A(f'buffer_load_dword v{T0+5}, v{kP2}, s[{X_}:{X_+3}], 0 offen'); lab('K2_NF3')
    A('s_waitcnt lgkmcnt(0)')
    stamp('prefix')
    def slot(ks):
        for k in ks:
            A(f'v_add_u32 v{RK+k}, v{RK+k}, v{AD+k}')
            A(f'v_lshl_add_u32 v{AD+k}, v{RK+k}, 1, s{sXS}')
            A(f'v_lshl_add_u32 v{RK+k}, v{RK+k}, 2, s{sES}')
        for k in ks:
            A(f's_mov_b64 exec, s[{MK+2*k}:{MK+2*k+1}]')
            A(f'ds_write_b16 v{AD+k}, v{EN+k}'); A(f'ds_write_b32 v{RK+k}, v{EW+k}')
        A('s_mov_b64 exec, -1')
    slot(list(range(8))+B0); guarded('S', slot)
    A(f's_add_u32 s{sNT}, s{sNT}, 3'); A(f's_lshr_b32 s{sNT}, s{sNT}, 2')
    A('s_waitcnt vmcnt(12) lgkmcnt(0)' if ENV('EPF') else 's_waitcnt vmcnt(2) lgkmcnt(0)'); A('s_barrier')
    stamp('bar3')
    A(f's_sub_u32 s{XG_}, s{X_}, 4096'); A(f's_subb_u32 s{XG_+1}, s{X_+1}, 0'); A(f's_mov_b32 s{XG_+2}, {N*128+4096}'); A(f's_mov_b32 s{XG_+3}, 0x20000')
    A(f's_mov_b32 s{sTI}, s{sWAVE}')
    A(f's_lshl_b32 s{sT0}, s{sWAVE}, 6'); A(f'v_add_u32 v{aXS}, s{sT0}, v{kXS}')
    A(f's_lshl_b32 s{sT0}, s{sWAVE}, 7'); A(f'v_add_u32 v{aES}, s{sT0}, v{kES}')
    A(f's_lshl_b32 s{sT0}, s{sWAVE}, 3'); A(f'v_add_u32 v{aGRP}, s{sT0}, v{kGRP}')
    A(f'ds_read_b32 v{EI}, v{aES}'); A(f'ds_read2_b32 v[{XI}:{XI+1}], v{aXS} offset0:0 offset1:4'); A(f'ds_read_b32 v{GR[0]}, v{aGRP}')
    for s in range(4): A(f'v_add_u32 v{aAX+s}, s{sX0}, v{kAX+s}')
    A('s_waitcnt lgkmcnt(0)')
    for i in x_dma(sX0)+e_issue(0)+e_flag(0): A(i)
    stamp('dma1')
    A(f's_cmp_eq_u32 s{sFIRST}, 0'); A('s_cbranch_scc1 K2_NG_DONE')
    A(f'v_add_u32 v1, {WSTG}, v{vL16}')
    A(f's_and_b32 s{sT0}, s{sWAVE}, 1'); A(f's_lshl_b32 s{sT0}, s{sT0}, 12'); A(f's_add_u32 s{sT0}, s{sT0}, {OWNX}')
    for s in range(4): A(f'v_add_u32 v{XV+s}, s{sT0}, v{kAX+s}')
    for s in range(4): A(f'ds_read_b128 {q(AX+4*s)}, v{XV+s}')
    for i in range(18): A(f'ds_read_b128 {q(WB+4*i)}, v1 offset:{1024*i}')
    A('s_waitcnt lgkmcnt(0)')
    stamp('wread')
    for s in range(4): A(mf(G0, AX+4*s, NGB+4*s, '0' if s==0 else G0))
    A(f's_and_b32 s{sT0}, s{sWAVE}, 1'); A(f's_lshl_b32 s{sT0}, s{sT0}, 5'); A(f'v_lshrrev_b32 v1, 5, v15'); A(f'v_lshl_add_u32 v1, v1, 2, s{sT0}')
    A(f'v_mul_u32_u24 v1, {RECSZ}, v1')
    A(f's_bfe_u32 s{sT1}, s{sWAVE}, 0x10001')
    A(f's_cmp_ge_u32 s{sWAVE}, 4'); A('s_cbranch_scc1 K2_NG_U')
    A(f's_lshl_b32 s{sT1}, s{sT1}, 7'); A(f'v_add_u32 v1, v1, v{cRA}'); A(f'v_add_u32 v1, s{sT1}, v1')
    A(f's_mov_b32 s{sT2}, 0x{NLOG2E:08x}'); A('s_nop 7')
    for r in range(16):
        A(f'v_mul_f32 v{G0+r}, s{sT2}, v{G0+r}')
        A(f'v_cvt_pk_bf16_f32 v{SD}, v{G0+r}, v{G0+r}'); A(f'v_lshlrev_b32 v{SD}, 16, v{SD}'); A(f'v_sub_f32 v{SN}, v{G0+r}, v{SD}'); A(f'v_cvt_pk_bf16_f32 v{G0+r}, v{SD}, v{SN}')
    def wr_a(r): A(f'ds_write_b32 v1, v{G0+r} offset:{(8*(r//4)+(r%4))*RECSZ}')
    for r in range(8): wr_a(r)
    A(f's_and_b32 s{sT0}, s{sWAVE}, 1'); A(f's_cmp_eq_u32 s{sT0}, 0'); A('s_cbranch_scc0 K2_NG_A1')
    for r in range(8,16): wr_a(r)
    A('s_branch K2_NG_BAR')
    lab('K2_NG_A1')
    A('s_mov_b32 exec_lo, -1'); A('s_mov_b32 exec_hi, 0'); wr_a(8); wr_a(9); A('s_mov_b64 exec, -1'); A('s_branch K2_NG_BAR')
    lab('K2_NG_U')
    A(f's_lshl_b32 s{sT1}, s{sT1}, 6'); A(f'v_and_b32 v{SD}, 31, v15'); A(f'v_lshl_add_u32 v1, v{SD}, 1, v1'); A(f'v_add_u32 v1, s{sT1}, v1'); A(f'v_add_u32 v1, {REC+O_U}, v1')
    A('s_nop 7')
    for r in range(16): A(f'v_cvt_pk_bf16_f32 v{G0+r}, v{G0+r}, v{G0+r}')
    def wr_u(r): A(f'ds_write_b16 v1, v{G0+r} offset:{(8*(r//4)+(r%4))*RECSZ}')
    for r in range(8): wr_u(r)
    A(f's_and_b32 s{sT0}, s{sWAVE}, 1'); A(f's_cmp_eq_u32 s{sT0}, 0'); A('s_cbranch_scc0 K2_NG_U1')
    for r in range(8,16): wr_u(r)
    A('s_branch K2_NG_BAR')
    lab('K2_NG_U1')
    A('s_mov_b32 exec_lo, -1'); A('s_mov_b32 exec_hi, 0'); wr_u(8); wr_u(9); A('s_mov_b64 exec, -1')
    lab('K2_NG_BAR')
    stamp('ngm')
    A('s_waitcnt lgkmcnt(0)'); A('s_barrier')
    lab('K2_NG_DONE')
    stamp('ng')
    A(f's_mov_b32 s{sFIRST}, 0')
    if ENV('BAR'): A(f's_mov_b32 s{sTI}, 0')
    A(f's_cmp_lt_u32 s{sTI}, s{sNT}'); A('s_cbranch_scc0 K2_LOOP_END')
    A(f'ds_read2_b32 v[{XI}:{XI+1}], v{aXS} offset0:{16*STR} offset1:{16*STR+4}'); A(f'ds_read_b32 v{EI}, v{aES} offset:{128*STR}')
    for i in ra_mads(GR[0]): A(i)
    A(f'v_mad_u32_u16 v{RB1}, v{GR[0]}, 64, v{cRB} op_sel:[1,0,0,0]')
    for i in xb_reads(): A(i)
    for r in range(8,16): A(f'v_mov_b32 v{G1+r}, 0'); A(f'v_mov_b32 v{H1+r}, 0')
    A('s_waitcnt lgkmcnt(2)')
    if ENV('XNEAR'):
        for i in e_issue(1)+e_flag(1): A(i)
        A(f'v_add_u32 v{aXS}, {64*STR}, v{aXS}')
        A('s_waitcnt vmcnt(1)')
    else:
        for i in x_dma(sX1)+e_issue(1)+e_flag(1): A(i)
        A(f'v_add_u32 v{aXS}, {128*STR}, v{aXS}')
        A(f'ds_read2_b32 v[{XI}:{XI+1}], v{aXS} offset0:0 offset1:4')
        A('s_waitcnt vmcnt(5)')
    stamp('entw')
    for s in range(4): A(f'ds_read_b128 {q(AX+4*s)}, v{aAX+s}')
    A(f'v_add_u32 v{aXS}, {64*STR}, v{aXS}'); A(f'v_add_u32 v{aES}, {256*STR}, v{aES}'); A(f'v_add_u32 v{aGRP}, {8*STR}, v{aGRP}')
    A('s_waitcnt lgkmcnt(0)')
    for g in gchain(G0,0,0):
        for i in g: A(i)
    A('s_nop 7'); A('s_nop 2')
    stamp('entd')
    if ENV('ALN'):
        L.append('    .balignl 64, 0xBF800000')
        for _ in range(int(ENV('ALN'))): A('s_nop 0')
    lab('K2_LOOP')
    for i in body(0): A(i)
    A(f's_add_u32 s{sTI}, s{sTI}, {STR}'); A(f's_cmp_lt_u32 s{sTI}, s{sNT}'); A('s_cbranch_scc0 K2_TAIL')
    for i in body(1): A(i)
    A(f's_add_u32 s{sTI}, s{sTI}, {STR}'); A(f's_cmp_lt_u32 s{sTI}, s{sNT}'); A('s_cbranch_scc1 K2_LOOP')
    lab('K2_TAIL')
    for i in summ(G1,H1,8,RB1,1): A(i)
    lab('K2_LOOP_END')
    stamp('loop')
    A('s_waitcnt vmcnt(0)')
    A('v_lshrrev_b32 v1, 3, v0'); A('v_and_b32 v2, 7, v0')
    A(f'v_lshlrev_b32 v3, 8, v1'); A(f'v_add_u32 v3, s{sB}, v3'); A('v_lshlrev_b32 v3, 7, v3'); A('v_lshl_add_u32 v3, v2, 4, v3')
    A(f'buffer_load_dwordx4 {q(NGB)}, v3, s[{X_}:{X_+3}], 0 offen')
    A(f'v_mul_u32_u24 v14, {RECSZ}, v1'); A(f'v_add_u32 v14, {REC}, v14'); A(f'v_lshl_add_u32 v{kE5}, v2, 6, v14'); A(f'v_lshl_add_u32 v{kE6}, v2, 4, v14')
    A('s_waitcnt lgkmcnt(0)'); A('s_barrier')
    stamp('bar5')
    A(f's_cmp_eq_u32 s{sMODE}, 1'); A('s_cbranch_scc1 K2_NEXT_SPLIT')
    A(f's_cmp_eq_u32 s{sMODE}, 2'); A('s_cbranch_scc1 K2_NEXT_OVF')
    lab('K2_CHECK_OVF')
    A(f's_cmp_eq_u32 s{sOVF}, 0'); A('s_cbranch_scc1 K2_EPI')
    A(f's_mov_b32 s{sMODE}, 2'); A(f's_mov_b32 s{sOI}, 0'); A(f's_mov_b32 s{sOP}, 0'); A('s_branch K2_OVF_FIND')
    lab('K2_SPLIT')
    A(f's_mov_b32 s{sMODE}, 1'); A(f's_mov_b32 s{sU}, 0')
    A('s_waitcnt lgkmcnt(0)'); A('s_barrier')
    A('s_branch K2_LOADQ')
    lab('K2_NEXT_SPLIT')
    A(f's_add_u32 s{sU}, s{sU}, 1'); A(f's_cmp_ge_u32 s{sU}, 4'); A('s_cbranch_scc1 K2_CHECK_OVF')
    lab('K2_LOADQ')
    A(f's_and_b32 s{sT0}, s{sU}, 1'); A(f's_lshl_b32 s{sT0}, s{sT0}, 7'); A('v_lshrrev_b32 v4, 2, v0'); A(f'v_add_u32 v4, s{sT0}, v4'); A('v_and_b32 v5, 3, v0')
    cell_off_g(CO, 4)
    A('s_waitcnt vmcnt(0)')
    A(f'buffer_load_dwordx4 {q(EN)}, v{CO}, s[12:15], 0 offen')
    for k in range(4,16): A(f'v_mov_b32 v{EN+k}, 0')
    A(f's_cmp_ge_u32 s{sU}, 2'); A('s_cbranch_scc0 K2_LOADQ_A')
    A('s_waitcnt vmcnt(0)')
    A(f'v_mov_b32_dpp v14, v{EN+3} quad_perm:[3,3,3,3] row_mask:0xf bank_mask:0xf'); A('s_nop 0')
    A('v_cmp_ne_u32 vcc, 0, v14')
    for k in range(4): A(f'v_mov_b32 v{EN+k}, 0')
    A('s_mov_b64 exec, vcc'); A('s_cbranch_execz K2_LOADQ_B')
    A(f'buffer_load_dwordx4 {q(EN)}, v{CO}, s[12:15], s{sPB} offen')
    lab('K2_LOADQ_B'); A('s_mov_b64 exec, -1')
    lab('K2_LOADQ_A')
    A('v_mul_u32_u24 v4, 3200, v4'); A(f'v_add_u32 v{EB}, 0x{EFLAG-1:08x}, v4')
    A('s_branch K2_ROUND')
    lab('K2_NEXT_OVF')
    A(f's_add_u32 s{sOP}, s{sOP}, 2048')
    lab('K2_OVF_FIND')
    A(f's_cmp_ge_u32 s{sOI}, s{sOVF}'); A('s_cbranch_scc1 K2_EPI')
    A(f's_lshl_b32 s{sT0}, s{sOI}, 1'); A(f's_add_u32 s{sT0}, s{sT0}, {OVL}'); A(f'v_mov_b32 v14, s{sT0}'); A('ds_read_u16 v14, v14'); A('s_waitcnt lgkmcnt(0)')
    A(f'v_readfirstlane_b32 s{sOC}, v14'); A('s_nop 3')
    A(f's_lshl_b32 s{sT0}, s{sOC}, 2'); A(f's_add_u32 s{sT0}, s{sT0}, {WS_OVFCNT}')
    A(f's_load_dword s{sON}, s[{sWS}:{sWS+1}], s{sT0}'); A('s_waitcnt lgkmcnt(0)')
    A(f's_cmp_gt_u32 s{sON}, s{sOP}'); A('s_cbranch_scc1 K2_OVF_LOAD')
    A(f's_add_u32 s{sOI}, s{sOI}, 1'); A(f's_mov_b32 s{sOP}, 0'); A('s_branch K2_OVF_FIND')
    lab('K2_OVF_LOAD')
    A(f's_mul_i32 s{sT0}, s{sOC}, 25600'); A(f's_add_u32 s{sT0}, s{sT0}, {WS_OVFL}')
    A(f's_add_u32 s24, s{sWS}, s{sT0}'); A(f's_addc_u32 s25, s{sWS+1}, 0'); A(f's_lshl_b32 s26, s{sON}, 3'); A('s_mov_b32 s27, 0x20000')
    A(f'v_add_u32 v1, s{sOP}, v0'); A('v_lshlrev_b32 v1, 3, v1')
    A(f'buffer_load_dwordx2 v[{AX}:{AX+1}], v1, s[24:27], 0 offen')
    for j in range(1,4):
        A(f's_mov_b32 s{sT0}, {4096*j}'); A(f'buffer_load_dwordx2 v[{AX+2*j}:{AX+2*j+1}], v1, s[24:27], s{sT0} offen')
    A('s_waitcnt vmcnt(0)')
    for j in range(4):
        A(f'v_cmp_eq_u32 vcc, s{sB}, v{AX+2*j+1}'); A('s_nop 1'); A(f'v_cndmask_b32 v{EN+j}, 0, v{AX+2*j}, vcc')
    for k in range(4,16): A(f'v_mov_b32 v{EN+k}, 0')
    A(f's_mul_i32 s{sT0}, s{sOC}, 3200'); A(f's_add_u32 s{sT0}, s{sT0}, 0x{EFLAG-1:08x}'); A(f'v_mov_b32 v{EB}, s{sT0}')
    A('s_branch K2_ROUND')
    lab('K2_EPI')
    for i in range(4): A(f'ds_read_b128 {q(48+4*i)}, v{kE5} offset:{O_DEN+16*i}')
    A(f'ds_read_b128 v[36:39], v{kE6} offset:{O_U}')
    for i in range(4): A(f'ds_read_b128 {q(64+4*i)}, v{kE5} offset:{O_NUM+16*i}')
    A('s_mov_b32 s40, 0x358637bd')
    A('s_waitcnt lgkmcnt(5)')
    for i in range(8): A(f'v_cvt_f32_f64 v{20+i}, v[{48+2*i}:{49+2*i}]')
    for i in range(8): A(f'v_add_f32 v{20+i}, s40, v{20+i}')
    for i in range(8): A(f'v_rcp_f32 v{20+i}, v{20+i}')
    A('s_waitcnt lgkmcnt(4)')
    for i in range(4):
        A(f'v_lshlrev_b32 v{40+2*i}, 16, v{36+i}'); A(f'v_and_b32 v{41+2*i}, 0xffff0000, v{36+i}')
    A('s_waitcnt lgkmcnt(0)')
    for i in range(8): A(f'v_cvt_f32_f64 v{28+i}, v[{64+2*i}:{65+2*i}]')
    for i in range(8): A(f'v_fmac_f32 v{40+i}, v{28+i}, v{20+i}')
    for i in range(8): A(f'v_cmp_lt_f32 s[{42+2*i}:{43+2*i}], 0, v{40+i}')
    for i in range(8): A(f'v_mul_f32 v{28+i}, 0, v{40+i}')
    for i in range(8): A(f'v_cndmask_b32 v{28+i}, v{28+i}, v{40+i}, s[{42+2*i}:{43+2*i}]')
    A('s_waitcnt vmcnt(0)')
    for i in range(4):
        A(f'v_lshlrev_b32 v{40+2*i}, 16, v{NGB+i}'); A(f'v_and_b32 v{41+2*i}, 0xffff0000, v{NGB+i}')
    for i in range(8): A(f'v_add_f32 v{28+i}, v{28+i}, v{40+i}')
    for i in range(4): A(f'v_cvt_pk_bf16_f32 v{20+i}, v{28+2*i}, v{29+2*i}')
    A(f"buffer_store_dwordx4 v[20:23], v3, s[{OU_}:{OU_+3}], 0 offen {os.environ.get('OST','sc1')}")
    stamp('end')
    stamp_store()
    lab('K2_END')
    A('s_endpgm')

hdr = f'''; GatedGCN edge-featured message passing (N=12500 nodes, E=800000 edges, D=64, De=16), two launches.
;
;
; @launch kernel=gcn_sort_kernel grid=({K1_GRID},1,1) block=(1024,1,1) lds={K1_LDS}
; @launch kernel=standalone__edge_featured_mpnn_gatedgcn__graph_kernel grid=(256,1,1) block=(512,1,1) lds={LDS_END}
.amdgcn_target "amdgcn-amd-amdhsa--gfx950"
.text
'''
def kd(name, nv, ns):
    return f'''.p2align 6
.amdhsa_kernel {name}
  .amdhsa_next_free_vgpr {nv}
  .amdhsa_next_free_sgpr {ns}
  .amdhsa_accum_offset {(nv+3)//4*4}
  .amdhsa_group_segment_fixed_size 0
  .amdhsa_kernarg_size 96
  .amdhsa_user_sgpr_count 2
  .amdhsa_user_sgpr_kernarg_segment_ptr 1
  .amdhsa_system_sgpr_workgroup_id_x 1
.end_amdhsa_kernel
'''
out=[hdr]
out.append('.globl gcn_sort_kernel\n.p2align 8\n.type gcn_sort_kernel,@function')
k1(); out+=L; L=[]
out.append('.globl standalone__edge_featured_mpnn_gatedgcn__graph_kernel\n.p2align 8\n.type standalone__edge_featured_mpnn_gatedgcn__graph_kernel,@function')
k2(); out+=L
out.append('.section .rodata,"a"')
out.append(kd('gcn_sort_kernel', 40, 72))
out.append(kd('standalone__edge_featured_mpnn_gatedgcn__graph_kernel', NVGPR, 102 if STAMPS else 96))
open(sys.argv[1] if len(sys.argv)>1 else 'out.s','w').write('\n'.join(out)+'\n')
print('LDS_END',LDS_END)
```
